```python
import torch

def _softmax(x, axis=-1):
    return torch.softmax(x, dim=axis)
def _gelu(x):
    return torch.nn.functional.gelu(x, approximate="tanh")
def _silu(x):
    return torch.nn.functional.silu(x)
def _sigmoid(x):
    return torch.sigmoid(x)
def _layernorm(x, axis=-1, eps=1e-5):
    m = x.mean(dim=axis, keepdim=True)
    v = x.var(dim=axis, keepdim=True, unbiased=False)
    return (x - m) / torch.sqrt(v + eps)
def _scatter_add(tgt, idx, src, axis=0):
    return tgt.clone().index_add_(axis, idx, src)
def _segment_sum(src, seg, n):
    out = torch.zeros((n,) + src.shape[1:], dtype=src.dtype)
    return out.index_add_(0, seg, src)
def _pad(x, pw):
    flat = tuple(v for pair in reversed(pw) for v in pair)
    return torch.nn.functional.pad(x, flat)

kernel_name = 'sequential_preLN__mha_block_cached__glu_gated_glu__decode'

def setup_inputs():

    _w = (lambda a: (lambda t: t.to(torch.bfloat16) if t.is_floating_point() else t)(torch.as_tensor(a)))
    def _A_setup():
        B, Sq, D = 1, 1, 512
        H, Sk, Dh = 32, 4096, 128
        return {
            "x": _w((lambda *s: torch.randn(*s, dtype=torch.bfloat16) * 0.1)(B, Sq, D)),
            "k_cache": _w((lambda *s: torch.randn(*s, dtype=torch.bfloat16) * 0.8)(B, H, Sk, Dh)),
            "v_cache": _w((lambda *s: torch.randn(*s, dtype=torch.bfloat16) * 1.6)(B, H, Sk, Dh)),
            "wq": _w((lambda *s: torch.randn(*s, dtype=torch.bfloat16) * 0.8)(D, H * Dh) * (D ** -0.5)),
            "wo": _w((lambda *s: torch.randn(*s, dtype=torch.bfloat16) * 1.6)(H * Dh, D) * ((H * Dh) ** -0.5)),
        }
    _A_in = _A_setup()

    def _B_setup():
        B, S, D, F = 1, 1, 512, 1376
        return {
            "x": _w((lambda *s: torch.randn(*s, dtype=torch.bfloat16) * 0.1)(B, S, D)),
            "w_gate": _w((lambda *s: torch.randn(*s, dtype=torch.bfloat16) * 3.2)(D, F)),
            "w_up": _w((lambda *s: torch.randn(*s, dtype=torch.bfloat16) * 0.2)(D, F)),
            "w_down": _w((lambda *s: torch.randn(*s, dtype=torch.bfloat16) * 0.2)(F, D)),
        }
    _B_in = _B_setup()

    return {
        "A_x": _A_in["x"],
        "A_k_cache": _A_in["k_cache"],
        "A_v_cache": _A_in["v_cache"],
        "A_wq": _A_in["wq"],
        "A_wo": _A_in["wo"],
        "B_x": _B_in["x"],
        "B_w_gate": _B_in["w_gate"],
        "B_w_up": _B_in["w_up"],
        "B_w_down": _B_in["w_down"],
    }

def reference(A_x, A_k_cache, A_v_cache, A_wq, A_wo, B_x, B_w_gate, B_w_up, B_w_down):
    def _A_ref(x, k_cache, v_cache, wq, wo):
        B, Sq, D = x.shape
        H, Dh = 32, 128
        q = (lambda x, *d: x.permute(*d))((x @ wq).reshape(B, Sq, H, Dh), 0, 2, 1, 3)
        scores = torch.einsum("bhqd,bhkd->bhqk", q, k_cache) * (Dh ** -0.5)
        p = _softmax(scores, axis=-1)
        o = torch.einsum("bhqk,bhkd->bhqd", p, v_cache)
        return (lambda x, *d: x.permute(*d))(o, 0, 2, 1, 3).reshape(B, Sq, H * Dh) @ wo

    def _B_ref(x, w_gate, w_up, w_down):
        g = torch.einsum("bsd,df->bsf", x, w_gate)
        u = torch.einsum("bsd,df->bsf", x, w_up)
        h = _sigmoid(g) * u
        return torch.einsum("bsf,fd->bsd", h, w_down)

    x = A_x
    h = x + _A_ref(_layernorm(x, axis=-1), A_k_cache, A_v_cache, A_wq, A_wo)
    h2 = h + _B_ref(_layernorm(h, axis=-1), B_w_gate, B_w_up, B_w_down)
    return h2
```

```python
import re

def _regs(tok):
    tok = tok.strip()
    tok = tok.lstrip('-')
    m = re.fullmatch(r'abs\((.*)\)', tok)
    if m: tok = m.group(1)
    m = re.fullmatch(r'\|(.*)\|', tok)
    if m: tok = m.group(1)
    m = re.fullmatch(r'([vsa])(\d+)', tok)
    if m: return [(m.group(1), int(m.group(2)))]
    m = re.fullmatch(r'([vsa])\[(\d+):(\d+)\]', tok)
    if m: return [(m.group(1), i) for i in range(int(m.group(2)), int(m.group(3)) + 1)]
    if tok == 'vcc': return [('s', 'vcc')]
    if tok == 'exec': return [('s', 'exec')]
    if tok == 'm0': return [('s', 'm0')]
    return []

TRANS = ('v_exp_f32', 'v_log_f32', 'v_rcp_f32', 'v_rsq_f32', 'v_sqrt_f32', 'v_sin_f32', 'v_cos_f32')

class Ins:
    def __init__(self, text):
        self.text = text
        t = text.split(';')[0].strip()
        self.label = t.endswith(':')
        self.directive = t.startswith('.')
        self.empty = (t == '')
        self.w = set(); self.r = set(); self.kind = None; self.srcC = set(); self.srcAB = set()
        self.dpp = False; self.dppsrc = set(); self.states = 1; self.op = ''; self.storedata = set(); self.lanesel = set()
        if self.label or self.directive or self.empty:
            self.states = 0
            return
        parts = t.split(None, 1)
        op = parts[0]; self.op = op
        rest = parts[1] if len(parts) > 1 else ''
        ops = [o.strip() for o in rest.split(',')] if rest else []
        mods = ''
        if ops:
            last = ops[-1].split()
        m = re.search(r'\s(quad_perm|row_|bank_mask|offset|offen|idxen|sc0|sc1|nt\b|lds\b|dst_sel|src0_sel|src1_sel|op_sel|neg_|clamp|mul:|div:|bitop3|cbsz|off\b)', ' ' + rest)
        if m and not op.startswith('s_'):
            cut = m.start()
            mods = (' ' + rest)[cut:]
            rest2 = (' ' + rest)[:cut]
            ops = [o.strip() for o in rest2.split(',') if o.strip()]
        self.mods = mods
        base = re.sub(r'_(e32|e64|dpp|sdwa)$', '', op)
        self.base = base
        R = [_regs(o) for o in ops]
        if op == 's_nop':
            self.kind = 'salu'; self.states = int(ops[0], 0) + 1; return
        if op.startswith('s_'):
            self.kind = 'salu'
            if op.startswith(('s_cmp', 's_cbranch', 's_branch', 's_waitcnt', 's_barrier', 's_endpgm', 's_setprio', 's_sleep', 's_bitcmp')):
                for x in R: self.r.update(x)
            else:
                if R: self.w.update(R[0])
                for x in R[1:]: self.r.update(x)
                if 'saveexec' in op: self.w.add(('s', 'exec'))
            return
        if op.startswith('v_mfma'):
            self.kind = 'mfma'
            self.w.update(R[0]); self.srcAB.update(R[1]); self.srcAB.update(R[2]); self.srcC.update(R[3] if len(R) > 3 else [])
            self.r = self.srcAB | self.srcC
            self.passes = 4 if '16x16x32' in op or '16x16x16' in op else 8
            return
        if op.startswith('v_'):
            self.kind = 'valu'
            self.dpp = ('_dpp' in op) or ('row_' in mods) or ('quad_perm' in mods)
            if base.startswith('v_cmp'):
                self.w.update(R[0])
                for x in R[1:]: self.r.update(x)
            elif base in ('v_readfirstlane_b32', 'v_readlane_b32'):
                self.w.update(R[0]); self.r.update(R[1])
                if len(R) > 2: self.lanesel.update(R[2]); self.r.update(R[2])
            elif base.startswith('v_permlane') and 'swap' in base:
                self.w.update(R[0]); self.w.update(R[1]); self.r.update(R[0]); self.r.update(R[1])
            elif base in ('v_add_co_u32', 'v_sub_co_u32', 'v_addc_co_u32'):
                self.w.update(R[0]); self.w.update(R[1])
                for x in R[2:]: self.r.update(x)
            else:
                self.w.update(R[0])
                for x in R[1:]: self.r.update(x)
                if base in ('v_fmac_f32', 'v_dot2c_f32_bf16', 'v_mac_f32') or self.dpp:
                    self.r.update(R[0])
                if base == 'v_cndmask_b32' and len(R) == 3: self.r.add(('s', 'vcc'))
            if self.dpp and len(R) > 1: self.dppsrc.update(R[1])
            self.trans = base in TRANS
            self.dot = base.startswith('v_dot')
            return
        if op.startswith('ds_'):
            self.kind = 'ds'
            if op.startswith(('ds_read', 'ds_bpermute', 'ds_swizzle')) or '_rtn' in op:
                self.w.update(R[0])
                for x in R[1:]: self.r.update(x)
            else:
                for x in R: self.r.update(x)
            return
        if op.startswith(('buffer_', 'global_')):
            self.kind = 'vmem'
            if 'load' in op and ' lds' not in (' ' + mods) and 'load_lds' not in op:
                self.w.update(R[0])
                for x in R[1:]: self.r.update(x)
            else:
                for x in R: self.r.update(x)
                if 'store' in op and ('x3' in op or 'x4' in op):
                    self.storedata.update(R[0] if op.startswith('buffer_') else R[1])
                if ' lds' in (' ' + mods) or 'load_lds' in op: self.r.add(('s', 'm0')); self.ldsdma = True
            return
        raise ValueError('unknown instruction: ' + text)

def need(p, c):
    n = 0
    vw = {x for x in p.w if x[0] in 'va'}
    sw = {x for x in p.w if x[0] == 's'}
    if p.kind == 'valu':
        if c.kind == 'valu':
            if c.dpp and (vw & c.dppsrc): n = max(n, 2)
            if c.dpp and ('s', 'exec') in sw: n = max(n, 5)
            if c.base.startswith('v_permlane') and (vw & c.r): n = max(n, 2)
            if c.base in ('v_readfirstlane_b32', 'v_readlane_b32') and (vw & c.r): n = max(n, 1)
            if sw & c.lanesel: n = max(n, 4)
            if sw & c.r: n = max(n, 2)
            if p.trans and not c.trans and (vw & c.r): n = max(n, 1)
            if p.dot:
                if c.base == p.base:
                    ops = c.r - c.w if c.base == 'v_dot2c_f32_bf16' else None
                    if c.base == 'v_dot2c_f32_bf16':
                        if vw & (c.r - c.w): n = max(n, 3)
                    else:
                        t = c.text.split(';')[0].split(None, 1)[1].split(',')
                        ab = set(_regs(t[1])) | set(_regs(t[2]))
                        if vw & ab: n = max(n, 3)
                elif vw & (c.r | c.w): n = max(n, 3)
        if c.kind == 'mfma':
            if vw & c.r: n = max(n, 3 if p.dot else 2)
            if ('s', 'exec') in sw: n = max(n, 4)
        if c.kind == 'vmem':
            if sw & c.r: n = max(n, 5)
            if p.dot and (vw & c.r): n = max(n, 3)
            if p.trans and (vw & c.r): n = max(n, 1)
        if c.kind == 'ds':
            if p.dot and (vw & c.r): n = max(n, 3)
            if p.trans and (vw & c.r): n = max(n, 1)
        if c.kind == 'salu' and (sw & c.r) and not c.op.startswith('s_cbranch'):
            n = max(n, 1)
    if p.kind == 'mfma':
        big = {4: 8, 8: 12}[p.passes]
        if c.kind == 'mfma':
            if vw & c.srcAB: n = max(n, big)
            if vw & c.srcC and not (vw == c.srcC and c.passes == p.passes): n = max(n, {4: 6, 8: 10}[p.passes])
            if (vw & c.w) and not (vw == c.srcC): n = max(n, {4: 6, 8: 10}[p.passes])
        elif c.kind in ('valu', 'ds', 'vmem'):
            if vw & (c.r | c.w): n = max(n, big)
            if c.kind == 'valu' and (p.srcC & c.w): n = max(n, {4: 3, 8: 7}[p.passes])
    if p.kind == 'vmem' and p.storedata:
        if c.kind == 'valu' and (p.storedata & c.w): n = max(n, 2)
        elif c.kind in ('ds', 'vmem', 'mfma') and (p.storedata & c.w): n = max(n, 1)
    if p.kind == 'salu' and ('s', 'm0') in p.w and c.kind == 'vmem' and getattr(c, 'ldsdma', False): n = max(n, 1)
    return n

def fix_hazards(lines, window=24):
    out = []
    for text in lines:
        ins = Ins(text)
        if ins.states:
            req = 0; dist = 0
            for p in reversed(out[-window * 2:]):
                if p.states == 0: continue
                if p.op in ('s_branch', 's_endpgm'): break
                k = need(p, ins) - dist
                req = max(req, k)
                dist += p.states
                if dist > 20: break
            while req > 0:
                k = min(req, 16)
                out.append(Ins(f's_nop {k-1}')); req -= k
        out.append(ins)
    labels = {i.text.split(';')[0].strip()[:-1]: n for n, i in enumerate(out) if i.label}
    problems = []
    for n, ins in enumerate(out):
        if ins.op.startswith(('s_cbranch', 's_branch')):
            tgt = ins.text.split(';')[0].split()[1]
            if tgt not in labels: continue
            after = [x for x in out[labels[tgt]:labels[tgt] + 40] if x.states]
            before = [x for x in out[max(0, n - 40):n + 1] if x.states]
            d2 = 0
            for c in after:
                dist = d2
                for p in reversed(before):
                    if p is not ins and p.op in ('s_branch', 's_endpgm'): break
                    if need(p, c) > dist:
                        problems.append(f'branch {ins.text.strip()} : {p.text.strip()} -> {c.text.strip()} needs {need(p,c)} has {dist}')
                    dist += p.states
                    if dist > 20: break
                d2 += c.states
                if d2 > 20 or c.op in ('s_branch', 's_endpgm'): break
    return [i.text for i in out], problems
```

```python
import sys, struct
from asmlib import fix_hazards

NAME = "sequential_preLN__mha_block_cached__glu_gated_glu__decode"
opt = dict(stamps=0, nv1=12, trigz="c2", trigm="c1", pat="B2", kvfl="nt", wqfl="nt", wofl="nt", gufl="nt", wdfl="nt",
           fast=1, pf=1, spin=200000)
for a in sys.argv[2:]:
    k, v = a.split("=")
    opt[k] = v if not v.lstrip("-").isdigit() else int(v)
STAMPS = opt["stamps"]
NV1 = opt["nv1"]


def fl(name):
    v = opt[name]
    return "" if v == "plain" else " " + v.replace("+", " ")


def f32(x):
    return "0x%08x" % struct.unpack("<I", struct.pack("<f", x))[0]


QS, OS, ST, ZS, PS, STAMP = 0x0, 0x20000, 0x40000, 0x41000, 0x48000, 0x80000
NMLP = 86
QL, MX, LACC, SQ, OACC, ZACC, SCR, WIMG = 0, 256, 260, 272, 512, 1024, 2048, 4096
CQ, C1, C2, C3, CCLR, FAST = 280, 284, 288, 292, 296, 300
LDS_BYTES = WIMG + 4 * 8192
pX, pK, pV, pWQ, pWO, pWG, pWU, pWD, pOUT, pDBG, pWS = 4, 6, 8, 10, 12, 16, 18, 20, 22, 24, 26
rA, rB, rWS, rDBG, rC, rD = 28, 32, 36, 40, 44, 48
sXG, sI, sSLOT, sR, sT0, sT1, sCNT, sFAST = 52, 53, 54, 55, 56, 57, 58, 59
sM1, sM0, sC2, sHI = 60, 62, 66, 67
sOFF = 68
sST = 84

L = []


def A(s):
    for line in s.split("\n"):
        line = line.strip()
        if line:
            L.append(line)


def srd(r, p, size, add=None):
    if add is None:
        A(f"s_mov_b32 s{r}, s{p}\ns_mov_b32 s{r+1}, s{p+1}")
    else:
        A(f"s_add_u32 s{r}, s{p}, {add}\ns_addc_u32 s{r+1}, s{p+1}, 0")
    A(f"s_mov_b32 s{r+2}, {hex(size)}\ns_mov_b32 s{r+3}, 0x20000")


def R(r):
    return f"s[{r}:{r+3}]"


def V(a, n):
    return f"v[{a}:{a+n-1}]"


def st(k):
    if STAMPS:
        A(f"s_memrealtime s[{sST+2*k}:{sST+2*k+1}]")


def end_wave():
    if STAMPS:
        A("s_branch L_stamps")
    else:
        A("s_endpgm")


DPP = "row_mask:0xf bank_mask:0xf"


def row_allreduce(op, a):
    for n in (8, 4, 2, 1):
        A(f"{op}_dpp v{a}, v{a}, v{a} row_ror:{n} {DPP}")


def wave_allreduce_add(a, t):
    row_allreduce("v_add_f32", a)
    for sw in ("v_permlane16_swap_b32", "v_permlane32_swap_b32"):
        A(f"v_mov_b32 v{t}, v{a}\n{sw} v{a}, v{t}\nv_add_f32 v{a}, v{a}, v{t}")


uid = [0]


def poll(loads, regs, tmp, between=None, nwait=0):
    uid[0] += 1
    u = uid[0]
    loads()
    if between:
        between()
    A(f"s_mov_b32 s{sCNT}, {opt['spin']}")
    A(f"L_poll{u}:")
    A("s_waitcnt vmcnt(0)")
    rs = list(regs)
    A(f"v_max3_u32 v{tmp}, v{rs[0]}, v{rs[1]}, v{rs[2]}")
    rs = rs[3:]
    while len(rs) >= 2:
        A(f"v_max3_u32 v{tmp}, v{tmp}, v{rs[0]}, v{rs[1]}")
        rs = rs[2:]
    if rs:
        A(f"v_max_u32 v{tmp}, v{tmp}, v{rs[0]}")
    A(f"v_cmp_eq_u32 vcc, -1, v{tmp}")
    A(f"s_cbranch_vccz L_ok{u}")
    A(f"s_sub_u32 s{sCNT}, s{sCNT}, 1\ns_cbranch_scc1 L_ok{u}")
    loads()
    A(f"s_branch L_poll{u}")
    A(f"L_ok{u}:")


def flags_wait(vaddr, vdat, tmp, issued):
    uid[0] += 1
    u = uid[0]
    ld = f"buffer_load_dword v{vdat}, v{vaddr}, {R(rDBG)}, 0 offen sc1"
    if not issued:
        A(ld)
        A("s_waitcnt vmcnt(0)")
    A(f"s_mov_b32 s{sCNT}, {opt['spin']}")
    A(f"L_fl{u}:")
    A(f"v_add_u32 v{tmp}, 0x7f7f7f7f, v{vdat}\nv_and_b32 v{tmp}, 0x80808080, v{tmp}")
    A(f"v_cmp_ne_u32 vcc, 0x80808080, v{tmp}")
    A(f"s_cbranch_vccz L_flok{u}")
    A(f"s_sub_u32 s{sCNT}, s{sCNT}, 1\ns_cbranch_scc1 L_flok{u}")
    A(ld)
    A("s_waitcnt vmcnt(0)")
    A(f"s_branch L_fl{u}")
    A(f"L_flok{u}:")


def spin(vaddr, off, n, tmp, extra=None, sleep=1):
    uid[0] += 1
    u = uid[0]
    A(f"L_spin{u}:")
    A(f"ds_read_b32 v{tmp}, v{vaddr} offset:{off}")
    if extra:
        A(extra)
    A("s_waitcnt lgkmcnt(0)")
    A(f"v_readfirstlane_b32 s{sT0}, v{tmp}")
    A(f"s_cmp_ge_u32 s{sT0}, {n}\ns_cbranch_scc1 L_spun{u}")
    if sleep:
        A(f"s_sleep {sleep}")
    A(f"s_branch L_spin{u}")
    A(f"L_spun{u}:")


def store_fs(instr):
    uid[0] += 1
    u = uid[0]
    if not opt["fast"]:
        A(instr + " sc1")
        return
    A(f"s_cmp_eq_u32 s{sFAST}, 0\ns_cbranch_scc1 L_slow{u}")
    A(instr)
    A(f"s_branch L_sdone{u}")
    A(f"L_slow{u}:")
    A(instr + " sc1")
    A(f"L_sdone{u}:")


hdr = open("cdna_kernels/" + NAME + ".s.ref").read().split("\n")
head_comments = [l for l in hdr if l.startswith(";") and "@launch" not in l and "Override" not in l and "grid=ceil" not in l]
out = list(head_comments)
out.append(f"; @launch grid=(256,1,1) block=(768,1,1) lds={LDS_BYTES}")
out.append('.amdgcn_target "amdgcn-amd-amdhsa--gfx950"')
out.append(".text")
out.append(f".globl {NAME}_kernel")
out.append(".p2align 8")
out.append(f".type {NAME}_kernel,@function")
out.append(f"{NAME}_kernel:")

A("L_start:")
A("s_cmp_ge_u32 s2, 256\ns_cbranch_scc1 L_exit")
A("s_load_dwordx16 s[4:19], s[0:1], 0\ns_load_dwordx8 s[20:27], s[0:1], 64")
if STAMPS:
    for k in range(8):
        A(f"s_mov_b32 s{sST+2*k}, 0")
st(0)
A("v_lshrrev_b32 v1, 6, v0\nv_and_b32 v0, 63, v0\nv_readfirstlane_b32 s3, v1")
A(f"s_and_b32 s{sXG}, s2, 7\ns_lshr_b32 s{sI}, s2, 3\ns_lshl_b32 s{sSLOT}, s{sXG}, 5\ns_add_u32 s{sSLOT}, s{sSLOT}, s{sI}")
A("v_lshlrev_b32 v8, 4, v0")
if opt["pf"]:
    A("s_cmp_eq_u32 s3, 1\ns_cbranch_scc0 L_pf_done")
    A(f"s_getpc_b64 s[{rA}:{rA+1}]")
    A("L_pc:")
    A(f"s_sub_u32 s{rA}, s{rA}, L_pc-L_start\ns_subb_u32 s{rA+1}, s{rA+1}, 0")
    A(f"s_and_b32 s{sT0}, s{sI}, 15\ns_lshl_b32 s{sT0}, s{sT0}, 10\nv_add_u32 v1, s{sT0}, v8")
    A("v_min_u32 v1, (L_last-L_start-16)&0xfffffff0, v1")
    A(f"global_load_dwordx4 v[160:163], v1, s[{rA}:{rA+1}]")
    A("L_pf_done:")
A("v_mov_b32 v4, 0\nv_mov_b32 v5, 0\nv_mov_b32 v6, 0\nv_mov_b32 v7, 0")
A(f"s_mov_b32 s{sT0}, 0xff800000\nv_writelane_b32 v4, s{sT0}, 0")
A(f"ds_write_b128 v8, v[4:7] offset:{MX}")
for i in range(16):
    A(f"s_mov_b32 s{sOFF+i}, {i*(8192 if opt['pat']=='B' else 4096)}")
A(f"s_mov_b32 s{sHI}, 0xffff0000")
KR, VR = 40, 104
A(f"s_sub_u32 s{sT0}, s3, 4")
if opt["pat"] == "B2":
    A(f"s_lshr_b32 s{sT1}, s{sT0}, 2\ns_lshl_b32 s{sT1}, s{sT1}, 16\ns_and_b32 s{sT0}, s{sT0}, 3\ns_lshl_b32 s{sT0}, s{sT0}, 10\ns_add_u32 s{sT0}, s{sT0}, s{sT1}")
    koff = lambda i: (f"s{sOFF+i}", 0)
elif opt["pat"] == "A":
    A(f"s_lshl_b32 s{sT0}, s{sT0}, 14")
    koff = lambda i: (f"s{sOFF+i//4}", (i % 4) * 1024)
elif opt["pat"] == "B":
    A(f"s_lshl_b32 s{sT0}, s{sT0}, 10")
    koff = lambda i: (f"s{sOFF+i}", 0)
A(f"s_lshl_b32 s{sT1}, s{sSLOT}, 17\ns_add_u32 s{sT0}, s{sT0}, s{sT1}")
A(f"v_add_u32 v1, s{sT0}, v8")
A(f"s_and_b32 s{sT0}, s{sSLOT}, 7\ns_lshl_b32 s{sT0}, s{sT0}, 6")
A(f"v_lshrrev_b32 v2, 4, v0\nv_lshl_add_u32 v2, v2, 4, s{sT0}\nv_lshlrev_b32 v3, 1, v2")
A(f"s_lshr_b32 s{sT0}, s{sSLOT}, 3\ns_lshl_b32 s{sT0}, s{sT0}, 8")
A(f"v_lshlrev_b32 v2, 13, v2\nv_and_b32 v9, 15, v0\nv_lshl_add_u32 v2, v9, 4, v2\nv_add_u32 v2, s{sT0}, v2")
A(f"v_mov_b32 v33, {MX}")
A("s_waitcnt lgkmcnt(0)")
srd(rD, pX, 1024)
srd(rC, pWQ, 0x400000)
srd(rA, pK, 0x2000000)
srd(rB, pV, 0x2000000)
A("s_barrier")
A("s_cmp_lg_u32 s3, 0\ns_cbranch_scc1 L_not0")
A(f"buffer_load_dwordx4 v[104:107], v8, {R(rD)}, 0 offen")
A(f"buffer_load_dwordx4 v[12:15], v3, {R(rD)}, 0 offen")
A(f"buffer_load_dwordx4 v[16:19], v3, {R(rD)}, 0 offen offset:16")
for t in range(16):
    A(f"s_mov_b32 s{sT1}, {t*8192}")
    A(f"buffer_load_dwordx4 {V(40+4*t,4)}, v2, {R(rC)}, s{sT1} offen{fl('wqfl')}")
A("s_branch L_helper")
A("L_not0:")
A("s_cmp_lt_u32 s3, 4\ns_cbranch_scc1 L_helper")


def kvload(base, i, r):
    so, io = koff(i)
    o = f" offset:{io}" if io else ""
    A(f"buffer_load_dwordx4 {V(base+4*i,4)}, v1, {R(r)}, {so} offen{o}{fl('kvfl')}")


for i in range(16):
    kvload(KR, i, rA)
for i in range(NV1):
    kvload(VR, i, rB)
st(1)
srd(rWS, pWS, 0x10000000)
A("""v_bfe_u32 v10, v0, 3, 1
v_mul_u32_u24 v10, 0x202, v10
v_add_u32 v10, 0x100, v10
v_and_b32 v11, 1, v0
v_lshlrev_b32 v11, 4, v11
v_lshlrev_b32 v10, v11, v10
v_mov_b32 v12, 0x0c0c0000
v_lshrrev_b32 v12, v11, v12
v_or_b32 v10, v10, v12
v_bfe_u32 v11, v0, 1, 2
v_mov_b32 v12, 0x0c0c0c0c""")
for i in range(4):
    A(f"v_cmp_eq_u32 vcc, {i}, v11\nv_cndmask_b32 v{6+i}, v12, v10, vcc")
A(f"s_mov_b32 s{sM1}, 0xcccccccc\ns_mov_b32 s{sM1+1}, 0xcccccccc\ns_mov_b32 s{sM0}, 0xaaaaaaaa\ns_mov_b32 s{sM0+1}, 0xaaaaaaaa")
A(f"s_mov_b32 s{sC2}, {f32(128 ** -0.5 * 1.4426950408889634)}")
A("v_and_b32 v32, 15, v0\nv_lshlrev_b32 v32, 4, v32")
A(f"v_lshrrev_b32 v34, 4, v0\nv_lshlrev_b32 v34, 5, v34\nv_and_b32 v35, 7, v0\nv_lshl_add_u32 v34, v35, 2, v34")
A(f"v_bfe_u32 v35, v0, 2, 2\nv_lshlrev_b32 v35, 7, v35\nv_lshrrev_b32 v36, 4, v0\nv_lshl_add_u32 v35, v36, 5, v35\nv_and_b32 v36, 3, v0\nv_lshl_add_u32 v35, v36, 3, v35")
A(f"s_lshl_b32 s{sT0}, s{sSLOT}, 9\ns_add_u32 s{sT0}, s{sT0}, {OS}\nv_lshl_add_u32 v36, v0, 3, s{sT0}")
A(f"s_lshl_b32 s{sT0}, s{sSLOT}, 3\ns_add_u32 s{sT0}, s{sT0}, {ST}\nv_mov_b32 v37, s{sT0}")
A("v_mov_b32 v39, 1")
spin(33, CQ - MX, 1, 10, f"ds_read_b128 v[2:5], v32 offset:{QL}\nds_read_b32 v38, v33 offset:{FAST-MX}", sleep=2)
st(2)
A(f"v_readfirstlane_b32 s{sFAST}, v38")
A(f"s_waitcnt vmcnt({NV1})")
for j in range(4):
    for i in range(16):
        c = "0" if j == 0 else f"v{10+i}"
        A(f"v_dot2_f32_bf16 v{10+i}, v{KR+4*i+j}, v{2+j}, {c}")
for i in range(8):
    A(f"v_add_f32_dpp v{10+i}, v{10+i}, v{10+i} row_ror:8 row_mask:0xf bank_mask:0x3")
    A(f"v_add_f32_dpp v{10+i}, v{18+i}, v{18+i} row_ror:8 row_mask:0xf bank_mask:0xc")
for i in range(4):
    A(f"v_add_f32_dpp v{10+i}, v{10+i}, v{10+i} row_ror:12 row_mask:0xf bank_mask:0x5")
    A(f"v_add_f32_dpp v{10+i}, v{14+i}, v{14+i} row_ror:4 row_mask:0xf bank_mask:0xa")
for i in range(4):
    A(f"v_add_f32_dpp v{10+i}, v{10+i}, v{10+i} quad_perm:[2,3,0,1] {DPP}")
for i in range(2):
    A(f"v_cndmask_b32 v{10+i}, v{10+i}, v{12+i}, s[{sM1}:{sM1+1}]")
for i in range(2):
    A(f"v_add_f32_dpp v{10+i}, v{10+i}, v{10+i} quad_perm:[1,0,3,2] {DPP}")
A(f"v_cndmask_b32 v10, v10, v11, s[{sM0}:{sM0+1}]")
A(f"v_mul_f32 v10, s{sC2}, v10")
A(f"v_max_f32_dpp v11, v10, v10 row_ror:8 {DPP}")
for n in (4, 2, 1):
    A(f"v_max_f32_dpp v11, v11, v11 row_ror:{n} {DPP}")
for sw in ("v_permlane16_swap_b32", "v_permlane32_swap_b32"):
    A(f"v_mov_b32 v12, v11\n{sw} v11, v12\nv_max_f32 v11, v11, v12")
A("s_mov_b64 exec, 1")
A(f"ds_max_f32 v33, v11\nds_add_u32 v33, v39 offset:{C1-MX}")
A("s_mov_b64 exec, -1")
st(3)
A("v_sub_f32 v10, v10, v11\nv_exp_f32 v10, v10")
A("v_cvt_pk_bf16_f32 v13, v10, v10\nv_lshlrev_b32 v13, 16, v13\nv_sub_f32 v13, v10, v13\nv_cvt_pk_bf16_f32 v13, v10, v13")
for t in range(16):
    A(f"v_mov_b32_dpp v{14+t%4}, v13 row_newbcast:{t} {DPP}")
    if t >= 1:
        for i in range(4):
            A(f"v_perm_b32 v{KR+4*(t-1)+i}, v{14+(t-1)%4}, v{14+(t-1)%4}, v{6+i}")
for i in range(4):
    A(f"v_perm_b32 v{KR+60+i}, v{14+15%4}, v{14+15%4}, v{6+i}")
for i in range(NV1, 16):
    kvload(VR, i, rB)
row_allreduce("v_add_f32", 10)
spin(33, C1 - MX, 8, 12, "ds_read_b32 v13, v33", sleep=2)
A("v_sub_f32 v11, v11, v13\nv_exp_f32 v11, v11")
A("v_mul_f32 v10, v10, v11")
A("s_mov_b32 exec_lo, 0x00010001\ns_mov_b32 exec_hi, 0x00010001")
A(f"ds_add_f32 v33, v10 offset:{LACC-MX}")
A("s_mov_b64 exec, 1")
A(f"ds_add_u32 v33, v39 offset:{C2-MX}")
A("s_mov_b64 exec, -1")
st(4)
for t in range(16):
    A(f"s_waitcnt vmcnt({15-t})")
    c = "0" if t == 0 else "v[28:31]"
    A(f"v_mfma_f32_16x16x32_bf16 v[28:31], {V(VR+4*t,4)}, {V(KR+4*t,4)}, {c}")
st(5)
for i in range(4):
    A(f"v_mul_f32 v{28+i}, v{28+i}, v11")
for i in range(4):
    A(f"ds_add_f32 v34, v{28+i} offset:{OACC+128*i}")
A("s_mov_b64 exec, 1")
A(f"ds_add_rtn_u32 v12, v33, v39 offset:{C3-MX}")
A("s_mov_b64 exec, -1")
A(f"ds_read_b64 v[18:19], v35 offset:{OACC}\ns_waitcnt lgkmcnt(0)")
A(f"v_readfirstlane_b32 s{sT0}, v12")
A(f"s_cmp_lg_u32 s{sT0}, 7\ns_cbranch_scc1 L_kv_notlast")
store_fs(f"buffer_store_dwordx2 v[18:19], v36, {R(rWS)}, 0 offen")
st(6)
A("L_kv_notlast:")
A("s_cmp_lg_u32 s3, 4\ns_cbranch_scc1 L_kv_end")
spin(33, C2 - MX, 8, 12, "ds_read_b64 v[20:21], v33")
A("s_mov_b64 exec, 1")
store_fs(f"buffer_store_dwordx2 v[20:21], v37, {R(rWS)}, 0 offen")
st(7)
A("L_kv_end:")
end_wave()

A("L_helper:")
A(f"""s_mov_b32 s64, 0
s_mov_b32 s{sR}, s{sI}
s_cmp_lt_u32 s{sI}, 16
s_cbranch_scc1 L_role_done
s_mul_i32 s{sR}, s{sXG}, 11
s_add_u32 s{sR}, s{sR}, s{sI}
s_sub_u32 s{sR}, s{sR}, 16
s_mov_b32 s64, 2
s_cmp_ge_u32 s{sI}, 27
s_cbranch_scc1 L_role_done
s_cmp_ge_u32 s{sR}, {NMLP}
s_cbranch_scc1 L_role_done
s_mov_b32 s64, 1
L_role_done:""")
srd(rWS, pWS, 0x10000000)
srd(rDBG, pDBG, 256)
if opt["pat"] == "B":
    for i in range(4):
        A(f"s_mov_b32 s{sOFF+i}, {i*4096}")
A("v_mov_b32 v39, 1")
A("s_cmp_eq_u32 s3, 0\ns_cbranch_scc1 L_q")
A("s_cmp_eq_u32 s3, 3\ns_cbranch_scc0 L_roles")
A("v_mov_b32 v4, -1\nv_mov_b32 v5, -1\nv_mov_b32 v6, -1\nv_mov_b32 v7, -1")
A(f"s_lshl_b32 s{sT0}, s{sSLOT}, 9\ns_add_u32 s{sT0}, s{sT0}, {OS}\nv_lshl_add_u32 v3, v0, 4, s{sT0}\ns_mov_b32 exec_hi, 0")
A(f"buffer_store_dwordx4 v[4:7], v3, {R(rWS)}, 0 offen sc1")
A(f"s_lshl_b32 s{sT0}, s{sSLOT}, 3\ns_add_u32 s{sT0}, s{sT0}, {ST}\nv_mov_b32 v3, s{sT0}\ns_mov_b64 exec, 1")
A(f"buffer_store_dwordx2 v[4:5], v3, {R(rWS)}, 0 offen sc1")
A("s_mov_b64 exec, -1")
A("s_cmp_eq_u32 s64, 0\ns_cbranch_scc0 L_clr_notz")
A(f"s_lshl_b32 s{sT0}, s{sXG}, 11\ns_lshl_b32 s{sT1}, s{sR}, 7\ns_add_u32 s{sT0}, s{sT0}, s{sT1}\ns_add_u32 s{sT0}, s{sT0}, {ZS}")
A(f"v_add_u32 v3, s{sT0}, v8\ns_mov_b64 exec, 0xff")
A(f"buffer_store_dwordx4 v[4:7], v3, {R(rWS)}, 0 offen sc1")
A("s_mov_b64 exec, -1")
A("L_clr_notz:")
A("s_cmp_eq_u32 s64, 1\ns_cbranch_scc0 L_clr_done")
A(f"s_lshl_b32 s{sT0}, s{sR}, 11\ns_add_u32 s{sT0}, s{sT0}, {PS}\nv_add_u32 v3, s{sT0}, v8")
A(f"buffer_store_dwordx4 v[4:7], v3, {R(rWS)}, 0 offen sc1")
A(f"buffer_store_dwordx4 v[4:7], v3, {R(rWS)}, 0 offen offset:1024 sc1")
A("L_clr_done:")
A("s_waitcnt vmcnt(0)")
st(1)
A(f"ds_write_b32 v33, v39 offset:{CCLR-MX}")
A("s_branch L_roles")

A("L_q:")
A("""v_and_b32 v28, 1, v0
v_lshlrev_b32 v28, 4, v28
v_mov_b32 v29, 0x100
v_lshlrev_b32 v29, v28, v29
v_mov_b32 v30, 0x0c0c0000
v_lshrrev_b32 v30, v28, v30
v_or_b32 v29, v29, v30
v_bfe_u32 v28, v0, 1, 3
v_mov_b32 v30, 0x0c0c0c0c""")
for i in range(4):
    A(f"v_cmp_eq_u32 vcc, {i}, v28\nv_cndmask_b32 v{20+i}, v30, v29, vcc")
A("s_waitcnt vmcnt(16)")
for j in range(4):
    A(f"v_lshlrev_b32 v{112+2*j}, 16, v{104+j}\nv_and_b32 v{113+2*j}, s{sHI}, v{104+j}")
A("v_add_f32 v36, v112, v113\nv_add_f32 v37, v114, v115\nv_add_f32 v38, v116, v117\nv_add_f32 v35, v118, v119")
A("v_add_f32 v36, v36, v37\nv_add_f32 v38, v38, v35\nv_add_f32 v36, v36, v38")
wave_allreduce_add(36, 37)
A(f"v_mul_f32 v36, {f32(1/512)}, v36")
for j in range(8):
    A(f"v_sub_f32 v{112+j}, v{112+j}, v36")
A("v_mul_f32 v37, v112, v112")
for j in range(1, 8):
    A(f"v_fmac_f32 v37, v{112+j}, v{112+j}")
wave_allreduce_add(37, 38)
A(f"v_mul_f32 v37, {f32(1/512)}, v37")
A(f"""v_cvt_pk_bf16_f32 v38, v36, v37
v_lshlrev_b32 v36, 16, v38
v_and_b32 v37, s{sHI}, v38
v_add_f32 v37, {f32(1e-5)}, v37
v_cvt_pk_bf16_f32 v37, v37, v37
v_and_b32 v37, s{sHI}, v37
v_sqrt_f32 v37, v37
v_cvt_pk_bf16_f32 v37, v37, v37
v_and_b32 v37, s{sHI}, v37
v_rcp_f32 v37, v37""")
for j in range(8):
    r = 12 + j
    A(f"""v_lshlrev_b32 v28, 16, v{r}
v_and_b32 v29, s{sHI}, v{r}
v_sub_f32 v28, v28, v36
v_sub_f32 v29, v29, v36
v_cvt_pk_bf16_f32 v30, v28, v29
v_lshlrev_b32 v28, 16, v30
v_and_b32 v29, s{sHI}, v30
v_mul_f32 v28, v28, v37
v_mul_f32 v29, v29, v37
v_cvt_pk_bf16_f32 v{r}, v28, v29""")
A("s_waitcnt vmcnt(0)")
st(1)
for t in range(16):
    src = 12 + t // 2
    if t % 2:
        A(f"v_lshrrev_b32 v{src}, 16, v{src}")
    b = 104 + 4 * (t % 2)
    for i in range(4):
        A(f"v_perm_b32 v{b+i}, v{src}, v{src}, v{20+i}")
    c = "0" if t == 0 else "v[24:27]"
    A(f"v_mfma_f32_16x16x32_bf16 v[24:27], {V(40+4*t,4)}, {V(b,4)}, {c}")
A(f"s_lshl_b32 s{sT0}, s{sSLOT}, 9\ns_add_u32 s{sT0}, s{sT0}, {QS}")
A(f"v_lshrrev_b32 v2, 4, v0\nv_and_b32 v3, 7, v0\nv_lshl_add_u32 v2, v2, 3, v3\nv_lshl_add_u32 v2, v2, 4, s{sT0}")
A("s_mov_b32 exec_lo, 0x00ff00ff\ns_mov_b32 exec_hi, 0x00ff00ff")
A(f"buffer_store_dwordx4 v[24:27], v2, {R(rWS)}, 0 offen sc1")
A("s_mov_b64 exec, -1")
A(f"s_getreg_b32 s{sT1}, hwreg(HW_REG_XCC_ID)\ns_and_b32 s{sT1}, s{sT1}, 15\ns_add_u32 s{sT1}, s{sT1}, 1")
A(f"v_mov_b32 v4, s{sT1}\nv_mov_b32 v3, s{sSLOT}\ns_mul_i32 s65, s{sT1}, 0x01010101")
A(f"s_lshl_b32 s{sT1}, s{sXG}, 5\nv_and_b32 v5, 7, v0\nv_lshl_add_u32 v5, v5, 2, s{sT1}")
spin(33, CCLR - MX, 1, 6)
A("s_waitcnt vmcnt(0)")
st(2)
A("s_mov_b64 exec, 1")
A(f"buffer_store_byte v4, v3, {R(rDBG)}, 0 offen sc1")
A("s_mov_b64 exec, -1")
flags_wait(5, 6, 7, False)
st(3)
A(f"s_and_b32 s{sT0}, s{sSLOT}, 0xf8\ns_lshl_b32 s{sT0}, s{sT0}, 9\ns_add_u32 s{sT0}, s{sT0}, {QS}")
A(f"v_lshl_add_u32 v2, v0, 4, s{sT0}")
for t in range(4):
    A(f"buffer_load_dwordx4 {V(112+4*t,4)}, v2, {R(rWS)}, 0 offen offset:{1024*t} sc1")
A(f"v_cmp_ne_u32 vcc, s65, v6\ns_cmp_eq_u64 vcc, 0\ns_cselect_b32 s{sFAST}, 1, 0")
A(f"v_mov_b32 v4, s{sFAST}\nds_write_b32 v33, v4 offset:{FAST-MX}")
A("v_bfe_u32 v2, v0, 3, 2\nv_lshlrev_b32 v2, 2, v2\nv_lshrrev_b32 v3, 5, v0\nv_add_u32 v2, v2, v3\nv_and_b32 v3, 7, v0\nv_lshl_add_u32 v2, v2, 3, v3\nv_lshlrev_b32 v2, 1, v2")
A("s_waitcnt vmcnt(0)")
for i in range(4):
    A(f"v_add_f32 v{112+i}, v{112+i}, v{116+i}\nv_add_f32 v{120+i}, v{120+i}, v{124+i}")
for i in range(4):
    A(f"v_add_f32 v{112+i}, v{112+i}, v{120+i}")
A("v_permlane32_swap_b32 v112, v113\nv_permlane32_swap_b32 v114, v115")
A("v_add_f32 v112, v112, v113\nv_add_f32 v114, v114, v115")
A("v_cvt_pk_bf16_f32 v112, v112, v114")
A(f"ds_write_b16 v2, v112 offset:{QL}\nds_write_b16_d16_hi v2, v112 offset:{QL+32}")
A(f"ds_write_b32 v33, v39 offset:{CQ-MX}")
st(4)

A("L_roles:")
A("s_cmp_eq_u32 s64, 1\ns_cbranch_scc1 L_mlp")
A("s_cmp_eq_u32 s64, 0\ns_cbranch_scc1 L_z")
end_wave()


def trigger(trig, loads):
    if trig != "start":
        off, n = {"q": (CQ, 1), "c1": (C1, 8), "c1h": (C1, 5), "c2": (C2, 8), "c2h": (C2, 5)}[trig]
        spin(33, off - MX, n, 10, sleep=4)
    loads()


A("L_z:")
srd(rA, pWO, 0x400000)
A(f"s_lshl_b32 s{sT0}, s{sXG}, 2\ns_add_u32 s{sT0}, s{sT0}, s3\ns_lshl_b32 s{sT0}, s{sT0}, 17\ns_lshl_b32 s{sT1}, s{sR}, 6\ns_add_u32 s{sT0}, s{sT0}, s{sT1}")
A(f"v_lshrrev_b32 v1, 2, v0\nv_lshlrev_b32 v1, 10, v1\nv_and_b32 v2, 3, v0\nv_lshl_add_u32 v1, v2, 4, v1\nv_add_u32 v1, s{sT0}, v1")
A(f"s_lshl_b32 s65, s3, 13\ns_add_u32 s65, s65, {WIMG}")
A(f"v_lshrrev_b32 v3, 4, v0\nv_lshlrev_b32 v3, 3, v3\nv_bfe_u32 v4, v0, 2, 2\nv_add_u32 v3, v3, v4\nv_lshlrev_b32 v3, 6, v3\nv_lshl_add_u32 v3, v2, 3, v3\nv_add_u32 v3, s65, v3")
A(f"s_lshl_b32 s{sT0}, s{sXG}, 5\ns_lshl_b32 s{sT1}, s3, 3\ns_add_u32 s{sT0}, s{sT0}, s{sT1}")
A(f"s_lshl_b32 s{sT1}, s{sT0}, 9\ns_add_u32 s{sT1}, s{sT1}, {OS}\nv_lshl_add_u32 v4, v0, 3, s{sT1}")
A(f"s_lshl_b32 s{sT1}, s{sT0}, 3\ns_add_u32 s{sT1}, s{sT1}, {ST}\nv_and_b32 v5, 7, v0\nv_lshl_add_u32 v5, v5, 3, s{sT1}")
A(f"s_lshl_b32 s{sT0}, s3, 8\ns_add_u32 s{sT0}, s{sT0}, {SCR}\nv_lshl_add_u32 v6, v0, 2, s{sT0}")
A(f"v_lshrrev_b32 v7, 4, v0\nv_lshl_add_u32 v7, v7, 4, s{sT0}")
A("v_lshlrev_b32 v8, 2, v0")
A(f"s_lshl_b32 s{sT0}, s{sXG}, 4\ns_add_u32 s{sT0}, s{sT0}, s{sR}\ns_lshl_b32 s{sT0}, s{sT0}, 2")
A(f"v_lshrrev_b32 v20, 4, v0\nv_add_u32 v20, s{sT0}, v20\nv_lshlrev_b32 v21, 1, v20\nv_lshlrev_b32 v20, 2, v20\nv_add_u32 v20, {ZS}, v20")
A(f"s_lshl_b32 s{sT0}, s{sT0}, 2\nv_lshlrev_b32 v22, 11, v0\nv_add_u32 v22, s{sT0}, v22\nv_add_u32 v23, {64*2048}, v22")
A(f"s_lshl_b32 s{sT0}, s{sXG}, 11\ns_lshl_b32 s{sT1}, s{sR}, 7\ns_add_u32 s{sT0}, s{sT0}, s{sT1}\ns_add_u32 s{sT0}, s{sT0}, {ZS}\nv_lshl_add_u32 v24, v0, 4, s{sT0}")
A(f"v_lshlrev_b32 v25, 4, v0")
srd(rC, pWS, NMLP * 2048, PS)
srd(rB, pOUT, 1024)


def z_loads():
    A(f"buffer_load_dword v9, v8, {R(rDBG)}, 0 offen sc1")
    A(f"buffer_load_ushort v26, v21, {R(rD)}, 0 offen")
    for t in range(8):
        A(f"s_add_u32 m0, s65, {t*1024}\ns_mov_b32 s{sT1}, {t*16384}")
        A(f"buffer_load_dwordx4 v1, {R(rA)}, s{sT1} offen{fl('wofl')} lds")


trigger(opt["trigz"], z_loads)
st(5)
spin(33, C3 - MX, 8, 10)


def z_poll():
    A(f"buffer_load_dwordx2 v[88:89], v5, {R(rWS)}, 0 offen sc1")
    for s in range(8):
        A(f"buffer_load_dwordx2 {V(72+2*s,2)}, v4, {R(rWS)}, 0 offen offset:{512*s} sc1")


def z_between():
    A("s_waitcnt vmcnt(9)")
    for kb in range(4):
        for nt in range(2):
            for hf in range(2):
                A(f"ds_read_b64_tr_b16 {V(40+(kb*2+nt)*4+2*hf,2)}, v3 offset:{kb*2048+hf*256+nt*32}")


poll(z_poll, list(range(72, 90)), 10, z_between)
st(6)
A(f"""v_max_f32_dpp v10, v88, v88 quad_perm:[1,0,3,2] {DPP}
v_max_f32_dpp v10, v10, v10 quad_perm:[2,3,0,1] {DPP}
v_max_f32_dpp v10, v10, v10 row_half_mirror {DPP}
v_sub_f32 v10, v88, v10
v_exp_f32 v10, v10
v_mul_f32 v11, v10, v89
v_add_f32_dpp v11, v11, v11 quad_perm:[1,0,3,2] {DPP}
v_add_f32_dpp v11, v11, v11 quad_perm:[2,3,0,1] {DPP}
v_add_f32_dpp v11, v11, v11 row_half_mirror {DPP}
v_rcp_f32 v11, v11
v_mul_f32 v10, v10, v11""")
A(f"v_mul_f32_dpp v12, v10, v72 row_newbcast:0 {DPP}\nv_mul_f32_dpp v13, v10, v73 row_newbcast:0 {DPP}")
for s in range(1, 8):
    A(f"v_fmac_f32_dpp v12, v10, v{72+2*s} row_newbcast:{s} {DPP}\nv_fmac_f32_dpp v13, v10, v{73+2*s} row_newbcast:{s} {DPP}")
A("v_cvt_pk_bf16_f32 v12, v12, v13\nds_write_b32 v6, v12\ns_waitcnt lgkmcnt(0)")
for kb in range(4):
    A(f"ds_read_b128 {V(92+4*kb,4)}, v7 offset:{64*kb}")
for kb in range(4):
    A(f"s_waitcnt lgkmcnt({3-kb})")
    for nt in range(2):
        c = "0" if kb == 0 else V(108 + 4 * nt, 4)
        A(f"v_mfma_f32_16x16x32_bf16 {V(108+4*nt,4)}, {V(92+4*kb,4)}, {V(40+(kb*2+nt)*4,4)}, {c}")
A("s_mov_b64 exec, 0xffff")
A(f"ds_add_f32 v8, v108 offset:{ZACC}\nds_add_f32 v8, v112 offset:{ZACC+64}")
A("s_mov_b64 exec, -1")
A("s_waitcnt lgkmcnt(0)\ns_barrier")
A("s_cmp_eq_u32 s3, 0\ns_cbranch_scc0 L_z_not0")
A(f"s_mov_b64 exec, 0xff\nds_read_b128 v[12:15], v25 offset:{ZACC}\ns_waitcnt lgkmcnt(0)")
A(f"buffer_store_dwordx4 v[12:15], v24, {R(rWS)}, 0 offen sc1")
st(7)
end_wave()
A("L_z_not0:")
A("s_cmp_eq_u32 s3, 1\ns_cbranch_scc1 L_fin")
end_wave()
A("L_fin:")
flags_wait(8, 9, 10, True)


def f_poll1():
    for x in range(8):
        A(f"buffer_load_dword v{72+x}, v20, {R(rWS)}, s{sOFF+x//2} offen offset:{2048*(x%2)} sc1")


poll(f_poll1, list(range(72, 80)), 10)
st(1)


def f_poll2():
    A(f"buffer_load_dwordx4 v[80:83], v22, {R(rC)}, 0 offen sc1")
    A(f"buffer_load_dwordx4 v[84:87], v23, {R(rC)}, 0 offen sc1")


def f_between():
    A("""v_add_f32 v72, v72, v74
v_add_f32 v73, v73, v75
v_add_f32 v72, v72, v76
v_add_f32 v73, v73, v77
v_add_f32 v72, v72, v78
v_add_f32 v73, v73, v79
v_add_f32 v72, v72, v73
v_cvt_pk_bf16_f32 v72, v72, v72
v_lshlrev_b32 v72, 16, v72
v_lshlrev_b32 v26, 16, v26
v_add_f32 v72, v72, v26
v_cvt_pk_bf16_f32 v72, v72, v72
v_lshlrev_b32 v72, 16, v72""")


poll(f_poll2, list(range(80, 88)), 10, f_between)
st(2)
for i in range(4):
    A(f"v_add_f32 v{80+i}, v{80+i}, v{84+i}")
A("v_permlane32_swap_b32 v80, v82\nv_permlane32_swap_b32 v81, v83")
A("v_add_f32 v80, v80, v82\nv_add_f32 v81, v81, v83")
A("v_permlane16_swap_b32 v80, v81\nv_add_f32 v80, v80, v81")
row_allreduce("v_add_f32", 80)
A("v_cvt_pk_bf16_f32 v80, v80, v80\nv_lshlrev_b32 v80, 16, v80\nv_add_f32 v80, v80, v72\nv_cvt_pk_bf16_f32 v80, v80, v80")
A("s_mov_b32 exec_lo, 0x00010001\ns_mov_b32 exec_hi, 0x00010001")
A(f"buffer_store_short v80, v21, {R(rB)}, 0 offen sc1")
st(7)
end_wave()

A("L_mlp:")
srd(rA, pWG, 512 * 2752)
srd(rB, pWU, 512 * 2752)
srd(rC, pWD, 1376 * 1024)
A(f"s_lshl_b32 s{sT0}, s3, 7\nv_lshrrev_b32 v1, 1, v0\nv_add_u32 v1, s{sT0}, v1\nv_mul_u32_u24 v1, 2752, v1")
A(f"v_and_b32 v2, 1, v0\nv_lshl_add_u32 v1, v2, 4, v1\ns_lshl_b32 s{sT0}, s{sR}, 5\nv_add_u32 v1, s{sT0}, v1")
A(f"s_lshl_b32 s65, s3, 13\ns_add_u32 s65, s65, {WIMG}")
A(f"v_lshrrev_b32 v3, 4, v0\nv_lshlrev_b32 v3, 3, v3\nv_bfe_u32 v4, v0, 2, 2\nv_add_u32 v3, v3, v4\nv_lshlrev_b32 v3, 5, v3\nv_and_b32 v2, 3, v0\nv_lshl_add_u32 v3, v2, 3, v3\nv_add_u32 v3, s65, v3")
A(f"s_lshl_b32 s{sT0}, s3, 9\ns_add_u32 s{sT0}, s{sT0}, {ZS}\nv_lshrrev_b32 v2, 5, v0\nv_and_b32 v5, 31, v0\nv_lshlrev_b32 v4, 11, v2\nv_lshl_add_u32 v4, v5, 4, v4\nv_add_u32 v4, s{sT0}, v4")
A(f"v_lshlrev_b32 v5, 3, v5\nv_lshl_add_u32 v5, v2, 2, v5\ns_lshl_b32 s{sT0}, s3, 8\nv_add_u32 v5, s{sT0}, v5\nv_add_u32 v6, {SCR}, v5")
A(f"s_add_u32 s{sT0}, s{sT0}, {SCR}\nv_lshrrev_b32 v7, 4, v0\nv_lshl_add_u32 v7, v7, 4, s{sT0}")
A("v_lshlrev_b32 v8, 2, v0")
A(f"s_lshl_b32 s{sT0}, s{sR}, 14\ns_lshl_b32 s{sT1}, s3, 8\ns_add_u32 s{sT0}, s{sT0}, s{sT1}\nv_add_u32 v20, s{sT0}, v8")
A(f"s_lshl_b32 s{sT0}, s{sR}, 11\ns_lshl_b32 s{sT1}, s3, 9\ns_add_u32 s{sT0}, s{sT0}, s{sT1}\ns_add_u32 s{sT0}, s{sT0}, {PS}\nv_lshl_add_u32 v21, v0, 3, s{sT0}")
A(f"v_and_b32 v22, 15, v0\nv_lshlrev_b32 v22, 4, v22")
A(f"v_lshrrev_b32 v23, 5, v0\nv_lshlrev_b32 v23, 2, v23\nv_add_u32 v23, {SQ}, v23\nv_mov_b32 v24, {SQ}")
for i in range(4):
    A(f"v_mov_b32 v{116+i}, 0x3f803f80")
A(f"s_mov_b32 s{sM1}, 0x05040100\ns_mov_b32 s{sM1+1}, 0x07060302")


def m_loads():
    A(f"buffer_load_dword v9, v8, {R(rDBG)}, 0 offen sc1")
    A(f"buffer_load_dword v26, v5, {R(rD)}, 0 offen")
    for t in range(4):
        A(f"s_add_u32 m0, s65, {t*1024}\ns_mov_b32 s{sT1}, {t*32*2752}")
        A(f"buffer_load_dwordx4 v1, {R(rA)}, s{sT1} offen{fl('gufl')} lds")
        A(f"s_add_u32 m0, s65, {4096+t*1024}")
        A(f"buffer_load_dwordx4 v1, {R(rB)}, s{sT1} offen{fl('gufl')} lds")
    for r in range(16):
        A(f"buffer_load_dword v{120+r}, v20, {R(rC)}, s{sOFF+r//4} offen offset:{1024*(r%4)}{fl('wdfl')}")


trigger(opt["trigm"], m_loads)
st(5)
A("s_waitcnt vmcnt(0)")
flags_wait(8, 9, 10, True)


def m_poll():
    for t in range(4):
        A(f"buffer_load_dwordx4 {V(72+4*t,4)}, v4, {R(rWS)}, s{sOFF+t} offen sc1")


def m_between():
    for kb in range(4):
        for tl in range(2):
            for hf in range(2):
                A(f"ds_read_b64_tr_b16 {V(40+(kb*2+tl)*4+2*hf,2)}, v3 offset:{kb*1024+hf*128+tl*4096}")
    for i in range(8):
        A(f"v_perm_b32 v{136+i}, v{121+2*i}, v{120+2*i}, s{sM1}\nv_perm_b32 v{144+i}, v{121+2*i}, v{120+2*i}, s{sM1+1}")
    A(f"v_lshlrev_b32 v27, 16, v26\nv_and_b32 v26, s{sHI}, v26")
    A("s_waitcnt lgkmcnt(0)")
    for kb in range(4):
        for tl in range(2):
            c = "0" if kb == 0 else V(108 + 4 * tl, 4)
            A(f"v_mfma_f32_16x16x32_bf16 {V(108+4*tl,4)}, v[116:119], {V(40+(kb*2+tl)*4,4)}, {c}")
    A("s_mov_b64 exec, 0xffff")
    A(f"ds_add_f32 v22, v108 offset:{ZACC+8}\nds_add_f32 v22, v112 offset:{ZACC+12}")
    A("s_mov_b64 exec, -1")
    A("v_mov_b32 v30, 0\nv_mov_b32 v31, 0")
    st(1)


m_between()
spin(33, C3 - MX, 8, 10)
poll(m_poll, list(range(72, 88)), 10)
st(6)
for t in range(1, 4):
    for i in range(4):
        A(f"v_add_f32 v{72+i}, v{72+i}, v{72+4*t+i}")
A("v_permlane32_swap_b32 v72, v74\nv_permlane32_swap_b32 v73, v75")
A(f"""v_add_f32 v72, v72, v74
v_add_f32 v73, v73, v75
v_cvt_pk_bf16_f32 v72, v72, v73
v_lshlrev_b32 v73, 16, v72
v_and_b32 v72, s{sHI}, v72
v_add_f32 v73, v73, v27
v_add_f32 v72, v72, v26
v_cvt_pk_bf16_f32 v72, v73, v72
ds_write_b32 v6, v72
v_lshlrev_b32 v73, 16, v72
v_and_b32 v72, s{sHI}, v72
v_add_f32 v74, v72, v73
v_mul_f32 v75, v72, v72
v_fmac_f32 v75, v73, v73
s_waitcnt lgkmcnt(0)""")
for kb in range(4):
    A(f"ds_read_b128 {V(92+4*kb,4)}, v7 offset:{64*kb}")
A("v_permlane32_swap_b32 v74, v75\nv_add_f32 v74, v74, v75")
rr = [8, 4, 2, 1]
for kb in range(4):
    A(f"s_waitcnt lgkmcnt({3-kb})")
    for tl in range(2):
        c = "0" if kb == 0 else V(108 + 4 * tl, 4)
        A(f"v_mfma_f32_16x16x32_bf16 {V(108+4*tl,4)}, {V(92+4*kb,4)}, {V(40+(kb*2+tl)*4,4)}, {c}")
    A(f"v_add_f32_dpp v74, v74, v74 row_ror:{rr[kb]} {DPP}")
A("s_mov_b32 exec_lo, 0x00010001\ns_mov_b32 exec_hi, 0x00010001")
A("ds_add_f32 v23, v74")
A("s_mov_b64 exec, 0xffff")
A(f"ds_add_f32 v22, v108 offset:{ZACC}\nds_add_f32 v22, v112 offset:{ZACC+4}")
A("s_mov_b64 exec, -1")
A("s_waitcnt lgkmcnt(0)\ns_barrier")
A(f"ds_read_b64 v[16:17], v24\nds_read_b128 v[12:15], v22 offset:{ZACC}")
A("s_waitcnt lgkmcnt(1)")
A(f"""v_mul_f32 v16, {f32(1/512)}, v16
v_mul_f32 v17, {f32(1/512)}, v17
v_fma_f32 v17, -v16, v16, v17
v_max_f32 v17, 0, v17
v_cvt_pk_bf16_f32 v18, v16, v17
v_lshlrev_b32 v16, 16, v18
v_and_b32 v17, s{sHI}, v18
v_add_f32 v17, {f32(1e-5)}, v17
v_cvt_pk_bf16_f32 v17, v17, v17
v_and_b32 v17, s{sHI}, v17
v_sqrt_f32 v17, v17
v_cvt_pk_bf16_f32 v17, v17, v17
v_and_b32 v17, s{sHI}, v17
v_rcp_f32 v17, v17
s_waitcnt lgkmcnt(0)
v_fma_f32 v12, -v16, v14, v12
v_fma_f32 v13, -v16, v15, v13
v_mul_f32 v12, v12, v17
v_mul_f32 v13, v13, v17
v_cvt_pk_bf16_f32 v12, v12, v13
v_and_b32 v13, s{sHI}, v12
v_lshlrev_b32 v12, 16, v12
v_mul_f32 v12, {f32(-1.4426950408889634)}, v12
v_exp_f32 v12, v12
v_add_f32 v12, 1.0, v12
v_rcp_f32 v12, v12
v_cvt_pk_bf16_f32 v12, v12, v12
v_and_b32 v12, s{sHI}, v12
v_mul_f32 v12, v12, v13
v_mov_b32_dpp v13, v12 quad_perm:[1,0,3,2] {DPP}
v_cvt_pk_bf16_f32 v12, v12, v13""")
for i in range(8):
    A(f"v_dot2c_f32_bf16_dpp v30, v12, v{136+i} row_newbcast:{2*i} {DPP}")
    A(f"v_dot2c_f32_bf16_dpp v31, v12, v{144+i} row_newbcast:{2*i} {DPP}")
A(f"buffer_store_dwordx2 v[30:31], v21, {R(rWS)}, 0 offen sc1")
st(7)
end_wave()

if STAMPS:
    A("L_stamps:")
    A("s_mov_b64 exec, 1")
    A(f"s_mul_i32 s{sT0}, s2, 12\ns_add_u32 s{sT0}, s{sT0}, s3\ns_lshl_b32 s{sT0}, s{sT0}, 5\ns_add_u32 s{sT0}, s{sT0}, {STAMP}")
    A(f"v_mov_b32 v1, s{sT0}\ns_waitcnt lgkmcnt(0)")
    for k in range(8):
        A(f"v_mov_b32 v{4+k}, s{sST+2*k}")
    A(f"buffer_store_dwordx4 v[4:7], v1, {R(rWS)}, 0 offen\nbuffer_store_dwordx4 v[8:11], v1, {R(rWS)}, 0 offen offset:16")
A("L_exit:")
A("s_endpgm")
A("L_last:")

body, problems = fix_hazards(L)
for p in problems:
    print("HAZARD:", p, file=sys.stderr)
for line in body:
    out.append(line if line.endswith(":") else "    " + line)
out.append(f""".section .rodata,"a"
.p2align 6
.amdhsa_kernel {NAME}_kernel
  .amdhsa_next_free_vgpr 168
  .amdhsa_next_free_sgpr 100
  .amdhsa_accum_offset 168
  .amdhsa_group_segment_fixed_size 0
  .amdhsa_kernarg_size 96
  .amdhsa_user_sgpr_count 2
  .amdhsa_user_sgpr_kernarg_segment_ptr 1
  .amdhsa_system_sgpr_workgroup_id_x 1
  .amdhsa_float_denorm_mode_32 3
.end_amdhsa_kernel""")
open(sys.argv[1], "w").write("\n".join(out) + "\n")
```

```python
import sys, struct
from asmlib import fix_hazards

NAME = "sequential_preLN__mha_block_cached__glu_gated_glu__decode"
opt = dict(stamps=0, nv1=12, trigz="start", trigm="start", pat="B", kvfl="nt", wqfl="nt", wofl="nt", gufl="nt",
           wdfl="nt", fast=1, pf=1, gap=0, prio=0, bal=1, nsl=12, spin=100000)
for a in sys.argv[2:]:
    k, v = a.split("=")
    opt[k] = v if not v.lstrip("-").isdigit() else int(v)
STAMPS = opt["stamps"]
NV1 = opt["nv1"]


def fl(name):
    v = opt[name]
    return "" if v == "plain" else " " + v.replace("+", " ")


def f32(x):
    return "0x%08x" % struct.unpack("<I", struct.pack("<f", x))[0]


QS, OS, ST, ZS, XC, EPOCH, PS, STAMP = 0x0, 0x20000, 0x40000, 0x41000, 0x45000, 0x46000, 0x48000, 0x80000
NMLP = 86
TAGMASK = 0x3ff
QL, MX, LACC, SQ, CS, ZP, SCR, OSL, WIMG = 0, 256, 260, 272, 1024, 1536, 3072, 4096, 10240
CQ, C1, C2, C3, C4, FAST, TAG = 280, 284, 288, 292, 296, 304, 308
LDS_BYTES = WIMG + 4 * 16384
pX, pK, pV, pWQ, pWO, pWG, pWU, pWD, pOUT, pDBG, pWS = 4, 6, 8, 10, 12, 16, 18, 20, 22, 24, 26
rA, rB, rWS, rC, rD = 28, 32, 36, 44, 48
sNKV, sROLE, sMASK, sN = 40, 41, 42, 43
sXG, sI, sSLOT, sR, sT0, sT1, sCNT, sFAST = 52, 53, 54, 55, 56, 57, 58, 59
sM1, sM0, sU, sIMG, sC2, sHI = 60, 62, 64, 65, 66, 67
sOFF = 68
sST = 84
vT = 38
vONE = 39
vL = 33

L = []


def A(s):
    for line in s.split("\n"):
        line = line.strip()
        if line:
            L.append(line)


def srd(r, p, size, add=None):
    if add is None:
        A(f"s_mov_b32 s{r}, s{p}\ns_mov_b32 s{r+1}, s{p+1}")
    else:
        A(f"s_add_u32 s{r}, s{p}, {add}\ns_addc_u32 s{r+1}, s{p+1}, 0")
    A(f"s_mov_b32 s{r+2}, {hex(size)}\ns_mov_b32 s{r+3}, 0x20000")


def R(r):
    return f"s[{r}:{r+3}]"


def V(a, n):
    return f"v[{a}:{a+n-1}]"


def st(k):
    if STAMPS and str(k) not in str(opt.get("nost", "")):
        A(f"s_memtime s[{sST+2*k}:{sST+2*k+1}]")


def end_wave():
    A("s_branch L_stamps" if STAMPS else "s_endpgm")


DPP = "row_mask:0xf bank_mask:0xf"


def row_allreduce(op, a):
    for n in (8, 4, 2, 1):
        A(f"{op}_dpp v{a}, v{a}, v{a} row_ror:{n} {DPP}")


def wave_allreduce_add(a, t):
    row_allreduce("v_add_f32", a)
    for sw in ("v_permlane16_swap_b32", "v_permlane32_swap_b32"):
        A(f"v_mov_b32 v{t}, v{a}\n{sw} v{a}, v{t}\nv_add_f32 v{a}, v{a}, v{t}")


def tag(regs):
    for r in regs:
        A(f"v_bfi_b32 v{r}, s{sMASK}, v{vT}, v{r}")


uid = [0]


def poll(loads, regs, tmp, between=None, masked=None):
    uid[0] += 1
    u = uid[0]
    loads()
    if between:
        between()
    A(f"s_mov_b32 s{sCNT}, {opt['spin']}")
    A(f"L_poll{u}:")
    A("s_waitcnt vmcnt(0)")
    rs = list(regs)
    A(f"v_xor_b32 v{tmp}, v{rs[0]}, v{vT}\nv_xor_b32 v{tmp+1}, v{rs[1]}, v{vT}")
    for n, r in enumerate(rs[2:]):
        A(f"v_bitop3_b32 v{tmp+n%2}, v{tmp+n%2}, v{r}, v{vT} bitop3:0xf6")
    if masked:
        A(f"s_mov_b64 exec, {hex(masked[0])}")
        for n, r in enumerate(masked[1]):
            A(f"v_bitop3_b32 v{tmp+n%2}, v{tmp+n%2}, v{r}, v{vT} bitop3:0xf6")
        A("s_mov_b64 exec, -1")
    A(f"v_bitop3_b32 v{tmp}, v{tmp}, v{tmp+1}, s{sMASK} bitop3:0xa8")
    A(f"v_cmp_ne_u32 vcc, 0, v{tmp}")
    A(f"s_cbranch_vccz L_ok{u}")
    A(f"s_sub_u32 s{sCNT}, s{sCNT}, 1\ns_cbranch_scc1 L_ok{u}")
    loads()
    A(f"s_branch L_poll{u}")
    A(f"L_ok{u}:")


def spin(off, n, tmp, extra=None, sleep=1):
    uid[0] += 1
    u = uid[0]
    A(f"L_spin{u}:")
    A(f"ds_read_b32 v{tmp}, v{vL} offset:{off-MX}")
    if extra:
        A(extra)
    A("s_waitcnt lgkmcnt(0)")
    A(f"v_readfirstlane_b32 s{sT0}, v{tmp}")
    A(f"s_cmp_ge_u32 s{sT0}, {n}\ns_cbranch_scc1 L_spun{u}")
    if sleep:
        A(f"s_sleep {sleep}")
    A(f"s_branch L_spin{u}")
    A(f"L_spun{u}:")


def store_fs(instr):
    uid[0] += 1
    u = uid[0]
    if not opt["fast"]:
        A(instr + " sc1")
        return
    A(f"s_cmp_eq_u32 s{sFAST}, 0\ns_cbranch_scc1 L_slow{u}")
    A(instr)
    A(f"s_branch L_sdone{u}")
    A(f"L_slow{u}:")
    A(instr + " sc1")
    A(f"L_sdone{u}:")


hdr = open("cdna_kernels/" + NAME + ".s.ref").read().split("\n")
out = [l for l in hdr if l.startswith(";") and "@launch" not in l and "Override" not in l and "grid=ceil" not in l]
out.append(f"; @launch grid=(256,1,1) block=(768,1,1) lds={LDS_BYTES}")
out.append('.amdgcn_target "amdgcn-amd-amdhsa--gfx950"')
out.append(".text")
out.append(f".globl {NAME}_kernel")
out.append(".p2align 8")
out.append(f".type {NAME}_kernel,@function")
out.append(f"{NAME}_kernel:")

A("L_start:")
A("s_cmp_ge_u32 s2, 256\ns_cbranch_scc1 L_exit")
A("s_load_dwordx16 s[4:19], s[0:1], 0\ns_load_dwordx8 s[20:27], s[0:1], 64")
if STAMPS:
    for k in range(8):
        A(f"s_mov_b32 s{sST+2*k}, 0")
st(0)
if STAMPS:
    A("s_memrealtime s[100:101]")
A("v_lshrrev_b32 v1, 6, v0\nv_and_b32 v0, 63, v0\nv_readfirstlane_b32 s3, v1")
A(f"s_and_b32 s{sXG}, s2, 7\ns_lshr_b32 s{sI}, s2, 3\ns_lshl_b32 s{sSLOT}, s{sXG}, 5\ns_add_u32 s{sSLOT}, s{sSLOT}, s{sI}")
A("v_lshlrev_b32 v8, 4, v0")
if opt["pf"]:
    A("s_cmp_eq_u32 s3, 1\ns_cbranch_scc0 L_pf_done")
    A(f"s_getpc_b64 s[{rA}:{rA+1}]")
    A("L_pc:")
    A(f"s_sub_u32 s{rA}, s{rA}, L_pc-L_start\ns_subb_u32 s{rA+1}, s{rA+1}, 0")
    A(f"s_and_b32 s{sT0}, s{sI}, 15\ns_lshl_b32 s{sT0}, s{sT0}, 10\nv_add_u32 v1, s{sT0}, v8")
    A("v_min_u32 v1, (L_last-L_start-16)&0xfffffff0, v1")
    A(f"global_load_dwordx4 v[160:163], v1, s[{rA}:{rA+1}]")
    A("L_pf_done:")
A("v_mov_b32 v4, 0\nv_mov_b32 v5, 0\nv_mov_b32 v6, 0\nv_mov_b32 v7, 0")
A(f"s_mov_b32 s{sT0}, 0xff800000\nv_writelane_b32 v4, s{sT0}, 0")
A(f"ds_write_b128 v8, v[4:7] offset:{MX}")
A(f"s_lshl_b32 s{sT0}, s3, 9\nv_lshl_add_u32 v9, v0, 3, s{sT0}\nds_write_b64 v9, v[6:7] offset:{OSL}")
nz, nmu = (8, 6) if opt["bal"] else (8, 8)
A(f"""s_and_b32 s80, s{sI}, 7
s_lshr_b32 s81, s{sI}, 3
s_cmp_lt_u32 s{sXG}, 6
s_cselect_b32 s82, 3, 2
s_cmp_lt_u32 s81, s82
s_cselect_b32 s83, 3, 2
s_mov_b32 s{sROLE}, 0
s_mov_b32 s{sNKV}, 8
s_lshl_b32 s{sU}, s80, 3
s_lshl_b32 s{sR}, s81, 1
s_add_u32 s{sR}, s{sR}, s80
s_cmp_lt_u32 s80, 2
s_cbranch_scc1 L_role_done
s_sub_u32 s80, s80, 2
s_cmp_lt_u32 s80, s83
s_cbranch_scc0 L_role_free
s_mov_b32 s{sROLE}, 1
s_min_u32 s82, s82, s81
s_lshl_b32 s{sR}, s81, 1
s_add_u32 s{sR}, s{sR}, s82
s_add_u32 s{sR}, s{sR}, s80
s_mul_i32 s82, s{sXG}, 11
s_add_u32 s{sR}, s{sR}, s82
s_cmp_eq_u32 s{sXG}, 7
s_subb_u32 s{sR}, s{sR}, 0""")
if opt["bal"]:
    A(f"s_mov_b32 s{sNKV}, 6\ns_mul_i32 s{sU}, s80, 6\ns_add_u32 s{sU}, s{sU}, 16")
A(f"s_branch L_role_done\nL_role_free:\ns_mov_b32 s{sROLE}, 2")
if opt["bal"]:
    A(f"""s_add_u32 s{sNKV}, s83, 7
s_sub_u32 s80, s80, s83
s_mul_i32 s{sU}, s80, s{sNKV}
s_mul_i32 s83, s83, 6
s_add_u32 s{sU}, s{sU}, s83
s_add_u32 s{sU}, s{sU}, 16""")
A("L_role_done:")
KR, VR = 40, 104
A(f"s_add_u32 s{sT0}, s3, s{sNKV}\ns_sub_u32 s83, s{sT0}, 12")
A(f"s_lshr_b32 s{sT1}, s{sSLOT}, 3\ns_lshl_b32 s{sT1}, s{sT1}, 20\ns_lshl_b32 s{sU}, s{sU}, 14\ns_add_u32 s{sT1}, s{sT1}, s{sU}")
if opt["pat"] == "A":
    A(f"s_lshl_b32 s{sT0}, s83, 14")
    for i in range(4):
        A(f"s_mov_b32 s{sOFF+i}, {i*4096}")
    koff = lambda i: (f"s{sOFF+i//4}", (i % 4) * 1024)
else:
    A(f"s_lshl_b32 s{sT0}, s83, 10\ns_lshl_b32 s{sOFF+1}, s{sNKV}, 10")
    for i in range(2, 12):
        A(f"s_add_u32 s{sOFF+i}, s{sOFF+i-1}, s{sOFF+1}")
    koff = lambda i: ("0" if i == 0 else f"s{sOFF+i}", 0)
A(f"s_mov_b32 s{sU}, s83")
A(f"s_add_u32 s{sT0}, s{sT0}, s{sT1}\nv_add_u32 v1, s{sT0}, v8")
if opt["pat"] != "A":
    for i in range(12, 16):
        A(f"s_add_u32 s{sOFF+i}, s{sOFF+i-1}, s{sOFF+1}")
A(f"s_mov_b32 s{sHI}, 0xffff0000\ns_mov_b32 s{sMASK}, {TAGMASK}")
A(f"s_and_b32 s{sT0}, s{sSLOT}, 7\ns_lshl_b32 s{sT0}, s{sT0}, 6")
A(f"v_lshrrev_b32 v2, 4, v0\nv_lshl_add_u32 v2, v2, 4, s{sT0}\nv_lshlrev_b32 v3, 1, v2")
A(f"s_lshr_b32 s{sT0}, s{sSLOT}, 3\ns_lshl_b32 s{sT0}, s{sT0}, 8")
A(f"v_lshlrev_b32 v2, 13, v2\nv_and_b32 v9, 15, v0\nv_lshl_add_u32 v2, v9, 4, v2\nv_add_u32 v2, s{sT0}, v2")
A(f"v_mov_b32 v{vL}, {MX}\nv_mov_b32 v{vONE}, 1")
A("s_waitcnt lgkmcnt(0)")
srd(rD, pX, 1024)
srd(rC, pWQ, 0x400000)
srd(rA, pK, 0x2000000)
srd(rB, pV, 0x2000000)
srd(rWS, pWS, 0x10000000)
st(6)
A("s_cmp_lg_u32 s3, 0\ns_cbranch_scc1 L_not0")
A(f"buffer_load_dwordx4 v[104:107], v8, {R(rD)}, 0 offen")
A(f"buffer_load_dwordx4 v[12:15], v3, {R(rD)}, 0 offen")
A(f"buffer_load_dwordx4 v[16:19], v3, {R(rD)}, 0 offen offset:16")
for t in range(16):
    A(f"s_mov_b32 s{sT1}, {t*8192 if not opt.get('nowq') else 0}")
    A(f"buffer_load_dwordx4 {V(40+4*t,4)}, {'v2' if not opt.get('nowq') else 'v8'}, {R(rC)}, s{sT1} offen{fl('wqfl')}")
A("L_not0:")
A("s_barrier")
A(f"s_cmp_lt_i32 s{sU}, 0\ns_cbranch_scc1 L_helper")


def kvload(base, i, r):
    so, io = koff(i)
    o = f" offset:{io}" if io else ""
    A(f"buffer_load_dwordx4 {V(base+4*i,4)}, v1, {R(r)}, {so} offen{o}{fl('kvfl')}")
    if opt["gap"] >= 0:
        A(f"s_nop {opt['gap']}")


for i in range(16):
    kvload(KR, i, rA)
for i in range(NV1):
    kvload(VR, i, rB)
st(1)
A("""v_bfe_u32 v10, v0, 3, 1
v_mul_u32_u24 v10, 0x202, v10
v_add_u32 v10, 0x100, v10
v_and_b32 v11, 1, v0
v_lshlrev_b32 v11, 4, v11
v_lshlrev_b32 v10, v11, v10
v_mov_b32 v12, 0x0c0c0000
v_lshrrev_b32 v12, v11, v12
v_or_b32 v10, v10, v12
v_bfe_u32 v11, v0, 1, 2
v_mov_b32 v12, 0x0c0c0c0c""")
for i in range(4):
    A(f"v_cmp_eq_u32 vcc, {i}, v11\nv_cndmask_b32 v{6+i}, v12, v10, vcc")
A(f"s_mov_b32 s{sM1}, 0xcccccccc\ns_mov_b32 s{sM1+1}, 0xcccccccc\ns_mov_b32 s{sM0}, 0xaaaaaaaa\ns_mov_b32 s{sM0+1}, 0xaaaaaaaa")
A(f"s_mov_b32 s{sC2}, {f32(128 ** -0.5 * 1.4426950408889634)}")
A("v_and_b32 v32, 15, v0\nv_lshlrev_b32 v32, 4, v32")
A(f"v_lshrrev_b32 v34, 4, v0\nv_and_b32 v35, 7, v0\nv_lshl_add_u32 v34, v34, 3, v35\ns_lshl_b32 s{sT0}, s3, 9\nv_lshl_add_u32 v34, v34, 4, s{sT0}")
A("v_lshlrev_b32 v35, 3, v0")
A(f"s_lshl_b32 s{sT0}, s{sSLOT}, 9\ns_add_u32 s{sT0}, s{sT0}, {OS}\nv_lshl_add_u32 v36, v0, 3, s{sT0}")
A(f"s_lshl_b32 s{sT0}, s{sSLOT}, 4\ns_add_u32 s{sT0}, s{sT0}, {ST}\nv_mov_b32 v37, s{sT0}")
A(f"s_sub_u32 s{sN}, s{sNKV}, 1")
spin(CQ, 1, 10, f"ds_read_b128 v[2:5], v32 offset:{QL}\nds_read_b64 v[26:27], v{vL} offset:{FAST-MX}", sleep=2)
st(2)
A(f"v_readfirstlane_b32 s{sFAST}, v26\nv_mov_b32 v{vT}, v27")
A(f"s_waitcnt vmcnt({NV1})")
for j in range(4):
    for i in range(16):
        c = "0" if j == 0 else f"v{10+i}"
        A(f"v_dot2_f32_bf16 v{10+i}, v{KR+4*i+j}, v{2+j}, {c}")
for i in range(8):
    A(f"v_add_f32_dpp v{10+i}, v{10+i}, v{10+i} row_ror:8 row_mask:0xf bank_mask:0x3")
    A(f"v_add_f32_dpp v{10+i}, v{18+i}, v{18+i} row_ror:8 row_mask:0xf bank_mask:0xc")
for i in range(4):
    A(f"v_add_f32_dpp v{10+i}, v{10+i}, v{10+i} row_ror:12 row_mask:0xf bank_mask:0x5")
    A(f"v_add_f32_dpp v{10+i}, v{14+i}, v{14+i} row_ror:4 row_mask:0xf bank_mask:0xa")
for i in range(4):
    A(f"v_add_f32_dpp v{10+i}, v{10+i}, v{10+i} quad_perm:[2,3,0,1] {DPP}")
for i in range(2):
    A(f"v_cndmask_b32 v{10+i}, v{10+i}, v{12+i}, s[{sM1}:{sM1+1}]")
for i in range(2):
    A(f"v_add_f32_dpp v{10+i}, v{10+i}, v{10+i} quad_perm:[1,0,3,2] {DPP}")
A(f"v_cndmask_b32 v10, v10, v11, s[{sM0}:{sM0+1}]")
A(f"v_mul_f32 v10, s{sC2}, v10")
A(f"v_max_f32_dpp v11, v10, v10 row_ror:8 {DPP}")
for n in (4, 2, 1):
    A(f"v_max_f32_dpp v11, v11, v11 row_ror:{n} {DPP}")
for sw in ("v_permlane16_swap_b32", "v_permlane32_swap_b32"):
    A(f"v_mov_b32 v12, v11\n{sw} v11, v12\nv_max_f32 v11, v11, v12")
A("s_mov_b64 exec, 1")
A(f"ds_max_f32 v{vL}, v11\nds_add_u32 v{vL}, v{vONE} offset:{C1-MX}")
A("s_mov_b64 exec, -1")
st(3)
A("v_sub_f32 v10, v10, v11\nv_exp_f32 v10, v10")
A("v_cvt_pk_bf16_f32 v13, v10, v10\nv_lshlrev_b32 v13, 16, v13\nv_sub_f32 v13, v10, v13\nv_cvt_pk_bf16_f32 v13, v10, v13")
for t in range(16):
    A(f"v_mov_b32_dpp v{14+t%4}, v13 row_newbcast:{t} {DPP}")
    if t >= 1:
        for i in range(4):
            A(f"v_perm_b32 v{KR+4*(t-1)+i}, v{14+(t-1)%4}, v{14+(t-1)%4}, v{6+i}")
for i in range(4):
    A(f"v_perm_b32 v{KR+60+i}, v{14+15%4}, v{14+15%4}, v{6+i}")
for i in range(NV1, 16):
    kvload(VR, i, rB)
row_allreduce("v_add_f32", 10)
spin(C1, f"s{sNKV}", 12, f"ds_read_b32 v13, v{vL}", sleep=2)
A("v_sub_f32 v11, v11, v13\nv_exp_f32 v11, v11")
A("v_mul_f32 v10, v10, v11")
A("s_mov_b32 exec_lo, 0x00010001\ns_mov_b32 exec_hi, 0x00010001")
A(f"ds_add_f32 v{vL}, v10 offset:{LACC-MX}")
A("s_mov_b64 exec, 1")
A(f"ds_add_u32 v{vL}, v{vONE} offset:{C2-MX}")
A("s_mov_b64 exec, -1")
st(4)
for t in range(16):
    A(f"s_waitcnt vmcnt({15-t})")
    c = "0" if t == 0 else "v[28:31]"
    A(f"v_mfma_f32_16x16x32_bf16 v[28:31], {V(VR+4*t,4)}, {V(KR+4*t,4)}, {c}")
st(5)
for i in range(4):
    A(f"v_add_f32_dpp v{28+i}, v{28+i}, v{28+i} row_ror:8 {DPP}")
for i in range(4):
    A(f"v_mul_f32 v{28+i}, v{28+i}, v11")
A("s_mov_b32 exec_lo, 0x00ff00ff\ns_mov_b32 exec_hi, 0x00ff00ff")
A(f"ds_write_b128 v34, v[28:31] offset:{OSL}")
A("s_mov_b64 exec, 1")
A(f"ds_add_rtn_u32 v12, v{vL}, v{vONE} offset:{C3-MX}")
A("s_mov_b64 exec, -1")
for w in range(2, 12):
    A(f"ds_read_b64 {V(KR+2*(w-2),2)}, v35 offset:{OSL+512*w}")
A("s_waitcnt lgkmcnt(6)")
A(f"v_readfirstlane_b32 s{sT0}, v12")
P = lambda k: V(KR + 2 * k, 2)
A(f"v_pk_add_f32 {P(0)}, {P(0)}, {P(1)}\nv_pk_add_f32 {P(2)}, {P(2)}, {P(3)}\ns_waitcnt lgkmcnt(2)")
A(f"v_pk_add_f32 {P(4)}, {P(4)}, {P(5)}\nv_pk_add_f32 {P(6)}, {P(6)}, {P(7)}\nv_pk_add_f32 {P(0)}, {P(0)}, {P(2)}\ns_waitcnt lgkmcnt(0)")
A(f"v_pk_add_f32 {P(8)}, {P(8)}, {P(9)}\nv_pk_add_f32 {P(4)}, {P(4)}, {P(6)}\nv_pk_add_f32 {P(0)}, {P(0)}, {P(8)}\nv_pk_add_f32 v[18:19], {P(0)}, {P(4)}")
tag([18, 19])
A(f"s_cmp_lg_u32 s{sT0}, s{sN}\ns_cbranch_scc1 L_kv_notlast")
store_fs(f"buffer_store_dwordx2 v[18:19], v36, {R(rWS)}, 0 offen")
st(6)
A("L_kv_notlast:")
A(f"s_cmp_lg_u32 s{sU}, 0\ns_cbranch_scc1 L_kv_end")
spin(C2, f"s{sNKV}", 12, f"ds_read_b64 v[20:21], v{vL}")
tag([20, 21])
A(f"v_mov_b32 v22, v{vT}\nv_mov_b32 v23, v{vT}\ns_mov_b64 exec, 1")
store_fs(f"buffer_store_dwordx4 v[20:23], v37, {R(rWS)}, 0 offen")
st(7)
A("L_kv_end:")
end_wave()

A("L_helper:")
for i in range(4):
    A(f"s_mov_b32 s{sOFF+i}, {i*4096}")
A("s_cmp_eq_u32 s3, 0\ns_cbranch_scc1 L_q")
A("s_cmp_ge_u32 s3, 4\ns_cbranch_scc1 L_idle")
A("s_cmp_eq_u32 s2, 0\ns_cbranch_scc0 L_roles\ns_cmp_eq_u32 s3, 1\ns_cbranch_scc0 L_roles")
A(f"s_load_dword s{sT0}, s[{pWS}:{pWS+1}], {hex(EPOCH)}")
srd(rA, pDBG, 256)
A(f"v_mov_b32 v3, {EPOCH}\nv_lshlrev_b32 v4, 6, v0\ns_waitcnt lgkmcnt(0)")
A(f"s_add_u32 s{sT0}, s{sT0}, 0x0e3779b1\ns_and_b32 s{sT0}, s{sT0}, 0x0fffffff\ns_or_b32 s{sT1}, s{sT0}, 0x80000000")
A(f"v_mov_b32 v5, s{sT1}\nv_mov_b32 v6, s{sT0}\ns_mov_b64 exec, 15")
A(f"buffer_store_dword v5, v4, {R(rA)}, 0 offen sc1")
A("s_mov_b64 exec, 1")
A(f"buffer_store_dword v6, v3, {R(rWS)}, 0 offen sc1")
A("s_mov_b64 exec, -1")
A("s_branch L_roles")
A("L_idle:")
end_wave()

A("L_q:")
A("""v_and_b32 v28, 1, v0
v_lshlrev_b32 v28, 4, v28
v_mov_b32 v29, 0x100
v_lshlrev_b32 v29, v28, v29
v_mov_b32 v30, 0x0c0c0000
v_lshrrev_b32 v30, v28, v30
v_or_b32 v29, v29, v30
v_bfe_u32 v28, v0, 1, 3
v_mov_b32 v30, 0x0c0c0c0c""")
for i in range(4):
    A(f"v_cmp_eq_u32 vcc, {i}, v28\nv_cndmask_b32 v{20+i}, v30, v29, vcc")
A("s_waitcnt vmcnt(16)")
for j in range(4):
    A(f"v_lshlrev_b32 v{112+2*j}, 16, v{104+j}\nv_and_b32 v{113+2*j}, s{sHI}, v{104+j}")
A("v_add_f32 v36, v112, v113\nv_add_f32 v37, v114, v115\nv_add_f32 v34, v116, v117\nv_add_f32 v35, v118, v119")
A("v_add_f32 v36, v36, v37\nv_add_f32 v34, v34, v35\nv_add_f32 v36, v36, v34")
wave_allreduce_add(36, 37)
A(f"v_mul_f32 v36, {f32(1/512)}, v36")
for j in range(8):
    A(f"v_sub_f32 v{112+j}, v{112+j}, v36")
A("v_mul_f32 v37, v112, v112")
for j in range(1, 8):
    A(f"v_fmac_f32 v37, v{112+j}, v{112+j}")
wave_allreduce_add(37, 34)
A(f"v_mul_f32 v37, {f32(1/512)}, v37")
A(f"""v_cvt_pk_bf16_f32 v34, v36, v37
v_lshlrev_b32 v36, 16, v34
v_and_b32 v37, s{sHI}, v34
v_add_f32 v37, {f32(1e-5)}, v37
v_cvt_pk_bf16_f32 v37, v37, v37
v_and_b32 v37, s{sHI}, v37
v_sqrt_f32 v37, v37
v_cvt_pk_bf16_f32 v37, v37, v37
v_and_b32 v37, s{sHI}, v37
v_rcp_f32 v37, v37""")
for j in range(8):
    r = 12 + j
    A(f"""v_lshlrev_b32 v28, 16, v{r}
v_and_b32 v29, s{sHI}, v{r}
v_sub_f32 v28, v28, v36
v_sub_f32 v29, v29, v36
v_cvt_pk_bf16_f32 v30, v28, v29
v_lshlrev_b32 v28, 16, v30
v_and_b32 v29, s{sHI}, v30
v_mul_f32 v28, v28, v37
v_mul_f32 v29, v29, v37
v_cvt_pk_bf16_f32 v{r}, v28, v29""")
A(f"s_load_dword s{sN}, s[{pDBG}:{pDBG+1}], 0")
A("s_waitcnt vmcnt(0)")
st(1)
for t in range(16):
    src = 12 + t // 2
    if t % 2:
        A(f"v_lshrrev_b32 v{src}, 16, v{src}")
    b = 104 + 4 * (t % 2)
    for i in range(4):
        A(f"v_perm_b32 v{b+i}, v{src}, v{src}, v{20+i}")
    c = "0" if t == 0 else "v[24:27]"
    A(f"v_mfma_f32_16x16x32_bf16 v[24:27], {V(40+4*t,4)}, {V(b,4)}, {c}")
for k in range(1, 4):
    A(f"s_waitcnt lgkmcnt(0)\ns_cmp_lg_u32 s{sN}, 0\ns_cbranch_scc1 L_num_ok")
    if k > 1:
        A(f"s_sleep {opt['nsl']}")
    A(f"s_load_dword s{sN}, s[{pDBG}:{pDBG+1}], {64*k}")
srd(rA, pDBG, 256)
A(f"s_mov_b32 s{sCNT}, {opt['spin']}\nv_mov_b32 v3, 0\ns_waitcnt lgkmcnt(0)")
A(f"""L_num:
s_cmp_lg_u32 s{sN}, 0
s_cbranch_scc1 L_num_ok
s_sub_u32 s{sCNT}, s{sCNT}, 1
s_cbranch_scc1 L_num_ok
buffer_load_dword v4, v3, {R(rA)}, 0 offen sc1
s_waitcnt vmcnt(0)
v_readfirstlane_b32 s{sN}, v4
s_branch L_num
L_num_ok:""")
st(2)
A(f"s_and_b32 s{sT0}, s{sN}, s{sMASK}\nv_mov_b32 v{vT}, s{sT0}")
A(f"s_getreg_b32 s{sT1}, hwreg(HW_REG_XCC_ID)\ns_and_b32 s{sT1}, s{sT1}, 15\ns_lshl_b32 s{sN}, s{sN}, 4\ns_or_b32 s{sN}, s{sN}, s{sT1}")
A(f"s_lshl_b32 s{sT0}, s{sSLOT}, 9\ns_add_u32 s{sT0}, s{sT0}, {QS}")
A(f"v_lshrrev_b32 v2, 4, v0\nv_and_b32 v3, 7, v0\nv_lshl_add_u32 v2, v2, 3, v3\nv_lshl_add_u32 v2, v2, 4, s{sT0}")
tag([24, 25, 26, 27])
A("s_mov_b32 exec_lo, 0x00ff00ff\ns_mov_b32 exec_hi, 0x00ff00ff")
A(f"buffer_store_dwordx4 v[24:27], v2, {R(rWS)}, 0 offen sc1")
A("s_mov_b64 exec, -1")
A(f"s_lshl_b32 s{sT1}, s{sXG}, 7\ns_add_u32 s{sT1}, s{sT1}, {XC}\nv_lshl_add_u32 v5, v3, 2, s{sT1}")
A(f"s_cmp_eq_u32 s{sROLE}, 0\ns_cbranch_scc0 L_noxc")
A(f"s_lshl_b32 s{sT0}, s{sR}, 2\ns_add_u32 s{sT0}, s{sT0}, s{sT1}\nv_mov_b32 v3, s{sT0}\nv_mov_b32 v4, s{sN}\ns_mov_b64 exec, 1")
A(f"buffer_store_dword v4, v3, {R(rWS)}, 0 offen sc1")
A("s_mov_b64 exec, -1")
A("L_noxc:")
A(f"s_and_b32 s{sT0}, s{sSLOT}, 0xf8\ns_lshl_b32 s{sT0}, s{sT0}, 9\ns_add_u32 s{sT0}, s{sT0}, {QS}")
A(f"v_lshl_add_u32 v7, v0, 4, s{sT0}")
A("v_bfe_u32 v2, v0, 3, 2\nv_lshlrev_b32 v2, 2, v2\nv_lshrrev_b32 v3, 5, v0\nv_add_u32 v2, v2, v3\nv_and_b32 v3, 7, v0\nv_lshl_add_u32 v2, v2, 3, v3\nv_lshlrev_b32 v2, 1, v2")
if not opt.get("noq"):
    A("s_waitcnt vmcnt(0)")
st(3)


def q_poll():
    for t in range(4):
        A(f"buffer_load_dwordx4 {V(112+4*t,4)}, v7, {R(rWS)}, 0 offen offset:{1024*t} sc1")
    A(f"buffer_load_dword v6, v5, {R(rWS)}, 0 offen sc1")


if not opt.get("noq"):
    poll(q_poll, list(range(112, 128)), 10)
A(f"v_cmp_ne_u32 vcc, s{sN}, v6\ns_cmp_eq_u64 vcc, 0\ns_cselect_b32 s{sFAST}, 1, 0")
A(f"v_mov_b32 v4, s{sFAST}\nv_mov_b32 v5, v{vT}\nds_write_b64 v{vL}, v[4:5] offset:{FAST-MX}")
for i in range(4):
    A(f"v_add_f32 v{112+i}, v{112+i}, v{116+i}\nv_add_f32 v{120+i}, v{120+i}, v{124+i}")
for i in range(4):
    A(f"v_add_f32 v{112+i}, v{112+i}, v{120+i}")
A("v_permlane32_swap_b32 v112, v113\nv_permlane32_swap_b32 v114, v115")
A("v_add_f32 v112, v112, v113\nv_add_f32 v114, v114, v115")
A("v_cvt_pk_bf16_f32 v112, v112, v114")
A(f"ds_write_b16 v2, v112 offset:{QL}\nds_write_b16_d16_hi v2, v112 offset:{QL+32}")
A(f"ds_write_b32 v{vL}, v{vONE} offset:{CQ-MX}")
st(4)

A("L_roles:")
A(f"s_cmp_eq_u32 s{sROLE}, 1\ns_cbranch_scc1 L_mlp")
A(f"s_cmp_eq_u32 s{sROLE}, 0\ns_cbranch_scc1 L_z")
end_wave()


def trigger(trig, loads):
    if opt.get("now"):
        return
    if trig != "start":
        off, n = {"q": (CQ, 1), "c1": (C1, f"s{sNKV}"), "c1h": (C1, 4), "c2": (C2, f"s{sNKV}"), "c2h": (C2, 4)}[trig]
        spin(off, n, 10, sleep=4)
    loads()


A("L_z:")
ZB, ZO, ZST, ZA, ZD = 40, 104, 120, 124, 140
srd(rA, pWO, 0x400000)
A(f"s_lshl_b32 s{sT0}, s{sXG}, 2\ns_add_u32 s{sT0}, s{sT0}, s3\ns_lshl_b32 s{sT0}, s{sT0}, 17\ns_lshl_b32 s{sT1}, s{sR}, 7\ns_add_u32 s{sT0}, s{sT0}, s{sT1}")
A(f"v_bfe_u32 v1, v0, 3, 2\nv_lshrrev_b32 v2, 5, v0\nv_lshl_add_u32 v1, v1, 3, v2\nv_lshlrev_b32 v1, 10, v1\nv_and_b32 v2, 7, v0\nv_lshl_add_u32 v1, v2, 4, v1\nv_add_u32 v1, s{sT0}, v1")
A(f"s_lshl_b32 s{sIMG}, s3, 14\ns_add_u32 s{sIMG}, s{sIMG}, {WIMG}")
A(f"v_lshrrev_b32 v3, 4, v0\nv_lshlrev_b32 v3, 3, v3\nv_bfe_u32 v4, v0, 2, 2\nv_add_u32 v3, v3, v4\nv_lshlrev_b32 v3, 7, v3\nv_and_b32 v4, 3, v0\nv_lshl_add_u32 v3, v4, 3, v3\nv_add_u32 v3, s{sIMG}, v3")
A(f"s_lshl_b32 s{sT0}, s{sXG}, 5\ns_lshl_b32 s{sT1}, s3, 3\ns_add_u32 s{sT0}, s{sT0}, s{sT1}")
A(f"s_lshl_b32 s{sT1}, s{sT0}, 9\ns_add_u32 s{sT1}, s{sT1}, {OS}\nv_lshl_add_u32 v4, v0, 3, s{sT1}")
A(f"s_lshl_b32 s{sT1}, s{sT0}, 4\ns_add_u32 s{sT1}, s{sT1}, {ST}\nv_lshl_add_u32 v5, v2, 4, s{sT1}")
A(f"s_lshl_b32 s{sT0}, s3, 8\ns_add_u32 s{sT0}, s{sT0}, {SCR}\nv_lshl_add_u32 v6, v0, 2, s{sT0}")
A(f"v_lshrrev_b32 v7, 4, v0\nv_lshl_add_u32 v7, v7, 4, s{sT0}")
A(f"v_subrev_u32 v25, {SCR-ZP}, v6")
A(f"s_lshl_b32 s{sT0}, s{sXG}, 3\ns_add_u32 s{sT0}, s{sT0}, s{sR}\ns_lshl_b32 s{sT0}, s{sT0}, 1\ns_and_b32 s{sT1}, s3, 1\ns_add_u32 s{sT0}, s{sT0}, s{sT1}\ns_lshl_b32 s{sT0}, s{sT0}, 2")
A(f"v_lshrrev_b32 v20, 4, v0\nv_add_u32 v20, s{sT0}, v20\nv_lshlrev_b32 v21, 1, v20\nv_lshlrev_b32 v20, 2, v20\nv_add_u32 v20, {ZS}, v20")
A(f"s_lshl_b32 s{sT0}, s{sT0}, 2\nv_lshlrev_b32 v22, 11, v0\nv_add_u32 v22, s{sT0}, v22\nv_add_u32 v23, {64*2048}, v22")
A(f"s_lshl_b32 s{sT0}, s{sXG}, 11\ns_lshl_b32 s{sT1}, s{sR}, 8\ns_add_u32 s{sT0}, s{sT0}, s{sT1}\ns_add_u32 s{sT0}, s{sT0}, {ZS}\nv_add_u32 v24, s{sT0}, v8")
srd(rC, pWS, NMLP * 2048, PS)
srd(rB, pOUT, 1024)


def z_loads():
    A(f"buffer_load_ushort v26, v21, {R(rD)}, 0 offen")
    for t in range(16):
        A(f"s_add_u32 m0, s{sIMG}, {t*1024}\ns_mov_b32 s{sT1}, {((t>>2)*32+(t&3)*2)*1024}")
        A(f"buffer_load_dwordx4 v1, {R(rA)}, s{sT1} offen{fl('wofl')} lds")


def z_prep():
    for kb in range(4):
        for nt in range(4):
            for hf in range(2):
                A(f"ds_read_b64_tr_b16 {V(ZB+(kb*4+nt)*4+2*hf,2)}, v3 offset:{kb*4096+hf*512+nt*32}")


def z_poll():
    A(f"buffer_load_dwordx4 {V(ZST,4)}, v5, {R(rWS)}, 0 offen sc1")
    for s in range(8):
        A(f"buffer_load_dwordx2 {V(ZO+2*s,2)}, v4, {R(rWS)}, 0 offen offset:{512*s} sc1")


trigger(opt["trigz"], z_loads)
zlate = opt["trigz"] in ("c2", "c2h", "c1")
if not zlate:
    A("s_waitcnt vmcnt(0)")
    z_prep()
st(5)
spin(C3, f"s{sNKV}", 10, f"ds_read_b32 v{vT}, v{vL} offset:{TAG-MX}")
poll(z_poll, list(range(ZO, ZO + 20)), 10, (lambda: (A("s_waitcnt vmcnt(9)"), z_prep())) if zlate else None)
st(6)
A(f"""v_max_f32_dpp v10, v{ZST}, v{ZST} quad_perm:[1,0,3,2] {DPP}
v_max_f32_dpp v10, v10, v10 quad_perm:[2,3,0,1] {DPP}
v_max_f32_dpp v10, v10, v10 row_half_mirror {DPP}
v_sub_f32 v10, v{ZST}, v10
v_exp_f32 v10, v10
v_mul_f32 v11, v10, v{ZST+1}
v_add_f32_dpp v11, v11, v11 quad_perm:[1,0,3,2] {DPP}
v_add_f32_dpp v11, v11, v11 quad_perm:[2,3,0,1] {DPP}
v_add_f32_dpp v11, v11, v11 row_half_mirror {DPP}
v_rcp_f32 v11, v11
v_mul_f32 v10, v10, v11""")
A(f"v_mul_f32_dpp v12, v10, v{ZO} row_newbcast:0 {DPP}\nv_mul_f32_dpp v13, v10, v{ZO+1} row_newbcast:0 {DPP}")
for s in range(1, 8):
    A(f"v_fmac_f32_dpp v12, v10, v{ZO+2*s} row_newbcast:{s} {DPP}\nv_fmac_f32_dpp v13, v10, v{ZO+1+2*s} row_newbcast:{s} {DPP}")
A("v_cvt_pk_bf16_f32 v12, v12, v13\nds_write_b32 v6, v12")
for kb in range(4):
    A(f"ds_read_b128 {V(ZA+4*kb,4)}, v7 offset:{64*kb}")
for kb in range(4):
    A(f"s_waitcnt lgkmcnt({3-kb})")
    for nt in range(4):
        c = "0" if kb == 0 else V(ZD + 4 * nt, 4)
        A(f"v_mfma_f32_16x16x32_bf16 {V(ZD+4*nt,4)}, {V(ZA+4*kb,4)}, {V(ZB+(kb*4+nt)*4,4)}, {c}")
for nt in range(1, 4):
    A(f"v_mov_b32_dpp v{ZD}, v{ZD+4*nt} quad_perm:[0,1,2,3] row_mask:{hex(1<<nt)} bank_mask:0xf")
A(f"ds_write_b32 v6, v{ZD} offset:{ZP-SCR+65536-65536}" if ZP >= SCR else f"ds_write_b32 v25, v{ZD}")
A("s_mov_b64 exec, 1")
A(f"ds_add_rtn_u32 v10, v{vL}, v{vONE} offset:{C4-MX}")
A("s_mov_b64 exec, 0xffff")
for w in range(4):
    A(f"ds_read_b128 {V(12 if w == 0 else ZA+4*w,4)}, v8 offset:{ZP+256*w}")
A("s_waitcnt lgkmcnt(2)")
A(f"v_readfirstlane_b32 s{sT0}, v10")
A(f"v_pk_add_f32 v[12:13], v[12:13], {V(ZA+4,2)}\nv_pk_add_f32 v[14:15], v[14:15], {V(ZA+6,2)}\ns_waitcnt lgkmcnt(0)")
A(f"v_pk_add_f32 {V(ZA+8,2)}, {V(ZA+8,2)}, {V(ZA+12,2)}\nv_pk_add_f32 {V(ZA+10,2)}, {V(ZA+10,2)}, {V(ZA+14,2)}")
A(f"v_pk_add_f32 v[12:13], v[12:13], {V(ZA+8,2)}\nv_pk_add_f32 v[14:15], v[14:15], {V(ZA+10,2)}")
tag([12, 13, 14, 15])
A(f"s_cmp_lg_u32 s{sT0}, 3\ns_cbranch_scc1 L_z_notlast")
A(f"buffer_store_dwordx4 v[12:15], v24, {R(rWS)}, 0 offen sc1")
st(7)
A("L_z_notlast:")
A("s_mov_b64 exec, -1")
A(f"s_sub_u32 s{sT0}, s3, 1\ns_cmp_lt_u32 s{sT0}, 2\ns_cbranch_scc1 L_fin")
end_wave()
A("L_fin:")


def f_poll1():
    for x in range(8):
        A(f"buffer_load_dword v{104+x}, v20, {R(rWS)}, s{sOFF+x//2} offen offset:{2048*(x%2)} sc1")


poll(f_poll1, list(range(104, 112)), 10)
st(1)


def f_poll2():
    A(f"buffer_load_dwordx4 v[112:115], v22, {R(rC)}, 0 offen sc1")
    A(f"buffer_load_dwordx4 v[116:119], v23, {R(rC)}, 0 offen sc1")


def f_between():
    A("""v_add_f32 v104, v104, v106
v_add_f32 v105, v105, v107
v_add_f32 v104, v104, v108
v_add_f32 v105, v105, v109
v_add_f32 v104, v104, v110
v_add_f32 v105, v105, v111
v_add_f32 v104, v104, v105
v_cvt_pk_bf16_f32 v104, v104, v104
v_lshlrev_b32 v104, 16, v104
v_lshlrev_b32 v26, 16, v26
v_add_f32 v104, v104, v26
v_cvt_pk_bf16_f32 v104, v104, v104
v_lshlrev_b32 v104, 16, v104""")


poll(f_poll2, list(range(112, 116)), 10, f_between, masked=((1 << (NMLP - 64)) - 1, list(range(116, 120))))
st(2)
for i in range(4):
    A(f"v_add_f32 v{112+i}, v{112+i}, v{116+i}")
A("v_permlane32_swap_b32 v112, v114\nv_permlane32_swap_b32 v113, v115")
A("v_add_f32 v112, v112, v114\nv_add_f32 v113, v113, v115")
A("v_permlane16_swap_b32 v112, v113\nv_add_f32 v112, v112, v113")
row_allreduce("v_add_f32", 112)
A("v_cvt_pk_bf16_f32 v112, v112, v112\nv_lshlrev_b32 v112, 16, v112\nv_add_f32 v112, v112, v104\nv_cvt_pk_bf16_f32 v112, v112, v112")
A("s_mov_b32 exec_lo, 0x00010001\ns_mov_b32 exec_hi, 0x00010001")
A(f"buffer_store_short v112, v21, {R(rB)}, 0 offen sc1")
st(3)
end_wave()

A("L_mlp:")
srd(rA, pWG, 512 * 2752)
srd(rB, pWU, 512 * 2752)
srd(rC, pWD, 1376 * 1024)
A(f"s_lshl_b32 s{sT0}, s3, 7\nv_lshrrev_b32 v1, 1, v0\nv_add_u32 v1, s{sT0}, v1\nv_mul_u32_u24 v1, 2752, v1")
A(f"v_and_b32 v2, 1, v0\nv_lshl_add_u32 v1, v2, 4, v1\ns_lshl_b32 s{sT0}, s{sR}, 5\nv_add_u32 v1, s{sT0}, v1")
A(f"s_lshl_b32 s{sIMG}, s3, 13\ns_add_u32 s{sIMG}, s{sIMG}, {WIMG}")
A(f"v_lshrrev_b32 v3, 4, v0\nv_lshlrev_b32 v3, 3, v3\nv_bfe_u32 v4, v0, 2, 2\nv_add_u32 v3, v3, v4\nv_lshlrev_b32 v3, 5, v3\nv_and_b32 v2, 3, v0\nv_lshl_add_u32 v3, v2, 3, v3\nv_add_u32 v3, s{sIMG}, v3")
A(f"s_lshl_b32 s{sT0}, s3, 9\ns_add_u32 s{sT0}, s{sT0}, {ZS}\nv_lshrrev_b32 v2, 5, v0\nv_and_b32 v5, 31, v0\nv_lshlrev_b32 v4, 11, v2\nv_lshl_add_u32 v4, v5, 4, v4\nv_add_u32 v4, s{sT0}, v4")
A(f"v_lshlrev_b32 v5, 3, v5\nv_lshl_add_u32 v5, v2, 2, v5\ns_lshl_b32 s{sT0}, s3, 8\nv_add_u32 v5, s{sT0}, v5\nv_add_u32 v6, {SCR}, v5")
A(f"s_add_u32 s{sT0}, s{sT0}, {SCR}\nv_lshrrev_b32 v7, 4, v0\nv_lshl_add_u32 v7, v7, 4, s{sT0}")
A("v_lshlrev_b32 v9, 2, v0")
A(f"s_lshl_b32 s{sT0}, s{sR}, 14\ns_lshl_b32 s{sT1}, s3, 8\ns_add_u32 s{sT0}, s{sT0}, s{sT1}\nv_add_u32 v20, s{sT0}, v9")
A(f"s_lshl_b32 s{sT0}, s{sR}, 11\ns_lshl_b32 s{sT1}, s3, 9\ns_add_u32 s{sT0}, s{sT0}, s{sT1}\ns_add_u32 s{sT0}, s{sT0}, {PS}\nv_lshl_add_u32 v21, v0, 3, s{sT0}")
A(f"v_and_b32 v22, 15, v0\nv_lshlrev_b32 v22, 3, v22\ns_lshl_b32 s{sT0}, s3, 7\ns_add_u32 s{sT0}, s{sT0}, {ZP}\nv_add_u32 v25, s{sT0}, v22")
A(f"v_lshrrev_b32 v23, 5, v0\nv_lshlrev_b32 v23, 2, v23\nv_add_u32 v23, {SQ}, v23\nv_mov_b32 v24, {SQ}")
for i in range(4):
    A(f"v_mov_b32 v{116+i}, 0x3f803f80")
A(f"s_mov_b32 s{sM1}, 0x05040100\ns_mov_b32 s{sM1+1}, 0x07060302")


def m_loads():
    A(f"buffer_load_dword v26, v5, {R(rD)}, 0 offen")
    for t in range(4):
        A(f"s_add_u32 m0, s{sIMG}, {t*1024}\ns_mov_b32 s{sT1}, {t*32*2752}")
        A(f"buffer_load_dwordx4 v1, {R(rA)}, s{sT1} offen{fl('gufl')} lds")
        A(f"s_add_u32 m0, s{sIMG}, {4096+t*1024}")
        A(f"buffer_load_dwordx4 v1, {R(rB)}, s{sT1} offen{fl('gufl')} lds")
    for r in range(16):
        A(f"buffer_load_dword v{120+r}, v20, {R(rC)}, s{sOFF+r//4} offen offset:{1024*(r%4)}{fl('wdfl')}")
        A("s_nop 0")


trigger(opt["trigm"], m_loads)
st(5)
A("s_waitcnt vmcnt(0)")
for kb in range(4):
    for tl in range(2):
        for hf in range(2):
            A(f"ds_read_b64_tr_b16 {V(40+(kb*2+tl)*4+2*hf,2)}, v3 offset:{kb*1024+hf*128+tl*4096}")
for i in range(8):
    A(f"v_perm_b32 v{136+i}, v{121+2*i}, v{120+2*i}, s{sM1}\nv_perm_b32 v{144+i}, v{121+2*i}, v{120+2*i}, s{sM1+1}")
A(f"v_lshlrev_b32 v27, 16, v26\nv_and_b32 v26, s{sHI}, v26")
A("s_waitcnt lgkmcnt(0)")
for kb in range(4):
    for tl in range(2):
        c = "0" if kb == 0 else V(108 + 4 * tl, 4)
        A(f"v_mfma_f32_16x16x32_bf16 {V(108+4*tl,4)}, v[116:119], {V(40+(kb*2+tl)*4,4)}, {c}")
A("s_mov_b64 exec, 0xffff")
A(f"ds_add_f32 v22, v108 offset:{CS}\nds_add_f32 v22, v112 offset:{CS+4}")
A("s_mov_b64 exec, -1")
A("v_mov_b32 v30, 0\nv_mov_b32 v31, 0")
st(1)
spin(C3, f"s{sNKV}", 10, f"ds_read_b32 v{vT}, v{vL} offset:{TAG-MX}")


def m_poll():
    for t in range(4):
        A(f"buffer_load_dwordx4 {V(72+4*t,4)}, v4, {R(rWS)}, s{sOFF+t} offen sc1")


poll(m_poll, list(range(72, 88)), 10)
st(6)
for t in range(1, 4):
    for i in range(4):
        A(f"v_add_f32 v{72+i}, v{72+i}, v{72+4*t+i}")
A("v_permlane32_swap_b32 v72, v74\nv_permlane32_swap_b32 v73, v75")
A(f"""v_add_f32 v72, v72, v74
v_add_f32 v73, v73, v75
v_cvt_pk_bf16_f32 v72, v72, v73
v_lshlrev_b32 v73, 16, v72
v_and_b32 v72, s{sHI}, v72
v_add_f32 v73, v73, v27
v_add_f32 v72, v72, v26
v_cvt_pk_bf16_f32 v72, v73, v72
ds_write_b32 v6, v72""")
for kb in range(4):
    A(f"ds_read_b128 {V(92+4*kb,4)}, v7 offset:{64*kb}")
A(f"""v_lshlrev_b32 v73, 16, v72
v_and_b32 v72, s{sHI}, v72
v_add_f32 v74, v72, v73
v_mul_f32 v75, v72, v72
v_fmac_f32 v75, v73, v73""")
A("v_permlane32_swap_b32 v74, v75\nv_add_f32 v74, v74, v75")
rr = [8, 4, 2, 1]
for kb in range(4):
    A(f"s_waitcnt lgkmcnt({3-kb})")
    for tl in range(2):
        c = "0" if kb == 0 else V(108 + 4 * tl, 4)
        A(f"v_mfma_f32_16x16x32_bf16 {V(108+4*tl,4)}, {V(92+4*kb,4)}, {V(40+(kb*2+tl)*4,4)}, {c}")
    A(f"v_add_f32_dpp v74, v74, v74 row_ror:{rr[kb]} {DPP}")
A("s_mov_b32 exec_lo, 0x00010001\ns_mov_b32 exec_hi, 0x00010001")
A("ds_add_f32 v23, v74")
A("s_mov_b64 exec, 0xffff")
A("ds_write2_b32 v25, v108, v112 offset0:0 offset1:1")
A("s_mov_b64 exec, -1")
A("s_waitcnt lgkmcnt(0)\ns_barrier")
A(f"ds_read_b64 v[16:17], v24\nds_read_b64 v[14:15], v22 offset:{CS}")
for w in range(4):
    A(f"ds_read_b64 {V(12 if w == 0 else 92+2*w,2)}, v22 offset:{ZP+128*w}")
A("s_waitcnt lgkmcnt(5)")
A(f"""v_mul_f32 v16, {f32(1/512)}, v16
v_mul_f32 v17, {f32(1/512)}, v17
v_fma_f32 v17, -v16, v16, v17
v_max_f32 v17, 0, v17
v_cvt_pk_bf16_f32 v18, v16, v17
v_lshlrev_b32 v16, 16, v18
v_and_b32 v17, s{sHI}, v18
v_add_f32 v17, {f32(1e-5)}, v17
v_cvt_pk_bf16_f32 v17, v17, v17
v_and_b32 v17, s{sHI}, v17
v_sqrt_f32 v17, v17
v_cvt_pk_bf16_f32 v17, v17, v17
v_and_b32 v17, s{sHI}, v17
v_rcp_f32 v17, v17
s_waitcnt lgkmcnt(0)
v_pk_add_f32 v[12:13], v[12:13], v[94:95]
v_pk_add_f32 v[96:97], v[96:97], v[98:99]
v_pk_add_f32 v[12:13], v[12:13], v[96:97]
v_fma_f32 v12, -v16, v14, v12
v_fma_f32 v13, -v16, v15, v13
v_mul_f32 v12, v12, v17
v_mul_f32 v13, v13, v17
v_cvt_pk_bf16_f32 v12, v12, v13
v_and_b32 v13, s{sHI}, v12
v_lshlrev_b32 v12, 16, v12
v_mul_f32 v12, {f32(-1.4426950408889634)}, v12
v_exp_f32 v12, v12
v_add_f32 v12, 1.0, v12
v_rcp_f32 v12, v12
v_cvt_pk_bf16_f32 v12, v12, v12
v_and_b32 v12, s{sHI}, v12
v_mul_f32 v12, v12, v13
v_mov_b32_dpp v13, v12 quad_perm:[1,0,3,2] {DPP}
v_cvt_pk_bf16_f32 v12, v12, v13""")
for i in range(8):
    A(f"v_dot2c_f32_bf16_dpp v30, v12, v{136+i} row_newbcast:{2*i} {DPP}")
    A(f"v_dot2c_f32_bf16_dpp v31, v12, v{144+i} row_newbcast:{2*i} {DPP}")
tag([30, 31])
A(f"buffer_store_dwordx2 v[30:31], v21, {R(rWS)}, 0 offen sc1")
st(7)
end_wave()

if STAMPS:
    A("L_stamps:")
    A("s_mov_b64 exec, 1")
    A("s_waitcnt lgkmcnt(0)\ns_memrealtime s[4:5]\ns_waitcnt lgkmcnt(0)\ns_memtime s[6:7]")
    A(f"s_mul_i32 s{sT0}, s2, 12\ns_add_u32 s{sT0}, s{sT0}, s3\ns_lshl_b32 s{sT0}, s{sT0}, 6\ns_add_u32 s{sT0}, s{sT0}, {STAMP}")
    A(f"v_mov_b32 v1, s{sT0}\ns_waitcnt lgkmcnt(0)")
    for k in range(8):
        A(f"v_mov_b32 v{4+k}, s{sST+2*k}")
    A("v_mov_b32 v12, s100\nv_mov_b32 v13, s4\nv_mov_b32 v14, s6\nv_mov_b32 v15, 0")
    A(f"buffer_store_dwordx4 v[4:7], v1, {R(rWS)}, 0 offen\nbuffer_store_dwordx4 v[8:11], v1, {R(rWS)}, 0 offen offset:16\nbuffer_store_dwordx4 v[12:15], v1, {R(rWS)}, 0 offen offset:32")
A("L_exit:")
A("s_endpgm")
A("L_last:")

body, problems = fix_hazards(L)
for p in problems:
    print("HAZARD:", p, file=sys.stderr)
for line in body:
    out.append(line if line.endswith(":") else "    " + line)
out.append(f""".section .rodata,"a"
.p2align 6
.amdhsa_kernel {NAME}_kernel
  .amdhsa_next_free_vgpr 168
  .amdhsa_next_free_sgpr 102
  .amdhsa_accum_offset 168
  .amdhsa_group_segment_fixed_size 0
  .amdhsa_kernarg_size 96
  .amdhsa_user_sgpr_count 2
  .amdhsa_user_sgpr_kernarg_segment_ptr 1
  .amdhsa_system_sgpr_workgroup_id_x 1
  .amdhsa_float_denorm_mode_32 3
.end_amdhsa_kernel""")
open(sys.argv[1], "w").write("\n".join(out) + "\n")
```

```python
import sys, struct
from asmlib import fix_hazards

NAME = "sequential_preLN__mha_block_cached__glu_gated_glu__decode"
opt = dict(stamps=0, nv1=12, trigz="start", trigm="start", pat="B", kvfl="nt", wqfl="nt", wofl="nt", gufl="nt",
           wdfl="nt", fast=1, pf=1, gap=0, prio=0, bal=1, nsl=12, spin=100000)
for a in sys.argv[2:]:
    k, v = a.split("=")
    opt[k] = v if not v.lstrip("-").isdigit() else int(v)
STAMPS = opt["stamps"]
NV1 = opt["nv1"]


def fl(name):
    v = opt[name]
    return "" if v == "plain" else " " + v.replace("+", " ")


def f32(x):
    return "0x%08x" % struct.unpack("<I", struct.pack("<f", x))[0]


QS, OS, ST, ZS, XC, EPOCH, PS, STAMP = 0x0, 0x20000, 0x40000, 0x41000, 0x45000, 0x46000, 0x48000, 0x80000
NMLP = 86
TAGMASK = 0x3ff
QL, MX, LACC, SQ, CS, ZP, SCR, OSL, WIMG = 0, 256, 260, 272, 1024, 1536, 3072, 4096, 10240
CQ, C1, C2, C3, C4, FAST, TAG = 280, 284, 288, 292, 296, 304, 308
LDS_BYTES = WIMG + 4 * 16384
pX, pK, pV, pWQ, pWO, pWG, pWU, pWD, pOUT, pDBG, pWS = 4, 6, 8, 10, 12, 16, 18, 20, 22, 24, 26
rA, rB, rWS, rC, rD = 28, 32, 36, 44, 48
sNKV, sROLE, sMASK, sN = 40, 41, 42, 43
sXG, sI, sSLOT, sR, sT0, sT1, sCNT, sFAST = 52, 53, 54, 55, 56, 57, 58, 59
sM1, sM0, sU, sIMG, sC2, sHI = 60, 62, 64, 65, 66, 67
sOFF = 68
sST = 84
vT = 38
vONE = 39
vL = 33

L = []


def A(s):
    for line in s.split("\n"):
        line = line.strip()
        if line:
            L.append(line)


def srd(r, p, size, add=None):
    if add is None:
        A(f"s_mov_b32 s{r}, s{p}\ns_mov_b32 s{r+1}, s{p+1}")
    else:
        A(f"s_add_u32 s{r}, s{p}, {add}\ns_addc_u32 s{r+1}, s{p+1}, 0")
    A(f"s_mov_b32 s{r+2}, {hex(size)}\ns_mov_b32 s{r+3}, 0x20000")


def R(r):
    return f"s[{r}:{r+3}]"


def V(a, n):
    return f"v[{a}:{a+n-1}]"


def st(k):
    if STAMPS and str(k) not in str(opt.get("nost", "")):
        A(f"s_memtime s[{sST+2*k}:{sST+2*k+1}]")


def end_wave():
    A("s_branch L_stamps" if STAMPS else "s_endpgm")


DPP = "row_mask:0xf bank_mask:0xf"


def row_allreduce(op, a):
    for n in (8, 4, 2, 1):
        A(f"{op}_dpp v{a}, v{a}, v{a} row_ror:{n} {DPP}")


def wave_allreduce_add(a, t):
    row_allreduce("v_add_f32", a)
    for sw in ("v_permlane16_swap_b32", "v_permlane32_swap_b32"):
        A(f"v_mov_b32 v{t}, v{a}\n{sw} v{a}, v{t}\nv_add_f32 v{a}, v{a}, v{t}")


def tag(regs):
    for r in regs:
        A(f"v_bfi_b32 v{r}, s{sMASK}, v{vT}, v{r}")


uid = [0]


def poll(loads, regs, tmp, between=None, masked=None):
    uid[0] += 1
    u = uid[0]
    loads()
    if between:
        between()
    A(f"s_mov_b32 s{sCNT}, {opt['spin']}")
    A(f"L_poll{u}:")
    A("s_waitcnt vmcnt(0)")
    rs = list(regs)
    A(f"v_xor_b32 v{tmp}, v{rs[0]}, v{vT}\nv_xor_b32 v{tmp+1}, v{rs[1]}, v{vT}")
    for n, r in enumerate(rs[2:]):
        A(f"v_bitop3_b32 v{tmp+n%2}, v{tmp+n%2}, v{r}, v{vT} bitop3:0xf6")
    if masked:
        A(f"s_mov_b64 exec, {hex(masked[0])}")
        for n, r in enumerate(masked[1]):
            A(f"v_bitop3_b32 v{tmp+n%2}, v{tmp+n%2}, v{r}, v{vT} bitop3:0xf6")
        A("s_mov_b64 exec, -1")
    A(f"v_bitop3_b32 v{tmp}, v{tmp}, v{tmp+1}, s{sMASK} bitop3:0xa8")
    A(f"v_cmp_ne_u32 vcc, 0, v{tmp}")
    A(f"s_cbranch_vccz L_ok{u}")
    A(f"s_sub_u32 s{sCNT}, s{sCNT}, 1\ns_cbranch_scc1 L_ok{u}")
    loads()
    A(f"s_branch L_poll{u}")
    A(f"L_ok{u}:")


def spin(off, n, tmp, extra=None, sleep=1):
    uid[0] += 1
    u = uid[0]
    A(f"L_spin{u}:")
    A(f"ds_read_b32 v{tmp}, v{vL} offset:{off-MX}")
    if extra:
        A(extra)
    A("s_waitcnt lgkmcnt(0)")
    A(f"v_readfirstlane_b32 s{sT0}, v{tmp}")
    A(f"s_cmp_ge_u32 s{sT0}, {n}\ns_cbranch_scc1 L_spun{u}")
    if sleep:
        A(f"s_sleep {sleep}")
    A(f"s_branch L_spin{u}")
    A(f"L_spun{u}:")


def store_fs(instr):
    uid[0] += 1
    u = uid[0]
    if not opt["fast"]:
        A(instr + " sc1")
        return
    A(f"s_cmp_eq_u32 s{sFAST}, 0\ns_cbranch_scc1 L_slow{u}")
    A(instr)
    A(f"s_branch L_sdone{u}")
    A(f"L_slow{u}:")
    A(instr + " sc1")
    A(f"L_sdone{u}:")


hdr = open("cdna_kernels/" + NAME + ".s.ref").read().split("\n")
out = [l for l in hdr if l.startswith(";") and "@launch" not in l and "Override" not in l and "grid=ceil" not in l]
out.append(f"; @launch grid=(256,1,1) block=(768,1,1) lds={LDS_BYTES}")
out.append('.amdgcn_target "amdgcn-amd-amdhsa--gfx950"')
out.append(".text")
out.append(f".globl {NAME}_kernel")
out.append(".p2align 8")
out.append(f".type {NAME}_kernel,@function")
out.append(f"{NAME}_kernel:")

A("L_start:")
A("s_cmp_ge_u32 s2, 256\ns_cbranch_scc1 L_exit")
A("s_load_dwordx16 s[4:19], s[0:1], 0\ns_load_dwordx8 s[20:27], s[0:1], 64")
if STAMPS:
    for k in range(8):
        A(f"s_mov_b32 s{sST+2*k}, 0")
st(0)
if STAMPS or opt.get("diag"):
    A("s_memrealtime s[100:101]")
A("v_lshrrev_b32 v1, 6, v0\nv_and_b32 v0, 63, v0\nv_readfirstlane_b32 s3, v1")
A(f"s_and_b32 s{sXG}, s2, 7\ns_lshr_b32 s{sI}, s2, 3\ns_lshl_b32 s{sSLOT}, s{sXG}, 5\ns_add_u32 s{sSLOT}, s{sSLOT}, s{sI}")
A("v_lshlrev_b32 v8, 4, v0")
if opt["pf"]:
    A("s_cmp_eq_u32 s3, 1\ns_cbranch_scc0 L_pf_done")
    A(f"s_getpc_b64 s[{rA}:{rA+1}]")
    A("L_pc:")
    A(f"s_sub_u32 s{rA}, s{rA}, L_pc-L_start\ns_subb_u32 s{rA+1}, s{rA+1}, 0")
    A(f"s_and_b32 s{sT0}, s{sI}, 15\ns_lshl_b32 s{sT0}, s{sT0}, 10\nv_add_u32 v1, s{sT0}, v8")
    A("v_min_u32 v1, (L_last-L_start-16)&0xfffffff0, v1")
    A(f"global_load_dwordx4 v[160:163], v1, s[{rA}:{rA+1}]")
    A("L_pf_done:")
A("v_mov_b32 v4, 0\nv_mov_b32 v5, 0\nv_mov_b32 v6, 0\nv_mov_b32 v7, 0")
A(f"s_mov_b32 s{sT0}, 0xff800000\nv_writelane_b32 v4, s{sT0}, 0")
A(f"ds_write_b128 v8, v[4:7] offset:{MX}")
A(f"s_lshl_b32 s{sT0}, s3, 9\nv_lshl_add_u32 v9, v0, 3, s{sT0}\nds_write_b64 v9, v[6:7] offset:{OSL}")
nz, nmu = (8, 6) if opt["bal"] else (8, 8)
A(f"""s_and_b32 s80, s{sI}, 7
s_lshr_b32 s81, s{sI}, 3
s_cmp_lt_u32 s{sXG}, 6
s_cselect_b32 s82, 3, 2
s_cmp_lt_u32 s81, s82
s_cselect_b32 s83, 3, 2
s_mov_b32 s{sROLE}, 0
s_mov_b32 s{sNKV}, 8
s_lshl_b32 s{sU}, s80, 3
s_lshl_b32 s{sR}, s81, 1
s_add_u32 s{sR}, s{sR}, s80
s_cmp_lt_u32 s80, 2
s_cbranch_scc1 L_role_done
s_sub_u32 s80, s80, 2
s_cmp_lt_u32 s80, s83
s_cbranch_scc0 L_role_free
s_mov_b32 s{sROLE}, 1
s_min_u32 s82, s82, s81
s_lshl_b32 s{sR}, s81, 1
s_add_u32 s{sR}, s{sR}, s82
s_add_u32 s{sR}, s{sR}, s80
s_mul_i32 s82, s{sXG}, 11
s_add_u32 s{sR}, s{sR}, s82
s_cmp_eq_u32 s{sXG}, 7
s_subb_u32 s{sR}, s{sR}, 0""")
if opt["bal"]:
    A(f"s_mov_b32 s{sNKV}, 6\ns_mul_i32 s{sU}, s80, 6\ns_add_u32 s{sU}, s{sU}, 16")
A(f"s_branch L_role_done\nL_role_free:\ns_mov_b32 s{sROLE}, 2")
if opt["bal"]:
    A(f"""s_add_u32 s{sNKV}, s83, 7
s_sub_u32 s80, s80, s83
s_mul_i32 s{sU}, s80, s{sNKV}
s_mul_i32 s83, s83, 6
s_add_u32 s{sU}, s{sU}, s83
s_add_u32 s{sU}, s{sU}, 16""")
A("L_role_done:")
KR, VR = 40, 104
A(f"s_add_u32 s{sT0}, s3, s{sNKV}\ns_sub_u32 s83, s{sT0}, 12")
A(f"s_lshr_b32 s{sT1}, s{sSLOT}, 3\ns_lshl_b32 s{sT1}, s{sT1}, 20\ns_lshl_b32 s{sU}, s{sU}, 14\ns_add_u32 s{sT1}, s{sT1}, s{sU}")
if opt["pat"] == "A":
    A(f"s_lshl_b32 s{sT0}, s83, 14")
    for i in range(4):
        A(f"s_mov_b32 s{sOFF+i}, {i*4096}")
    koff = lambda i: (f"s{sOFF+i//4}", (i % 4) * 1024)
else:
    A(f"s_lshl_b32 s{sT0}, s83, 10\ns_lshl_b32 s{sOFF+1}, s{sNKV}, 10")
    for i in range(2, 12):
        A(f"s_add_u32 s{sOFF+i}, s{sOFF+i-1}, s{sOFF+1}")
    koff = lambda i: ("0" if i == 0 else f"s{sOFF+i}", 0)
A(f"s_mov_b32 s{sU}, s83")
A(f"s_add_u32 s{sT0}, s{sT0}, s{sT1}\nv_add_u32 v1, s{sT0}, v8")
if opt["pat"] != "A":
    for i in range(12, 16):
        A(f"s_add_u32 s{sOFF+i}, s{sOFF+i-1}, s{sOFF+1}")
A(f"s_mov_b32 s{sHI}, 0xffff0000\ns_mov_b32 s{sMASK}, {TAGMASK}")
A(f"s_and_b32 s{sT0}, s{sSLOT}, 7\ns_lshl_b32 s{sT0}, s{sT0}, 6")
A(f"v_lshrrev_b32 v2, 4, v0\nv_lshl_add_u32 v2, v2, 4, s{sT0}\nv_lshlrev_b32 v3, 1, v2")
A(f"s_lshr_b32 s{sT0}, s{sSLOT}, 3\ns_lshl_b32 s{sT0}, s{sT0}, 8")
A(f"v_lshlrev_b32 v2, 13, v2\nv_and_b32 v9, 15, v0\nv_lshl_add_u32 v2, v9, 4, v2\nv_add_u32 v2, s{sT0}, v2")
A(f"v_mov_b32 v{vL}, {MX}\nv_mov_b32 v{vONE}, 1")
A("s_waitcnt lgkmcnt(0)")
srd(rD, pX, 1024)
srd(rC, pWQ, 0x400000)
srd(rA, pK, 0x2000000)
srd(rB, pV, 0x2000000)
srd(rWS, pWS, 0x10000000)
st(6)
A("s_cmp_lg_u32 s3, 0\ns_cbranch_scc1 L_not0")
A(f"buffer_load_dwordx4 v[104:107], v8, {R(rD)}, 0 offen")
A(f"buffer_load_dwordx4 v[12:15], v3, {R(rD)}, 0 offen")
A(f"buffer_load_dwordx4 v[16:19], v3, {R(rD)}, 0 offen offset:16")
for t in range(16):
    A(f"s_mov_b32 s{sT1}, {t*8192 if not opt.get('nowq') else 0}")
    A(f"buffer_load_dwordx4 {V(40+4*t,4)}, {'v2' if not opt.get('nowq') else 'v8'}, {R(rC)}, s{sT1} offen{fl('wqfl')}")
A("L_not0:")
A("s_barrier")
A(f"s_cmp_lt_i32 s{sU}, 0\ns_cbranch_scc1 L_helper")


def kvload(base, i, r):
    so, io = koff(i)
    o = f" offset:{io}" if io else ""
    A(f"buffer_load_dwordx4 {V(base+4*i,4)}, v1, {R(r)}, {so} offen{o}{fl('kvfl')}")
    if opt["gap"] >= 0:
        A(f"s_nop {opt['gap']}")


for i in range(16):
    kvload(KR, i, rA)
for i in range(NV1):
    kvload(VR, i, rB)
st(1)
A("""v_bfe_u32 v10, v0, 3, 1
v_mul_u32_u24 v10, 0x202, v10
v_add_u32 v10, 0x100, v10
v_and_b32 v11, 1, v0
v_lshlrev_b32 v11, 4, v11
v_lshlrev_b32 v10, v11, v10
v_mov_b32 v12, 0x0c0c0000
v_lshrrev_b32 v12, v11, v12
v_or_b32 v10, v10, v12
v_bfe_u32 v11, v0, 1, 2
v_mov_b32 v12, 0x0c0c0c0c""")
for i in range(4):
    A(f"v_cmp_eq_u32 vcc, {i}, v11\nv_cndmask_b32 v{6+i}, v12, v10, vcc")
A(f"s_mov_b32 s{sM1}, 0xcccccccc\ns_mov_b32 s{sM1+1}, 0xcccccccc\ns_mov_b32 s{sM0}, 0xaaaaaaaa\ns_mov_b32 s{sM0+1}, 0xaaaaaaaa")
A(f"s_mov_b32 s{sC2}, {f32(128 ** -0.5 * 1.4426950408889634)}")
A("v_and_b32 v32, 15, v0\nv_lshlrev_b32 v32, 4, v32")
A(f"v_lshrrev_b32 v34, 4, v0\nv_and_b32 v35, 7, v0\nv_lshl_add_u32 v34, v34, 3, v35\ns_lshl_b32 s{sT0}, s3, 9\nv_lshl_add_u32 v34, v34, 4, s{sT0}")
A("v_lshlrev_b32 v35, 3, v0")
A(f"s_lshl_b32 s{sT0}, s{sSLOT}, 9\ns_add_u32 s{sT0}, s{sT0}, {OS}\nv_lshl_add_u32 v36, v0, 3, s{sT0}")
A(f"s_lshl_b32 s{sT0}, s{sSLOT}, 4\ns_add_u32 s{sT0}, s{sT0}, {ST}\nv_mov_b32 v37, s{sT0}")
A(f"s_sub_u32 s{sN}, s{sNKV}, 1")
spin(CQ, 1, 10, f"ds_read_b128 v[2:5], v32 offset:{QL}\nds_read_b64 v[26:27], v{vL} offset:{FAST-MX}", sleep=2)
st(2)
A(f"v_readfirstlane_b32 s{sFAST}, v26\nv_mov_b32 v{vT}, v27")
A(f"s_waitcnt vmcnt({NV1})")
for j in range(4):
    for i in range(16):
        c = "0" if j == 0 else f"v{10+i}"
        A(f"v_dot2_f32_bf16 v{10+i}, v{KR+4*i+j}, v{2+j}, {c}")
for i in range(8):
    A(f"v_add_f32_dpp v{10+i}, v{10+i}, v{10+i} row_ror:8 row_mask:0xf bank_mask:0x3")
    A(f"v_add_f32_dpp v{10+i}, v{18+i}, v{18+i} row_ror:8 row_mask:0xf bank_mask:0xc")
for i in range(4):
    A(f"v_add_f32_dpp v{10+i}, v{10+i}, v{10+i} row_ror:12 row_mask:0xf bank_mask:0x5")
    A(f"v_add_f32_dpp v{10+i}, v{14+i}, v{14+i} row_ror:4 row_mask:0xf bank_mask:0xa")
for i in range(4):
    A(f"v_add_f32_dpp v{10+i}, v{10+i}, v{10+i} quad_perm:[2,3,0,1] {DPP}")
for i in range(2):
    A(f"v_cndmask_b32 v{10+i}, v{10+i}, v{12+i}, s[{sM1}:{sM1+1}]")
for i in range(2):
    A(f"v_add_f32_dpp v{10+i}, v{10+i}, v{10+i} quad_perm:[1,0,3,2] {DPP}")
A(f"v_cndmask_b32 v10, v10, v11, s[{sM0}:{sM0+1}]")
A(f"v_mul_f32 v10, s{sC2}, v10")
A(f"v_max_f32_dpp v11, v10, v10 row_ror:8 {DPP}")
for n in (4, 2, 1):
    A(f"v_max_f32_dpp v11, v11, v11 row_ror:{n} {DPP}")
for sw in ("v_permlane16_swap_b32", "v_permlane32_swap_b32"):
    A(f"v_mov_b32 v12, v11\n{sw} v11, v12\nv_max_f32 v11, v11, v12")
A("s_mov_b64 exec, 1")
A(f"ds_max_f32 v{vL}, v11\nds_add_u32 v{vL}, v{vONE} offset:{C1-MX}")
A("s_mov_b64 exec, -1")
st(3)
A("v_sub_f32 v10, v10, v11\nv_exp_f32 v10, v10")
A("v_cvt_pk_bf16_f32 v13, v10, v10\nv_lshlrev_b32 v13, 16, v13\nv_sub_f32 v13, v10, v13\nv_cvt_pk_bf16_f32 v13, v10, v13")
for t in range(16):
    A(f"v_mov_b32_dpp v{14+t%4}, v13 row_newbcast:{t} {DPP}")
    if t >= 1:
        for i in range(4):
            A(f"v_perm_b32 v{KR+4*(t-1)+i}, v{14+(t-1)%4}, v{14+(t-1)%4}, v{6+i}")
for i in range(4):
    A(f"v_perm_b32 v{KR+60+i}, v{14+15%4}, v{14+15%4}, v{6+i}")
for i in range(NV1, 16):
    kvload(VR, i, rB)
row_allreduce("v_add_f32", 10)
spin(C1, f"s{sNKV}", 12, f"ds_read_b32 v13, v{vL}", sleep=2)
A("v_sub_f32 v11, v11, v13\nv_exp_f32 v11, v11")
A("v_mul_f32 v10, v10, v11")
A("s_mov_b32 exec_lo, 0x00010001\ns_mov_b32 exec_hi, 0x00010001")
A(f"ds_add_f32 v{vL}, v10 offset:{LACC-MX}")
A("s_mov_b64 exec, 1")
A(f"ds_add_u32 v{vL}, v{vONE} offset:{C2-MX}")
A("s_mov_b64 exec, -1")
st(4)
for t in range(16):
    A(f"s_waitcnt vmcnt({15-t})")
    c = "0" if t == 0 else "v[28:31]"
    A(f"v_mfma_f32_16x16x32_bf16 v[28:31], {V(VR+4*t,4)}, {V(KR+4*t,4)}, {c}")
st(5)
for i in range(4):
    A(f"v_add_f32_dpp v{28+i}, v{28+i}, v{28+i} row_ror:8 {DPP}")
for i in range(4):
    A(f"v_mul_f32 v{28+i}, v{28+i}, v11")
A("s_mov_b32 exec_lo, 0x00ff00ff\ns_mov_b32 exec_hi, 0x00ff00ff")
A(f"ds_write_b128 v34, v[28:31] offset:{OSL}")
A("s_mov_b64 exec, 1")
A(f"ds_add_rtn_u32 v12, v{vL}, v{vONE} offset:{C3-MX}")
A("s_mov_b64 exec, -1")
for w in range(2, 12):
    A(f"ds_read_b64 {V(KR+2*(w-2),2)}, v35 offset:{OSL+512*w}")
A("s_waitcnt lgkmcnt(6)")
A(f"v_readfirstlane_b32 s{sT0}, v12")
P = lambda k: V(KR + 2 * k, 2)
A(f"v_pk_add_f32 {P(0)}, {P(0)}, {P(1)}\nv_pk_add_f32 {P(2)}, {P(2)}, {P(3)}\ns_waitcnt lgkmcnt(2)")
A(f"v_pk_add_f32 {P(4)}, {P(4)}, {P(5)}\nv_pk_add_f32 {P(6)}, {P(6)}, {P(7)}\nv_pk_add_f32 {P(0)}, {P(0)}, {P(2)}\ns_waitcnt lgkmcnt(0)")
A(f"v_pk_add_f32 {P(8)}, {P(8)}, {P(9)}\nv_pk_add_f32 {P(4)}, {P(4)}, {P(6)}\nv_pk_add_f32 {P(0)}, {P(0)}, {P(8)}\nv_pk_add_f32 v[18:19], {P(0)}, {P(4)}")
tag([18, 19])
A(f"s_cmp_lg_u32 s{sT0}, s{sN}\ns_cbranch_scc1 L_kv_notlast")
store_fs(f"buffer_store_dwordx2 v[18:19], v36, {R(rWS)}, 0 offen")
st(6)
A("L_kv_notlast:")
A(f"s_cmp_lg_u32 s{sU}, 0\ns_cbranch_scc1 L_kv_end")
spin(C2, f"s{sNKV}", 12, f"ds_read_b64 v[20:21], v{vL}")
tag([20, 21])
A(f"v_mov_b32 v22, v{vT}\nv_mov_b32 v23, v{vT}\ns_mov_b64 exec, 1")
store_fs(f"buffer_store_dwordx4 v[20:23], v37, {R(rWS)}, 0 offen")
st(7)
A("L_kv_end:")
end_wave()

A("L_helper:")
for i in range(4):
    A(f"s_mov_b32 s{sOFF+i}, {i*4096}")
A("s_cmp_eq_u32 s3, 0\ns_cbranch_scc1 L_q")
A("s_cmp_ge_u32 s3, 4\ns_cbranch_scc1 L_idle")
A("s_cmp_eq_u32 s2, 0\ns_cbranch_scc0 L_roles\ns_cmp_eq_u32 s3, 1\ns_cbranch_scc0 L_roles")
A(f"s_load_dword s{sT0}, s[{pWS}:{pWS+1}], {hex(EPOCH)}")
srd(rA, pDBG, 256)
A(f"v_mov_b32 v3, {EPOCH}\nv_lshlrev_b32 v4, 6, v0\ns_waitcnt lgkmcnt(0)")
A(f"s_add_u32 s{sT0}, s{sT0}, 0x0e3779b1\ns_and_b32 s{sT0}, s{sT0}, 0x0fffffff\ns_or_b32 s{sT1}, s{sT0}, 0x80000000")
A(f"v_mov_b32 v5, s{sT1}\nv_mov_b32 v6, s{sT0}\ns_mov_b64 exec, 15")
A(f"buffer_store_dword v5, v4, {R(rA)}, 0 offen sc1")
A("s_mov_b64 exec, 1")
A(f"buffer_store_dword v6, v3, {R(rWS)}, 0 offen sc1")
A("s_mov_b64 exec, -1")
A("s_branch L_roles")
A("L_idle:")
end_wave()

A("L_q:")
A("""v_and_b32 v28, 1, v0
v_lshlrev_b32 v28, 4, v28
v_mov_b32 v29, 0x100
v_lshlrev_b32 v29, v28, v29
v_mov_b32 v30, 0x0c0c0000
v_lshrrev_b32 v30, v28, v30
v_or_b32 v29, v29, v30
v_bfe_u32 v28, v0, 1, 3
v_mov_b32 v30, 0x0c0c0c0c""")
for i in range(4):
    A(f"v_cmp_eq_u32 vcc, {i}, v28\nv_cndmask_b32 v{20+i}, v30, v29, vcc")
A("s_waitcnt vmcnt(16)")
for j in range(4):
    A(f"v_lshlrev_b32 v{112+2*j}, 16, v{104+j}\nv_and_b32 v{113+2*j}, s{sHI}, v{104+j}")
A("v_add_f32 v36, v112, v113\nv_add_f32 v37, v114, v115\nv_add_f32 v34, v116, v117\nv_add_f32 v35, v118, v119")
A("v_add_f32 v36, v36, v37\nv_add_f32 v34, v34, v35\nv_add_f32 v36, v36, v34")
wave_allreduce_add(36, 37)
A(f"v_mul_f32 v36, {f32(1/512)}, v36")
for j in range(8):
    A(f"v_sub_f32 v{112+j}, v{112+j}, v36")
A("v_mul_f32 v37, v112, v112")
for j in range(1, 8):
    A(f"v_fmac_f32 v37, v{112+j}, v{112+j}")
wave_allreduce_add(37, 34)
A(f"v_mul_f32 v37, {f32(1/512)}, v37")
A(f"""v_cvt_pk_bf16_f32 v34, v36, v37
v_lshlrev_b32 v36, 16, v34
v_and_b32 v37, s{sHI}, v34
v_add_f32 v37, {f32(1e-5)}, v37
v_cvt_pk_bf16_f32 v37, v37, v37
v_and_b32 v37, s{sHI}, v37
v_sqrt_f32 v37, v37
v_cvt_pk_bf16_f32 v37, v37, v37
v_and_b32 v37, s{sHI}, v37
v_rcp_f32 v37, v37""")
for j in range(8):
    r = 12 + j
    A(f"""v_lshlrev_b32 v28, 16, v{r}
v_and_b32 v29, s{sHI}, v{r}
v_sub_f32 v28, v28, v36
v_sub_f32 v29, v29, v36
v_cvt_pk_bf16_f32 v30, v28, v29
v_lshlrev_b32 v28, 16, v30
v_and_b32 v29, s{sHI}, v30
v_mul_f32 v28, v28, v37
v_mul_f32 v29, v29, v37
v_cvt_pk_bf16_f32 v{r}, v28, v29""")
A(f"s_load_dword s{sN}, s[{pDBG}:{pDBG+1}], 0")
A("s_waitcnt vmcnt(0)")
st(1)
for t in range(16):
    src = 12 + t // 2
    if t % 2:
        A(f"v_lshrrev_b32 v{src}, 16, v{src}")
    b = 104 + 4 * (t % 2)
    for i in range(4):
        A(f"v_perm_b32 v{b+i}, v{src}, v{src}, v{20+i}")
    c = "0" if t == 0 else "v[24:27]"
    A(f"v_mfma_f32_16x16x32_bf16 v[24:27], {V(40+4*t,4)}, {V(b,4)}, {c}")
for k in range(1, 4):
    A(f"s_waitcnt lgkmcnt(0)\ns_cmp_lg_u32 s{sN}, 0\ns_cbranch_scc1 L_num_ok")
    if k > 1:
        A(f"s_sleep {opt['nsl']}")
    A(f"s_load_dword s{sN}, s[{pDBG}:{pDBG+1}], {64*k}")
srd(rA, pDBG, 256)
A(f"s_mov_b32 s{sCNT}, {opt['spin']}\nv_mov_b32 v3, 0\ns_waitcnt lgkmcnt(0)")
A(f"""L_num:
s_cmp_lg_u32 s{sN}, 0
s_cbranch_scc1 L_num_ok
s_sub_u32 s{sCNT}, s{sCNT}, 1
s_cbranch_scc1 L_num_ok
buffer_load_dword v4, v3, {R(rA)}, 0 offen sc1
s_waitcnt vmcnt(0)
v_readfirstlane_b32 s{sN}, v4
s_branch L_num
L_num_ok:""")
st(2)
A(f"s_and_b32 s{sT0}, s{sN}, s{sMASK}\nv_mov_b32 v{vT}, s{sT0}")
A(f"s_getreg_b32 s{sT1}, hwreg(HW_REG_XCC_ID)\ns_and_b32 s{sT1}, s{sT1}, 15\ns_lshl_b32 s{sN}, s{sN}, 4\ns_or_b32 s{sN}, s{sN}, s{sT1}")
A(f"s_lshl_b32 s{sT0}, s{sSLOT}, 9\ns_add_u32 s{sT0}, s{sT0}, {QS}")
A(f"v_lshrrev_b32 v2, 4, v0\nv_and_b32 v3, 7, v0\nv_lshl_add_u32 v2, v2, 3, v3\nv_lshl_add_u32 v2, v2, 4, s{sT0}")
tag([24, 25, 26, 27])
A("s_mov_b32 exec_lo, 0x00ff00ff\ns_mov_b32 exec_hi, 0x00ff00ff")
A(f"buffer_store_dwordx4 v[24:27], v2, {R(rWS)}, 0 offen sc1")
A("s_mov_b64 exec, -1")
A(f"s_lshl_b32 s{sT1}, s{sXG}, 7\ns_add_u32 s{sT1}, s{sT1}, {XC}\nv_lshl_add_u32 v5, v3, 2, s{sT1}")
A(f"s_cmp_eq_u32 s{sROLE}, 0\ns_cbranch_scc0 L_noxc")
A(f"s_lshl_b32 s{sT0}, s{sR}, 2\ns_add_u32 s{sT0}, s{sT0}, s{sT1}\nv_mov_b32 v3, s{sT0}\nv_mov_b32 v4, s{sN}\ns_mov_b64 exec, 1")
A(f"buffer_store_dword v4, v3, {R(rWS)}, 0 offen sc1")
A("s_mov_b64 exec, -1")
A("L_noxc:")
A(f"s_and_b32 s{sT0}, s{sSLOT}, 0xf8\ns_lshl_b32 s{sT0}, s{sT0}, 9\ns_add_u32 s{sT0}, s{sT0}, {QS}")
A(f"v_lshl_add_u32 v7, v0, 4, s{sT0}")
A("v_bfe_u32 v2, v0, 3, 2\nv_lshlrev_b32 v2, 2, v2\nv_lshrrev_b32 v3, 5, v0\nv_add_u32 v2, v2, v3\nv_and_b32 v3, 7, v0\nv_lshl_add_u32 v2, v2, 3, v3\nv_lshlrev_b32 v2, 1, v2")
if not opt.get("noq"):
    A("s_waitcnt vmcnt(0)")
st(3)


def q_poll():
    for t in range(4):
        A(f"buffer_load_dwordx4 {V(112+4*t,4)}, v7, {R(rWS)}, 0 offen offset:{1024*t} sc1")
    A(f"buffer_load_dword v6, v5, {R(rWS)}, 0 offen sc1")


if not opt.get("noq"):
    poll(q_poll, list(range(112, 128)), 10)
A(f"v_cmp_ne_u32 vcc, s{sN}, v6\ns_cmp_eq_u64 vcc, 0\ns_cselect_b32 s{sFAST}, 1, 0")
A(f"v_mov_b32 v4, s{sFAST}\nv_mov_b32 v5, v{vT}\nds_write_b64 v{vL}, v[4:5] offset:{FAST-MX}")
for i in range(4):
    A(f"v_add_f32 v{112+i}, v{112+i}, v{116+i}\nv_add_f32 v{120+i}, v{120+i}, v{124+i}")
for i in range(4):
    A(f"v_add_f32 v{112+i}, v{112+i}, v{120+i}")
A("v_permlane32_swap_b32 v112, v113\nv_permlane32_swap_b32 v114, v115")
A("v_add_f32 v112, v112, v113\nv_add_f32 v114, v114, v115")
A("v_cvt_pk_bf16_f32 v112, v112, v114")
A(f"ds_write_b16 v2, v112 offset:{QL}\nds_write_b16_d16_hi v2, v112 offset:{QL+32}")
A(f"ds_write_b32 v{vL}, v{vONE} offset:{CQ-MX}")
st(4)

A("L_roles:")
A(f"s_cmp_eq_u32 s{sROLE}, 1\ns_cbranch_scc1 L_mlp")
A(f"s_cmp_eq_u32 s{sROLE}, 0\ns_cbranch_scc1 L_z")
end_wave()


def trigger(trig, loads):
    if opt.get("now"):
        return
    if trig != "start":
        off, n = {"q": (CQ, 1), "c1": (C1, f"s{sNKV}"), "c1h": (C1, 4), "c2": (C2, f"s{sNKV}"), "c2h": (C2, 4)}[trig]
        spin(off, n, 10, sleep=4)
    loads()


A("L_z:")
ZB, ZO, ZST, ZA, ZD = 40, 104, 120, 124, 140
srd(rA, pWO, 0x400000)
A(f"s_lshl_b32 s{sT0}, s{sXG}, 2\ns_add_u32 s{sT0}, s{sT0}, s3\ns_lshl_b32 s{sT0}, s{sT0}, 17\ns_lshl_b32 s{sT1}, s{sR}, 7\ns_add_u32 s{sT0}, s{sT0}, s{sT1}")
A(f"v_bfe_u32 v1, v0, 3, 2\nv_lshrrev_b32 v2, 5, v0\nv_lshl_add_u32 v1, v1, 3, v2\nv_lshlrev_b32 v1, 10, v1\nv_and_b32 v2, 7, v0\nv_lshl_add_u32 v1, v2, 4, v1\nv_add_u32 v1, s{sT0}, v1")
A(f"s_lshl_b32 s{sIMG}, s3, 14\ns_add_u32 s{sIMG}, s{sIMG}, {WIMG}")
A(f"v_lshrrev_b32 v3, 4, v0\nv_lshlrev_b32 v3, 3, v3\nv_bfe_u32 v4, v0, 2, 2\nv_add_u32 v3, v3, v4\nv_lshlrev_b32 v3, 7, v3\nv_and_b32 v4, 3, v0\nv_lshl_add_u32 v3, v4, 3, v3\nv_add_u32 v3, s{sIMG}, v3")
A(f"s_lshl_b32 s{sT0}, s{sXG}, 5\ns_lshl_b32 s{sT1}, s3, 3\ns_add_u32 s{sT0}, s{sT0}, s{sT1}")
A(f"s_lshl_b32 s{sT1}, s{sT0}, 9\ns_add_u32 s{sT1}, s{sT1}, {OS}\nv_lshl_add_u32 v4, v0, 3, s{sT1}")
A(f"s_lshl_b32 s{sT1}, s{sT0}, 4\ns_add_u32 s{sT1}, s{sT1}, {ST}\nv_lshl_add_u32 v5, v2, 4, s{sT1}")
A(f"s_lshl_b32 s{sT0}, s3, 8\ns_add_u32 s{sT0}, s{sT0}, {SCR}\nv_lshl_add_u32 v6, v0, 2, s{sT0}")
A(f"v_lshrrev_b32 v7, 4, v0\nv_lshl_add_u32 v7, v7, 4, s{sT0}")
A(f"v_subrev_u32 v25, {SCR-ZP}, v6")
A(f"s_lshl_b32 s{sT0}, s{sXG}, 3\ns_add_u32 s{sT0}, s{sT0}, s{sR}\ns_lshl_b32 s{sT0}, s{sT0}, 1\ns_and_b32 s{sT1}, s3, 1\ns_add_u32 s{sT0}, s{sT0}, s{sT1}\ns_lshl_b32 s{sT0}, s{sT0}, 2")
A(f"v_lshrrev_b32 v20, 4, v0\nv_add_u32 v20, s{sT0}, v20\nv_lshlrev_b32 v21, 1, v20\nv_lshlrev_b32 v20, 2, v20\nv_add_u32 v20, {ZS}, v20")
A(f"s_lshl_b32 s{sT0}, s{sT0}, 2\nv_lshlrev_b32 v22, 11, v0\nv_add_u32 v22, s{sT0}, v22\nv_add_u32 v23, {64*2048}, v22")
A(f"s_lshl_b32 s{sT0}, s{sXG}, 11\ns_lshl_b32 s{sT1}, s{sR}, 8\ns_add_u32 s{sT0}, s{sT0}, s{sT1}\ns_add_u32 s{sT0}, s{sT0}, {ZS}\nv_add_u32 v24, s{sT0}, v8")
srd(rC, pWS, NMLP * 2048, PS)
srd(rB, pOUT, 1024)


def z_loads():
    A(f"buffer_load_ushort v26, v21, {R(rD)}, 0 offen")
    for t in range(16):
        A(f"s_add_u32 m0, s{sIMG}, {t*1024}\ns_mov_b32 s{sT1}, {((t>>2)*32+(t&3)*2)*1024}")
        A(f"buffer_load_dwordx4 v1, {R(rA)}, s{sT1} offen{fl('wofl')} lds")


def z_prep():
    for kb in range(4):
        for nt in range(4):
            for hf in range(2):
                A(f"ds_read_b64_tr_b16 {V(ZB+(kb*4+nt)*4+2*hf,2)}, v3 offset:{kb*4096+hf*512+nt*32}")


def z_poll():
    A(f"buffer_load_dwordx4 {V(ZST,4)}, v5, {R(rWS)}, 0 offen sc1")
    for s in range(8):
        A(f"buffer_load_dwordx2 {V(ZO+2*s,2)}, v4, {R(rWS)}, 0 offen offset:{512*s} sc1")


trigger(opt["trigz"], z_loads)
zlate = opt["trigz"] in ("c2", "c2h", "c1")
if not zlate:
    A("s_waitcnt vmcnt(0)")
    z_prep()
st(5)
spin(C3, f"s{sNKV}", 10, f"ds_read_b32 v{vT}, v{vL} offset:{TAG-MX}")
poll(z_poll, list(range(ZO, ZO + 20)), 10, (lambda: (A("s_waitcnt vmcnt(9)"), z_prep())) if zlate else None)
if opt.get("diag"):
    A("s_memrealtime s[98:99]")
st(6)
A(f"""v_max_f32_dpp v10, v{ZST}, v{ZST} quad_perm:[1,0,3,2] {DPP}
v_max_f32_dpp v10, v10, v10 quad_perm:[2,3,0,1] {DPP}
v_max_f32_dpp v10, v10, v10 row_half_mirror {DPP}
v_sub_f32 v10, v{ZST}, v10
v_exp_f32 v10, v10
v_mul_f32 v11, v10, v{ZST+1}
v_add_f32_dpp v11, v11, v11 quad_perm:[1,0,3,2] {DPP}
v_add_f32_dpp v11, v11, v11 quad_perm:[2,3,0,1] {DPP}
v_add_f32_dpp v11, v11, v11 row_half_mirror {DPP}
v_rcp_f32 v11, v11
v_mul_f32 v10, v10, v11""")
A(f"v_mul_f32_dpp v12, v10, v{ZO} row_newbcast:0 {DPP}\nv_mul_f32_dpp v13, v10, v{ZO+1} row_newbcast:0 {DPP}")
for s in range(1, 8):
    A(f"v_fmac_f32_dpp v12, v10, v{ZO+2*s} row_newbcast:{s} {DPP}\nv_fmac_f32_dpp v13, v10, v{ZO+1+2*s} row_newbcast:{s} {DPP}")
A("v_cvt_pk_bf16_f32 v12, v12, v13\nds_write_b32 v6, v12")
for kb in range(4):
    A(f"ds_read_b128 {V(ZA+4*kb,4)}, v7 offset:{64*kb}")
for kb in range(4):
    A(f"s_waitcnt lgkmcnt({3-kb})")
    for nt in range(4):
        c = "0" if kb == 0 else V(ZD + 4 * nt, 4)
        A(f"v_mfma_f32_16x16x32_bf16 {V(ZD+4*nt,4)}, {V(ZA+4*kb,4)}, {V(ZB+(kb*4+nt)*4,4)}, {c}")
for nt in range(1, 4):
    A(f"v_mov_b32_dpp v{ZD}, v{ZD+4*nt} quad_perm:[0,1,2,3] row_mask:{hex(1<<nt)} bank_mask:0xf")
A(f"ds_write_b32 v6, v{ZD} offset:{ZP-SCR+65536-65536}" if ZP >= SCR else f"ds_write_b32 v25, v{ZD}")
A("s_mov_b64 exec, 1")
A(f"ds_add_rtn_u32 v10, v{vL}, v{vONE} offset:{C4-MX}")
A("s_mov_b64 exec, 0xffff")
for w in range(4):
    A(f"ds_read_b128 {V(12 if w == 0 else ZA+4*w,4)}, v8 offset:{ZP+256*w}")
A("s_waitcnt lgkmcnt(2)")
A(f"v_readfirstlane_b32 s{sT0}, v10")
A(f"v_pk_add_f32 v[12:13], v[12:13], {V(ZA+4,2)}\nv_pk_add_f32 v[14:15], v[14:15], {V(ZA+6,2)}\ns_waitcnt lgkmcnt(0)")
A(f"v_pk_add_f32 {V(ZA+8,2)}, {V(ZA+8,2)}, {V(ZA+12,2)}\nv_pk_add_f32 {V(ZA+10,2)}, {V(ZA+10,2)}, {V(ZA+14,2)}")
A(f"v_pk_add_f32 v[12:13], v[12:13], {V(ZA+8,2)}\nv_pk_add_f32 v[14:15], v[14:15], {V(ZA+10,2)}")
tag([12, 13, 14, 15])
A(f"s_cmp_lg_u32 s{sT0}, 3\ns_cbranch_scc1 L_z_notlast")
A(f"buffer_store_dwordx4 v[12:15], v24, {R(rWS)}, 0 offen sc1")
st(7)
A("L_z_notlast:")
A("s_mov_b64 exec, -1")
A(f"s_sub_u32 s{sT0}, s3, 1\ns_cmp_lt_u32 s{sT0}, 2\ns_cbranch_scc1 L_fin")
end_wave()
A("L_fin:")


def f_poll1():
    for x in range(8):
        A(f"buffer_load_dword v{104+x}, v20, {R(rWS)}, s{sOFF+x//2} offen offset:{2048*(x%2)} sc1")


poll(f_poll1, list(range(104, 112)), 10)
st(1)


def f_poll2():
    A(f"buffer_load_dwordx4 v[112:115], v22, {R(rC)}, 0 offen sc1")
    A(f"buffer_load_dwordx4 v[116:119], v23, {R(rC)}, 0 offen sc1")


def f_between():
    A("""v_add_f32 v104, v104, v106
v_add_f32 v105, v105, v107
v_add_f32 v104, v104, v108
v_add_f32 v105, v105, v109
v_add_f32 v104, v104, v110
v_add_f32 v105, v105, v111
v_add_f32 v104, v104, v105
v_cvt_pk_bf16_f32 v104, v104, v104
v_lshlrev_b32 v104, 16, v104
v_lshlrev_b32 v26, 16, v26
v_add_f32 v104, v104, v26
v_cvt_pk_bf16_f32 v104, v104, v104
v_lshlrev_b32 v104, 16, v104""")


poll(f_poll2, list(range(112, 116)), 10, f_between, masked=((1 << (NMLP - 64)) - 1, list(range(116, 120))))
st(2)
for i in range(4):
    A(f"v_add_f32 v{112+i}, v{112+i}, v{116+i}")
A("v_permlane32_swap_b32 v112, v114\nv_permlane32_swap_b32 v113, v115")
A("v_add_f32 v112, v112, v114\nv_add_f32 v113, v113, v115")
A("v_permlane16_swap_b32 v112, v113\nv_add_f32 v112, v112, v113")
row_allreduce("v_add_f32", 112)
A("v_cvt_pk_bf16_f32 v112, v112, v112\nv_lshlrev_b32 v112, 16, v112\nv_add_f32 v112, v112, v104\nv_cvt_pk_bf16_f32 v112, v112, v112")
A("s_mov_b32 exec_lo, 0x00010001\ns_mov_b32 exec_hi, 0x00010001")
A(f"buffer_store_short v112, v21, {R(rB)}, 0 offen sc1")
if opt.get("diag"):
    A(f"s_cmp_eq_u32 s{sI}, 0\ns_cbranch_scc0 L_exit\ns_cmp_eq_u32 s3, 1\ns_cbranch_scc0 L_exit")
    A("s_memrealtime s[96:97]\ns_waitcnt lgkmcnt(0)")
    srd(rA, pDBG, 64)
    A(f"s_sub_u32 s96, s96, s100\ns_sub_u32 s98, s98, s100\ns_lshl_b32 s100, s100, 16\ns_or_b32 s96, s96, s100")
    A(f"s_lshl_b32 s{sT0}, s{sXG}, 2\nv_mov_b32 v1, s{sT0}\nv_mov_b32 v2, s96\nv_mov_b32 v3, s98\ns_mov_b64 exec, 1")
    A(f"buffer_store_dword v2, v1, {R(rA)}, 0 offen offset:4 sc1\nbuffer_store_dword v3, v1, {R(rA)}, 0 offen offset:36 sc1")
st(3)
end_wave()

A("L_mlp:")
srd(rA, pWG, 512 * 2752)
srd(rB, pWU, 512 * 2752)
srd(rC, pWD, 1376 * 1024)
A(f"s_lshl_b32 s{sT0}, s3, 7\nv_lshrrev_b32 v1, 1, v0\nv_add_u32 v1, s{sT0}, v1\nv_mul_u32_u24 v1, 2752, v1")
A(f"v_and_b32 v2, 1, v0\nv_lshl_add_u32 v1, v2, 4, v1\ns_lshl_b32 s{sT0}, s{sR}, 5\nv_add_u32 v1, s{sT0}, v1")
A(f"s_lshl_b32 s{sIMG}, s3, 13\ns_add_u32 s{sIMG}, s{sIMG}, {WIMG}")
A(f"v_lshrrev_b32 v3, 4, v0\nv_lshlrev_b32 v3, 3, v3\nv_bfe_u32 v4, v0, 2, 2\nv_add_u32 v3, v3, v4\nv_lshlrev_b32 v3, 5, v3\nv_and_b32 v2, 3, v0\nv_lshl_add_u32 v3, v2, 3, v3\nv_add_u32 v3, s{sIMG}, v3")
A(f"s_lshl_b32 s{sT0}, s3, 9\ns_add_u32 s{sT0}, s{sT0}, {ZS}\nv_lshrrev_b32 v2, 5, v0\nv_and_b32 v5, 31, v0\nv_lshlrev_b32 v4, 11, v2\nv_lshl_add_u32 v4, v5, 4, v4\nv_add_u32 v4, s{sT0}, v4")
A(f"v_lshlrev_b32 v5, 3, v5\nv_lshl_add_u32 v5, v2, 2, v5\ns_lshl_b32 s{sT0}, s3, 8\nv_add_u32 v5, s{sT0}, v5\nv_add_u32 v6, {SCR}, v5")
A(f"s_add_u32 s{sT0}, s{sT0}, {SCR}\nv_lshrrev_b32 v7, 4, v0\nv_lshl_add_u32 v7, v7, 4, s{sT0}")
A("v_lshlrev_b32 v9, 2, v0")
A(f"s_lshl_b32 s{sT0}, s{sR}, 14\ns_lshl_b32 s{sT1}, s3, 8\ns_add_u32 s{sT0}, s{sT0}, s{sT1}\nv_add_u32 v20, s{sT0}, v9")
A(f"s_lshl_b32 s{sT0}, s{sR}, 11\ns_lshl_b32 s{sT1}, s3, 9\ns_add_u32 s{sT0}, s{sT0}, s{sT1}\ns_add_u32 s{sT0}, s{sT0}, {PS}\nv_lshl_add_u32 v21, v0, 3, s{sT0}")
A(f"v_and_b32 v22, 15, v0\nv_lshlrev_b32 v22, 3, v22\ns_lshl_b32 s{sT0}, s3, 7\ns_add_u32 s{sT0}, s{sT0}, {ZP}\nv_add_u32 v25, s{sT0}, v22")
A(f"v_lshrrev_b32 v23, 5, v0\nv_lshlrev_b32 v23, 2, v23\nv_add_u32 v23, {SQ}, v23\nv_mov_b32 v24, {SQ}")
for i in range(4):
    A(f"v_mov_b32 v{116+i}, 0x3f803f80")
A(f"s_mov_b32 s{sM1}, 0x05040100\ns_mov_b32 s{sM1+1}, 0x07060302")


def m_loads():
    A(f"buffer_load_dword v26, v5, {R(rD)}, 0 offen")
    for t in range(4):
        A(f"s_add_u32 m0, s{sIMG}, {t*1024}\ns_mov_b32 s{sT1}, {t*32*2752}")
        A(f"buffer_load_dwordx4 v1, {R(rA)}, s{sT1} offen{fl('gufl')} lds")
        A(f"s_add_u32 m0, s{sIMG}, {4096+t*1024}")
        A(f"buffer_load_dwordx4 v1, {R(rB)}, s{sT1} offen{fl('gufl')} lds")
    for r in range(16):
        A(f"buffer_load_dword v{120+r}, v20, {R(rC)}, s{sOFF+r//4} offen offset:{1024*(r%4)}{fl('wdfl')}")
        A("s_nop 0")


trigger(opt["trigm"], m_loads)
st(5)
A("s_waitcnt vmcnt(0)")
for kb in range(4):
    for tl in range(2):
        for hf in range(2):
            A(f"ds_read_b64_tr_b16 {V(40+(kb*2+tl)*4+2*hf,2)}, v3 offset:{kb*1024+hf*128+tl*4096}")
for i in range(8):
    A(f"v_perm_b32 v{136+i}, v{121+2*i}, v{120+2*i}, s{sM1}\nv_perm_b32 v{144+i}, v{121+2*i}, v{120+2*i}, s{sM1+1}")
A(f"v_lshlrev_b32 v27, 16, v26\nv_and_b32 v26, s{sHI}, v26")
A("s_waitcnt lgkmcnt(0)")
for kb in range(4):
    for tl in range(2):
        c = "0" if kb == 0 else V(108 + 4 * tl, 4)
        A(f"v_mfma_f32_16x16x32_bf16 {V(108+4*tl,4)}, v[116:119], {V(40+(kb*2+tl)*4,4)}, {c}")
A("s_mov_b64 exec, 0xffff")
A(f"ds_add_f32 v22, v108 offset:{CS}\nds_add_f32 v22, v112 offset:{CS+4}")
A("s_mov_b64 exec, -1")
A("v_mov_b32 v30, 0\nv_mov_b32 v31, 0")
st(1)
spin(C3, f"s{sNKV}", 10, f"ds_read_b32 v{vT}, v{vL} offset:{TAG-MX}")


def m_poll():
    for t in range(4):
        A(f"buffer_load_dwordx4 {V(72+4*t,4)}, v4, {R(rWS)}, s{sOFF+t} offen sc1")


poll(m_poll, list(range(72, 88)), 10)
st(6)
for t in range(1, 4):
    for i in range(4):
        A(f"v_add_f32 v{72+i}, v{72+i}, v{72+4*t+i}")
A("v_permlane32_swap_b32 v72, v74\nv_permlane32_swap_b32 v73, v75")
A(f"""v_add_f32 v72, v72, v74
v_add_f32 v73, v73, v75
v_cvt_pk_bf16_f32 v72, v72, v73
v_lshlrev_b32 v73, 16, v72
v_and_b32 v72, s{sHI}, v72
v_add_f32 v73, v73, v27
v_add_f32 v72, v72, v26
v_cvt_pk_bf16_f32 v72, v73, v72
ds_write_b32 v6, v72""")
for kb in range(4):
    A(f"ds_read_b128 {V(92+4*kb,4)}, v7 offset:{64*kb}")
A(f"""v_lshlrev_b32 v73, 16, v72
v_and_b32 v72, s{sHI}, v72
v_add_f32 v74, v72, v73
v_mul_f32 v75, v72, v72
v_fmac_f32 v75, v73, v73""")
A("v_permlane32_swap_b32 v74, v75\nv_add_f32 v74, v74, v75")
rr = [8, 4, 2, 1]
for kb in range(4):
    A(f"s_waitcnt lgkmcnt({3-kb})")
    for tl in range(2):
        c = "0" if kb == 0 else V(108 + 4 * tl, 4)
        A(f"v_mfma_f32_16x16x32_bf16 {V(108+4*tl,4)}, {V(92+4*kb,4)}, {V(40+(kb*2+tl)*4,4)}, {c}")
    A(f"v_add_f32_dpp v74, v74, v74 row_ror:{rr[kb]} {DPP}")
A("s_mov_b32 exec_lo, 0x00010001\ns_mov_b32 exec_hi, 0x00010001")
A("ds_add_f32 v23, v74")
A("s_mov_b64 exec, 0xffff")
A("ds_write2_b32 v25, v108, v112 offset0:0 offset1:1")
A("s_mov_b64 exec, -1")
A("s_waitcnt lgkmcnt(0)\ns_barrier")
A(f"ds_read_b64 v[16:17], v24\nds_read_b64 v[14:15], v22 offset:{CS}")
for w in range(4):
    A(f"ds_read_b64 {V(12 if w == 0 else 92+2*w,2)}, v22 offset:{ZP+128*w}")
A("s_waitcnt lgkmcnt(5)")
A(f"""v_mul_f32 v16, {f32(1/512)}, v16
v_mul_f32 v17, {f32(1/512)}, v17
v_fma_f32 v17, -v16, v16, v17
v_max_f32 v17, 0, v17
v_cvt_pk_bf16_f32 v18, v16, v17
v_lshlrev_b32 v16, 16, v18
v_and_b32 v17, s{sHI}, v18
v_add_f32 v17, {f32(1e-5)}, v17
v_cvt_pk_bf16_f32 v17, v17, v17
v_and_b32 v17, s{sHI}, v17
v_sqrt_f32 v17, v17
v_cvt_pk_bf16_f32 v17, v17, v17
v_and_b32 v17, s{sHI}, v17
v_rcp_f32 v17, v17
s_waitcnt lgkmcnt(0)
v_pk_add_f32 v[12:13], v[12:13], v[94:95]
v_pk_add_f32 v[96:97], v[96:97], v[98:99]
v_pk_add_f32 v[12:13], v[12:13], v[96:97]
v_fma_f32 v12, -v16, v14, v12
v_fma_f32 v13, -v16, v15, v13
v_mul_f32 v12, v12, v17
v_mul_f32 v13, v13, v17
v_cvt_pk_bf16_f32 v12, v12, v13
v_and_b32 v13, s{sHI}, v12
v_lshlrev_b32 v12, 16, v12
v_mul_f32 v12, {f32(-1.4426950408889634)}, v12
v_exp_f32 v12, v12
v_add_f32 v12, 1.0, v12
v_rcp_f32 v12, v12
v_cvt_pk_bf16_f32 v12, v12, v12
v_and_b32 v12, s{sHI}, v12
v_mul_f32 v12, v12, v13
v_mov_b32_dpp v13, v12 quad_perm:[1,0,3,2] {DPP}
v_cvt_pk_bf16_f32 v12, v12, v13""")
for i in range(8):
    A(f"v_dot2c_f32_bf16_dpp v30, v12, v{136+i} row_newbcast:{2*i} {DPP}")
    A(f"v_dot2c_f32_bf16_dpp v31, v12, v{144+i} row_newbcast:{2*i} {DPP}")
tag([30, 31])
A(f"buffer_store_dwordx2 v[30:31], v21, {R(rWS)}, 0 offen sc1")
st(7)
end_wave()

if STAMPS:
    A("L_stamps:")
    A("s_mov_b64 exec, 1")
    A("s_waitcnt lgkmcnt(0)\ns_memrealtime s[4:5]\ns_waitcnt lgkmcnt(0)\ns_memtime s[6:7]")
    A(f"s_mul_i32 s{sT0}, s2, 12\ns_add_u32 s{sT0}, s{sT0}, s3\ns_lshl_b32 s{sT0}, s{sT0}, 6\ns_add_u32 s{sT0}, s{sT0}, {STAMP}")
    A(f"v_mov_b32 v1, s{sT0}\ns_waitcnt lgkmcnt(0)")
    for k in range(8):
        A(f"v_mov_b32 v{4+k}, s{sST+2*k}")
    A("v_mov_b32 v12, s100\nv_mov_b32 v13, s4\nv_mov_b32 v14, s6\nv_mov_b32 v15, 0")
    A(f"buffer_store_dwordx4 v[4:7], v1, {R(rWS)}, 0 offen\nbuffer_store_dwordx4 v[8:11], v1, {R(rWS)}, 0 offen offset:16\nbuffer_store_dwordx4 v[12:15], v1, {R(rWS)}, 0 offen offset:32")
A("L_exit:")
A("s_endpgm")
A("L_last:")

body, problems = fix_hazards(L)
for p in problems:
    print("HAZARD:", p, file=sys.stderr)
for line in body:
    out.append(line if line.endswith(":") else "    " + line)
out.append(f""".section .rodata,"a"
.p2align 6
.amdhsa_kernel {NAME}_kernel
  .amdhsa_next_free_vgpr 168
  .amdhsa_next_free_sgpr 102
  .amdhsa_accum_offset 168
  .amdhsa_group_segment_fixed_size 0
  .amdhsa_kernarg_size 96
  .amdhsa_user_sgpr_count 2
  .amdhsa_user_sgpr_kernarg_segment_ptr 1
  .amdhsa_system_sgpr_workgroup_id_x 1
  .amdhsa_float_denorm_mode_32 3
.end_amdhsa_kernel""")
open(sys.argv[1], "w").write("\n".join(out) + "\n")
```

```python
import sys, struct
from asmlib import fix_hazards

NAME = "sequential_preLN__mha_block_cached__glu_gated_glu__decode"
opt = dict(stamps=0, nv1=12, trigz="start", trigm="start", pat="B", kvfl="nt", wqfl="nt", wofl="nt", gufl="nt",
           wdfl="nt", fast=1, pf=1, gap=0, prio=0, bal=1, nsl=12, spin=100000)
for a in sys.argv[2:]:
    k, v = a.split("=")
    opt[k] = v if not v.lstrip("-").isdigit() else int(v)
STAMPS = opt["stamps"]
NV1 = opt["nv1"]


def fl(name):
    v = opt[name]
    return "" if v == "plain" else " " + v.replace("+", " ")


def f32(x):
    return "0x%08x" % struct.unpack("<I", struct.pack("<f", x))[0]


QS, OS, ST, ZS, XC, EPOCH, PS, STAMP = 0x0, 0x20000, 0x40000, 0x41000, 0x45000, 0x46000, 0x48000, 0x80000
NMLP = 86
TAGMASK = 0x3ff
QL, MX, LACC, SQ, CS, ZP, SCR, OSL, WIMG = 0, 256, 260, 272, 1024, 1536, 3072, 4096, 10240
CQ, C1, C2, C3, C4, FAST, TAG = 280, 284, 288, 292, 296, 304, 308
LDS_BYTES = WIMG + 4 * 16384
pX, pK, pV, pWQ, pWO, pWG, pWU, pWD, pOUT, pDBG, pWS = 4, 6, 8, 10, 12, 16, 18, 20, 22, 24, 26
rA, rB, rWS, rC, rD = 28, 32, 36, 44, 48
sNKV, sROLE, sMASK, sN = 40, 41, 42, 43
sXG, sI, sSLOT, sR, sT0, sT1, sCNT, sFAST = 52, 53, 54, 55, 56, 57, 58, 59
sM1, sM0, sU, sIMG, sC2, sHI = 60, 62, 64, 65, 66, 67
sOFF = 68
sST = 84
vT = 38
vONE = 39
vL = 33

L = []


def A(s):
    for line in s.split("\n"):
        line = line.strip()
        if line:
            L.append(line)


def srd(r, p, size, add=None):
    if add is None:
        A(f"s_mov_b32 s{r}, s{p}\ns_mov_b32 s{r+1}, s{p+1}")
    else:
        A(f"s_add_u32 s{r}, s{p}, {add}\ns_addc_u32 s{r+1}, s{p+1}, 0")
    A(f"s_mov_b32 s{r+2}, {hex(size)}\ns_mov_b32 s{r+3}, 0x20000")


def R(r):
    return f"s[{r}:{r+3}]"


def V(a, n):
    return f"v[{a}:{a+n-1}]"


def st(k):
    if STAMPS and str(k) not in str(opt.get("nost", "")):
        A(f"s_memtime s[{sST+2*k}:{sST+2*k+1}]")


def end_wave():
    A("s_branch L_stamps" if STAMPS else "s_endpgm")


DPP = "row_mask:0xf bank_mask:0xf"


def row_allreduce(op, a):
    for n in (8, 4, 2, 1):
        A(f"{op}_dpp v{a}, v{a}, v{a} row_ror:{n} {DPP}")


def wave_allreduce_add(a, t):
    row_allreduce("v_add_f32", a)
    for sw in ("v_permlane16_swap_b32", "v_permlane32_swap_b32"):
        A(f"v_mov_b32 v{t}, v{a}\n{sw} v{a}, v{t}\nv_add_f32 v{a}, v{a}, v{t}")


def tag(regs):
    for r in regs:
        A(f"v_bfi_b32 v{r}, s{sMASK}, v{vT}, v{r}")


uid = [0]


def poll(loads, regs, tmp, between=None, masked=None):
    uid[0] += 1
    u = uid[0]
    loads()
    if between:
        between()
    A(f"s_mov_b32 s{sCNT}, {opt['spin']}")
    A(f"L_poll{u}:")
    A("s_waitcnt vmcnt(0)")
    rs = list(regs)
    A(f"v_xor_b32 v{tmp}, v{rs[0]}, v{vT}\nv_xor_b32 v{tmp+1}, v{rs[1]}, v{vT}")
    for n, r in enumerate(rs[2:]):
        A(f"v_bitop3_b32 v{tmp+n%2}, v{tmp+n%2}, v{r}, v{vT} bitop3:0xf6")
    if masked:
        A(f"s_mov_b64 exec, {hex(masked[0])}")
        for n, r in enumerate(masked[1]):
            A(f"v_bitop3_b32 v{tmp+n%2}, v{tmp+n%2}, v{r}, v{vT} bitop3:0xf6")
        A("s_mov_b64 exec, -1")
    A(f"v_bitop3_b32 v{tmp}, v{tmp}, v{tmp+1}, s{sMASK} bitop3:0xa8")
    A(f"v_cmp_ne_u32 vcc, 0, v{tmp}")
    A(f"s_cbranch_vccz L_ok{u}")
    A(f"s_sub_u32 s{sCNT}, s{sCNT}, 1\ns_cbranch_scc1 L_ok{u}")
    loads()
    A(f"s_branch L_poll{u}")
    A(f"L_ok{u}:")


def spin(off, n, tmp, extra=None, sleep=1):
    uid[0] += 1
    u = uid[0]
    A(f"L_spin{u}:")
    A(f"ds_read_b32 v{tmp}, v{vL} offset:{off-MX}")
    if extra:
        A(extra)
    A("s_waitcnt lgkmcnt(0)")
    A(f"v_readfirstlane_b32 s{sT0}, v{tmp}")
    A(f"s_cmp_ge_u32 s{sT0}, {n}\ns_cbranch_scc1 L_spun{u}")
    if sleep:
        A(f"s_sleep {sleep}")
    A(f"s_branch L_spin{u}")
    A(f"L_spun{u}:")


def store_fs(instr):
    uid[0] += 1
    u = uid[0]
    if not opt["fast"]:
        A(instr + " sc1")
        return
    A(f"s_cmp_eq_u32 s{sFAST}, 0\ns_cbranch_scc1 L_slow{u}")
    A(instr)
    A(f"s_branch L_sdone{u}")
    A(f"L_slow{u}:")
    A(instr + " sc1")
    A(f"L_sdone{u}:")


hdr = open("cdna_kernels/" + NAME + ".s.ref").read().split("\n")
out = [l for l in hdr if l.startswith(";") and "@launch" not in l and "Override" not in l and "grid=ceil" not in l]
out.append(f"; @launch grid=(256,1,1) block=(768,1,1) lds={LDS_BYTES}")
out.append('.amdgcn_target "amdgcn-amd-amdhsa--gfx950"')
out.append(".text")
out.append(f".globl {NAME}_kernel")
out.append(".p2align 8")
out.append(f".type {NAME}_kernel,@function")
out.append(f"{NAME}_kernel:")

A("L_start:")
A("s_cmp_ge_u32 s2, 256\ns_cbranch_scc1 L_exit")
A("s_load_dwordx16 s[4:19], s[0:1], 0\ns_load_dwordx8 s[20:27], s[0:1], 64")
if STAMPS:
    for k in range(8):
        A(f"s_mov_b32 s{sST+2*k}, 0")
st(0)
if STAMPS or opt.get("diag"):
    A("s_memrealtime s[100:101]")
A("v_lshrrev_b32 v1, 6, v0\nv_and_b32 v0, 63, v0\nv_readfirstlane_b32 s3, v1")
A(f"s_and_b32 s{sXG}, s2, 7\ns_lshr_b32 s{sI}, s2, 3\ns_lshl_b32 s{sSLOT}, s{sXG}, 5\ns_add_u32 s{sSLOT}, s{sSLOT}, s{sI}")
A("v_lshlrev_b32 v8, 4, v0")
if opt["pf"]:
    A("s_cmp_eq_u32 s3, 1\ns_cbranch_scc0 L_pf_done")
    A(f"s_getpc_b64 s[{rA}:{rA+1}]")
    A("L_pc:")
    A(f"s_sub_u32 s{rA}, s{rA}, L_pc-L_start\ns_subb_u32 s{rA+1}, s{rA+1}, 0")
    A(f"s_and_b32 s{sT0}, s{sI}, 15\ns_lshl_b32 s{sT0}, s{sT0}, 10\nv_add_u32 v1, s{sT0}, v8")
    A("v_min_u32 v1, (L_last-L_start-16)&0xfffffff0, v1")
    A(f"global_load_dwordx4 v[160:163], v1, s[{rA}:{rA+1}]")
    A("L_pf_done:")
A("v_mov_b32 v4, 0\nv_mov_b32 v5, 0\nv_mov_b32 v6, 0\nv_mov_b32 v7, 0")
A(f"s_mov_b32 s{sT0}, 0xff800000\nv_writelane_b32 v4, s{sT0}, 0")
A(f"ds_write_b128 v8, v[4:7] offset:{MX}")
A(f"s_lshl_b32 s{sT0}, s3, 9\nv_lshl_add_u32 v9, v0, 3, s{sT0}\nds_write_b64 v9, v[6:7] offset:{OSL}")
nz, nmu = (8, 6) if opt["bal"] else (8, 8)
A(f"""s_and_b32 s80, s{sI}, 7
s_lshr_b32 s81, s{sI}, 3
s_cmp_lt_u32 s{sXG}, 6
s_cselect_b32 s82, 3, 2
s_cmp_lt_u32 s81, s82
s_cselect_b32 s83, 3, 2
s_mov_b32 s{sROLE}, 0
s_mov_b32 s{sNKV}, 8
s_lshl_b32 s{sU}, s80, 3
s_lshl_b32 s{sR}, s81, 1
s_add_u32 s{sR}, s{sR}, s80
s_cmp_lt_u32 s80, 2
s_cbranch_scc1 L_role_done
s_sub_u32 s80, s80, 2
s_cmp_lt_u32 s80, s83
s_cbranch_scc0 L_role_free
s_mov_b32 s{sROLE}, 1
s_min_u32 s82, s82, s81
s_lshl_b32 s{sR}, s81, 1
s_add_u32 s{sR}, s{sR}, s82
s_add_u32 s{sR}, s{sR}, s80
s_mul_i32 s82, s{sXG}, 11
s_add_u32 s{sR}, s{sR}, s82
s_cmp_eq_u32 s{sXG}, 7
s_subb_u32 s{sR}, s{sR}, 0""")
if opt["bal"]:
    A(f"s_mov_b32 s{sNKV}, 6\ns_mul_i32 s{sU}, s80, 6\ns_add_u32 s{sU}, s{sU}, 16")
A(f"s_branch L_role_done\nL_role_free:\ns_mov_b32 s{sROLE}, 2")
if opt["bal"]:
    A(f"""s_add_u32 s{sNKV}, s83, 7
s_sub_u32 s80, s80, s83
s_mul_i32 s{sU}, s80, s{sNKV}
s_mul_i32 s83, s83, 6
s_add_u32 s{sU}, s{sU}, s83
s_add_u32 s{sU}, s{sU}, 16""")
A("L_role_done:")
KR, VR = 40, 104
A(f"s_add_u32 s{sT0}, s3, s{sNKV}\ns_sub_u32 s83, s{sT0}, 12")
A(f"s_lshr_b32 s{sT1}, s{sSLOT}, 3\ns_lshl_b32 s{sT1}, s{sT1}, 20\ns_lshl_b32 s{sU}, s{sU}, 14\ns_add_u32 s{sT1}, s{sT1}, s{sU}")
if opt["pat"] == "A":
    A(f"s_lshl_b32 s{sT0}, s83, 14")
    for i in range(4):
        A(f"s_mov_b32 s{sOFF+i}, {i*4096}")
    koff = lambda i: (f"s{sOFF+i//4}", (i % 4) * 1024)
else:
    A(f"s_lshl_b32 s{sT0}, s83, 10\ns_lshl_b32 s{sOFF+1}, s{sNKV}, 10")
    for i in range(2, 12):
        A(f"s_add_u32 s{sOFF+i}, s{sOFF+i-1}, s{sOFF+1}")
    koff = lambda i: ("0" if i == 0 else f"s{sOFF+i}", 0)
A(f"s_mov_b32 s{sU}, s83")
A(f"s_add_u32 s{sT0}, s{sT0}, s{sT1}\nv_add_u32 v1, s{sT0}, v8")
if opt["pat"] != "A":
    for i in range(12, 16):
        A(f"s_add_u32 s{sOFF+i}, s{sOFF+i-1}, s{sOFF+1}")
A(f"s_mov_b32 s{sHI}, 0xffff0000\ns_mov_b32 s{sMASK}, {TAGMASK}")
A(f"s_and_b32 s{sT0}, s{sSLOT}, 7\ns_lshl_b32 s{sT0}, s{sT0}, 6")
A(f"v_lshrrev_b32 v2, 4, v0\nv_lshl_add_u32 v2, v2, 4, s{sT0}\nv_lshlrev_b32 v3, 1, v2")
A(f"s_lshr_b32 s{sT0}, s{sSLOT}, 3\ns_lshl_b32 s{sT0}, s{sT0}, 8")
A(f"v_lshlrev_b32 v2, 13, v2\nv_and_b32 v9, 15, v0\nv_lshl_add_u32 v2, v9, 4, v2\nv_add_u32 v2, s{sT0}, v2")
A(f"v_mov_b32 v{vL}, {MX}\nv_mov_b32 v{vONE}, 1")
A("s_waitcnt lgkmcnt(0)")
srd(rD, pX, 1024)
srd(rC, pWQ, 0x400000)
srd(rA, pK, 0x2000000)
srd(rB, pV, 0x2000000)
srd(rWS, pWS, 0x10000000)
st(6)
A("s_cmp_lg_u32 s3, 0\ns_cbranch_scc1 L_not0")
A(f"buffer_load_dwordx4 v[104:107], v8, {R(rD)}, 0 offen")
A(f"buffer_load_dwordx4 v[12:15], v3, {R(rD)}, 0 offen")
A(f"buffer_load_dwordx4 v[16:19], v3, {R(rD)}, 0 offen offset:16")
for t in range(16):
    A(f"s_mov_b32 s{sT1}, {t*8192 if not opt.get('nowq') else 0}")
    A(f"buffer_load_dwordx4 {V(40+4*t,4)}, {'v2' if not opt.get('nowq') else 'v8'}, {R(rC)}, s{sT1} offen{fl('wqfl')}")
A("L_not0:")
A("s_barrier")
A(f"s_cmp_lt_i32 s{sU}, 0\ns_cbranch_scc1 L_helper")


def kvload(base, i, r):
    so, io = koff(i)
    o = f" offset:{io}" if io else ""
    A(f"buffer_load_dwordx4 {V(base+4*i,4)}, v1, {R(r)}, {so} offen{o}{fl('kvfl')}")
    if opt["gap"] >= 0:
        A(f"s_nop {opt['gap']}")


for i in range(16):
    kvload(KR, i, rA)
for i in range(NV1):
    kvload(VR, i, rB)
st(1)
A("""v_bfe_u32 v10, v0, 3, 1
v_mul_u32_u24 v10, 0x202, v10
v_add_u32 v10, 0x100, v10
v_and_b32 v11, 1, v0
v_lshlrev_b32 v11, 4, v11
v_lshlrev_b32 v10, v11, v10
v_mov_b32 v12, 0x0c0c0000
v_lshrrev_b32 v12, v11, v12
v_or_b32 v10, v10, v12
v_bfe_u32 v11, v0, 1, 2
v_mov_b32 v12, 0x0c0c0c0c""")
for i in range(4):
    A(f"v_cmp_eq_u32 vcc, {i}, v11\nv_cndmask_b32 v{6+i}, v12, v10, vcc")
A(f"s_mov_b32 s{sM1}, 0xcccccccc\ns_mov_b32 s{sM1+1}, 0xcccccccc\ns_mov_b32 s{sM0}, 0xaaaaaaaa\ns_mov_b32 s{sM0+1}, 0xaaaaaaaa")
A(f"s_mov_b32 s{sC2}, {f32(128 ** -0.5 * 1.4426950408889634)}")
A("v_and_b32 v32, 15, v0\nv_lshlrev_b32 v32, 4, v32")
A(f"v_lshrrev_b32 v34, 4, v0\nv_and_b32 v35, 7, v0\nv_lshl_add_u32 v34, v34, 3, v35\ns_lshl_b32 s{sT0}, s3, 9\nv_lshl_add_u32 v34, v34, 4, s{sT0}")
A("v_lshlrev_b32 v35, 3, v0")
A(f"s_lshl_b32 s{sT0}, s{sSLOT}, 9\ns_add_u32 s{sT0}, s{sT0}, {OS}\nv_lshl_add_u32 v36, v0, 3, s{sT0}")
A(f"s_lshl_b32 s{sT0}, s{sSLOT}, 4\ns_add_u32 s{sT0}, s{sT0}, {ST}\nv_mov_b32 v37, s{sT0}")
A(f"s_sub_u32 s{sN}, s{sNKV}, 1")
spin(CQ, 1, 10, f"ds_read_b128 v[2:5], v32 offset:{QL}\nds_read_b64 v[26:27], v{vL} offset:{FAST-MX}", sleep=2)
st(2)
A(f"v_readfirstlane_b32 s{sFAST}, v26\nv_mov_b32 v{vT}, v27")
A(f"s_waitcnt vmcnt({NV1})")
for j in range(4):
    for i in range(16):
        c = "0" if j == 0 else f"v{10+i}"
        A(f"v_dot2_f32_bf16 v{10+i}, v{KR+4*i+j}, v{2+j}, {c}")
for i in range(8):
    A(f"v_add_f32_dpp v{10+i}, v{10+i}, v{10+i} row_ror:8 row_mask:0xf bank_mask:0x3")
    A(f"v_add_f32_dpp v{10+i}, v{18+i}, v{18+i} row_ror:8 row_mask:0xf bank_mask:0xc")
for i in range(4):
    A(f"v_add_f32_dpp v{10+i}, v{10+i}, v{10+i} row_ror:12 row_mask:0xf bank_mask:0x5")
    A(f"v_add_f32_dpp v{10+i}, v{14+i}, v{14+i} row_ror:4 row_mask:0xf bank_mask:0xa")
for i in range(4):
    A(f"v_add_f32_dpp v{10+i}, v{10+i}, v{10+i} quad_perm:[2,3,0,1] {DPP}")
for i in range(2):
    A(f"v_cndmask_b32 v{10+i}, v{10+i}, v{12+i}, s[{sM1}:{sM1+1}]")
for i in range(2):
    A(f"v_add_f32_dpp v{10+i}, v{10+i}, v{10+i} quad_perm:[1,0,3,2] {DPP}")
A(f"v_cndmask_b32 v10, v10, v11, s[{sM0}:{sM0+1}]")
A(f"v_mul_f32 v10, s{sC2}, v10")
A(f"v_max_f32_dpp v11, v10, v10 row_ror:8 {DPP}")
for n in (4, 2, 1):
    A(f"v_max_f32_dpp v11, v11, v11 row_ror:{n} {DPP}")
for sw in ("v_permlane16_swap_b32", "v_permlane32_swap_b32"):
    A(f"v_mov_b32 v12, v11\n{sw} v11, v12\nv_max_f32 v11, v11, v12")
A("s_mov_b64 exec, 1")
A(f"ds_max_f32 v{vL}, v11\nds_add_u32 v{vL}, v{vONE} offset:{C1-MX}")
A("s_mov_b64 exec, -1")
st(3)
A("v_sub_f32 v10, v10, v11\nv_exp_f32 v10, v10")
A("v_cvt_pk_bf16_f32 v13, v10, v10\nv_lshlrev_b32 v13, 16, v13\nv_sub_f32 v13, v10, v13\nv_cvt_pk_bf16_f32 v13, v10, v13")
for t in range(16):
    A(f"v_mov_b32_dpp v{14+t%4}, v13 row_newbcast:{t} {DPP}")
    if t >= 1:
        for i in range(4):
            A(f"v_perm_b32 v{KR+4*(t-1)+i}, v{14+(t-1)%4}, v{14+(t-1)%4}, v{6+i}")
for i in range(4):
    A(f"v_perm_b32 v{KR+60+i}, v{14+15%4}, v{14+15%4}, v{6+i}")
for i in range(NV1, 16):
    kvload(VR, i, rB)
row_allreduce("v_add_f32", 10)
spin(C1, f"s{sNKV}", 12, f"ds_read_b32 v13, v{vL}", sleep=2)
A("v_sub_f32 v11, v11, v13\nv_exp_f32 v11, v11")
A("v_mul_f32 v10, v10, v11")
A("s_mov_b32 exec_lo, 0x00010001\ns_mov_b32 exec_hi, 0x00010001")
A(f"ds_add_f32 v{vL}, v10 offset:{LACC-MX}")
A("s_mov_b64 exec, 1")
A(f"ds_add_u32 v{vL}, v{vONE} offset:{C2-MX}")
A("s_mov_b64 exec, -1")
st(4)
for t in range(16):
    A(f"s_waitcnt vmcnt({15-t})")
    c = "0" if t == 0 else "v[28:31]"
    A(f"v_mfma_f32_16x16x32_bf16 v[28:31], {V(VR+4*t,4)}, {V(KR+4*t,4)}, {c}")
st(5)
for i in range(4):
    A(f"v_add_f32_dpp v{28+i}, v{28+i}, v{28+i} row_ror:8 {DPP}")
for i in range(4):
    A(f"v_mul_f32 v{28+i}, v{28+i}, v11")
A("s_mov_b32 exec_lo, 0x00ff00ff\ns_mov_b32 exec_hi, 0x00ff00ff")
A(f"ds_write_b128 v34, v[28:31] offset:{OSL}")
A("s_mov_b64 exec, 1")
A(f"ds_add_rtn_u32 v12, v{vL}, v{vONE} offset:{C3-MX}")
A("s_mov_b64 exec, -1")
for w in range(2, 12):
    A(f"ds_read_b64 {V(KR+2*(w-2),2)}, v35 offset:{OSL+512*w}")
A("s_waitcnt lgkmcnt(6)")
A(f"v_readfirstlane_b32 s{sT0}, v12")
P = lambda k: V(KR + 2 * k, 2)
A(f"v_pk_add_f32 {P(0)}, {P(0)}, {P(1)}\nv_pk_add_f32 {P(2)}, {P(2)}, {P(3)}\ns_waitcnt lgkmcnt(2)")
A(f"v_pk_add_f32 {P(4)}, {P(4)}, {P(5)}\nv_pk_add_f32 {P(6)}, {P(6)}, {P(7)}\nv_pk_add_f32 {P(0)}, {P(0)}, {P(2)}\ns_waitcnt lgkmcnt(0)")
A(f"v_pk_add_f32 {P(8)}, {P(8)}, {P(9)}\nv_pk_add_f32 {P(4)}, {P(4)}, {P(6)}\nv_pk_add_f32 {P(0)}, {P(0)}, {P(8)}\nv_pk_add_f32 v[18:19], {P(0)}, {P(4)}")
tag([18, 19])
A(f"s_cmp_lg_u32 s{sT0}, s{sN}\ns_cbranch_scc1 L_kv_notlast")
store_fs(f"buffer_store_dwordx2 v[18:19], v36, {R(rWS)}, 0 offen")
st(6)
A("L_kv_notlast:")
A(f"s_cmp_lg_u32 s{sU}, 0\ns_cbranch_scc1 L_kv_end")
spin(C2, f"s{sNKV}", 12, f"ds_read_b64 v[20:21], v{vL}")
tag([20, 21])
A(f"v_mov_b32 v22, v{vT}\nv_mov_b32 v23, v{vT}\ns_mov_b64 exec, 1")
store_fs(f"buffer_store_dwordx4 v[20:23], v37, {R(rWS)}, 0 offen")
st(7)
A("L_kv_end:")
end_wave()

A("L_helper:")
for i in range(4):
    A(f"s_mov_b32 s{sOFF+i}, {i*4096}")
A("s_cmp_eq_u32 s3, 0\ns_cbranch_scc1 L_q")
A("s_cmp_ge_u32 s3, 4\ns_cbranch_scc1 L_idle")
A("s_cmp_eq_u32 s2, 0\ns_cbranch_scc0 L_roles\ns_cmp_eq_u32 s3, 1\ns_cbranch_scc0 L_roles")
A(f"s_load_dword s{sT0}, s[{pWS}:{pWS+1}], {hex(EPOCH)}")
srd(rA, pDBG, 256)
A(f"v_mov_b32 v3, {EPOCH}\nv_lshlrev_b32 v4, 6, v0\ns_waitcnt lgkmcnt(0)")
A(f"s_add_u32 s{sT0}, s{sT0}, 0x0e3779b1\ns_and_b32 s{sT0}, s{sT0}, 0x0fffffff\ns_or_b32 s{sT1}, s{sT0}, 0x80000000")
A(f"v_mov_b32 v5, s{sT1}\nv_mov_b32 v6, s{sT0}\ns_mov_b64 exec, 15")
A(f"buffer_store_dword v5, v4, {R(rA)}, 0 offen sc1")
A("s_mov_b64 exec, 1")
A(f"buffer_store_dword v6, v3, {R(rWS)}, 0 offen sc1")
A("s_mov_b64 exec, -1")
A("s_branch L_roles")
A("L_idle:")
end_wave()

A("L_q:")
A("""v_and_b32 v28, 1, v0
v_lshlrev_b32 v28, 4, v28
v_mov_b32 v29, 0x100
v_lshlrev_b32 v29, v28, v29
v_mov_b32 v30, 0x0c0c0000
v_lshrrev_b32 v30, v28, v30
v_or_b32 v29, v29, v30
v_bfe_u32 v28, v0, 1, 3
v_mov_b32 v30, 0x0c0c0c0c""")
for i in range(4):
    A(f"v_cmp_eq_u32 vcc, {i}, v28\nv_cndmask_b32 v{20+i}, v30, v29, vcc")
A("s_waitcnt vmcnt(16)")
for j in range(4):
    A(f"v_lshlrev_b32 v{112+2*j}, 16, v{104+j}\nv_and_b32 v{113+2*j}, s{sHI}, v{104+j}")
A("v_add_f32 v36, v112, v113\nv_add_f32 v37, v114, v115\nv_add_f32 v34, v116, v117\nv_add_f32 v35, v118, v119")
A("v_add_f32 v36, v36, v37\nv_add_f32 v34, v34, v35\nv_add_f32 v36, v36, v34")
wave_allreduce_add(36, 37)
A(f"v_mul_f32 v36, {f32(1/512)}, v36")
for j in range(8):
    A(f"v_sub_f32 v{112+j}, v{112+j}, v36")
A("v_mul_f32 v37, v112, v112")
for j in range(1, 8):
    A(f"v_fmac_f32 v37, v{112+j}, v{112+j}")
wave_allreduce_add(37, 34)
A(f"v_mul_f32 v37, {f32(1/512)}, v37")
A(f"""v_cvt_pk_bf16_f32 v34, v36, v37
v_lshlrev_b32 v36, 16, v34
v_and_b32 v37, s{sHI}, v34
v_add_f32 v37, {f32(1e-5)}, v37
v_cvt_pk_bf16_f32 v37, v37, v37
v_and_b32 v37, s{sHI}, v37
v_sqrt_f32 v37, v37
v_cvt_pk_bf16_f32 v37, v37, v37
v_and_b32 v37, s{sHI}, v37
v_rcp_f32 v37, v37""")
for j in range(8):
    r = 12 + j
    A(f"""v_lshlrev_b32 v28, 16, v{r}
v_and_b32 v29, s{sHI}, v{r}
v_sub_f32 v28, v28, v36
v_sub_f32 v29, v29, v36
v_cvt_pk_bf16_f32 v30, v28, v29
v_lshlrev_b32 v28, 16, v30
v_and_b32 v29, s{sHI}, v30
v_mul_f32 v28, v28, v37
v_mul_f32 v29, v29, v37
v_cvt_pk_bf16_f32 v{r}, v28, v29""")
A(f"s_load_dword s{sN}, s[{pDBG}:{pDBG+1}], 0")
A("s_waitcnt vmcnt(0)")
st(1)
for t in range(16):
    src = 12 + t // 2
    if t % 2:
        A(f"v_lshrrev_b32 v{src}, 16, v{src}")
    b = 104 + 4 * (t % 2)
    for i in range(4):
        A(f"v_perm_b32 v{b+i}, v{src}, v{src}, v{20+i}")
    c = "0" if t == 0 else "v[24:27]"
    A(f"v_mfma_f32_16x16x32_bf16 v[24:27], {V(40+4*t,4)}, {V(b,4)}, {c}")
for k in range(1, 4):
    A(f"s_waitcnt lgkmcnt(0)\ns_cmp_lg_u32 s{sN}, 0\ns_cbranch_scc1 L_num_ok")
    if k > 1:
        A(f"s_sleep {opt['nsl']}")
    A(f"s_load_dword s{sN}, s[{pDBG}:{pDBG+1}], {64*k}")
srd(rA, pDBG, 256)
A(f"s_mov_b32 s{sCNT}, {opt['spin']}\nv_mov_b32 v3, 0\ns_waitcnt lgkmcnt(0)")
A(f"""L_num:
s_cmp_lg_u32 s{sN}, 0
s_cbranch_scc1 L_num_ok
s_sub_u32 s{sCNT}, s{sCNT}, 1
s_cbranch_scc1 L_num_ok
buffer_load_dword v4, v3, {R(rA)}, 0 offen sc1
s_waitcnt vmcnt(0)
v_readfirstlane_b32 s{sN}, v4
s_branch L_num
L_num_ok:""")
st(2)
A(f"s_and_b32 s{sT0}, s{sN}, s{sMASK}\nv_mov_b32 v{vT}, s{sT0}")
A(f"s_getreg_b32 s{sT1}, hwreg(HW_REG_XCC_ID)\ns_and_b32 s{sT1}, s{sT1}, 15\ns_lshl_b32 s{sN}, s{sN}, 4\ns_or_b32 s{sN}, s{sN}, s{sT1}")
A(f"s_lshl_b32 s{sT0}, s{sSLOT}, 9\ns_add_u32 s{sT0}, s{sT0}, {QS}")
A(f"v_lshrrev_b32 v2, 4, v0\nv_and_b32 v3, 7, v0\nv_lshl_add_u32 v2, v2, 3, v3\nv_lshl_add_u32 v2, v2, 4, s{sT0}")
tag([24, 25, 26, 27])
A("s_mov_b32 exec_lo, 0x00ff00ff\ns_mov_b32 exec_hi, 0x00ff00ff")
A(f"buffer_store_dwordx4 v[24:27], v2, {R(rWS)}, 0 offen sc1")
A("s_mov_b64 exec, -1")
A(f"s_lshl_b32 s{sT1}, s{sXG}, 7\ns_add_u32 s{sT1}, s{sT1}, {XC}\nv_lshl_add_u32 v5, v3, 2, s{sT1}")
A(f"s_cmp_eq_u32 s{sROLE}, 0\ns_cbranch_scc0 L_noxc")
A(f"s_lshl_b32 s{sT0}, s{sR}, 2\ns_add_u32 s{sT0}, s{sT0}, s{sT1}\nv_mov_b32 v3, s{sT0}\nv_mov_b32 v4, s{sN}\ns_mov_b64 exec, 1")
A(f"buffer_store_dword v4, v3, {R(rWS)}, 0 offen sc1")
A("s_mov_b64 exec, -1")
A("L_noxc:")
A(f"s_and_b32 s{sT0}, s{sSLOT}, 0xf8\ns_lshl_b32 s{sT0}, s{sT0}, 9\ns_add_u32 s{sT0}, s{sT0}, {QS}")
A(f"v_lshl_add_u32 v7, v0, 4, s{sT0}")
A("v_bfe_u32 v2, v0, 3, 2\nv_lshlrev_b32 v2, 2, v2\nv_lshrrev_b32 v3, 5, v0\nv_add_u32 v2, v2, v3\nv_and_b32 v3, 7, v0\nv_lshl_add_u32 v2, v2, 3, v3\nv_lshlrev_b32 v2, 1, v2")
if not opt.get("noq"):
    A("s_waitcnt vmcnt(0)")
st(3)


def q_poll():
    for t in range(4):
        A(f"buffer_load_dwordx4 {V(112+4*t,4)}, v7, {R(rWS)}, 0 offen offset:{1024*t} sc1")
    A(f"buffer_load_dword v6, v5, {R(rWS)}, 0 offen sc1")


if not opt.get("noq"):
    poll(q_poll, list(range(112, 128)), 10)
A(f"v_cmp_ne_u32 vcc, s{sN}, v6\ns_cmp_eq_u64 vcc, 0\ns_cselect_b32 s{sFAST}, 1, 0")
A(f"v_mov_b32 v4, s{sFAST}\nv_mov_b32 v5, v{vT}\nds_write_b64 v{vL}, v[4:5] offset:{FAST-MX}")
for i in range(4):
    A(f"v_add_f32 v{112+i}, v{112+i}, v{116+i}\nv_add_f32 v{120+i}, v{120+i}, v{124+i}")
for i in range(4):
    A(f"v_add_f32 v{112+i}, v{112+i}, v{120+i}")
A("v_permlane32_swap_b32 v112, v113\nv_permlane32_swap_b32 v114, v115")
A("v_add_f32 v112, v112, v113\nv_add_f32 v114, v114, v115")
A("v_cvt_pk_bf16_f32 v112, v112, v114")
A(f"ds_write_b16 v2, v112 offset:{QL}\nds_write_b16_d16_hi v2, v112 offset:{QL+32}")
A(f"ds_write_b32 v{vL}, v{vONE} offset:{CQ-MX}")
st(4)

A("L_roles:")
A(f"s_cmp_eq_u32 s{sROLE}, 1\ns_cbranch_scc1 L_mlp")
A(f"s_cmp_eq_u32 s{sROLE}, 0\ns_cbranch_scc1 L_z")
end_wave()


def trigger(trig, loads):
    if opt.get("now"):
        return
    if trig != "start":
        off, n = {"q": (CQ, 1), "c1": (C1, f"s{sNKV}"), "c1h": (C1, 4), "c2": (C2, f"s{sNKV}"), "c2h": (C2, 4)}[trig]
        spin(off, n, 10, sleep=4)
    loads()


A("L_z:")
ZB, ZO, ZST, ZA, ZD = 40, 104, 120, 124, 140
srd(rA, pWO, 0x400000)
A(f"s_lshl_b32 s{sT0}, s{sXG}, 2\ns_add_u32 s{sT0}, s{sT0}, s3\ns_lshl_b32 s{sT0}, s{sT0}, 17\ns_lshl_b32 s{sT1}, s{sR}, 7\ns_add_u32 s{sT0}, s{sT0}, s{sT1}")
A(f"v_bfe_u32 v1, v0, 3, 2\nv_lshrrev_b32 v2, 5, v0\nv_lshl_add_u32 v1, v1, 3, v2\nv_lshlrev_b32 v1, 10, v1\nv_and_b32 v2, 7, v0\nv_lshl_add_u32 v1, v2, 4, v1\nv_add_u32 v1, s{sT0}, v1")
A(f"s_lshl_b32 s{sIMG}, s3, 14\ns_add_u32 s{sIMG}, s{sIMG}, {WIMG}")
A(f"v_lshrrev_b32 v3, 4, v0\nv_lshlrev_b32 v3, 3, v3\nv_bfe_u32 v4, v0, 2, 2\nv_add_u32 v3, v3, v4\nv_lshlrev_b32 v3, 7, v3\nv_and_b32 v4, 3, v0\nv_lshl_add_u32 v3, v4, 3, v3\nv_add_u32 v3, s{sIMG}, v3")
A(f"s_lshl_b32 s{sT0}, s{sXG}, 5\ns_lshl_b32 s{sT1}, s3, 3\ns_add_u32 s{sT0}, s{sT0}, s{sT1}")
A(f"s_lshl_b32 s{sT1}, s{sT0}, 9\ns_add_u32 s{sT1}, s{sT1}, {OS}\nv_lshl_add_u32 v4, v0, 3, s{sT1}")
A(f"s_lshl_b32 s{sT1}, s{sT0}, 4\ns_add_u32 s{sT1}, s{sT1}, {ST}\nv_lshl_add_u32 v5, v2, 4, s{sT1}")
A(f"s_lshl_b32 s{sT0}, s3, 8\ns_add_u32 s{sT0}, s{sT0}, {SCR}\nv_lshl_add_u32 v6, v0, 2, s{sT0}")
A(f"v_lshrrev_b32 v7, 4, v0\nv_lshl_add_u32 v7, v7, 4, s{sT0}")
A(f"v_subrev_u32 v25, {SCR-ZP}, v6")
A(f"s_lshl_b32 s{sT0}, s{sXG}, 3\ns_add_u32 s{sT0}, s{sT0}, s{sR}\ns_lshl_b32 s{sT0}, s{sT0}, 1\ns_and_b32 s{sT1}, s3, 1\ns_add_u32 s{sT0}, s{sT0}, s{sT1}\ns_lshl_b32 s{sT0}, s{sT0}, 2")
A(f"v_lshrrev_b32 v20, 4, v0\nv_add_u32 v20, s{sT0}, v20\nv_lshlrev_b32 v21, 1, v20\nv_lshlrev_b32 v20, 2, v20\nv_add_u32 v20, {ZS}, v20")
A(f"s_lshl_b32 s{sT0}, s{sT0}, 2\nv_lshlrev_b32 v22, 11, v0\nv_add_u32 v22, s{sT0}, v22\nv_add_u32 v23, {64*2048}, v22")
A(f"s_lshl_b32 s{sT0}, s{sXG}, 11\ns_lshl_b32 s{sT1}, s{sR}, 8\ns_add_u32 s{sT0}, s{sT0}, s{sT1}\ns_add_u32 s{sT0}, s{sT0}, {ZS}\nv_add_u32 v24, s{sT0}, v8")
srd(rC, pWS, NMLP * 2048, PS)
srd(rB, pOUT, 1024)


def z_loads():
    A(f"buffer_load_ushort v26, v21, {R(rD)}, 0 offen")
    for t in range(16):
        A(f"s_add_u32 m0, s{sIMG}, {t*1024}\ns_mov_b32 s{sT1}, {((t>>2)*32+(t&3)*2)*1024}")
        A(f"buffer_load_dwordx4 v1, {R(rA)}, s{sT1} offen{fl('wofl')} lds")


def z_prep():
    for kb in range(4):
        for nt in range(4):
            for hf in range(2):
                A(f"ds_read_b64_tr_b16 {V(ZB+(kb*4+nt)*4+2*hf,2)}, v3 offset:{kb*4096+hf*512+nt*32}")


def z_poll():
    A(f"buffer_load_dwordx4 {V(ZST,4)}, v5, {R(rWS)}, 0 offen sc1")
    for s in range(8):
        A(f"buffer_load_dwordx2 {V(ZO+2*s,2)}, v4, {R(rWS)}, 0 offen offset:{512*s} sc1")


trigger(opt["trigz"], z_loads)
zlate = opt["trigz"] in ("c2", "c2h", "c1")
if not zlate:
    A("s_waitcnt vmcnt(0)")
    z_prep()
st(5)
spin(C3, f"s{sNKV}", 10, f"ds_read_b32 v{vT}, v{vL} offset:{TAG-MX}")
poll(z_poll, list(range(ZO, ZO + 20)), 10, (lambda: (A("s_waitcnt vmcnt(9)"), z_prep())) if zlate else None)
if opt.get("diag"):
    A("s_memrealtime s[98:99]")
st(6)
A(f"""v_max_f32_dpp v10, v{ZST}, v{ZST} quad_perm:[1,0,3,2] {DPP}
v_max_f32_dpp v10, v10, v10 quad_perm:[2,3,0,1] {DPP}
v_max_f32_dpp v10, v10, v10 row_half_mirror {DPP}
v_sub_f32 v10, v{ZST}, v10
v_exp_f32 v10, v10
v_mul_f32 v11, v10, v{ZST+1}
v_add_f32_dpp v11, v11, v11 quad_perm:[1,0,3,2] {DPP}
v_add_f32_dpp v11, v11, v11 quad_perm:[2,3,0,1] {DPP}
v_add_f32_dpp v11, v11, v11 row_half_mirror {DPP}
v_rcp_f32 v11, v11
v_mul_f32 v10, v10, v11""")
A(f"v_mul_f32_dpp v12, v10, v{ZO} row_newbcast:0 {DPP}\nv_mul_f32_dpp v13, v10, v{ZO+1} row_newbcast:0 {DPP}")
for s in range(1, 8):
    A(f"v_fmac_f32_dpp v12, v10, v{ZO+2*s} row_newbcast:{s} {DPP}\nv_fmac_f32_dpp v13, v10, v{ZO+1+2*s} row_newbcast:{s} {DPP}")
A("v_cvt_pk_bf16_f32 v12, v12, v13\nds_write_b32 v6, v12")
for kb in range(4):
    A(f"ds_read_b128 {V(ZA+4*kb,4)}, v7 offset:{64*kb}")
for kb in range(4):
    A(f"s_waitcnt lgkmcnt({3-kb})")
    for nt in range(4):
        c = "0" if kb == 0 else V(ZD + 4 * nt, 4)
        A(f"v_mfma_f32_16x16x32_bf16 {V(ZD+4*nt,4)}, {V(ZA+4*kb,4)}, {V(ZB+(kb*4+nt)*4,4)}, {c}")
for nt in range(1, 4):
    A(f"v_mov_b32_dpp v{ZD}, v{ZD+4*nt} quad_perm:[0,1,2,3] row_mask:{hex(1<<nt)} bank_mask:0xf")
A(f"ds_write_b32 v6, v{ZD} offset:{ZP-SCR+65536-65536}" if ZP >= SCR else f"ds_write_b32 v25, v{ZD}")
A("s_mov_b64 exec, 1")
A(f"ds_add_rtn_u32 v10, v{vL}, v{vONE} offset:{C4-MX}")
A("s_mov_b64 exec, 0xffff")
for w in range(4):
    A(f"ds_read_b128 {V(12 if w == 0 else ZA+4*w,4)}, v8 offset:{ZP+256*w}")
A("s_waitcnt lgkmcnt(2)")
A(f"v_readfirstlane_b32 s{sT0}, v10")
A(f"v_pk_add_f32 v[12:13], v[12:13], {V(ZA+4,2)}\nv_pk_add_f32 v[14:15], v[14:15], {V(ZA+6,2)}\ns_waitcnt lgkmcnt(0)")
A(f"v_pk_add_f32 {V(ZA+8,2)}, {V(ZA+8,2)}, {V(ZA+12,2)}\nv_pk_add_f32 {V(ZA+10,2)}, {V(ZA+10,2)}, {V(ZA+14,2)}")
A(f"v_pk_add_f32 v[12:13], v[12:13], {V(ZA+8,2)}\nv_pk_add_f32 v[14:15], v[14:15], {V(ZA+10,2)}")
tag([12, 13, 14, 15])
A(f"s_cmp_lg_u32 s{sT0}, 3\ns_cbranch_scc1 L_z_notlast")
A(f"buffer_store_dwordx4 v[12:15], v24, {R(rWS)}, 0 offen sc1")
st(7)
A("L_z_notlast:")
A("s_mov_b64 exec, -1")
A(f"s_sub_u32 s{sT0}, s3, 1\ns_cmp_lt_u32 s{sT0}, 2\ns_cbranch_scc1 L_fin")
end_wave()
A("L_fin:")


def f_poll1():
    for x in range(8):
        A(f"buffer_load_dword v{104+x}, v20, {R(rWS)}, s{sOFF+x//2} offen offset:{2048*(x%2)} sc1")


poll(f_poll1, list(range(104, 112)), 10)
st(1)


def f_poll2():
    A(f"buffer_load_dwordx4 v[112:115], v22, {R(rC)}, 0 offen sc1")
    A(f"buffer_load_dwordx4 v[116:119], v23, {R(rC)}, 0 offen sc1")


def f_between():
    A("""v_add_f32 v104, v104, v106
v_add_f32 v105, v105, v107
v_add_f32 v104, v104, v108
v_add_f32 v105, v105, v109
v_add_f32 v104, v104, v110
v_add_f32 v105, v105, v111
v_add_f32 v104, v104, v105
v_cvt_pk_bf16_f32 v104, v104, v104
v_lshlrev_b32 v104, 16, v104
v_lshlrev_b32 v26, 16, v26
v_add_f32 v104, v104, v26
v_cvt_pk_bf16_f32 v104, v104, v104
v_lshlrev_b32 v104, 16, v104""")


poll(f_poll2, list(range(112, 116)), 10, f_between, masked=((1 << (NMLP - 64)) - 1, list(range(116, 120))))
st(2)
for i in range(4):
    A(f"v_add_f32 v{112+i}, v{112+i}, v{116+i}")
A("v_permlane32_swap_b32 v112, v114\nv_permlane32_swap_b32 v113, v115")
A("v_add_f32 v112, v112, v114\nv_add_f32 v113, v113, v115")
A("v_permlane16_swap_b32 v112, v113\nv_add_f32 v112, v112, v113")
row_allreduce("v_add_f32", 112)
A("v_cvt_pk_bf16_f32 v112, v112, v112\nv_lshlrev_b32 v112, 16, v112\nv_add_f32 v112, v112, v104\nv_cvt_pk_bf16_f32 v112, v112, v112")
A("s_mov_b32 exec_lo, 0x00010001\ns_mov_b32 exec_hi, 0x00010001")
A(f"buffer_store_short v112, v21, {R(rB)}, 0 offen sc1")
if opt.get("diag"):
    A(f"s_cmp_eq_u32 s{sI}, 0\ns_cbranch_scc0 L_exit\ns_cmp_eq_u32 s3, 1\ns_cbranch_scc0 L_exit")
    A("s_memrealtime s[96:97]\ns_waitcnt lgkmcnt(0)")
    if "amp" in opt:
        if opt["amp"] != 8:
            A(f"s_cmp_eq_u32 s{sXG}, {opt['amp']}\ns_cbranch_scc0 L_exit")
        if opt.get("ampsrc") == "o":
            A("s_sub_u32 s94, s98, s100")
        else:
            A("s_sub_u32 s94, s96, s100")
        A("s_lshl_b32 s94, s94, 2\nL_amp:\ns_memrealtime s[92:93]\ns_waitcnt lgkmcnt(0)\ns_sub_u32 s92, s92, s96\ns_cmp_lt_u32 s92, s94\ns_cbranch_scc1 L_amp")
    srd(rA, pDBG, 64)
    A(f"s_sub_u32 s96, s96, s100\ns_sub_u32 s98, s98, s100\ns_lshl_b32 s100, s100, 16\ns_or_b32 s96, s96, s100")
    A(f"s_lshl_b32 s{sT0}, s{sXG}, 2\nv_mov_b32 v1, s{sT0}\nv_mov_b32 v2, s96\nv_mov_b32 v3, s98\ns_mov_b64 exec, 1")
    A(f"buffer_store_dword v2, v1, {R(rA)}, 0 offen offset:4 sc1\nbuffer_store_dword v3, v1, {R(rA)}, 0 offen offset:36 sc1")
st(3)
end_wave()

A("L_mlp:")
srd(rA, pWG, 512 * 2752)
srd(rB, pWU, 512 * 2752)
srd(rC, pWD, 1376 * 1024)
A(f"s_lshl_b32 s{sT0}, s3, 7\nv_lshrrev_b32 v1, 1, v0\nv_add_u32 v1, s{sT0}, v1\nv_mul_u32_u24 v1, 2752, v1")
A(f"v_and_b32 v2, 1, v0\nv_lshl_add_u32 v1, v2, 4, v1\ns_lshl_b32 s{sT0}, s{sR}, 5\nv_add_u32 v1, s{sT0}, v1")
A(f"s_lshl_b32 s{sIMG}, s3, 13\ns_add_u32 s{sIMG}, s{sIMG}, {WIMG}")
A(f"v_lshrrev_b32 v3, 4, v0\nv_lshlrev_b32 v3, 3, v3\nv_bfe_u32 v4, v0, 2, 2\nv_add_u32 v3, v3, v4\nv_lshlrev_b32 v3, 5, v3\nv_and_b32 v2, 3, v0\nv_lshl_add_u32 v3, v2, 3, v3\nv_add_u32 v3, s{sIMG}, v3")
A(f"s_lshl_b32 s{sT0}, s3, 9\ns_add_u32 s{sT0}, s{sT0}, {ZS}\nv_lshrrev_b32 v2, 5, v0\nv_and_b32 v5, 31, v0\nv_lshlrev_b32 v4, 11, v2\nv_lshl_add_u32 v4, v5, 4, v4\nv_add_u32 v4, s{sT0}, v4")
A(f"v_lshlrev_b32 v5, 3, v5\nv_lshl_add_u32 v5, v2, 2, v5\ns_lshl_b32 s{sT0}, s3, 8\nv_add_u32 v5, s{sT0}, v5\nv_add_u32 v6, {SCR}, v5")
A(f"s_add_u32 s{sT0}, s{sT0}, {SCR}\nv_lshrrev_b32 v7, 4, v0\nv_lshl_add_u32 v7, v7, 4, s{sT0}")
A("v_lshlrev_b32 v9, 2, v0")
A(f"s_lshl_b32 s{sT0}, s{sR}, 14\ns_lshl_b32 s{sT1}, s3, 8\ns_add_u32 s{sT0}, s{sT0}, s{sT1}\nv_add_u32 v20, s{sT0}, v9")
A(f"s_lshl_b32 s{sT0}, s{sR}, 11\ns_lshl_b32 s{sT1}, s3, 9\ns_add_u32 s{sT0}, s{sT0}, s{sT1}\ns_add_u32 s{sT0}, s{sT0}, {PS}\nv_lshl_add_u32 v21, v0, 3, s{sT0}")
A(f"v_and_b32 v22, 15, v0\nv_lshlrev_b32 v22, 3, v22\ns_lshl_b32 s{sT0}, s3, 7\ns_add_u32 s{sT0}, s{sT0}, {ZP}\nv_add_u32 v25, s{sT0}, v22")
A(f"v_lshrrev_b32 v23, 5, v0\nv_lshlrev_b32 v23, 2, v23\nv_add_u32 v23, {SQ}, v23\nv_mov_b32 v24, {SQ}")
for i in range(4):
    A(f"v_mov_b32 v{116+i}, 0x3f803f80")
A(f"s_mov_b32 s{sM1}, 0x05040100\ns_mov_b32 s{sM1+1}, 0x07060302")


def m_loads():
    A(f"buffer_load_dword v26, v5, {R(rD)}, 0 offen")
    for t in range(4):
        A(f"s_add_u32 m0, s{sIMG}, {t*1024}\ns_mov_b32 s{sT1}, {t*32*2752}")
        A(f"buffer_load_dwordx4 v1, {R(rA)}, s{sT1} offen{fl('gufl')} lds")
        A(f"s_add_u32 m0, s{sIMG}, {4096+t*1024}")
        A(f"buffer_load_dwordx4 v1, {R(rB)}, s{sT1} offen{fl('gufl')} lds")
    for r in range(16):
        A(f"buffer_load_dword v{120+r}, v20, {R(rC)}, s{sOFF+r//4} offen offset:{1024*(r%4)}{fl('wdfl')}")
        A("s_nop 0")


trigger(opt["trigm"], m_loads)
st(5)
A("s_waitcnt vmcnt(0)")
for kb in range(4):
    for tl in range(2):
        for hf in range(2):
            A(f"ds_read_b64_tr_b16 {V(40+(kb*2+tl)*4+2*hf,2)}, v3 offset:{kb*1024+hf*128+tl*4096}")
for i in range(8):
    A(f"v_perm_b32 v{136+i}, v{121+2*i}, v{120+2*i}, s{sM1}\nv_perm_b32 v{144+i}, v{121+2*i}, v{120+2*i}, s{sM1+1}")
A(f"v_lshlrev_b32 v27, 16, v26\nv_and_b32 v26, s{sHI}, v26")
A("s_waitcnt lgkmcnt(0)")
for kb in range(4):
    for tl in range(2):
        c = "0" if kb == 0 else V(108 + 4 * tl, 4)
        A(f"v_mfma_f32_16x16x32_bf16 {V(108+4*tl,4)}, v[116:119], {V(40+(kb*2+tl)*4,4)}, {c}")
A("s_mov_b64 exec, 0xffff")
A(f"ds_add_f32 v22, v108 offset:{CS}\nds_add_f32 v22, v112 offset:{CS+4}")
A("s_mov_b64 exec, -1")
A("v_mov_b32 v30, 0\nv_mov_b32 v31, 0")
st(1)
spin(C3, f"s{sNKV}", 10, f"ds_read_b32 v{vT}, v{vL} offset:{TAG-MX}")


def m_poll():
    for t in range(4):
        A(f"buffer_load_dwordx4 {V(72+4*t,4)}, v4, {R(rWS)}, s{sOFF+t} offen sc1")


poll(m_poll, list(range(72, 88)), 10)
st(6)
for t in range(1, 4):
    for i in range(4):
        A(f"v_add_f32 v{72+i}, v{72+i}, v{72+4*t+i}")
A("v_permlane32_swap_b32 v72, v74\nv_permlane32_swap_b32 v73, v75")
A(f"""v_add_f32 v72, v72, v74
v_add_f32 v73, v73, v75
v_cvt_pk_bf16_f32 v72, v72, v73
v_lshlrev_b32 v73, 16, v72
v_and_b32 v72, s{sHI}, v72
v_add_f32 v73, v73, v27
v_add_f32 v72, v72, v26
v_cvt_pk_bf16_f32 v72, v73, v72
ds_write_b32 v6, v72""")
for kb in range(4):
    A(f"ds_read_b128 {V(92+4*kb,4)}, v7 offset:{64*kb}")
A(f"""v_lshlrev_b32 v73, 16, v72
v_and_b32 v72, s{sHI}, v72
v_add_f32 v74, v72, v73
v_mul_f32 v75, v72, v72
v_fmac_f32 v75, v73, v73""")
A("v_permlane32_swap_b32 v74, v75\nv_add_f32 v74, v74, v75")
rr = [8, 4, 2, 1]
for kb in range(4):
    A(f"s_waitcnt lgkmcnt({3-kb})")
    for tl in range(2):
        c = "0" if kb == 0 else V(108 + 4 * tl, 4)
        A(f"v_mfma_f32_16x16x32_bf16 {V(108+4*tl,4)}, {V(92+4*kb,4)}, {V(40+(kb*2+tl)*4,4)}, {c}")
    A(f"v_add_f32_dpp v74, v74, v74 row_ror:{rr[kb]} {DPP}")
A("s_mov_b32 exec_lo, 0x00010001\ns_mov_b32 exec_hi, 0x00010001")
A("ds_add_f32 v23, v74")
A("s_mov_b64 exec, 0xffff")
A("ds_write2_b32 v25, v108, v112 offset0:0 offset1:1")
A("s_mov_b64 exec, -1")
A("s_waitcnt lgkmcnt(0)\ns_barrier")
A(f"ds_read_b64 v[16:17], v24\nds_read_b64 v[14:15], v22 offset:{CS}")
for w in range(4):
    A(f"ds_read_b64 {V(12 if w == 0 else 92+2*w,2)}, v22 offset:{ZP+128*w}")
A("s_waitcnt lgkmcnt(5)")
A(f"""v_mul_f32 v16, {f32(1/512)}, v16
v_mul_f32 v17, {f32(1/512)}, v17
v_fma_f32 v17, -v16, v16, v17
v_max_f32 v17, 0, v17
v_cvt_pk_bf16_f32 v18, v16, v17
v_lshlrev_b32 v16, 16, v18
v_and_b32 v17, s{sHI}, v18
v_add_f32 v17, {f32(1e-5)}, v17
v_cvt_pk_bf16_f32 v17, v17, v17
v_and_b32 v17, s{sHI}, v17
v_sqrt_f32 v17, v17
v_cvt_pk_bf16_f32 v17, v17, v17
v_and_b32 v17, s{sHI}, v17
v_rcp_f32 v17, v17
s_waitcnt lgkmcnt(0)
v_pk_add_f32 v[12:13], v[12:13], v[94:95]
v_pk_add_f32 v[96:97], v[96:97], v[98:99]
v_pk_add_f32 v[12:13], v[12:13], v[96:97]
v_fma_f32 v12, -v16, v14, v12
v_fma_f32 v13, -v16, v15, v13
v_mul_f32 v12, v12, v17
v_mul_f32 v13, v13, v17
v_cvt_pk_bf16_f32 v12, v12, v13
v_and_b32 v13, s{sHI}, v12
v_lshlrev_b32 v12, 16, v12
v_mul_f32 v12, {f32(-1.4426950408889634)}, v12
v_exp_f32 v12, v12
v_add_f32 v12, 1.0, v12
v_rcp_f32 v12, v12
v_cvt_pk_bf16_f32 v12, v12, v12
v_and_b32 v12, s{sHI}, v12
v_mul_f32 v12, v12, v13
v_mov_b32_dpp v13, v12 quad_perm:[1,0,3,2] {DPP}
v_cvt_pk_bf16_f32 v12, v12, v13""")
for i in range(8):
    A(f"v_dot2c_f32_bf16_dpp v30, v12, v{136+i} row_newbcast:{2*i} {DPP}")
    A(f"v_dot2c_f32_bf16_dpp v31, v12, v{144+i} row_newbcast:{2*i} {DPP}")
tag([30, 31])
A(f"buffer_store_dwordx2 v[30:31], v21, {R(rWS)}, 0 offen sc1")
st(7)
end_wave()

if STAMPS:
    A("L_stamps:")
    A("s_mov_b64 exec, 1")
    A("s_waitcnt lgkmcnt(0)\ns_memrealtime s[4:5]\ns_waitcnt lgkmcnt(0)\ns_memtime s[6:7]")
    A(f"s_mul_i32 s{sT0}, s2, 12\ns_add_u32 s{sT0}, s{sT0}, s3\ns_lshl_b32 s{sT0}, s{sT0}, 6\ns_add_u32 s{sT0}, s{sT0}, {STAMP}")
    A(f"v_mov_b32 v1, s{sT0}\ns_waitcnt lgkmcnt(0)")
    for k in range(8):
        A(f"v_mov_b32 v{4+k}, s{sST+2*k}")
    A("v_mov_b32 v12, s100\nv_mov_b32 v13, s4\nv_mov_b32 v14, s6\nv_mov_b32 v15, 0")
    A(f"buffer_store_dwordx4 v[4:7], v1, {R(rWS)}, 0 offen\nbuffer_store_dwordx4 v[8:11], v1, {R(rWS)}, 0 offen offset:16\nbuffer_store_dwordx4 v[12:15], v1, {R(rWS)}, 0 offen offset:32")
A("L_exit:")
A("s_endpgm")
A("L_last:")

body, problems = fix_hazards(L)
for p in problems:
    print("HAZARD:", p, file=sys.stderr)
for line in body:
    out.append(line if line.endswith(":") else "    " + line)
out.append(f""".section .rodata,"a"
.p2align 6
.amdhsa_kernel {NAME}_kernel
  .amdhsa_next_free_vgpr 168
  .amdhsa_next_free_sgpr 102
  .amdhsa_accum_offset 168
  .amdhsa_group_segment_fixed_size 0
  .amdhsa_kernarg_size 96
  .amdhsa_user_sgpr_count 2
  .amdhsa_user_sgpr_kernarg_segment_ptr 1
  .amdhsa_system_sgpr_workgroup_id_x 1
  .amdhsa_float_denorm_mode_32 3
.end_amdhsa_kernel""")
open(sys.argv[1], "w").write("\n".join(out) + "\n")
```

```python
import sys, struct
from asmlib import fix_hazards

NAME = "sequential_preLN__mha_block_cached__glu_gated_glu__decode"
opt = dict(stamps=0, nv1=12, trigz="c1h", trigm="c1h", pat="B", kvfl="nt", wqfl="nt", wofl="nt", gufl="nt",
           wdfl="nt", fast=1, pf=1, gap=0, prio=0, bal=1, bfirst=0, fdelay=0, ptouch=0, nsl=12, spin=20000)
for a in sys.argv[2:]:
    k, v = a.split("=")
    opt[k] = v if not v.lstrip("-").isdigit() else int(v)
STAMPS = opt["stamps"]
NV1 = opt["nv1"]


def fl(name):
    v = opt[name]
    return "" if v == "plain" else " " + v.replace("+", " ")


def f32(x):
    return "0x%08x" % struct.unpack("<I", struct.pack("<f", x))[0]


QS, OS, ST, ZS, XC, EPOCH, PS, STAMP = 0x0, 0x20000, 0x40000, 0x41000, 0x45000, 0x46000, 0x48000, 0x80000
NMLP = 86
TAGMASK = 0x3ff
QL, MX, LACC, SQ, CS, ZP, SCR, OSL, WIMG = 0, 256, 260, 272, 1024, 1536, 3072, 4096, 10240
CQ, C1, C2, C3, C4, FAST, TAG = 280, 284, 288, 292, 296, 304, 308
LDS_BYTES = WIMG + 4 * 16384
pX, pK, pV, pWQ, pWO, pWG, pWU, pWD, pOUT, pDBG, pWS = 4, 6, 8, 10, 12, 16, 18, 20, 22, 24, 26
rA, rB, rWS, rC, rD = 28, 32, 36, 44, 48
sNKV, sROLE, sMASK, sN = 40, 41, 42, 43
sXG, sI, sSLOT, sR, sT0, sT1, sCNT, sFAST = 52, 53, 54, 55, 56, 57, 58, 59
sM1, sM0, sU, sIMG, sC2, sHI = 60, 62, 64, 65, 66, 67
sOFF = 68
sST = 84
vT = 38
vONE = 39
vL = 33

L = []


def A(s):
    for line in s.split("\n"):
        line = line.strip()
        if line:
            L.append(line)


def srd(r, p, size, add=None):
    if add is None:
        A(f"s_mov_b32 s{r}, s{p}\ns_mov_b32 s{r+1}, s{p+1}")
    else:
        A(f"s_add_u32 s{r}, s{p}, {add}\ns_addc_u32 s{r+1}, s{p+1}, 0")
    A(f"s_mov_b32 s{r+2}, {hex(size)}\ns_mov_b32 s{r+3}, 0x20000")


def R(r):
    return f"s[{r}:{r+3}]"


def V(a, n):
    return f"v[{a}:{a+n-1}]"


def st(k):
    if STAMPS and str(k) not in str(opt.get("nost", "")):
        A(f"s_memtime s[{sST+2*k}:{sST+2*k+1}]")


def end_wave():
    A("s_branch L_stamps" if STAMPS else "s_endpgm")


DPP = "row_mask:0xf bank_mask:0xf"


def row_allreduce(op, a):
    for n in (8, 4, 2, 1):
        A(f"{op}_dpp v{a}, v{a}, v{a} row_ror:{n} {DPP}")


def wave_allreduce_add(a, t):
    row_allreduce("v_add_f32", a)
    for sw in ("v_permlane16_swap_b32", "v_permlane32_swap_b32"):
        A(f"v_mov_b32 v{t}, v{a}\n{sw} v{a}, v{t}\nv_add_f32 v{a}, v{a}, v{t}")


def tag(regs):
    for r in regs:
        A(f"v_bfi_b32 v{r}, s{sMASK}, v{vT}, v{r}")


uid = [0]


def poll(loads, regs, tmp, between=None, masked=None):
    uid[0] += 1
    u = uid[0]
    loads()
    if between:
        between()
    A(f"s_mov_b32 s{sCNT}, {opt['spin']}")
    A(f"L_poll{u}:")
    A("s_waitcnt vmcnt(0)")
    rs = list(regs)
    A(f"v_xor_b32 v{tmp}, v{rs[0]}, v{vT}\nv_xor_b32 v{tmp+1}, v{rs[1]}, v{vT}")
    for n, r in enumerate(rs[2:]):
        A(f"v_bitop3_b32 v{tmp+n%2}, v{tmp+n%2}, v{r}, v{vT} bitop3:0xf6")
    if masked:
        A(f"s_mov_b64 exec, {hex(masked[0])}")
        for n, r in enumerate(masked[1]):
            A(f"v_bitop3_b32 v{tmp+n%2}, v{tmp+n%2}, v{r}, v{vT} bitop3:0xf6")
        A("s_mov_b64 exec, -1")
    A(f"v_bitop3_b32 v{tmp}, v{tmp}, v{tmp+1}, s{sMASK} bitop3:0xa8")
    A(f"v_cmp_ne_u32 vcc, 0, v{tmp}")
    A(f"s_cbranch_vccz L_ok{u}")
    A(f"s_sub_u32 s{sCNT}, s{sCNT}, 1\ns_cbranch_scc1 L_ok{u}")
    loads()
    A(f"s_branch L_poll{u}")
    A(f"L_ok{u}:")


def spin(off, n, tmp, extra=None, sleep=1):
    uid[0] += 1
    u = uid[0]
    A(f"L_spin{u}:")
    A(f"ds_read_b32 v{tmp}, v{vL} offset:{off-MX}")
    if extra:
        A(extra)
    A("s_waitcnt lgkmcnt(0)")
    A(f"v_readfirstlane_b32 s{sT0}, v{tmp}")
    A(f"s_cmp_ge_u32 s{sT0}, {n}\ns_cbranch_scc1 L_spun{u}")
    if sleep:
        A(f"s_sleep {sleep}")
    A(f"s_branch L_spin{u}")
    A(f"L_spun{u}:")


def store_fs(instr):
    uid[0] += 1
    u = uid[0]
    if not opt["fast"]:
        A(instr + " sc1")
        return
    A(f"s_cmp_eq_u32 s{sFAST}, 0\ns_cbranch_scc1 L_slow{u}")
    A(instr)
    A(f"s_branch L_sdone{u}")
    A(f"L_slow{u}:")
    A(instr + " sc1")
    A(f"L_sdone{u}:")


import os
hdr = open(os.path.join(os.path.dirname(os.path.abspath(__file__)), "hdr.txt")).read().split("\n")
out = [l for l in hdr if l.startswith(";") and "@launch" not in l and "Override" not in l and "grid=ceil" not in l]
out.append(f"; @launch grid=(256,1,1) block=(768,1,1) lds={LDS_BYTES}")
out.append('.amdgcn_target "amdgcn-amd-amdhsa--gfx950"')
out.append(".text")
out.append(f".globl {NAME}_kernel")
out.append(".p2align 8")
out.append(f".type {NAME}_kernel,@function")
out.append(f"{NAME}_kernel:")

A("L_start:")
A("s_cmp_ge_u32 s2, 256\ns_cbranch_scc1 L_exit")
A("s_load_dwordx16 s[4:19], s[0:1], 0\ns_load_dwordx8 s[20:27], s[0:1], 64")
if STAMPS:
    for k in range(8):
        A(f"s_mov_b32 s{sST+2*k}, 0")
st(0)
if STAMPS or opt.get("diag"):
    A("s_memrealtime s[100:101]")
A("v_lshrrev_b32 v1, 6, v0\nv_and_b32 v0, 63, v0\nv_readfirstlane_b32 s3, v1")
A(f"s_and_b32 s{sXG}, s2, 7\ns_lshr_b32 s{sI}, s2, 3\ns_lshl_b32 s{sSLOT}, s{sXG}, 5\ns_add_u32 s{sSLOT}, s{sSLOT}, s{sI}")
A("v_lshlrev_b32 v8, 4, v0")
if opt["pf"]:
    A("s_cmp_eq_u32 s3, 1\ns_cbranch_scc0 L_pf_done")
    A(f"s_getpc_b64 s[{rA}:{rA+1}]")
    A("L_pc:")
    A(f"s_sub_u32 s{rA}, s{rA}, L_pc-L_start\ns_subb_u32 s{rA+1}, s{rA+1}, 0")
    A(f"s_and_b32 s{sT0}, s{sI}, 15\ns_lshl_b32 s{sT0}, s{sT0}, 10\nv_add_u32 v1, s{sT0}, v8")
    A("v_min_u32 v1, (L_last-L_start-16)&0xfffffff0, v1")
    A(f"global_load_dwordx4 v[160:163], v1, s[{rA}:{rA+1}]")
    A("L_pf_done:")
A("v_mov_b32 v4, 0\nv_mov_b32 v5, 0\nv_mov_b32 v6, 0\nv_mov_b32 v7, 0")
A(f"s_mov_b32 s{sT0}, 0xff800000\nv_writelane_b32 v4, s{sT0}, 0")
A(f"ds_write_b128 v8, v[4:7] offset:{MX}")
A(f"s_lshl_b32 s{sT0}, s3, 9\nv_lshl_add_u32 v9, v0, 3, s{sT0}\nds_write_b64 v9, v[6:7] offset:{OSL}")
nz, nmu = (8, 6) if opt["bal"] else (8, 8)
A(f"""s_and_b32 s80, s{sI}, 7
s_lshr_b32 s81, s{sI}, 3
s_cmp_lt_u32 s{sXG}, 6
s_cselect_b32 s82, 3, 2
s_cmp_lt_u32 s81, s82
s_cselect_b32 s83, 3, 2
s_mov_b32 s{sROLE}, 0
s_mov_b32 s{sNKV}, 8
s_lshl_b32 s{sU}, s80, 3
s_lshl_b32 s{sR}, s81, 1
s_add_u32 s{sR}, s{sR}, s80
s_cmp_lt_u32 s80, 2
s_cbranch_scc1 L_role_done
s_sub_u32 s80, s80, 2
s_cmp_lt_u32 s80, s83
s_cbranch_scc0 L_role_free
s_mov_b32 s{sROLE}, 1
s_min_u32 s82, s82, s81
s_lshl_b32 s{sR}, s81, 1
s_add_u32 s{sR}, s{sR}, s82
s_add_u32 s{sR}, s{sR}, s80
s_mul_i32 s82, s{sXG}, 11
s_add_u32 s{sR}, s{sR}, s82
s_cmp_eq_u32 s{sXG}, 7
s_subb_u32 s{sR}, s{sR}, 0""")
if opt["bal"]:
    A(f"s_mov_b32 s{sNKV}, 6\ns_mul_i32 s{sU}, s80, 6\ns_add_u32 s{sU}, s{sU}, 16")
A(f"s_branch L_role_done\nL_role_free:\ns_mov_b32 s{sROLE}, 2")
if opt["bal"]:
    A(f"""s_add_u32 s{sNKV}, s83, 7
s_sub_u32 s80, s80, s83
s_mul_i32 s{sU}, s80, s{sNKV}
s_mul_i32 s83, s83, 6
s_add_u32 s{sU}, s{sU}, s83
s_add_u32 s{sU}, s{sU}, 16""")
A("L_role_done:")
KR, VR = 40, 104
A(f"s_add_u32 s{sT0}, s3, s{sNKV}\ns_sub_u32 s83, s{sT0}, 12")
A(f"s_lshr_b32 s{sT1}, s{sSLOT}, 3\ns_lshl_b32 s{sT1}, s{sT1}, 20\ns_lshl_b32 s{sU}, s{sU}, 14\ns_add_u32 s{sT1}, s{sT1}, s{sU}")
if opt["pat"] == "A":
    A(f"s_lshl_b32 s{sT0}, s83, 14")
    for i in range(4):
        A(f"s_mov_b32 s{sOFF+i}, {i*4096}")
    koff = lambda i: (f"s{sOFF+i//4}", (i % 4) * 1024)
else:
    A(f"s_lshl_b32 s{sT0}, s83, 10\ns_lshl_b32 s{sOFF+1}, s{sNKV}, 10")
    for i in range(2, 12):
        A(f"s_add_u32 s{sOFF+i}, s{sOFF+i-1}, s{sOFF+1}")
    koff = lambda i: ("0" if i == 0 else f"s{sOFF+i}", 0)
A(f"s_mov_b32 s{sU}, s83")
A(f"s_add_u32 s{sT0}, s{sT0}, s{sT1}\nv_add_u32 v1, s{sT0}, v8")
if opt["pat"] != "A":
    for i in range(12, 16):
        A(f"s_add_u32 s{sOFF+i}, s{sOFF+i-1}, s{sOFF+1}")
A(f"s_mov_b32 s{sHI}, 0xffff0000\ns_mov_b32 s{sMASK}, {TAGMASK}")
A(f"s_and_b32 s{sT0}, s{sSLOT}, 7\ns_lshl_b32 s{sT0}, s{sT0}, 6")
A(f"v_lshrrev_b32 v2, 4, v0\nv_lshl_add_u32 v2, v2, 4, s{sT0}\nv_lshlrev_b32 v3, 1, v2")
A(f"s_lshr_b32 s{sT0}, s{sSLOT}, 3\ns_lshl_b32 s{sT0}, s{sT0}, 8")
A(f"v_lshlrev_b32 v2, 13, v2\nv_and_b32 v9, 15, v0\nv_lshl_add_u32 v2, v9, 4, v2\nv_add_u32 v2, s{sT0}, v2")
A(f"v_mov_b32 v{vL}, {MX}\nv_mov_b32 v{vONE}, 1")
A("s_waitcnt lgkmcnt(0)")
srd(rD, pX, 1024)
srd(rC, pWQ, 0x400000)
srd(rA, pK, 0x2000000)
srd(rB, pV, 0x2000000)
srd(rWS, pWS, 0x10000000)
st(6)
A("s_cmp_lg_u32 s3, 0\ns_cbranch_scc1 L_not0")
A(f"buffer_load_dwordx4 v[104:107], v8, {R(rD)}, 0 offen")
A(f"buffer_load_dwordx4 v[12:15], v3, {R(rD)}, 0 offen")
A(f"buffer_load_dwordx4 v[16:19], v3, {R(rD)}, 0 offen offset:16")
for t in range(16):
    A(f"s_mov_b32 s{sT1}, {t*8192 if not opt.get('nowq') else 0}")
    A(f"buffer_load_dwordx4 {V(40+4*t,4)}, {'v2' if not opt.get('nowq') else 'v8'}, {R(rC)}, s{sT1} offen{fl('wqfl')}")
A("L_not0:")
A("s_barrier")
A(f"s_cmp_lt_i32 s{sU}, 0\ns_cbranch_scc1 L_helper")


def kvload(base, i, r):
    so, io = koff(i)
    o = f" offset:{io}" if io else ""
    A(f"buffer_load_dwordx4 {V(base+4*i,4)}, v1, {R(r)}, {so} offen{o}{fl('kvfl')}")
    if opt["gap"] >= 0:
        A(f"s_nop {opt['gap']}")


for i in range(16):
    kvload(KR, i, rA)
for i in range(NV1):
    kvload(VR, i, rB)
st(1)
A("""v_bfe_u32 v10, v0, 3, 1
v_mul_u32_u24 v10, 0x202, v10
v_add_u32 v10, 0x100, v10
v_and_b32 v11, 1, v0
v_lshlrev_b32 v11, 4, v11
v_lshlrev_b32 v10, v11, v10
v_mov_b32 v12, 0x0c0c0000
v_lshrrev_b32 v12, v11, v12
v_or_b32 v10, v10, v12
v_bfe_u32 v11, v0, 1, 2
v_mov_b32 v12, 0x0c0c0c0c""")
for i in range(4):
    A(f"v_cmp_eq_u32 vcc, {i}, v11\nv_cndmask_b32 v{6+i}, v12, v10, vcc")
A(f"s_mov_b32 s{sM1}, 0xcccccccc\ns_mov_b32 s{sM1+1}, 0xcccccccc\ns_mov_b32 s{sM0}, 0xaaaaaaaa\ns_mov_b32 s{sM0+1}, 0xaaaaaaaa")
A(f"s_mov_b32 s{sC2}, {f32(128 ** -0.5 * 1.4426950408889634)}")
A("v_and_b32 v32, 15, v0\nv_lshlrev_b32 v32, 4, v32")
A(f"v_lshrrev_b32 v34, 4, v0\nv_and_b32 v35, 7, v0\nv_lshl_add_u32 v34, v34, 3, v35\ns_lshl_b32 s{sT0}, s3, 9\nv_lshl_add_u32 v34, v34, 4, s{sT0}")
A("v_lshlrev_b32 v35, 3, v0")
A(f"s_lshl_b32 s{sT0}, s{sSLOT}, 9\ns_add_u32 s{sT0}, s{sT0}, {OS}\nv_lshl_add_u32 v36, v0, 3, s{sT0}")
A(f"s_lshl_b32 s{sT0}, s{sSLOT}, 4\ns_add_u32 s{sT0}, s{sT0}, {ST}\nv_mov_b32 v37, s{sT0}")
A(f"s_sub_u32 s{sN}, s{sNKV}, 1")
spin(CQ, 1, 10, f"ds_read_b128 v[2:5], v32 offset:{QL}\nds_read_b64 v[26:27], v{vL} offset:{FAST-MX}", sleep=2)
st(2)
A(f"v_readfirstlane_b32 s{sFAST}, v26\nv_mov_b32 v{vT}, v27")
A(f"s_waitcnt vmcnt({NV1})")
for j in range(4):
    for i in range(16):
        c = "0" if j == 0 else f"v{10+i}"
        A(f"v_dot2_f32_bf16 v{10+i}, v{KR+4*i+j}, v{2+j}, {c}")
for i in range(8):
    A(f"v_add_f32_dpp v{10+i}, v{10+i}, v{10+i} row_ror:8 row_mask:0xf bank_mask:0x3")
    A(f"v_add_f32_dpp v{10+i}, v{18+i}, v{18+i} row_ror:8 row_mask:0xf bank_mask:0xc")
for i in range(4):
    A(f"v_add_f32_dpp v{10+i}, v{10+i}, v{10+i} row_ror:12 row_mask:0xf bank_mask:0x5")
    A(f"v_add_f32_dpp v{10+i}, v{14+i}, v{14+i} row_ror:4 row_mask:0xf bank_mask:0xa")
for i in range(4):
    A(f"v_add_f32_dpp v{10+i}, v{10+i}, v{10+i} quad_perm:[2,3,0,1] {DPP}")
for i in range(2):
    A(f"v_cndmask_b32 v{10+i}, v{10+i}, v{12+i}, s[{sM1}:{sM1+1}]")
for i in range(2):
    A(f"v_add_f32_dpp v{10+i}, v{10+i}, v{10+i} quad_perm:[1,0,3,2] {DPP}")
A(f"v_cndmask_b32 v10, v10, v11, s[{sM0}:{sM0+1}]")
A(f"v_mul_f32 v10, s{sC2}, v10")
A(f"v_max_f32_dpp v11, v10, v10 row_ror:8 {DPP}")
for n in (4, 2, 1):
    A(f"v_max_f32_dpp v11, v11, v11 row_ror:{n} {DPP}")
for sw in ("v_permlane16_swap_b32", "v_permlane32_swap_b32"):
    A(f"v_mov_b32 v12, v11\n{sw} v11, v12\nv_max_f32 v11, v11, v12")
A("s_mov_b64 exec, 1")
A(f"ds_max_f32 v{vL}, v11\nds_add_u32 v{vL}, v{vONE} offset:{C1-MX}")
A("s_mov_b64 exec, -1")
st(3)
A("v_sub_f32 v10, v10, v11\nv_exp_f32 v10, v10")
A("v_cvt_pk_bf16_f32 v13, v10, v10\nv_lshlrev_b32 v13, 16, v13\nv_sub_f32 v13, v10, v13\nv_cvt_pk_bf16_f32 v13, v10, v13")
def bops():
    for t in range(16):
        A(f"v_mov_b32_dpp v{14+t%4}, v13 row_newbcast:{t} {DPP}")
        if t >= 1:
            for i in range(4):
                A(f"v_perm_b32 v{KR+4*(t-1)+i}, v{14+(t-1)%4}, v{14+(t-1)%4}, v{6+i}")
    for i in range(4):
        A(f"v_perm_b32 v{KR+60+i}, v{14+15%4}, v{14+15%4}, v{6+i}")


row_allreduce("v_add_f32", 10)
A(f"s_add_u32 s{sIMG}, s{sU}, 4\ns_cmp_lt_u32 s{sIMG}, s{sNKV}\ns_cbranch_scc0 L_kv_late")
bops()
for i in range(NV1, 16):
    kvload(VR, i, rB)
A("L_kv_late:")
spin(C1, f"s{sNKV}", 12, f"ds_read_b32 v19, v{vL}", sleep=2)
A("v_sub_f32 v11, v11, v19\nv_exp_f32 v11, v11")
A("v_mul_f32 v10, v10, v11")
A("s_mov_b32 exec_lo, 0x00010001\ns_mov_b32 exec_hi, 0x00010001")
A(f"ds_add_f32 v{vL}, v10 offset:{LACC-MX}")
A("s_mov_b64 exec, 1")
A(f"ds_add_u32 v{vL}, v{vONE} offset:{C2-MX}")
A("s_mov_b64 exec, -1")
A(f"s_cmp_lt_u32 s{sIMG}, s{sNKV}\ns_cbranch_scc1 L_kv_built")
for i in range(NV1, 16):
    kvload(VR, i, rB)
bops()
A("L_kv_built:")
st(4)
for t in range(16):
    A(f"s_waitcnt vmcnt({15-t})")
    c = "0" if t == 0 else "v[28:31]"
    A(f"v_mfma_f32_16x16x32_bf16 v[28:31], {V(VR+4*t,4)}, {V(KR+4*t,4)}, {c}")
st(5)
for i in range(4):
    A(f"v_add_f32_dpp v{28+i}, v{28+i}, v{28+i} row_ror:8 {DPP}")
for i in range(4):
    A(f"v_mul_f32 v{28+i}, v{28+i}, v11")
A("s_mov_b32 exec_lo, 0x00ff00ff\ns_mov_b32 exec_hi, 0x00ff00ff")
A(f"ds_write_b128 v34, v[28:31] offset:{OSL}")
A("s_mov_b64 exec, 1")
A(f"ds_add_rtn_u32 v12, v{vL}, v{vONE} offset:{C3-MX}")
A("s_mov_b64 exec, -1")
for w in range(2, 12):
    A(f"ds_read_b64 {V(KR+2*(w-2),2)}, v35 offset:{OSL+512*w}")
A("s_waitcnt lgkmcnt(6)")
A(f"v_readfirstlane_b32 s{sT0}, v12")
P = lambda k: V(KR + 2 * k, 2)
A(f"v_pk_add_f32 {P(0)}, {P(0)}, {P(1)}\nv_pk_add_f32 {P(2)}, {P(2)}, {P(3)}\ns_waitcnt lgkmcnt(2)")
A(f"v_pk_add_f32 {P(4)}, {P(4)}, {P(5)}\nv_pk_add_f32 {P(6)}, {P(6)}, {P(7)}\nv_pk_add_f32 {P(0)}, {P(0)}, {P(2)}\ns_waitcnt lgkmcnt(0)")
A(f"v_pk_add_f32 {P(8)}, {P(8)}, {P(9)}\nv_pk_add_f32 {P(4)}, {P(4)}, {P(6)}\nv_pk_add_f32 {P(0)}, {P(0)}, {P(8)}\nv_pk_add_f32 v[18:19], {P(0)}, {P(4)}")
tag([18, 19])
A(f"s_cmp_lg_u32 s{sT0}, s{sN}\ns_cbranch_scc1 L_kv_notlast")
store_fs(f"buffer_store_dwordx2 v[18:19], v36, {R(rWS)}, 0 offen")
st(6)
A("L_kv_notlast:")
A(f"s_cmp_lg_u32 s{sU}, 0\ns_cbranch_scc1 L_kv_end")
spin(C2, f"s{sNKV}", 12, f"ds_read_b64 v[20:21], v{vL}")
tag([20, 21])
A(f"v_mov_b32 v22, v{vT}\nv_mov_b32 v23, v{vT}\ns_mov_b64 exec, 1")
store_fs(f"buffer_store_dwordx4 v[20:23], v37, {R(rWS)}, 0 offen")
st(7)
A("L_kv_end:")
end_wave()

A("L_helper:")
for i in range(4):
    A(f"s_mov_b32 s{sOFF+i}, {i*4096}")
A("s_cmp_eq_u32 s3, 0\ns_cbranch_scc1 L_q")
A("s_cmp_ge_u32 s3, 4\ns_cbranch_scc1 L_idle")
A("s_cmp_eq_u32 s2, 0\ns_cbranch_scc0 L_roles\ns_cmp_eq_u32 s3, 1\ns_cbranch_scc0 L_roles")
A(f"s_load_dword s{sT0}, s[{pWS}:{pWS+1}], {hex(EPOCH)}")
srd(rA, pDBG, 256)
A(f"v_mov_b32 v3, {EPOCH}\nv_lshlrev_b32 v4, 6, v0\ns_waitcnt lgkmcnt(0)")
A(f"s_add_u32 s{sT0}, s{sT0}, 0x0e3779b1\ns_and_b32 s{sT0}, s{sT0}, 0x0fffffff\ns_or_b32 s{sT1}, s{sT0}, 0x80000000")
A(f"v_mov_b32 v5, s{sT1}\nv_mov_b32 v6, s{sT0}\ns_mov_b64 exec, 15")
A(f"buffer_store_dword v5, v4, {R(rA)}, 0 offen sc1")
A("s_mov_b64 exec, 1")
A(f"buffer_store_dword v6, v3, {R(rWS)}, 0 offen sc1")
A("s_mov_b64 exec, -1")
A("s_branch L_roles")
A("L_idle:")
end_wave()

A("L_q:")
A("""v_and_b32 v28, 1, v0
v_lshlrev_b32 v28, 4, v28
v_mov_b32 v29, 0x100
v_lshlrev_b32 v29, v28, v29
v_mov_b32 v30, 0x0c0c0000
v_lshrrev_b32 v30, v28, v30
v_or_b32 v29, v29, v30
v_bfe_u32 v28, v0, 1, 3
v_mov_b32 v30, 0x0c0c0c0c""")
for i in range(4):
    A(f"v_cmp_eq_u32 vcc, {i}, v28\nv_cndmask_b32 v{20+i}, v30, v29, vcc")
A("s_waitcnt vmcnt(16)")
for j in range(4):
    A(f"v_lshlrev_b32 v{112+2*j}, 16, v{104+j}\nv_and_b32 v{113+2*j}, s{sHI}, v{104+j}")
A("v_add_f32 v36, v112, v113\nv_add_f32 v37, v114, v115\nv_add_f32 v34, v116, v117\nv_add_f32 v35, v118, v119")
A("v_add_f32 v36, v36, v37\nv_add_f32 v34, v34, v35\nv_add_f32 v36, v36, v34")
wave_allreduce_add(36, 37)
A(f"v_mul_f32 v36, {f32(1/512)}, v36")
for j in range(8):
    A(f"v_sub_f32 v{112+j}, v{112+j}, v36")
A("v_mul_f32 v37, v112, v112")
for j in range(1, 8):
    A(f"v_fmac_f32 v37, v{112+j}, v{112+j}")
wave_allreduce_add(37, 34)
A(f"v_mul_f32 v37, {f32(1/512)}, v37")
A(f"""v_cvt_pk_bf16_f32 v34, v36, v37
v_lshlrev_b32 v36, 16, v34
v_and_b32 v37, s{sHI}, v34
v_add_f32 v37, {f32(1e-5)}, v37
v_cvt_pk_bf16_f32 v37, v37, v37
v_and_b32 v37, s{sHI}, v37
v_sqrt_f32 v37, v37
v_cvt_pk_bf16_f32 v37, v37, v37
v_and_b32 v37, s{sHI}, v37
v_rcp_f32 v37, v37""")
for j in range(8):
    r = 12 + j
    A(f"""v_lshlrev_b32 v28, 16, v{r}
v_and_b32 v29, s{sHI}, v{r}
v_sub_f32 v28, v28, v36
v_sub_f32 v29, v29, v36
v_cvt_pk_bf16_f32 v30, v28, v29
v_lshlrev_b32 v28, 16, v30
v_and_b32 v29, s{sHI}, v30
v_mul_f32 v28, v28, v37
v_mul_f32 v29, v29, v37
v_cvt_pk_bf16_f32 v{r}, v28, v29""")
A(f"s_load_dword s{sN}, s[{pDBG}:{pDBG+1}], 0")
A("s_waitcnt vmcnt(0)")
st(1)
for t in range(16):
    src = 12 + t // 2
    if t % 2:
        A(f"v_lshrrev_b32 v{src}, 16, v{src}")
    b = 104 + 4 * (t % 2)
    for i in range(4):
        A(f"v_perm_b32 v{b+i}, v{src}, v{src}, v{20+i}")
    c = "0" if t == 0 else "v[24:27]"
    A(f"v_mfma_f32_16x16x32_bf16 v[24:27], {V(40+4*t,4)}, {V(b,4)}, {c}")
for k in range(1, 4):
    A(f"s_waitcnt lgkmcnt(0)\ns_cmp_lg_u32 s{sN}, 0\ns_cbranch_scc1 L_num_ok")
    if k > 1:
        A(f"s_sleep {opt['nsl']}")
    A(f"s_load_dword s{sN}, s[{pDBG}:{pDBG+1}], {64*k}")
srd(rA, pDBG, 256)
A(f"s_mov_b32 s{sCNT}, {opt['spin']}\nv_mov_b32 v3, 0\ns_waitcnt lgkmcnt(0)")
A(f"""L_num:
s_cmp_lg_u32 s{sN}, 0
s_cbranch_scc1 L_num_ok
s_sub_u32 s{sCNT}, s{sCNT}, 1
s_cbranch_scc1 L_num_ok
buffer_load_dword v4, v3, {R(rA)}, 0 offen sc1
s_waitcnt vmcnt(0)
v_readfirstlane_b32 s{sN}, v4
s_branch L_num
L_num_ok:""")
st(2)
A(f"s_and_b32 s{sT0}, s{sN}, s{sMASK}\nv_mov_b32 v{vT}, s{sT0}")
A(f"s_getreg_b32 s{sT1}, hwreg(HW_REG_XCC_ID)\ns_and_b32 s{sT1}, s{sT1}, 15\ns_lshl_b32 s{sN}, s{sN}, 4\ns_or_b32 s{sN}, s{sN}, s{sT1}")
A(f"s_lshl_b32 s{sT0}, s{sSLOT}, 9\ns_add_u32 s{sT0}, s{sT0}, {QS}")
A(f"v_lshrrev_b32 v2, 4, v0\nv_and_b32 v3, 7, v0\nv_lshl_add_u32 v2, v2, 3, v3\nv_lshl_add_u32 v2, v2, 4, s{sT0}")
tag([24, 25, 26, 27])
A("s_mov_b32 exec_lo, 0x00ff00ff\ns_mov_b32 exec_hi, 0x00ff00ff")
A(f"buffer_store_dwordx4 v[24:27], v2, {R(rWS)}, 0 offen sc1")
A("s_mov_b64 exec, -1")
A(f"s_lshl_b32 s{sT1}, s{sXG}, 7\ns_add_u32 s{sT1}, s{sT1}, {XC}\nv_lshl_add_u32 v5, v3, 2, s{sT1}")
A(f"s_cmp_eq_u32 s{sROLE}, 0\ns_cbranch_scc0 L_noxc")
A(f"s_lshl_b32 s{sT0}, s{sR}, 2\ns_add_u32 s{sT0}, s{sT0}, s{sT1}\nv_mov_b32 v3, s{sT0}\nv_mov_b32 v4, s{sN}\ns_mov_b64 exec, 1")
A(f"buffer_store_dword v4, v3, {R(rWS)}, 0 offen sc1")
A("s_mov_b64 exec, -1")
A("L_noxc:")
A(f"s_and_b32 s{sT0}, s{sSLOT}, 0xf8\ns_lshl_b32 s{sT0}, s{sT0}, 9\ns_add_u32 s{sT0}, s{sT0}, {QS}")
A(f"v_lshl_add_u32 v7, v0, 4, s{sT0}")
A("v_bfe_u32 v2, v0, 3, 2\nv_lshlrev_b32 v2, 2, v2\nv_lshrrev_b32 v3, 5, v0\nv_add_u32 v2, v2, v3\nv_and_b32 v3, 7, v0\nv_lshl_add_u32 v2, v2, 3, v3\nv_lshlrev_b32 v2, 1, v2")
if not opt.get("noq"):
    A("s_waitcnt vmcnt(0)")
st(3)


def q_poll():
    for t in range(4):
        A(f"buffer_load_dwordx4 {V(112+4*t,4)}, v7, {R(rWS)}, 0 offen offset:{1024*t} sc1")
    A(f"buffer_load_dword v6, v5, {R(rWS)}, 0 offen sc1")


if not opt.get("noq"):
    poll(q_poll, list(range(112, 128)), 10)
A(f"v_cmp_ne_u32 vcc, s{sN}, v6\ns_cmp_eq_u64 vcc, 0\ns_cselect_b32 s{sFAST}, 1, 0")
A(f"v_mov_b32 v4, s{sFAST}\nv_mov_b32 v5, v{vT}\nds_write_b64 v{vL}, v[4:5] offset:{FAST-MX}")
for i in range(4):
    A(f"v_add_f32 v{112+i}, v{112+i}, v{116+i}\nv_add_f32 v{120+i}, v{120+i}, v{124+i}")
for i in range(4):
    A(f"v_add_f32 v{112+i}, v{112+i}, v{120+i}")
A("v_permlane32_swap_b32 v112, v113\nv_permlane32_swap_b32 v114, v115")
A("v_add_f32 v112, v112, v113\nv_add_f32 v114, v114, v115")
A("v_cvt_pk_bf16_f32 v112, v112, v114")
A(f"ds_write_b16 v2, v112 offset:{QL}\nds_write_b16_d16_hi v2, v112 offset:{QL+32}")
A(f"ds_write_b32 v{vL}, v{vONE} offset:{CQ-MX}")
st(4)

A("L_roles:")
A(f"s_cmp_eq_u32 s{sROLE}, 1\ns_cbranch_scc1 L_mlp")
A(f"s_cmp_eq_u32 s{sROLE}, 0\ns_cbranch_scc1 L_z")
end_wave()


def trigger(trig, loads):
    if opt.get("now"):
        return
    if trig != "start":
        off, n = {"q": (CQ, 1), "c1": (C1, f"s{sNKV}"), "c1h": (C1, 4), "c2": (C2, f"s{sNKV}"), "c2h": (C2, 4)}[trig]
        spin(off, n, 10, sleep=4)
    loads()


A("L_z:")
ZB, ZO, ZST, ZA, ZD = 40, 104, 120, 124, 140
srd(rA, pWO, 0x400000)
A(f"s_lshl_b32 s{sT0}, s{sXG}, 2\ns_add_u32 s{sT0}, s{sT0}, s3\ns_lshl_b32 s{sT0}, s{sT0}, 17\ns_lshl_b32 s{sT1}, s{sR}, 7\ns_add_u32 s{sT0}, s{sT0}, s{sT1}")
A(f"v_bfe_u32 v1, v0, 3, 2\nv_lshrrev_b32 v2, 5, v0\nv_lshl_add_u32 v1, v1, 3, v2\nv_lshlrev_b32 v1, 10, v1\nv_and_b32 v2, 7, v0\nv_lshl_add_u32 v1, v2, 4, v1\nv_add_u32 v1, s{sT0}, v1")
A(f"s_lshl_b32 s{sIMG}, s3, 14\ns_add_u32 s{sIMG}, s{sIMG}, {WIMG}")
A(f"v_lshrrev_b32 v3, 4, v0\nv_lshlrev_b32 v3, 3, v3\nv_bfe_u32 v4, v0, 2, 2\nv_add_u32 v3, v3, v4\nv_lshlrev_b32 v3, 7, v3\nv_and_b32 v4, 3, v0\nv_lshl_add_u32 v3, v4, 3, v3\nv_add_u32 v3, s{sIMG}, v3")
A(f"s_lshl_b32 s{sT0}, s{sXG}, 5\ns_lshl_b32 s{sT1}, s3, 3\ns_add_u32 s{sT0}, s{sT0}, s{sT1}")
A(f"s_lshl_b32 s{sT1}, s{sT0}, 9\ns_add_u32 s{sT1}, s{sT1}, {OS}\nv_add_u32 v4, s{sT1}, v8")
A(f"s_lshl_b32 s{sT1}, s{sT0}, 4\ns_add_u32 s{sT1}, s{sT1}, {ST}\nv_lshl_add_u32 v5, v2, 4, s{sT1}")
A(f"s_lshl_b32 s{sT0}, s3, 8\ns_add_u32 s{sT0}, s{sT0}, {SCR}\nv_lshl_add_u32 v6, v0, 2, s{sT0}")
A(f"v_lshrrev_b32 v7, 4, v0\nv_lshl_add_u32 v7, v7, 4, s{sT0}")
A(f"v_subrev_u32 v25, {SCR-ZP}, v6")
A(f"v_and_b32 v9, 31, v0\nv_lshlrev_b32 v9, 3, v9\nv_lshrrev_b32 v10, 5, v0\nv_lshl_add_u32 v9, v10, 2, v9\nv_add_u32 v9, s{sT0}, v9")
A(f"s_lshl_b32 s{sT0}, s{sXG}, 3\ns_add_u32 s{sT0}, s{sT0}, s{sR}\ns_lshl_b32 s{sT0}, s{sT0}, 1\ns_and_b32 s{sT1}, s3, 1\ns_add_u32 s{sT0}, s{sT0}, s{sT1}\ns_lshl_b32 s{sT0}, s{sT0}, 2")
A(f"v_lshrrev_b32 v20, 4, v0\nv_add_u32 v20, s{sT0}, v20\nv_lshlrev_b32 v21, 1, v20\nv_lshlrev_b32 v20, 2, v20\nv_add_u32 v20, {ZS}, v20")
A(f"s_lshl_b32 s{sT0}, s{sT0}, 2\nv_lshlrev_b32 v22, 11, v0\nv_add_u32 v22, s{sT0}, v22\nv_add_u32 v23, {64*2048}, v22")
A(f"s_lshl_b32 s{sT0}, s{sXG}, 11\ns_lshl_b32 s{sT1}, s{sR}, 8\ns_add_u32 s{sT0}, s{sT0}, s{sT1}\ns_add_u32 s{sT0}, s{sT0}, {ZS}\nv_add_u32 v24, s{sT0}, v8")
srd(rC, pWS, NMLP * 2048, PS)
srd(rB, pOUT, 1024)


def z_loads():
    if opt["ptouch"]:
        A(f"buffer_load_dword v28, v24, {R(rWS)}, 0 offen")
    A(f"buffer_load_ushort v26, v21, {R(rD)}, 0 offen")
    for t in range(16 if not opt.get("nowo") else 0):
        A(f"s_add_u32 m0, s{sIMG}, {t*1024}\ns_mov_b32 s{sT1}, {((t>>2)*32+(t&3)*2)*1024}")
        A(f"buffer_load_dwordx4 v1, {R(rA)}, s{sT1} offen{fl('wofl')} lds")


def z_prep():
    for kb in range(4):
        for nt in range(4):
            for hf in range(2):
                A(f"ds_read_b64_tr_b16 {V(ZB+(kb*4+nt)*4+2*hf,2)}, v3 offset:{kb*4096+hf*512+nt*32}")


def zs_poll():
    A(f"buffer_load_dwordx4 {V(ZST,4)}, v5, {R(rWS)}, 0 offen sc1")


def z_poll():
    for t in range(4):
        A(f"buffer_load_dwordx4 {V(ZO+4*t,4)}, v4, {R(rWS)}, 0 offen offset:{1024*t} sc1")


trigger(opt["trigz"], z_loads)
A("s_waitcnt vmcnt(0)")
z_prep()
st(5)
spin(C2, f"s{sNKV}", 10, f"ds_read_b32 v{vT}, v{vL} offset:{TAG-MX}")
poll(zs_poll, list(range(ZST, ZST + 4)), 10)
A(f"""v_max_f32_dpp v16, v{ZST}, v{ZST} quad_perm:[1,0,3,2] {DPP}
v_max_f32_dpp v16, v16, v16 quad_perm:[2,3,0,1] {DPP}
v_max_f32_dpp v16, v16, v16 row_half_mirror {DPP}
v_sub_f32 v16, v{ZST}, v16
v_exp_f32 v16, v16
v_mul_f32 v11, v16, v{ZST+1}
v_add_f32_dpp v11, v11, v11 quad_perm:[1,0,3,2] {DPP}
v_add_f32_dpp v11, v11, v11 quad_perm:[2,3,0,1] {DPP}
v_add_f32_dpp v11, v11, v11 row_half_mirror {DPP}
v_rcp_f32 v11, v11
v_mul_f32 v16, v16, v11
v_mov_b32_dpp v16, v16 row_ror:15 row_mask:0xc bank_mask:0xf""")
spin(C3, f"s{sNKV}", 10)
poll(z_poll, [ZO + 2 * k for k in range(8)], 10)
if STAMPS:
    A(f"s_sub_u32 s{sFAST}, {opt['spin']}, s{sCNT}")
if opt.get("diag"):
    A("s_memrealtime s[98:99]")
st(6)
for t in range(4):
    for i in range(4):
        op = "v_mul_f32_dpp" if t == 0 else "v_fmac_f32_dpp"
        A(f"{op} v{12+i}, v16, v{ZO+4*t+i} row_newbcast:{2*t} {DPP}")
A("v_permlane32_swap_b32 v12, v14\nv_permlane32_swap_b32 v13, v15")
A("v_add_f32 v12, v12, v14\nv_add_f32 v13, v13, v15")
A("v_cvt_pk_bf16_f32 v12, v12, v13\nds_write_b32 v9, v12")
for kb in range(4):
    A(f"ds_read_b128 {V(ZA+4*kb,4)}, v7 offset:{64*kb}")
for kb in range(4):
    A(f"s_waitcnt lgkmcnt({3-kb})")
    for nt in range(4):
        c = "0" if kb == 0 else V(ZD + 4 * nt, 4)
        A(f"v_mfma_f32_16x16x32_bf16 {V(ZD+4*nt,4)}, {V(ZA+4*kb,4)}, {V(ZB+(kb*4+nt)*4,4)}, {c}")
for nt in range(1, 4):
    A(f"v_mov_b32_dpp v{ZD}, v{ZD+4*nt} quad_perm:[0,1,2,3] row_mask:{hex(1<<nt)} bank_mask:0xf")
A(f"ds_write_b32 v6, v{ZD} offset:{ZP-SCR+65536-65536}" if ZP >= SCR else f"ds_write_b32 v25, v{ZD}")
A("s_mov_b64 exec, 1")
A(f"ds_add_rtn_u32 v10, v{vL}, v{vONE} offset:{C4-MX}")
A("s_mov_b64 exec, 0xffff")
for w in range(4):
    A(f"ds_read_b128 {V(12 if w == 0 else ZA+4*w,4)}, v8 offset:{ZP+256*w}")
A("s_waitcnt lgkmcnt(2)")
A(f"v_readfirstlane_b32 s{sT0}, v10")
A(f"v_pk_add_f32 v[12:13], v[12:13], {V(ZA+4,2)}\nv_pk_add_f32 v[14:15], v[14:15], {V(ZA+6,2)}\ns_waitcnt lgkmcnt(0)")
A(f"v_pk_add_f32 {V(ZA+8,2)}, {V(ZA+8,2)}, {V(ZA+12,2)}\nv_pk_add_f32 {V(ZA+10,2)}, {V(ZA+10,2)}, {V(ZA+14,2)}")
A(f"v_pk_add_f32 v[12:13], v[12:13], {V(ZA+8,2)}\nv_pk_add_f32 v[14:15], v[14:15], {V(ZA+10,2)}")
tag([12, 13, 14, 15])
A(f"s_cmp_lg_u32 s{sT0}, 3\ns_cbranch_scc1 L_z_notlast")
A(f"buffer_store_dwordx4 v[12:15], v24, {R(rWS)}, 0 offen sc1")
st(7)
A("L_z_notlast:")
A("s_mov_b64 exec, -1")
A(f"s_sub_u32 s{sT0}, s3, 1\ns_cmp_lt_u32 s{sT0}, 2\ns_cbranch_scc1 L_fin")
end_wave()
A("L_fin:")


def f_poll1():
    for x in range(8):
        A(f"buffer_load_dword v{104+x}, v20, {R(rWS)}, s{sOFF+x//2} offen offset:{2048*(x%2)} sc1")


poll(f_poll1, list(range(104, 112)), 10)
st(1)


def f_poll2():
    A(f"buffer_load_dwordx4 v[112:115], v22, {R(rC)}, 0 offen sc1")
    A(f"buffer_load_dwordx4 v[116:119], v23, {R(rC)}, 0 offen sc1")


def f_h():
    A("""v_add_f32 v104, v104, v106
v_add_f32 v105, v105, v107
v_add_f32 v104, v104, v108
v_add_f32 v105, v105, v109
v_add_f32 v104, v104, v110
v_add_f32 v105, v105, v111
v_add_f32 v104, v104, v105
v_cvt_pk_bf16_f32 v104, v104, v104
v_lshlrev_b32 v104, 16, v104
v_lshlrev_b32 v26, 16, v26
v_add_f32 v104, v104, v26
v_cvt_pk_bf16_f32 v104, v104, v104
v_lshlrev_b32 v104, 16, v104""")


f_h()
if opt["fdelay"]:
    A(f"s_sleep {opt['fdelay']}")
poll(f_poll2, list(range(112, 116)), 10, None, masked=((1 << (NMLP - 64)) - 1, list(range(116, 120))))
st(2)
for i in range(4):
    A(f"v_add_f32 v{112+i}, v{112+i}, v{116+i}")
A("v_permlane32_swap_b32 v112, v114\nv_permlane32_swap_b32 v113, v115")
A("v_add_f32 v112, v112, v114\nv_add_f32 v113, v113, v115")
A("v_permlane16_swap_b32 v112, v113\nv_add_f32 v112, v112, v113")
row_allreduce("v_add_f32", 112)
if "eps" in opt:
    A(f"v_mul_f32 v112, {f32(1 + opt['eps'] / 1000)}, v112")
A("v_cvt_pk_bf16_f32 v112, v112, v112\nv_lshlrev_b32 v112, 16, v112\nv_add_f32 v112, v112, v104\nv_cvt_pk_bf16_f32 v112, v112, v112")
A("s_mov_b32 exec_lo, 0x00010001\ns_mov_b32 exec_hi, 0x00010001")
A(f"buffer_store_short v112, v21, {R(rB)}, 0 offen sc1")
if opt.get("diag"):
    A(f"s_cmp_eq_u32 s{sI}, 0\ns_cbranch_scc0 L_exit\ns_cmp_eq_u32 s3, 1\ns_cbranch_scc0 L_exit")
    A("s_memrealtime s[96:97]\ns_waitcnt lgkmcnt(0)")
    if "amp" in opt:
        if opt["amp"] != 8:
            A(f"s_cmp_eq_u32 s{sXG}, {opt['amp']}\ns_cbranch_scc0 L_exit")
        if opt.get("ampsrc") == "o":
            A("s_sub_u32 s94, s98, s100")
        else:
            A("s_sub_u32 s94, s96, s100")
        A("s_lshl_b32 s94, s94, 2\nL_amp:\ns_memrealtime s[92:93]\ns_waitcnt lgkmcnt(0)\ns_sub_u32 s92, s92, s96\ns_cmp_lt_u32 s92, s94\ns_cbranch_scc1 L_amp")
    srd(rA, pDBG, 64)
    A(f"s_sub_u32 s96, s96, s100\ns_sub_u32 s98, s98, s100\ns_lshl_b32 s100, s100, 16\ns_or_b32 s96, s96, s100")
    A(f"s_lshl_b32 s{sT0}, s{sXG}, 2\nv_mov_b32 v1, s{sT0}\nv_mov_b32 v2, s96\nv_mov_b32 v3, s98\ns_mov_b64 exec, 1")
    A(f"buffer_store_dword v2, v1, {R(rA)}, 0 offen offset:4 sc1\nbuffer_store_dword v3, v1, {R(rA)}, 0 offen offset:36 sc1")
st(3)
end_wave()

A("L_mlp:")
srd(rA, pWG, 512 * 2752)
srd(rB, pWU, 512 * 2752)
srd(rC, pWD, 1376 * 1024)
A(f"s_lshl_b32 s{sT0}, s3, 7\nv_lshrrev_b32 v1, 1, v0\nv_add_u32 v1, s{sT0}, v1\nv_mul_u32_u24 v1, 2752, v1")
A(f"v_and_b32 v2, 1, v0\nv_lshl_add_u32 v1, v2, 4, v1\ns_lshl_b32 s{sT0}, s{sR}, 5\nv_add_u32 v1, s{sT0}, v1")
A(f"s_lshl_b32 s{sIMG}, s3, 13\ns_add_u32 s{sIMG}, s{sIMG}, {WIMG}")
A(f"v_lshrrev_b32 v3, 4, v0\nv_lshlrev_b32 v3, 3, v3\nv_bfe_u32 v4, v0, 2, 2\nv_add_u32 v3, v3, v4\nv_lshlrev_b32 v3, 5, v3\nv_and_b32 v2, 3, v0\nv_lshl_add_u32 v3, v2, 3, v3\nv_add_u32 v3, s{sIMG}, v3")
A(f"s_lshl_b32 s{sT0}, s3, 9\ns_add_u32 s{sT0}, s{sT0}, {ZS}\nv_lshrrev_b32 v2, 5, v0\nv_and_b32 v5, 31, v0\nv_lshlrev_b32 v4, 11, v2\nv_lshl_add_u32 v4, v5, 4, v4\nv_add_u32 v4, s{sT0}, v4")
A(f"v_lshlrev_b32 v5, 3, v5\nv_lshl_add_u32 v5, v2, 2, v5\ns_lshl_b32 s{sT0}, s3, 8\nv_add_u32 v5, s{sT0}, v5\nv_add_u32 v6, {SCR}, v5")
A(f"s_add_u32 s{sT0}, s{sT0}, {SCR}\nv_lshrrev_b32 v7, 4, v0\nv_lshl_add_u32 v7, v7, 4, s{sT0}")
A("v_lshlrev_b32 v9, 2, v0")
A(f"s_lshl_b32 s{sT0}, s{sR}, 14\ns_lshl_b32 s{sT1}, s3, 8\ns_add_u32 s{sT0}, s{sT0}, s{sT1}\nv_add_u32 v20, s{sT0}, v9")
A(f"s_lshl_b32 s{sT0}, s{sR}, 11\ns_lshl_b32 s{sT1}, s3, 9\ns_add_u32 s{sT0}, s{sT0}, s{sT1}\ns_add_u32 s{sT0}, s{sT0}, {PS}\nv_lshl_add_u32 v21, v0, 3, s{sT0}")
A(f"v_and_b32 v22, 15, v0\nv_lshlrev_b32 v22, 3, v22\ns_lshl_b32 s{sT0}, s3, 7\ns_add_u32 s{sT0}, s{sT0}, {ZP}\nv_add_u32 v25, s{sT0}, v22")
A(f"v_lshrrev_b32 v23, 5, v0\nv_lshlrev_b32 v23, 2, v23\nv_add_u32 v23, {SQ}, v23\nv_mov_b32 v24, {SQ}")
for i in range(4):
    A(f"v_mov_b32 v{116+i}, 0x3f803f80")
A(f"s_mov_b32 s{sM1}, 0x05040100\ns_mov_b32 s{sM1+1}, 0x07060302")


def m_loads():
    if opt["ptouch"]:
        A(f"buffer_load_dword v28, v21, {R(rWS)}, 0 offen")
    A(f"buffer_load_dword v26, v5, {R(rD)}, 0 offen")
    for t in range(4 if not opt.get("nogu") else 0):
        A(f"s_add_u32 m0, s{sIMG}, {t*1024}\ns_mov_b32 s{sT1}, {t*32*2752}")
        A(f"buffer_load_dwordx4 v1, {R(rA)}, s{sT1} offen{fl('gufl')} lds")
        A(f"s_add_u32 m0, s{sIMG}, {4096+t*1024}")
        A(f"buffer_load_dwordx4 v1, {R(rB)}, s{sT1} offen{fl('gufl')} lds")
    for r in range(16 if not opt.get("nowd") else 0):
        A(f"buffer_load_dword v{120+r}, v20, {R(rC)}, s{sOFF+r//4} offen offset:{1024*(r%4)}{fl('wdfl')}")
        A("s_nop 0")


trigger(opt["trigm"], m_loads)
st(5)
A("s_waitcnt vmcnt(0)")
for kb in range(4):
    for tl in range(2):
        for hf in range(2):
            A(f"ds_read_b64_tr_b16 {V(40+(kb*2+tl)*4+2*hf,2)}, v3 offset:{kb*1024+hf*128+tl*4096}")
for i in range(8):
    A(f"v_perm_b32 v{136+i}, v{121+2*i}, v{120+2*i}, s{sM1}\nv_perm_b32 v{144+i}, v{121+2*i}, v{120+2*i}, s{sM1+1}")
A(f"v_lshlrev_b32 v27, 16, v26\nv_and_b32 v26, s{sHI}, v26")
A("s_waitcnt lgkmcnt(0)")
for kb in range(4):
    for tl in range(2):
        c = "0" if kb == 0 else V(108 + 4 * tl, 4)
        A(f"v_mfma_f32_16x16x32_bf16 {V(108+4*tl,4)}, v[116:119], {V(40+(kb*2+tl)*4,4)}, {c}")
A("s_mov_b64 exec, 0xffff")
A(f"ds_add_f32 v22, v108 offset:{CS}\nds_add_f32 v22, v112 offset:{CS+4}")
A("s_mov_b64 exec, -1")
A("v_mov_b32 v30, 0\nv_mov_b32 v31, 0")
st(1)
spin(C3, f"s{sNKV}", 10, f"ds_read_b32 v{vT}, v{vL} offset:{TAG-MX}")


def m_poll():
    for t in range(4):
        A(f"buffer_load_dwordx4 {V(72+4*t,4)}, v4, {R(rWS)}, s{sOFF+t} offen sc1")


poll(m_poll, [72, 76, 80, 84], 10)
if STAMPS:
    A(f"s_sub_u32 s{sFAST}, {opt['spin']}, s{sCNT}")
st(6)
for t in range(1, 4):
    for i in (0, 2):
        A(f"v_pk_add_f32 {V(72+i,2)}, {V(72+i,2)}, {V(72+4*t+i,2)}")
A("v_permlane32_swap_b32 v72, v74\nv_permlane32_swap_b32 v73, v75")
A(f"""v_add_f32 v72, v72, v74
v_add_f32 v73, v73, v75
v_cvt_pk_bf16_f32 v72, v72, v73
v_lshlrev_b32 v73, 16, v72
v_and_b32 v72, s{sHI}, v72
v_add_f32 v73, v73, v27
v_add_f32 v72, v72, v26
v_cvt_pk_bf16_f32 v72, v73, v72
ds_write_b32 v6, v72""")
for kb in range(4):
    A(f"ds_read_b128 {V(92+4*kb,4)}, v7 offset:{64*kb}")
A(f"""v_lshlrev_b32 v73, 16, v72
v_and_b32 v72, s{sHI}, v72
v_add_f32 v74, v72, v73
v_mul_f32 v75, v72, v72
v_fmac_f32 v75, v73, v73""")
A("v_permlane32_swap_b32 v74, v75\nv_add_f32 v74, v74, v75")
row_allreduce("v_add_f32", 74)
A("s_mov_b32 exec_lo, 0x00010001\ns_mov_b32 exec_hi, 0x00010001")
A("ds_add_f32 v23, v74")
A("s_mov_b64 exec, 1")
A(f"ds_add_u32 v{vL}, v{vONE} offset:{C4-MX}")
A("s_mov_b64 exec, -1")
for kb in range(4):
    A(f"s_waitcnt lgkmcnt({5-kb})")
    for tl in range(2):
        c = "0" if kb == 0 else V(108 + 4 * tl, 4)
        A(f"v_mfma_f32_16x16x32_bf16 {V(108+4*tl,4)}, {V(92+4*kb,4)}, {V(40+(kb*2+tl)*4,4)}, {c}")
spin(C4, 4, 10, f"ds_read_b64 v[16:17], v24\nds_read_b64 v[14:15], v22 offset:{CS}", sleep=0)
A("s_mov_b64 exec, 0xffff")
A("ds_write2_b32 v25, v108, v112 offset0:0 offset1:1")
A("s_mov_b64 exec, -1")
A(f"""v_mul_f32 v16, {f32(1/512)}, v16
v_mul_f32 v17, {f32(1/512)}, v17
v_fma_f32 v17, -v16, v16, v17
v_max_f32 v17, 0, v17
v_cvt_pk_bf16_f32 v18, v16, v17
s_waitcnt lgkmcnt(0)
s_barrier""")
for w in range(4):
    A(f"ds_read_b64 {V(12 if w == 0 else 92+2*w,2)}, v22 offset:{ZP+128*w}")
A(f"""v_lshlrev_b32 v16, 16, v18
v_and_b32 v17, s{sHI}, v18
v_add_f32 v17, {f32(1e-5)}, v17
v_cvt_pk_bf16_f32 v17, v17, v17
v_and_b32 v17, s{sHI}, v17
v_sqrt_f32 v17, v17
v_cvt_pk_bf16_f32 v17, v17, v17
v_and_b32 v17, s{sHI}, v17
v_rcp_f32 v17, v17
s_waitcnt lgkmcnt(0)
v_pk_add_f32 v[12:13], v[12:13], v[94:95]
v_pk_add_f32 v[96:97], v[96:97], v[98:99]
v_pk_add_f32 v[12:13], v[12:13], v[96:97]
v_fma_f32 v12, -v16, v14, v12
v_fma_f32 v13, -v16, v15, v13
v_mul_f32 v12, v12, v17
v_mul_f32 v13, v13, v17
v_cvt_pk_bf16_f32 v12, v12, v13
v_and_b32 v13, s{sHI}, v12
v_lshlrev_b32 v12, 16, v12
v_mul_f32 v12, {f32(-1.4426950408889634)}, v12
v_exp_f32 v12, v12
v_add_f32 v12, 1.0, v12
v_rcp_f32 v12, v12
v_cvt_pk_bf16_f32 v12, v12, v12
v_and_b32 v12, s{sHI}, v12
v_mul_f32 v12, v12, v13
v_mov_b32_dpp v13, v12 quad_perm:[1,0,3,2] {DPP}
v_cvt_pk_bf16_f32 v12, v12, v13""")
for i in range(8):
    A(f"v_dot2c_f32_bf16_dpp v30, v12, v{136+i} row_newbcast:{2*i} {DPP}")
    A(f"v_dot2c_f32_bf16_dpp v31, v12, v{144+i} row_newbcast:{2*i} {DPP}")
tag([30, 31])
A(f"buffer_store_dwordx2 v[30:31], v21, {R(rWS)}, 0 offen sc1")
st(7)
end_wave()

if STAMPS:
    A("L_stamps:")
    A("s_mov_b64 exec, 1")
    A("s_waitcnt lgkmcnt(0)\ns_memrealtime s[4:5]\ns_waitcnt lgkmcnt(0)\ns_memtime s[6:7]")
    A(f"s_mul_i32 s{sT0}, s2, 12\ns_add_u32 s{sT0}, s{sT0}, s3\ns_lshl_b32 s{sT0}, s{sT0}, 6\ns_add_u32 s{sT0}, s{sT0}, {STAMP}")
    A(f"v_mov_b32 v1, s{sT0}\ns_waitcnt lgkmcnt(0)")
    for k in range(8):
        A(f"v_mov_b32 v{4+k}, s{sST+2*k}")
    A("v_mov_b32 v12, s100\nv_mov_b32 v13, s4\nv_mov_b32 v14, s6\nv_mov_b32 v15, s{0}".format(sFAST))
    A(f"buffer_store_dwordx4 v[4:7], v1, {R(rWS)}, 0 offen\nbuffer_store_dwordx4 v[8:11], v1, {R(rWS)}, 0 offen offset:16\nbuffer_store_dwordx4 v[12:15], v1, {R(rWS)}, 0 offen offset:32")
A("L_exit:")
A("s_endpgm")
A("L_last:")

body, problems = fix_hazards(L)
for p in problems:
    print("HAZARD:", p, file=sys.stderr)
for line in body:
    out.append(line if line.endswith(":") else "    " + line)
out.append(f""".section .rodata,"a"
.p2align 6
.amdhsa_kernel {NAME}_kernel
  .amdhsa_next_free_vgpr 168
  .amdhsa_next_free_sgpr 102
  .amdhsa_accum_offset 168
  .amdhsa_group_segment_fixed_size 0
  .amdhsa_kernarg_size 96
  .amdhsa_user_sgpr_count 2
  .amdhsa_user_sgpr_kernarg_segment_ptr 1
  .amdhsa_system_sgpr_workgroup_id_x 1
  .amdhsa_float_denorm_mode_32 3
.end_amdhsa_kernel""")
open(sys.argv[1], "w").write("\n".join(out) + "\n")
```

```python
import sys, struct
from asmlib import fix_hazards

NAME = "sequential_preLN__mha_block_cached__glu_gated_glu__decode"
opt = dict(stamps=0, nv1=8, trigz="c1", trigm="c1h", pat="A", kvfl="nt", wqfl="nt", wofl="nt", gufl="plain",
           wdfl="nt", fast=1, pf=1, gap=0, prio=0, bal=1, qsl=0, qst="sc1", xst="sc1", ssl=0, zsl=0, msl=0, fsl=0, mdelay=0, bfirst=0, fdelay=28, ptouch=1, nsl=12, spin=20000)
for a in sys.argv[2:]:
    k, v = a.split("=")
    opt[k] = v if not v.lstrip("-").isdigit() else int(v)
STAMPS = opt["stamps"]
NV1 = opt["nv1"]


def fl(name):
    v = opt[name]
    return "" if v == "plain" else " " + v.replace("+", " ")


def f32(x):
    return "0x%08x" % struct.unpack("<I", struct.pack("<f", x))[0]


QS, OS, ST, ZS, XC, EPOCH, PS, STAMP = 0x0, 0x20000, 0x40000, 0x41000, 0x45000, 0x46000, 0x48000, 0x80000
NMLP = 86
TAGMASK = 0x3ff
QL, MX, LACC, SQ, CS, ZP, SCR, OSL, WIMG = 0, 256, 260, 272, 1024, 1536, 3072, 4096, 10240
CQ, C1, C3, C4, FAST, TAG, ML = 280, 284, 292, 296, 304, 308, 384
LDS_BYTES = WIMG + 4 * 16384
pX, pK, pV, pWQ, pWO, pWG, pWU, pWD, pOUT, pDBG, pWS = 4, 6, 8, 10, 12, 16, 18, 20, 22, 24, 26
rA, rB, rWS, rC, rD = 28, 32, 36, 44, 48
sNKV, sROLE, sMASK, sN = 40, 41, 42, 43
sXG, sI, sSLOT, sR, sT0, sT1, sCNT, sFAST = 52, 53, 54, 55, 56, 57, 58, 59
sM1, sM0, sU, sIMG, sC2, sHI = 60, 62, 64, 65, 66, 67
sOFF = 68
sST = 84
vT = 38
vONE = 39
vL = 33

L = []


def A(s):
    for line in s.split("\n"):
        line = line.strip()
        if line:
            L.append(line)


def srd(r, p, size, add=None):
    if add is None:
        A(f"s_mov_b32 s{r}, s{p}\ns_mov_b32 s{r+1}, s{p+1}")
    else:
        A(f"s_add_u32 s{r}, s{p}, {add}\ns_addc_u32 s{r+1}, s{p+1}, 0")
    A(f"s_mov_b32 s{r+2}, {hex(size)}\ns_mov_b32 s{r+3}, 0x20000")


def R(r):
    return f"s[{r}:{r+3}]"


def V(a, n):
    return f"v[{a}:{a+n-1}]"


def st(k):
    if STAMPS and str(k) not in str(opt.get("nost", "")):
        A(f"s_memtime s[{sST+2*k}:{sST+2*k+1}]")


def end_wave():
    A("s_branch L_stamps" if STAMPS else "s_endpgm")


DPP = "row_mask:0xf bank_mask:0xf"


def row_allreduce(op, a):
    for n in (8, 4, 2, 1):
        A(f"{op}_dpp v{a}, v{a}, v{a} row_ror:{n} {DPP}")


def wave_allreduce_add(a, t):
    row_allreduce("v_add_f32", a)
    for sw in ("v_permlane16_swap_b32", "v_permlane32_swap_b32"):
        A(f"v_mov_b32 v{t}, v{a}\n{sw} v{a}, v{t}\nv_add_f32 v{a}, v{a}, v{t}")


def tag(regs):
    for r in regs:
        A(f"v_bfi_b32 v{r}, s{sMASK}, v{vT}, v{r}")


uid = [0]


def poll(loads, regs, tmp, between=None, masked=None, sleep=0):
    uid[0] += 1
    u = uid[0]
    loads()
    if between:
        between()
    A(f"s_mov_b32 s{sCNT}, {opt['spin']}")
    A(f"L_poll{u}:")
    A("s_waitcnt vmcnt(0)")
    rs = list(regs)
    A(f"v_xor_b32 v{tmp}, v{rs[0]}, v{vT}\nv_xor_b32 v{tmp+1}, v{rs[1]}, v{vT}")
    for n, r in enumerate(rs[2:]):
        A(f"v_bitop3_b32 v{tmp+n%2}, v{tmp+n%2}, v{r}, v{vT} bitop3:0xf6")
    if masked:
        A(f"s_mov_b64 exec, {hex(masked[0])}")
        for n, r in enumerate(masked[1]):
            A(f"v_bitop3_b32 v{tmp+n%2}, v{tmp+n%2}, v{r}, v{vT} bitop3:0xf6")
        A("s_mov_b64 exec, -1")
    A(f"v_bitop3_b32 v{tmp}, v{tmp}, v{tmp+1}, s{sMASK} bitop3:0xa8")
    A(f"v_cmp_ne_u32 vcc, 0, v{tmp}")
    A(f"s_cbranch_vccz L_ok{u}")
    A(f"s_sub_u32 s{sCNT}, s{sCNT}, 1\ns_cbranch_scc1 L_ok{u}")
    if sleep:
        A(f"s_sleep {sleep}")
    loads()
    A(f"s_branch L_poll{u}")
    A(f"L_ok{u}:")


def spin(off, n, tmp, extra=None, sleep=1):
    uid[0] += 1
    u = uid[0]
    A(f"L_spin{u}:")
    A(f"ds_read_b32 v{tmp}, v{vL} offset:{off-MX}")
    if extra:
        A(extra)
    A("s_waitcnt lgkmcnt(0)")
    A(f"v_readfirstlane_b32 s{sT0}, v{tmp}")
    A(f"s_cmp_ge_u32 s{sT0}, {n}\ns_cbranch_scc1 L_spun{u}")
    if sleep:
        A(f"s_sleep {sleep}")
    A(f"s_branch L_spin{u}")
    A(f"L_spun{u}:")


def store_fs(instr):
    uid[0] += 1
    u = uid[0]
    if not opt["fast"]:
        A(instr + " sc1")
        return
    A(f"s_cmp_eq_u32 s{sFAST}, 0\ns_cbranch_scc1 L_slow{u}")
    A(instr)
    A(f"s_branch L_sdone{u}")
    A(f"L_slow{u}:")
    A(instr + " sc1")
    A(f"L_sdone{u}:")


import os
hdr = open(os.path.join(os.path.dirname(os.path.abspath(__file__)), "hdr.txt")).read().split("\n")
out = [l for l in hdr if l.startswith(";") and "@launch" not in l and "Override" not in l and "grid=ceil" not in l]
lst = opt.get("list", "")
if lst:
    for ch in lst:
        if ch == "m":
            out.append(f"; @launch kernel={NAME}_kernel grid=(256,1,1) block=(768,1,1) lds={LDS_BYTES}")
        elif ch == "n":
            out.append("; @launch kernel=noop_kernel grid=(1,1,1) block=(64,1,1) lds=0")
        else:
            out.append("; @launch kernel=noop_kernel grid=(256,1,1) block=(64,1,1) lds=0")
else:
    out.append(f"; @launch grid=(256,1,1) block=(768,1,1) lds={LDS_BYTES}")
out.append('.amdgcn_target "amdgcn-amd-amdhsa--gfx950"')
out.append(".text")
out.append(f".globl {NAME}_kernel")
out.append(".p2align 8")
out.append(f".type {NAME}_kernel,@function")
out.append(f"{NAME}_kernel:")

A("L_start:")
A("s_cmp_ge_u32 s2, 256\ns_cbranch_scc1 L_exit")
A("s_load_dwordx16 s[4:19], s[0:1], 0\ns_load_dwordx8 s[20:27], s[0:1], 64")
if STAMPS:
    for k in range(8):
        A(f"s_mov_b32 s{sST+2*k}, 0")
st(0)
if STAMPS or opt.get("diag"):
    A("s_memrealtime s[100:101]")
A("v_lshrrev_b32 v1, 6, v0\nv_and_b32 v0, 63, v0\nv_readfirstlane_b32 s3, v1")
if opt.get("hx"):
    A(f"s_xor_b32 s2, s2, {opt['hx']}")
A(f"s_and_b32 s{sXG}, s2, 7\ns_lshr_b32 s{sI}, s2, 3\ns_lshl_b32 s{sSLOT}, s{sXG}, 5\ns_add_u32 s{sSLOT}, s{sSLOT}, s{sI}")
A("v_lshlrev_b32 v8, 4, v0")
if opt["pf"]:
    A("s_cmp_eq_u32 s3, 1\ns_cbranch_scc0 L_pf_done")
    A(f"s_getpc_b64 s[{rA}:{rA+1}]")
    A("L_pc:")
    A(f"s_sub_u32 s{rA}, s{rA}, L_pc-L_start\ns_subb_u32 s{rA+1}, s{rA+1}, 0")
    A(f"s_and_b32 s{sT0}, s{sI}, 15\ns_lshl_b32 s{sT0}, s{sT0}, 10\nv_add_u32 v1, s{sT0}, v8")
    A("v_min_u32 v1, (L_last-L_start-16)&0xfffffff0, v1")
    A(f"global_load_dwordx4 v[160:163], v1, s[{rA}:{rA+1}]")
    A("L_pf_done:")
A("v_mov_b32 v4, 0\nv_mov_b32 v5, 0\nv_mov_b32 v6, 0\nv_mov_b32 v7, 0")
A(f"s_mov_b32 s{sT0}, 0xff800000\nv_writelane_b32 v4, s{sT0}, 0")
A(f"ds_write_b128 v8, v[4:7] offset:{MX}")
A(f"s_lshl_b32 s{sT0}, s3, 9\nv_lshl_add_u32 v9, v0, 3, s{sT0}\nds_write_b64 v9, v[6:7] offset:{OSL}")
nz, nmu = (8, 6) if opt["bal"] else (8, 8)
A(f"""s_and_b32 s80, s{sI}, 7
s_lshr_b32 s81, s{sI}, 3
s_cmp_lt_u32 s{sXG}, 6
s_cselect_b32 s82, 3, 2
s_cmp_lt_u32 s81, s82
s_cselect_b32 s83, 3, 2
s_mov_b32 s{sROLE}, 0
s_mov_b32 s{sNKV}, 8
s_lshl_b32 s{sU}, s80, 3
s_lshl_b32 s{sR}, s81, 1
s_add_u32 s{sR}, s{sR}, s80
s_cmp_lt_u32 s80, 2
s_cbranch_scc1 L_role_done
s_sub_u32 s80, s80, 2
s_cmp_lt_u32 s80, s83
s_cbranch_scc0 L_role_free
s_mov_b32 s{sROLE}, 1
s_min_u32 s82, s82, s81
s_lshl_b32 s{sR}, s81, 1
s_add_u32 s{sR}, s{sR}, s82
s_add_u32 s{sR}, s{sR}, s80
s_mul_i32 s82, s{sXG}, 11
s_add_u32 s{sR}, s{sR}, s82
s_cmp_eq_u32 s{sXG}, 7
s_subb_u32 s{sR}, s{sR}, 0""")
if opt["bal"]:
    A(f"s_mov_b32 s{sNKV}, 6\ns_mul_i32 s{sU}, s80, 6\ns_add_u32 s{sU}, s{sU}, 16")
A(f"s_branch L_role_done\nL_role_free:\ns_mov_b32 s{sROLE}, 2")
if opt["bal"]:
    A(f"""s_add_u32 s{sNKV}, s83, 7
s_sub_u32 s80, s80, s83
s_mul_i32 s{sU}, s80, s{sNKV}
s_mul_i32 s83, s83, 6
s_add_u32 s{sU}, s{sU}, s83
s_add_u32 s{sU}, s{sU}, 16""")
A("L_role_done:")
KR, VR = 40, 104
A(f"s_add_u32 s{sT0}, s3, s{sNKV}\ns_sub_u32 s83, s{sT0}, 12")
A(f"s_lshr_b32 s{sT1}, s{sSLOT}, 3\ns_lshl_b32 s{sT1}, s{sT1}, 20\ns_lshl_b32 s{sU}, s{sU}, 14\ns_add_u32 s{sT1}, s{sT1}, s{sU}")
if opt["pat"] == "A":
    A(f"s_lshl_b32 s{sT0}, s83, 14")
    for i in range(4):
        A(f"s_mov_b32 s{sOFF+i}, {i*4096}")
    koff = lambda i: (f"s{sOFF+i//4}", (i % 4) * 1024)
else:
    A(f"s_lshl_b32 s{sT0}, s83, 10\ns_lshl_b32 s{sOFF+1}, s{sNKV}, 10")
    for i in range(2, 12):
        A(f"s_add_u32 s{sOFF+i}, s{sOFF+i-1}, s{sOFF+1}")
    koff = lambda i: ("0" if i == 0 else f"s{sOFF+i}", 0)
A(f"s_mov_b32 s{sU}, s83")
A(f"s_add_u32 s{sT0}, s{sT0}, s{sT1}\nv_add_u32 v1, s{sT0}, v8")
if opt["pat"] != "A":
    for i in range(12, 16):
        A(f"s_add_u32 s{sOFF+i}, s{sOFF+i-1}, s{sOFF+1}")
A(f"s_mov_b32 s{sHI}, 0xffff0000\ns_mov_b32 s{sMASK}, {TAGMASK}")
A(f"s_and_b32 s{sT0}, s{sSLOT}, 7\ns_lshl_b32 s{sT0}, s{sT0}, 6")
A(f"v_lshrrev_b32 v2, 4, v0\nv_lshl_add_u32 v2, v2, 4, s{sT0}\nv_lshlrev_b32 v3, 1, v2")
A(f"s_lshr_b32 s{sT0}, s{sSLOT}, 3\ns_lshl_b32 s{sT0}, s{sT0}, 8")
A(f"v_lshlrev_b32 v2, 13, v2\nv_and_b32 v9, 15, v0\nv_lshl_add_u32 v2, v9, 4, v2\nv_add_u32 v2, s{sT0}, v2")
A(f"v_mov_b32 v{vL}, {MX}\nv_mov_b32 v{vONE}, 1")
A("s_waitcnt lgkmcnt(0)")
srd(rD, pX, 1024)
srd(rC, pWQ, 0x400000)
srd(rA, pK, 0x2000000)
srd(rB, pV, 0x2000000)
srd(rWS, pWS, 0x10000000)
st(6)
A("s_cmp_lg_u32 s3, 0\ns_cbranch_scc1 L_not0")
A(f"buffer_load_dwordx4 v[104:107], v8, {R(rD)}, 0 offen")
A(f"buffer_load_dwordx4 v[12:15], v3, {R(rD)}, 0 offen")
A(f"buffer_load_dwordx4 v[16:19], v3, {R(rD)}, 0 offen offset:16")
for t in range(16):
    A(f"s_mov_b32 s{sT1}, {t*8192 if not opt.get('nowq') else 0}")
    A(f"buffer_load_dwordx4 {V(40+4*t,4)}, {'v2' if not opt.get('nowq') else 'v8'}, {R(rC)}, s{sT1} offen{fl('wqfl')}")
A("s_branch L_go")
A("L_not0:")
A(f"s_lshl_b32 s{sT0}, s2, 4\ns_add_u32 s{sT0}, s{sT0}, s3\ns_cmp_eq_u32 s{sT0}, 1\ns_cbranch_scc0 L_go")
A(f"s_load_dword s{sT0}, s[{pWS}:{pWS+1}], {hex(EPOCH)}")
srd(rC, pDBG, 256)
A(f"v_mov_b32 v3, {EPOCH}\nv_lshlrev_b32 v4, 6, v0\ns_waitcnt lgkmcnt(0)")
A(f"s_add_u32 s{sT0}, s{sT0}, 0x0e3779b1\ns_and_b32 s{sT0}, s{sT0}, 0x0fffffff\ns_or_b32 s{sT1}, s{sT0}, 0x80000000")
A(f"v_mov_b32 v5, s{sT1}\nv_mov_b32 v6, s{sT0}\ns_mov_b64 exec, 15")
A(f"buffer_store_dword v5, v4, {R(rC)}, 0 offen sc1")
A("s_mov_b64 exec, 1")
A(f"buffer_store_dword v6, v3, {R(rWS)}, 0 offen sc1")
A("s_mov_b64 exec, -1")
A("L_go:")
A("s_barrier")
A(f"s_cmp_lt_i32 s{sU}, 0\ns_cbranch_scc1 L_helper")


def kvload(base, i, r):
    so, io = koff(i)
    o = f" offset:{io}" if io else ""
    A(f"buffer_load_dwordx4 {V(base+4*i,4)}, v1, {R(r)}, {so} offen{o}{fl('kvfl')}")
    if opt["gap"] >= 0:
        A(f"s_nop {opt['gap']}")


for i in range(16):
    kvload(KR, i, rA)
for i in range(NV1):
    kvload(VR, i, rB)
st(1)
A("""v_bfe_u32 v10, v0, 3, 1
v_mul_u32_u24 v10, 0x202, v10
v_add_u32 v10, 0x100, v10
v_and_b32 v11, 1, v0
v_lshlrev_b32 v11, 4, v11
v_lshlrev_b32 v10, v11, v10
v_mov_b32 v12, 0x0c0c0000
v_lshrrev_b32 v12, v11, v12
v_or_b32 v10, v10, v12
v_bfe_u32 v11, v0, 1, 2
v_mov_b32 v12, 0x0c0c0c0c""")
for i in range(4):
    A(f"v_cmp_eq_u32 vcc, {i}, v11\nv_cndmask_b32 v{6+i}, v12, v10, vcc")
A(f"s_mov_b32 s{sM1}, 0xcccccccc\ns_mov_b32 s{sM1+1}, 0xcccccccc\ns_mov_b32 s{sM0}, 0xaaaaaaaa\ns_mov_b32 s{sM0+1}, 0xaaaaaaaa")
A(f"s_mov_b32 s{sC2}, {f32(128 ** -0.5 * 1.4426950408889634)}")
A("v_and_b32 v32, 15, v0\nv_lshlrev_b32 v32, 4, v32")
A(f"v_lshrrev_b32 v34, 4, v0\nv_and_b32 v35, 7, v0\nv_lshl_add_u32 v34, v34, 3, v35\ns_lshl_b32 s{sT0}, s3, 9\nv_lshl_add_u32 v34, v34, 4, s{sT0}")
A("v_lshlrev_b32 v35, 3, v0")
A(f"s_lshl_b32 s{sT0}, s{sSLOT}, 9\ns_add_u32 s{sT0}, s{sT0}, {OS}\nv_lshl_add_u32 v36, v0, 3, s{sT0}")
A(f"s_lshl_b32 s{sT0}, s{sSLOT}, 4\ns_add_u32 s{sT0}, s{sT0}, {ST}\nv_mov_b32 v37, s{sT0}")
A(f"s_sub_u32 s{sN}, s{sNKV}, 1")
A(f"v_lshrrev_b32 v26, 1, v32\nv_add_u32 v26, {ML}, v26\ns_lshl_b32 s{sT0}, s3, 3\ns_add_u32 s{sT0}, s{sT0}, {ML}\nv_mov_b32 v27, s{sT0}")
spin(CQ, 1, 10, f"ds_read_b128 v[2:5], v32 offset:{QL}\nds_read_b64 v[28:29], v{vL} offset:{FAST-MX}", sleep=2)
st(2)
A(f"v_readfirstlane_b32 s{sFAST}, v28\nv_mov_b32 v{vT}, v29")
A(f"s_waitcnt vmcnt({NV1})")
for j in range(4):
    for i in range(16):
        c = "0" if j == 0 else f"v{10+i}"
        A(f"v_dot2_f32_bf16 v{10+i}, v{KR+4*i+j}, v{2+j}, {c}")
for i in range(8):
    A(f"v_add_f32_dpp v{10+i}, v{10+i}, v{10+i} row_ror:8 row_mask:0xf bank_mask:0x3")
    A(f"v_add_f32_dpp v{10+i}, v{18+i}, v{18+i} row_ror:8 row_mask:0xf bank_mask:0xc")
for i in range(4):
    A(f"v_add_f32_dpp v{10+i}, v{10+i}, v{10+i} row_ror:12 row_mask:0xf bank_mask:0x5")
    A(f"v_add_f32_dpp v{10+i}, v{14+i}, v{14+i} row_ror:4 row_mask:0xf bank_mask:0xa")
for i in range(4):
    A(f"v_add_f32_dpp v{10+i}, v{10+i}, v{10+i} quad_perm:[2,3,0,1] {DPP}")
for i in range(2):
    A(f"v_cndmask_b32 v{10+i}, v{10+i}, v{12+i}, s[{sM1}:{sM1+1}]")
for i in range(2):
    A(f"v_add_f32_dpp v{10+i}, v{10+i}, v{10+i} quad_perm:[1,0,3,2] {DPP}")
A(f"v_cndmask_b32 v10, v10, v11, s[{sM0}:{sM0+1}]")
A(f"v_mul_f32 v10, s{sC2}, v10")
A(f"v_max_f32_dpp v11, v10, v10 row_ror:8 {DPP}")
for n in (4, 2, 1):
    A(f"v_max_f32_dpp v11, v11, v11 row_ror:{n} {DPP}")
for sw in ("v_permlane16_swap_b32", "v_permlane32_swap_b32"):
    A(f"v_mov_b32 v12, v11\n{sw} v11, v12\nv_max_f32 v11, v11, v12")
A("v_sub_f32 v10, v10, v11\nv_exp_f32 v10, v10")
A("v_cvt_pk_bf16_f32 v13, v10, v10\nv_lshlrev_b32 v13, 16, v13\nv_sub_f32 v13, v10, v13\nv_cvt_pk_bf16_f32 v13, v10, v13")
wave_allreduce_add(10, 12)
A("v_mov_b32 v20, v11\nv_mov_b32 v21, v10\ns_mov_b64 exec, 1")
A(f"ds_write_b64 v27, v[20:21]\nds_max_f32 v{vL}, v11\nds_add_rtn_u32 v12, v{vL}, v{vONE} offset:{C1-MX}")
A("s_mov_b64 exec, -1")
A(f"ds_read_b64 v[22:23], v26\nds_read_b32 v20, v{vL}\ns_waitcnt lgkmcnt(0)")
A(f"v_readfirstlane_b32 s{sT0}, v12")
A(f"s_cmp_lg_u32 s{sT0}, s{sN}\ns_cbranch_scc1 L_kv_nost")
A("v_sub_f32 v22, v22, v20\nv_min_f32 v22, 0, v22\nv_exp_f32 v22, v22\nv_mul_f32 v21, v22, v23")
row_allreduce("v_add_f32", 21)
tag([20, 21])
A(f"v_mov_b32 v22, v{vT}\nv_mov_b32 v23, v{vT}\ns_mov_b64 exec, 1\ns_setprio 3")
store_fs(f"buffer_store_dwordx4 v[20:23], v37, {R(rWS)}, 0 offen")
A("s_setprio 0\ns_mov_b64 exec, -1")
st(7)
A("L_kv_nost:")
st(3)
for i in range(NV1, 16):
    kvload(VR, i, rB)
for t in range(16):
    A(f"v_mov_b32_dpp v{14+t%4}, v13 row_newbcast:{t} {DPP}")
    if t >= 1:
        for i in range(4):
            A(f"v_perm_b32 v{KR+4*(t-1)+i}, v{14+(t-1)%4}, v{14+(t-1)%4}, v{6+i}")
for i in range(4):
    A(f"v_perm_b32 v{KR+60+i}, v{14+15%4}, v{14+15%4}, v{6+i}")
spin(C1, f"s{sNKV}", 12, f"ds_read_b32 v19, v{vL}", sleep=2)
A("v_sub_f32 v11, v11, v19\nv_exp_f32 v11, v11")
st(4)
for t in range(16):
    A(f"s_waitcnt vmcnt({15-t})")
    c = "0" if t == 0 else "v[28:31]"
    A(f"v_mfma_f32_16x16x32_bf16 v[28:31], {V(VR+4*t,4)}, {V(KR+4*t,4)}, {c}")
st(5)
for i in range(4):
    A(f"v_add_f32_dpp v{28+i}, v{28+i}, v{28+i} row_ror:8 {DPP}")
for i in range(4):
    A(f"v_mul_f32 v{28+i}, v{28+i}, v11")
A("s_mov_b32 exec_lo, 0x00ff00ff\ns_mov_b32 exec_hi, 0x00ff00ff")
A(f"ds_write_b128 v34, v[28:31] offset:{OSL}")
A("s_mov_b64 exec, 1")
A(f"ds_add_rtn_u32 v12, v{vL}, v{vONE} offset:{C3-MX}")
A("s_mov_b64 exec, -1")
for w in range(2, 12):
    A(f"ds_read_b64 {V(KR+2*(w-2),2)}, v35 offset:{OSL+512*w}")
A("s_waitcnt lgkmcnt(6)")
A(f"v_readfirstlane_b32 s{sT0}, v12")
P = lambda k: V(KR + 2 * k, 2)
A(f"v_pk_add_f32 {P(0)}, {P(0)}, {P(1)}\nv_pk_add_f32 {P(2)}, {P(2)}, {P(3)}\ns_waitcnt lgkmcnt(2)")
A(f"v_pk_add_f32 {P(4)}, {P(4)}, {P(5)}\nv_pk_add_f32 {P(6)}, {P(6)}, {P(7)}\nv_pk_add_f32 {P(0)}, {P(0)}, {P(2)}\ns_waitcnt lgkmcnt(0)")
A(f"v_pk_add_f32 {P(8)}, {P(8)}, {P(9)}\nv_pk_add_f32 {P(4)}, {P(4)}, {P(6)}\nv_pk_add_f32 {P(0)}, {P(0)}, {P(8)}\nv_pk_add_f32 v[18:19], {P(0)}, {P(4)}")
tag([18, 19])
A(f"s_cmp_lg_u32 s{sT0}, s{sN}\ns_cbranch_scc1 L_kv_notlast")
store_fs(f"buffer_store_dwordx2 v[18:19], v36, {R(rWS)}, 0 offen")
st(6)
A("L_kv_notlast:")
A("L_kv_end:")
end_wave()

A("L_helper:")
for i in range(4):
    A(f"s_mov_b32 s{sOFF+i}, {i*4096}")
A("s_cmp_eq_u32 s3, 0\ns_cbranch_scc1 L_q")
A("s_cmp_ge_u32 s3, 4\ns_cbranch_scc1 L_idle")
A("s_branch L_roles")
A("L_idle:")
end_wave()

A("L_q:")
A("""v_and_b32 v28, 1, v0
v_lshlrev_b32 v28, 4, v28
v_mov_b32 v29, 0x100
v_lshlrev_b32 v29, v28, v29
v_mov_b32 v30, 0x0c0c0000
v_lshrrev_b32 v30, v28, v30
v_or_b32 v29, v29, v30
v_bfe_u32 v28, v0, 1, 3
v_mov_b32 v30, 0x0c0c0c0c""")
for i in range(4):
    A(f"v_cmp_eq_u32 vcc, {i}, v28\nv_cndmask_b32 v{20+i}, v30, v29, vcc")
A("s_waitcnt vmcnt(16)")
for j in range(4):
    A(f"v_lshlrev_b32 v{112+2*j}, 16, v{104+j}\nv_and_b32 v{113+2*j}, s{sHI}, v{104+j}")
A("v_add_f32 v36, v112, v113\nv_add_f32 v37, v114, v115\nv_add_f32 v34, v116, v117\nv_add_f32 v35, v118, v119")
A("v_add_f32 v36, v36, v37\nv_add_f32 v34, v34, v35\nv_add_f32 v36, v36, v34")
wave_allreduce_add(36, 37)
A(f"v_mul_f32 v36, {f32(1/512)}, v36")
for j in range(8):
    A(f"v_sub_f32 v{112+j}, v{112+j}, v36")
A("v_mul_f32 v37, v112, v112")
for j in range(1, 8):
    A(f"v_fmac_f32 v37, v{112+j}, v{112+j}")
wave_allreduce_add(37, 34)
A(f"v_mul_f32 v37, {f32(1/512)}, v37")
A(f"""v_cvt_pk_bf16_f32 v34, v36, v37
v_lshlrev_b32 v36, 16, v34
v_and_b32 v37, s{sHI}, v34
v_add_f32 v37, {f32(1e-5)}, v37
v_cvt_pk_bf16_f32 v37, v37, v37
v_and_b32 v37, s{sHI}, v37
v_sqrt_f32 v37, v37
v_cvt_pk_bf16_f32 v37, v37, v37
v_and_b32 v37, s{sHI}, v37
v_rcp_f32 v37, v37""")
for j in range(8):
    r = 12 + j
    A(f"""v_lshlrev_b32 v28, 16, v{r}
v_and_b32 v29, s{sHI}, v{r}
v_sub_f32 v28, v28, v36
v_sub_f32 v29, v29, v36
v_cvt_pk_bf16_f32 v30, v28, v29
v_lshlrev_b32 v28, 16, v30
v_and_b32 v29, s{sHI}, v30
v_mul_f32 v28, v28, v37
v_mul_f32 v29, v29, v37
v_cvt_pk_bf16_f32 v{r}, v28, v29""")
A(f"s_load_dword s{sN}, s[{pDBG}:{pDBG+1}], 0")
A("s_waitcnt vmcnt(0)")
st(1)
for t in range(16):
    src = 12 + t // 2
    if t % 2:
        A(f"v_lshrrev_b32 v{src}, 16, v{src}")
    b = 104 + 4 * (t % 2)
    for i in range(4):
        A(f"v_perm_b32 v{b+i}, v{src}, v{src}, v{20+i}")
    c = "0" if t == 0 else "v[24:27]"
    A(f"v_mfma_f32_16x16x32_bf16 v[24:27], {V(40+4*t,4)}, {V(b,4)}, {c}")
for k in range(1, 4):
    A(f"s_waitcnt lgkmcnt(0)\ns_cmp_lg_u32 s{sN}, 0\ns_cbranch_scc1 L_num_ok")
    if k > 1:
        A(f"s_sleep {opt['nsl']}")
    A(f"s_load_dword s{sN}, s[{pDBG}:{pDBG+1}], {64*k}")
srd(rA, pDBG, 256)
A(f"s_mov_b32 s{sCNT}, {opt['spin']}\nv_mov_b32 v3, 0\ns_waitcnt lgkmcnt(0)")
A(f"""L_num:
s_cmp_lg_u32 s{sN}, 0
s_cbranch_scc1 L_num_ok
s_sub_u32 s{sCNT}, s{sCNT}, 1
s_cbranch_scc1 L_num_ok
buffer_load_dword v4, v3, {R(rA)}, 0 offen sc1
s_waitcnt vmcnt(0)
v_readfirstlane_b32 s{sN}, v4
s_branch L_num
L_num_ok:""")
st(2)
A(f"s_and_b32 s{sT0}, s{sN}, s{sMASK}\nv_mov_b32 v{vT}, s{sT0}")
A(f"s_getreg_b32 s{sT1}, hwreg(HW_REG_XCC_ID)\ns_and_b32 s{sT1}, s{sT1}, 15\ns_lshl_b32 s{sN}, s{sN}, 4\ns_or_b32 s{sN}, s{sN}, s{sT1}")
A(f"s_lshl_b32 s{sT0}, s{sSLOT}, 9\ns_add_u32 s{sT0}, s{sT0}, {QS}")
A(f"v_lshrrev_b32 v2, 4, v0\nv_and_b32 v3, 7, v0\nv_lshl_add_u32 v2, v2, 3, v3\nv_lshl_add_u32 v2, v2, 4, s{sT0}")
tag([24, 25, 26, 27])
A("s_mov_b32 exec_lo, 0x00ff00ff\ns_mov_b32 exec_hi, 0x00ff00ff")
A(f"buffer_store_dwordx4 v[24:27], v2, {R(rWS)}, 0 offen{fl('qst')}")
A("s_mov_b64 exec, -1")
A(f"s_lshl_b32 s{sT1}, s{sXG}, 7\ns_add_u32 s{sT1}, s{sT1}, {XC}\nv_lshl_add_u32 v5, v3, 2, s{sT1}")
A(f"s_cmp_eq_u32 s{sROLE}, 0\ns_cbranch_scc0 L_noxc")
A(f"s_lshl_b32 s{sT0}, s{sR}, 2\ns_add_u32 s{sT0}, s{sT0}, s{sT1}\nv_mov_b32 v3, s{sT0}\nv_mov_b32 v4, s{sN}\ns_mov_b64 exec, 1")
A(f"buffer_store_dword v4, v3, {R(rWS)}, 0 offen{fl('xst')}")
A("s_mov_b64 exec, -1")
A("L_noxc:")
A(f"s_and_b32 s{sT0}, s{sSLOT}, 0xf8\ns_lshl_b32 s{sT0}, s{sT0}, 9\ns_add_u32 s{sT0}, s{sT0}, {QS}")
A(f"v_lshl_add_u32 v7, v0, 4, s{sT0}")
A("v_bfe_u32 v2, v0, 3, 2\nv_lshlrev_b32 v2, 2, v2\nv_lshrrev_b32 v3, 5, v0\nv_add_u32 v2, v2, v3\nv_and_b32 v3, 7, v0\nv_lshl_add_u32 v2, v2, 3, v3\nv_lshlrev_b32 v2, 1, v2")
if opt["qsl"]:
    A(f"s_sleep {opt['qsl']}")
else:
    A("s_waitcnt vmcnt(0)")
st(3)


def q_poll():
    for t in range(4):
        A(f"buffer_load_dwordx4 {V(112+4*t,4)}, v7, {R(rWS)}, 0 offen offset:{1024*t} sc1")
    A(f"buffer_load_dword v6, v5, {R(rWS)}, 0 offen sc1")


if not opt.get("noq"):
    poll(q_poll, list(range(112, 128)), 10)
A(f"v_cmp_ne_u32 vcc, s{sN}, v6\ns_cmp_eq_u64 vcc, 0\ns_cselect_b32 s{sFAST}, 1, 0")
A(f"v_mov_b32 v4, s{sFAST}\nv_mov_b32 v5, v{vT}\nds_write_b64 v{vL}, v[4:5] offset:{FAST-MX}")
for i in range(4):
    A(f"v_add_f32 v{112+i}, v{112+i}, v{116+i}\nv_add_f32 v{120+i}, v{120+i}, v{124+i}")
for i in range(4):
    A(f"v_add_f32 v{112+i}, v{112+i}, v{120+i}")
A("v_permlane32_swap_b32 v112, v113\nv_permlane32_swap_b32 v114, v115")
A("v_add_f32 v112, v112, v113\nv_add_f32 v114, v114, v115")
A("v_cvt_pk_bf16_f32 v112, v112, v114")
A(f"ds_write_b16 v2, v112 offset:{QL}\nds_write_b16_d16_hi v2, v112 offset:{QL+32}")
A(f"ds_write_b32 v{vL}, v{vONE} offset:{CQ-MX}")
st(4)

A("L_roles:")
A(f"s_cmp_eq_u32 s{sROLE}, 1\ns_cbranch_scc1 L_mlp")
A(f"s_cmp_eq_u32 s{sROLE}, 0\ns_cbranch_scc1 L_z")
end_wave()


def trigger(trig, loads):
    if opt.get("now"):
        return
    if trig != "start":
        off, n = {"q": (CQ, 1), "c1": (C1, f"s{sNKV}"), "c1h": (C1, 4), "c1a": (C1, 1), "c1b": (C1, 2), "c1c": (C1, 5)}[trig]
        spin(off, n, 10, sleep=4)
    loads()


A("L_z:")
if opt.get("cgx"):
    A(f"s_xor_b32 s{sR}, s{sR}, {opt['cgx']}")
ZB, ZO, ZST, ZA, ZD = 40, 104, 120, 124, 140
srd(rA, pWO, 0x400000)
A(f"s_lshl_b32 s{sT0}, s{sXG}, 2\ns_add_u32 s{sT0}, s{sT0}, s3\ns_lshl_b32 s{sT0}, s{sT0}, 17\ns_lshl_b32 s{sT1}, s{sR}, 7\ns_add_u32 s{sT0}, s{sT0}, s{sT1}")
A(f"v_bfe_u32 v1, v0, 3, 2\nv_lshrrev_b32 v2, 5, v0\nv_lshl_add_u32 v1, v1, 3, v2\nv_lshlrev_b32 v1, 10, v1\nv_and_b32 v2, 7, v0\nv_lshl_add_u32 v1, v2, 4, v1\nv_add_u32 v1, s{sT0}, v1")
A(f"s_lshl_b32 s{sIMG}, s3, 14\ns_add_u32 s{sIMG}, s{sIMG}, {WIMG}")
A(f"v_lshrrev_b32 v3, 4, v0\nv_lshlrev_b32 v3, 3, v3\nv_bfe_u32 v4, v0, 2, 2\nv_add_u32 v3, v3, v4\nv_lshlrev_b32 v3, 7, v3\nv_and_b32 v4, 3, v0\nv_lshl_add_u32 v3, v4, 3, v3\nv_add_u32 v3, s{sIMG}, v3")
A(f"s_lshl_b32 s{sT0}, s{sXG}, 5\ns_lshl_b32 s{sT1}, s3, 3\ns_add_u32 s{sT0}, s{sT0}, s{sT1}")
A(f"s_lshl_b32 s{sT1}, s{sT0}, 9\ns_add_u32 s{sT1}, s{sT1}, {OS}\nv_add_u32 v4, s{sT1}, v8")
A(f"s_lshl_b32 s{sT1}, s{sT0}, 4\ns_add_u32 s{sT1}, s{sT1}, {ST}\nv_lshl_add_u32 v5, v2, 4, s{sT1}")
A(f"s_lshl_b32 s{sT0}, s3, 8\ns_add_u32 s{sT0}, s{sT0}, {SCR}\nv_lshl_add_u32 v6, v0, 2, s{sT0}")
A(f"v_lshrrev_b32 v7, 4, v0\nv_lshl_add_u32 v7, v7, 4, s{sT0}")
A(f"v_subrev_u32 v25, {SCR-ZP}, v6")
A(f"v_and_b32 v9, 31, v0\nv_lshlrev_b32 v9, 3, v9\nv_lshrrev_b32 v10, 5, v0\nv_lshl_add_u32 v9, v10, 2, v9\nv_add_u32 v9, s{sT0}, v9")
A(f"s_lshl_b32 s{sT0}, s{sXG}, 3\ns_add_u32 s{sT0}, s{sT0}, s{sR}\ns_lshl_b32 s{sT0}, s{sT0}, 1\ns_and_b32 s{sT1}, s3, 1\ns_add_u32 s{sT0}, s{sT0}, s{sT1}\ns_lshl_b32 s{sT0}, s{sT0}, 2")
A(f"v_lshrrev_b32 v20, 4, v0\nv_add_u32 v20, s{sT0}, v20\nv_lshlrev_b32 v21, 1, v20\nv_lshlrev_b32 v20, 2, v20\nv_add_u32 v20, {ZS}, v20")
A(f"s_lshl_b32 s{sT0}, s{sT0}, 2\nv_lshlrev_b32 v22, 11, v0\nv_add_u32 v22, s{sT0}, v22\nv_add_u32 v23, {64*2048}, v22")
A(f"s_lshl_b32 s{sT0}, s{sXG}, 11\ns_lshl_b32 s{sT1}, s{sR}, 8\ns_add_u32 s{sT0}, s{sT0}, s{sT1}\ns_add_u32 s{sT0}, s{sT0}, {ZS}\nv_add_u32 v24, s{sT0}, v8")
srd(rC, pWS, NMLP * 2048, PS)
srd(rB, pOUT, 1024)


def z_loads():
    if opt["ptouch"]:
        A(f"buffer_load_dword v28, v24, {R(rWS)}, 0 offen")
    A(f"buffer_load_ushort v26, v21, {R(rD)}, 0 offen")
    for t in range(16 if not opt.get("nowo") else 0):
        A(f"s_add_u32 m0, s{sIMG}, {t*1024}\ns_mov_b32 s{sT1}, {((t>>2)*32+(t&3)*2)*1024}")
        A(f"buffer_load_dwordx4 v1, {R(rA)}, s{sT1} offen{fl('wofl')} lds")


def z_prep():
    for kb in range(4):
        for nt in range(4):
            for hf in range(2):
                A(f"ds_read_b64_tr_b16 {V(ZB+(kb*4+nt)*4+2*hf,2)}, v3 offset:{kb*4096+hf*512+nt*32}")


def zs_poll():
    A(f"buffer_load_dwordx4 {V(ZST,4)}, v5, {R(rWS)}, 0 offen sc1")


def z_poll():
    for t in range(4):
        A(f"buffer_load_dwordx4 {V(ZO+4*t,4)}, v4, {R(rWS)}, 0 offen offset:{1024*t} sc1")


trigger(opt["trigz"], z_loads)
A("s_waitcnt vmcnt(0)")
z_prep()
st(5)
spin(C1, f"s{sNKV}", 10, f"ds_read_b32 v{vT}, v{vL} offset:{TAG-MX}")
poll(zs_poll, list(range(ZST, ZST + 4)), 10, sleep=opt["ssl"])
A(f"""v_max_f32_dpp v16, v{ZST}, v{ZST} quad_perm:[1,0,3,2] {DPP}
v_max_f32_dpp v16, v16, v16 quad_perm:[2,3,0,1] {DPP}
v_max_f32_dpp v16, v16, v16 row_half_mirror {DPP}
v_sub_f32 v16, v{ZST}, v16
v_exp_f32 v16, v16
v_mul_f32 v11, v16, v{ZST+1}
v_add_f32_dpp v11, v11, v11 quad_perm:[1,0,3,2] {DPP}
v_add_f32_dpp v11, v11, v11 quad_perm:[2,3,0,1] {DPP}
v_add_f32_dpp v11, v11, v11 row_half_mirror {DPP}
v_rcp_f32 v11, v11
v_mul_f32 v16, v16, v11
v_mov_b32_dpp v16, v16 row_ror:15 row_mask:0xc bank_mask:0xf""")
spin(C3, f"s{sNKV}", 10)
poll(z_poll, [ZO + 2 * k for k in range(8)], 10, sleep=opt["zsl"])
if STAMPS:
    A(f"s_sub_u32 s{sFAST}, {opt['spin']}, s{sCNT}")
if opt.get("diag"):
    A("s_memrealtime s[98:99]")
st(6)
for t in range(4):
    for i in range(4):
        op = "v_mul_f32_dpp" if t == 0 else "v_fmac_f32_dpp"
        A(f"{op} v{12+i}, v16, v{ZO+4*t+i} row_newbcast:{2*t} {DPP}")
A("v_permlane32_swap_b32 v12, v14\nv_permlane32_swap_b32 v13, v15")
A("v_add_f32 v12, v12, v14\nv_add_f32 v13, v13, v15")
A("v_cvt_pk_bf16_f32 v12, v12, v13\nds_write_b32 v9, v12")
for kb in range(4):
    A(f"ds_read_b128 {V(ZA+4*kb,4)}, v7 offset:{64*kb}")
for kb in range(4):
    A(f"s_waitcnt lgkmcnt({3-kb})")
    for nt in range(4):
        c = "0" if kb == 0 else V(ZD + 4 * nt, 4)
        A(f"v_mfma_f32_16x16x32_bf16 {V(ZD+4*nt,4)}, {V(ZA+4*kb,4)}, {V(ZB+(kb*4+nt)*4,4)}, {c}")
for nt in range(1, 4):
    A(f"v_mov_b32_dpp v{ZD}, v{ZD+4*nt} quad_perm:[0,1,2,3] row_mask:{hex(1<<nt)} bank_mask:0xf")
A(f"ds_write_b32 v6, v{ZD} offset:{ZP-SCR+65536-65536}" if ZP >= SCR else f"ds_write_b32 v25, v{ZD}")
A("s_mov_b64 exec, 1")
A(f"ds_add_rtn_u32 v10, v{vL}, v{vONE} offset:{C4-MX}")
A("s_mov_b64 exec, 0xffff")
for w in range(4):
    A(f"ds_read_b128 {V(12 if w == 0 else ZA+4*w,4)}, v8 offset:{ZP+256*w}")
A("s_waitcnt lgkmcnt(2)")
A(f"v_readfirstlane_b32 s{sT0}, v10")
A(f"v_pk_add_f32 v[12:13], v[12:13], {V(ZA+4,2)}\nv_pk_add_f32 v[14:15], v[14:15], {V(ZA+6,2)}\ns_waitcnt lgkmcnt(0)")
A(f"v_pk_add_f32 {V(ZA+8,2)}, {V(ZA+8,2)}, {V(ZA+12,2)}\nv_pk_add_f32 {V(ZA+10,2)}, {V(ZA+10,2)}, {V(ZA+14,2)}")
A(f"v_pk_add_f32 v[12:13], v[12:13], {V(ZA+8,2)}\nv_pk_add_f32 v[14:15], v[14:15], {V(ZA+10,2)}")
tag([12, 13, 14, 15])
A(f"s_cmp_lg_u32 s{sT0}, 3\ns_cbranch_scc1 L_z_notlast")
A(f"buffer_store_dwordx4 v[12:15], v24, {R(rWS)}, 0 offen sc1")
st(7)
A("L_z_notlast:")
A("s_mov_b64 exec, -1")
A(f"s_sub_u32 s{sT0}, s3, 1\ns_cmp_lt_u32 s{sT0}, 2\ns_cbranch_scc1 L_fin")
end_wave()
A("L_fin:")


def f_poll1():
    for x in range(8):
        A(f"buffer_load_dword v{104+x}, v20, {R(rWS)}, s{sOFF+x//2} offen offset:{2048*(x%2)} sc1")


poll(f_poll1, list(range(104, 112)), 10, sleep=opt["fsl"])
st(1)


def f_poll2():
    A(f"buffer_load_dwordx4 v[112:115], v22, {R(rC)}, 0 offen sc1")
    A(f"buffer_load_dwordx4 v[116:119], v23, {R(rC)}, 0 offen sc1")


def f_h():
    A("""v_add_f32 v104, v104, v106
v_add_f32 v105, v105, v107
v_add_f32 v104, v104, v108
v_add_f32 v105, v105, v109
v_add_f32 v104, v104, v110
v_add_f32 v105, v105, v111
v_add_f32 v104, v104, v105
v_lshlrev_b32 v26, 16, v26
v_add_f32 v104, v104, v26
v_cvt_pk_bf16_f32 v104, v104, v104
v_lshlrev_b32 v104, 16, v104""")


f_h()
if opt["fdelay"]:
    A(f"s_sleep {opt['fdelay']}")
poll(f_poll2, list(range(112, 116)), 10, None, masked=((1 << (NMLP - 64)) - 1, list(range(116, 120))))
st(2)
for i in range(4):
    A(f"v_add_f32 v{112+i}, v{112+i}, v{116+i}")
A("v_permlane32_swap_b32 v112, v114\nv_permlane32_swap_b32 v113, v115")
A("v_add_f32 v112, v112, v114\nv_add_f32 v113, v113, v115")
A("v_permlane16_swap_b32 v112, v113\nv_add_f32 v112, v112, v113")
row_allreduce("v_add_f32", 112)
if "eps" in opt:
    A(f"v_mul_f32 v112, {f32(1 + opt['eps'] / 1000)}, v112")
A("v_add_f32 v112, v112, v104\nv_cvt_pk_bf16_f32 v112, v112, v112")
A("s_mov_b32 exec_lo, 0x00010001\ns_mov_b32 exec_hi, 0x00010001")
A(f"buffer_store_short v112, v21, {R(rB)}, 0 offen sc1")
if opt.get("diag"):
    A(f"s_cmp_eq_u32 s{sI}, 0\ns_cbranch_scc0 L_exit\ns_cmp_eq_u32 s3, 1\ns_cbranch_scc0 L_exit")
    A("s_memrealtime s[96:97]\ns_waitcnt lgkmcnt(0)")
    if "amp" in opt:
        if opt["amp"] != 8:
            A(f"s_cmp_eq_u32 s{sXG}, {opt['amp']}\ns_cbranch_scc0 L_exit")
        if opt.get("ampsrc") == "o":
            A("s_sub_u32 s94, s98, s100")
        else:
            A("s_sub_u32 s94, s96, s100")
        A("s_lshl_b32 s94, s94, 2\nL_amp:\ns_memrealtime s[92:93]\ns_waitcnt lgkmcnt(0)\ns_sub_u32 s92, s92, s96\ns_cmp_lt_u32 s92, s94\ns_cbranch_scc1 L_amp")
    srd(rA, pDBG, 64)
    A(f"s_sub_u32 s96, s96, s100\ns_sub_u32 s98, s98, s100\ns_lshl_b32 s100, s100, 16\ns_or_b32 s96, s96, s100")
    A(f"s_lshl_b32 s{sT0}, s{sXG}, 2\nv_mov_b32 v1, s{sT0}\nv_mov_b32 v2, s96\nv_mov_b32 v3, s98\ns_mov_b64 exec, 1")
    A(f"buffer_store_dword v2, v1, {R(rA)}, 0 offen offset:4 sc1\nbuffer_store_dword v3, v1, {R(rA)}, 0 offen offset:36 sc1")
st(3)
end_wave()

A("L_mlp:")
srd(rA, pWG, 512 * 2752)
srd(rB, pWU, 512 * 2752)
srd(rC, pWD, 1376 * 1024)
A(f"s_lshl_b32 s{sT0}, s3, 7\nv_lshrrev_b32 v1, 1, v0\nv_add_u32 v1, s{sT0}, v1\nv_mul_u32_u24 v1, 2752, v1")
A(f"v_and_b32 v2, 1, v0\nv_lshl_add_u32 v1, v2, 4, v1\ns_lshl_b32 s{sT0}, s{sR}, 5\nv_add_u32 v1, s{sT0}, v1")
A(f"s_lshl_b32 s{sIMG}, s3, 13\ns_add_u32 s{sIMG}, s{sIMG}, {WIMG}")
A(f"v_lshrrev_b32 v3, 4, v0\nv_lshlrev_b32 v3, 3, v3\nv_bfe_u32 v4, v0, 2, 2\nv_add_u32 v3, v3, v4\nv_lshlrev_b32 v3, 5, v3\nv_and_b32 v2, 3, v0\nv_lshl_add_u32 v3, v2, 3, v3\nv_add_u32 v3, s{sIMG}, v3")
A(f"s_lshl_b32 s{sT0}, s3, 9\ns_add_u32 s{sT0}, s{sT0}, {ZS}\nv_lshrrev_b32 v2, 5, v0\nv_and_b32 v5, 31, v0\nv_lshlrev_b32 v4, 11, v2\nv_lshl_add_u32 v4, v5, 4, v4\nv_add_u32 v4, s{sT0}, v4")
A(f"v_lshlrev_b32 v5, 3, v5\nv_lshl_add_u32 v5, v2, 2, v5\ns_lshl_b32 s{sT0}, s3, 8\nv_add_u32 v5, s{sT0}, v5\nv_add_u32 v6, {SCR}, v5")
A(f"s_add_u32 s{sT0}, s{sT0}, {SCR}\nv_lshrrev_b32 v7, 4, v0\nv_lshl_add_u32 v7, v7, 4, s{sT0}")
A("v_lshlrev_b32 v9, 2, v0")
A(f"s_lshl_b32 s{sT0}, s{sR}, 14\ns_lshl_b32 s{sT1}, s3, 8\ns_add_u32 s{sT0}, s{sT0}, s{sT1}\nv_add_u32 v20, s{sT0}, v9")
A(f"s_lshl_b32 s{sT0}, s{sR}, 11\ns_lshl_b32 s{sT1}, s3, 9\ns_add_u32 s{sT0}, s{sT0}, s{sT1}\ns_add_u32 s{sT0}, s{sT0}, {PS}\nv_lshl_add_u32 v21, v0, 3, s{sT0}")
A(f"v_and_b32 v22, 15, v0\nv_lshlrev_b32 v22, 3, v22\ns_lshl_b32 s{sT0}, s3, 7\ns_add_u32 s{sT0}, s{sT0}, {ZP}\nv_add_u32 v25, s{sT0}, v22")
A(f"v_lshrrev_b32 v23, 5, v0\nv_lshlrev_b32 v23, 2, v23\nv_add_u32 v23, {SQ}, v23\nv_mov_b32 v24, {SQ}")
for i in range(4):
    A(f"v_mov_b32 v{116+i}, 0x3f803f80")
A(f"s_mov_b32 s{sM1}, 0x05040100\ns_mov_b32 s{sM1+1}, 0x07060302")


def m_loads():
    if opt["ptouch"]:
        A(f"buffer_load_dword v28, v21, {R(rWS)}, 0 offen")
    A(f"buffer_load_dword v26, v5, {R(rD)}, 0 offen")
    for t in range(4 if not opt.get("nogu") else 0):
        A(f"s_add_u32 m0, s{sIMG}, {t*1024}\ns_mov_b32 s{sT1}, {t*32*2752}")
        A(f"buffer_load_dwordx4 v1, {R(rA)}, s{sT1} offen{fl('gufl')} lds")
        A(f"s_add_u32 m0, s{sIMG}, {4096+t*1024}")
        A(f"buffer_load_dwordx4 v1, {R(rB)}, s{sT1} offen{fl('gufl')} lds")
    for r in range(16 if not opt.get("nowd") else 0):
        A(f"buffer_load_dword v{120+r}, v20, {R(rC)}, s{sOFF+r//4} offen offset:{1024*(r%4)}{fl('wdfl')}")
        A("s_nop 0")


trigger(opt["trigm"], m_loads)
st(5)
A("s_waitcnt vmcnt(0)")
for kb in range(4):
    for tl in range(2):
        for hf in range(2):
            A(f"ds_read_b64_tr_b16 {V(40+(kb*2+tl)*4+2*hf,2)}, v3 offset:{kb*1024+hf*128+tl*4096}")
for i in range(8):
    A(f"v_perm_b32 v{136+i}, v{121+2*i}, v{120+2*i}, s{sM1}\nv_perm_b32 v{144+i}, v{121+2*i}, v{120+2*i}, s{sM1+1}")
A(f"v_lshlrev_b32 v27, 16, v26\nv_and_b32 v26, s{sHI}, v26")
A("s_waitcnt lgkmcnt(0)")
for kb in range(4):
    for tl in range(2):
        c = "0" if kb == 0 else V(108 + 4 * tl, 4)
        A(f"v_mfma_f32_16x16x32_bf16 {V(108+4*tl,4)}, v[116:119], {V(40+(kb*2+tl)*4,4)}, {c}")
A("s_mov_b64 exec, 0xffff")
A(f"ds_add_f32 v22, v108 offset:{CS}\nds_add_f32 v22, v112 offset:{CS+4}")
A("s_mov_b64 exec, -1")
A(f"v_mov_b32 v30, 0\nv_mov_b32 v31, 0\nv_mov_b32 v29, {f32(1/512)}")
st(1)
spin(C3, f"s{sNKV}", 10, f"ds_read_b32 v{vT}, v{vL} offset:{TAG-MX}")


def m_poll():
    for t in range(4):
        A(f"buffer_load_dwordx4 {V(72+4*t,4)}, v4, {R(rWS)}, s{sOFF+t} offen sc1")


if opt["mdelay"]:
    A(f"s_sleep {opt['mdelay']}")
poll(m_poll, [72, 76, 80, 84], 10, sleep=opt["msl"])
if STAMPS:
    A(f"s_sub_u32 s{sFAST}, {opt['spin']}, s{sCNT}")
st(6)
for t in range(1, 4):
    for i in (0, 2):
        A(f"v_pk_add_f32 {V(72+i,2)}, {V(72+i,2)}, {V(72+4*t+i,2)}")
A("v_permlane32_swap_b32 v72, v74\nv_permlane32_swap_b32 v73, v75")
A("""v_add_f32 v72, v72, v74
v_add_f32 v73, v73, v75
v_add_f32 v72, v72, v27
v_add_f32 v73, v73, v26
v_cvt_pk_bf16_f32 v72, v72, v73
ds_write_b32 v6, v72""")
for kb in range(4):
    A(f"ds_read_b128 {V(92+4*kb,4)}, v7 offset:{64*kb}")
A(f"""v_lshlrev_b32 v73, 16, v72
v_and_b32 v72, s{sHI}, v72
v_add_f32 v74, v72, v73
v_mul_f32 v75, v72, v72
v_fmac_f32 v75, v73, v73""")
A("v_permlane32_swap_b32 v74, v75\nv_add_f32 v74, v74, v75")
rr = [8, 4, 2, 1]
for kb in range(4):
    A(f"s_waitcnt lgkmcnt({3-kb})")
    for tl in range(2):
        c = "0" if kb == 0 else V(108 + 4 * tl, 4)
        A(f"v_mfma_f32_16x16x32_bf16 {V(108+4*tl,4)}, {V(92+4*kb,4)}, {V(40+(kb*2+tl)*4,4)}, {c}")
    A(f"v_add_f32_dpp v74, v74, v74 row_ror:{rr[kb]} {DPP}")
A("s_mov_b32 exec_lo, 0x00010001\ns_mov_b32 exec_hi, 0x00010001")
A("ds_add_f32 v23, v74")
A("s_mov_b64 exec, 0xffff")
A("ds_write2_b32 v25, v108, v112 offset0:0 offset1:1")
A("s_mov_b64 exec, -1")
A("s_waitcnt lgkmcnt(0)\ns_barrier")
A(f"ds_read_b64 v[16:17], v24\nds_read_b64 v[14:15], v22 offset:{CS}")
for w in range(4):
    A(f"ds_read_b64 {V(12 if w == 0 else 92+2*w,2)}, v22 offset:{ZP+128*w}")
A(f"""s_waitcnt lgkmcnt(5)
v_mul_f32 v16, v16, v29
v_fmaak_f32 v17, v17, v29, {f32(1e-5)}
v_fma_f32 v17, -v16, v16, v17
v_max_f32 v17, {f32(1e-5)}, v17
v_rsq_f32 v17, v17
s_waitcnt lgkmcnt(0)
v_pk_add_f32 v[12:13], v[12:13], v[94:95]
v_pk_add_f32 v[96:97], v[96:97], v[98:99]
v_pk_add_f32 v[12:13], v[12:13], v[96:97]
v_mul_f32 v18, {f32(-1.4426950408889634)}, v17
v_fma_f32 v12, -v16, v14, v12
v_fma_f32 v13, -v16, v15, v13
v_mul_f32 v12, v12, v18
v_exp_f32 v12, v12
v_mul_f32 v13, v13, v17
v_add_f32 v12, 1.0, v12
v_rcp_f32 v12, v12
s_nop 0
v_mul_f32 v12, v12, v13
v_mov_b32_dpp v13, v12 quad_perm:[1,0,3,2] {DPP}
v_cvt_pk_bf16_f32 v12, v12, v13""")
for i in range(8):
    A(f"v_dot2c_f32_bf16_dpp v30, v12, v{136+i} row_newbcast:{2*i} {DPP}")
    A(f"v_dot2c_f32_bf16_dpp v31, v12, v{144+i} row_newbcast:{2*i} {DPP}")
tag([30, 31])
A(f"buffer_store_dwordx2 v[30:31], v21, {R(rWS)}, 0 offen sc1")
st(7)
end_wave()

if STAMPS:
    A("L_stamps:")
    A("s_mov_b64 exec, 1")
    A("s_waitcnt lgkmcnt(0)\ns_memrealtime s[4:5]\ns_waitcnt lgkmcnt(0)\ns_memtime s[6:7]")
    A(f"s_mul_i32 s{sT0}, s2, 12\ns_add_u32 s{sT0}, s{sT0}, s3\ns_lshl_b32 s{sT0}, s{sT0}, 6\ns_add_u32 s{sT0}, s{sT0}, {STAMP}")
    A(f"v_mov_b32 v1, s{sT0}\ns_waitcnt lgkmcnt(0)")
    for k in range(8):
        A(f"v_mov_b32 v{4+k}, s{sST+2*k}")
    A("v_mov_b32 v12, s100\nv_mov_b32 v13, s4\nv_mov_b32 v14, s6\nv_mov_b32 v15, s{0}".format(sFAST))
    A(f"buffer_store_dwordx4 v[4:7], v1, {R(rWS)}, 0 offen\nbuffer_store_dwordx4 v[8:11], v1, {R(rWS)}, 0 offen offset:16\nbuffer_store_dwordx4 v[12:15], v1, {R(rWS)}, 0 offen offset:32")
A("L_exit:")
A("s_endpgm")
A("L_last:")

body, problems = fix_hazards(L)
for p in problems:
    print("HAZARD:", p, file=sys.stderr)
for line in body:
    out.append(line if line.endswith(":") else "    " + line)
if lst:
    out.append(""".globl noop_kernel
.p2align 8
.type noop_kernel,@function
noop_kernel:
    s_endpgm
.section .rodata,"a"
.p2align 6
.amdhsa_kernel noop_kernel
  .amdhsa_next_free_vgpr 8
  .amdhsa_next_free_sgpr 16
  .amdhsa_accum_offset 8
  .amdhsa_group_segment_fixed_size 0
  .amdhsa_kernarg_size 96
  .amdhsa_user_sgpr_count 2
  .amdhsa_user_sgpr_kernarg_segment_ptr 1
  .amdhsa_system_sgpr_workgroup_id_x 1
.end_amdhsa_kernel""")
out.append(f""".section .rodata,"a"
.p2align 6
.amdhsa_kernel {NAME}_kernel
  .amdhsa_next_free_vgpr 168
  .amdhsa_next_free_sgpr 102
  .amdhsa_accum_offset 168
  .amdhsa_group_segment_fixed_size 0
  .amdhsa_kernarg_size 96
  .amdhsa_user_sgpr_count 2
  .amdhsa_user_sgpr_kernarg_segment_ptr 1
  .amdhsa_system_sgpr_workgroup_id_x 1
  .amdhsa_float_denorm_mode_32 3
.end_amdhsa_kernel""")
open(sys.argv[1], "w").write("\n".join(out) + "\n")
```

```python
import sys, struct
from asmlib import fix_hazards

NAME = "sequential_preLN__mha_block_cached__glu_gated_glu__decode"
opt = dict(stamps=0, nv1=8, trigz="c1", trigm="c1h", pat="A", kvfl="nt", wqfl="nt", wofl="nt", gufl="plain",
           wdfl="nt", fast=1, pf=2, gap=0, prio=0, bal="6", early=4, p2=0, dz=0, dm=0, df=0, otouch=1, npost=0, wdpost=0, qsl=0, qst="sc1", xst="sc1", ssl=0, zsl=0, msl=0, fsl=0, mdelay=0, bfirst=0, fdelay=28, ptouch=1, nsl=12, spin=20000)
for a in sys.argv[2:]:
    k, v = a.split("=")
    opt[k] = v if not v.lstrip("-").isdigit() else int(v)
STAMPS = opt["stamps"]
NV1 = opt["nv1"]


def fl(name):
    v = opt[name]
    return "" if v == "plain" else " " + v.replace("+", " ")


def f32(x):
    return "0x%08x" % struct.unpack("<I", struct.pack("<f", x))[0]


QS, OS, ST, ZS, XC, EPOCH, PS, STAMP = 0x0, 0x20000, 0x40000, 0x41000, 0x45000, 0x46000, 0x48000, 0x80000
NMLP = 86
TAGMASK = 0x3ff
QL, MX, LACC, SQ, CS, ZP, SCR, OSL, WIMG = 0, 256, 260, 272, 1024, 1536, 3072, 4096, 10240
CQ, C1, C5, C3, C4, FAST, TAG, ML = 280, 284, 288, 292, 296, 304, 308, 384
LDS_BYTES = WIMG + 4 * 16384
pX, pK, pV, pWQ, pWO, pWG, pWU, pWD, pOUT, pDBG, pWS = 4, 6, 8, 10, 12, 16, 18, 20, 22, 24, 26
rA, rB, rWS, rC, rD = 28, 32, 36, 44, 48
sNKV, sROLE, sMASK, sN = 40, 41, 42, 43
sXG, sI, sSLOT, sR, sT0, sT1, sCNT, sFAST = 52, 53, 54, 55, 56, 57, 58, 59
sM1, sM0, sU, sIMG, sC2, sHI = 60, 62, 64, 65, 66, 67
sOFF = 68
sST = 84
vT = 38
vONE = 39
vL = 33

L = []


def A(s):
    for line in s.split("\n"):
        line = line.strip()
        if line:
            L.append(line)


def srd(r, p, size, add=None):
    if add is None:
        A(f"s_mov_b32 s{r}, s{p}\ns_mov_b32 s{r+1}, s{p+1}")
    else:
        A(f"s_add_u32 s{r}, s{p}, {add}\ns_addc_u32 s{r+1}, s{p+1}, 0")
    A(f"s_mov_b32 s{r+2}, {hex(size)}\ns_mov_b32 s{r+3}, 0x20000")


def R(r):
    return f"s[{r}:{r+3}]"


def V(a, n):
    return f"v[{a}:{a+n-1}]"


def st(k):
    if STAMPS and str(k) not in str(opt.get("nost", "")):
        A(f"s_memtime s[{sST+2*k}:{sST+2*k+1}]")


def end_wave():
    A("s_branch L_stamps" if STAMPS else "s_endpgm")


DPP = "row_mask:0xf bank_mask:0xf"


def row_allreduce(op, a):
    for n in (8, 4, 2, 1):
        A(f"{op}_dpp v{a}, v{a}, v{a} row_ror:{n} {DPP}")


def wave_allreduce_add(a, t):
    row_allreduce("v_add_f32", a)
    for sw in ("v_permlane16_swap_b32", "v_permlane32_swap_b32"):
        A(f"v_mov_b32 v{t}, v{a}\n{sw} v{a}, v{t}\nv_add_f32 v{a}, v{a}, v{t}")


def tag(regs):
    for r in regs:
        A(f"v_bfi_b32 v{r}, s{sMASK}, v{vT}, v{r}")


uid = [0]


def poll(loads, regs, tmp, between=None, masked=None, sleep=0):
    uid[0] += 1
    u = uid[0]
    loads()
    if between:
        between()
    A(f"s_mov_b32 s{sCNT}, {opt['spin']}")
    A(f"L_poll{u}:")
    A("s_waitcnt vmcnt(0)")
    rs = list(regs)
    A(f"v_xor_b32 v{tmp}, v{rs[0]}, v{vT}\nv_xor_b32 v{tmp+1}, v{rs[1]}, v{vT}")
    for n, r in enumerate(rs[2:]):
        A(f"v_bitop3_b32 v{tmp+n%2}, v{tmp+n%2}, v{r}, v{vT} bitop3:0xf6")
    if masked:
        A(f"s_mov_b64 exec, {hex(masked[0])}")
        for n, r in enumerate(masked[1]):
            A(f"v_bitop3_b32 v{tmp+n%2}, v{tmp+n%2}, v{r}, v{vT} bitop3:0xf6")
        A("s_mov_b64 exec, -1")
    A(f"v_bitop3_b32 v{tmp}, v{tmp}, v{tmp+1}, s{sMASK} bitop3:0xa8")
    A(f"v_cmp_ne_u32 vcc, 0, v{tmp}")
    A(f"s_cbranch_vccz L_ok{u}")
    A(f"s_sub_u32 s{sCNT}, s{sCNT}, 1\ns_cbranch_scc1 L_ok{u}")
    if sleep:
        A(f"s_sleep {sleep}")
    loads()
    A(f"s_branch L_poll{u}")
    A(f"L_ok{u}:")


def poll2(items, tmp, between=None, m0=72, depth=0):
    uid[0] += 1
    u = uid[0]
    if depth:
        for _, regs, _ in items:
            A(f"v_not_b32 v{regs[0]}, v{vT}")
    for ld, _, _ in items:
        A(ld)
    if between:
        between()
    A(f"s_mov_b32 s{sCNT}, {opt['spin'] * (4 if depth else 1)}")
    A(f"L_poll{u}:")
    A(f"s_waitcnt vmcnt({depth})")
    for k, (_, regs, _) in enumerate(items):
        t = tmp + k
        if len(regs) == 1:
            A(f"v_bitop3_b32 v{t}, v{regs[0]}, v{vT}, s{sMASK} bitop3:0x28")
        else:
            A(f"v_xor_b32 v{t}, v{regs[0]}, v{vT}")
            for r in regs[1:]:
                A(f"v_bitop3_b32 v{t}, v{t}, v{r}, v{vT} bitop3:0xf6")
            A(f"v_and_b32 v{t}, s{sMASK}, v{t}")
    for k in range(len(items)):
        A(f"v_cmp_ne_u32 s[{m0+2*k}:{m0+2*k+1}], 0, v{tmp+k}")
    for k, (_, _, lanes) in enumerate(items):
        if lanes:
            A(f"s_and_b64 s[{m0+2*k}:{m0+2*k+1}], s[{m0+2*k}:{m0+2*k+1}], {hex(lanes)}")
    acc = f"s[{m0}:{m0+1}]"
    for k in range(1, len(items)):
        A(f"s_or_b64 vcc, {acc}, s[{m0+2*k}:{m0+2*k+1}]")
        acc = "vcc"
    A(f"s_cbranch_scc0 L_ok{u}")
    A(f"s_sub_u32 s{sCNT}, s{sCNT}, 1\ns_cbranch_scc1 L_ok{u}")
    for k, (ld, _, _) in enumerate(items):
        A(f"s_mov_b64 exec, s[{m0+2*k}:{m0+2*k+1}]\ns_cbranch_execz L_skip{u}_{k}")
        A(ld)
        A(f"L_skip{u}_{k}:")
    A("s_mov_b64 exec, -1")
    A(f"s_branch L_poll{u}")
    A(f"L_ok{u}:")
    if depth:
        A("s_waitcnt vmcnt(0)")


def spin(off, n, tmp, extra=None, sleep=1):
    uid[0] += 1
    u = uid[0]
    A(f"L_spin{u}:")
    A(f"ds_read_b32 v{tmp}, v{vL} offset:{off-MX}")
    if extra:
        A(extra)
    A("s_waitcnt lgkmcnt(0)")
    A(f"v_readfirstlane_b32 s{sT0}, v{tmp}")
    A(f"s_cmp_ge_u32 s{sT0}, {n}\ns_cbranch_scc1 L_spun{u}")
    if sleep:
        A(f"s_sleep {sleep}")
    A(f"s_branch L_spin{u}")
    A(f"L_spun{u}:")


def store_fs(instr):
    uid[0] += 1
    u = uid[0]
    if not opt["fast"]:
        A(instr + " sc1")
        return
    A(f"s_cmp_eq_u32 s{sFAST}, 0\ns_cbranch_scc1 L_slow{u}")
    A(instr)
    A(f"s_branch L_sdone{u}")
    A(f"L_slow{u}:")
    A(instr + " sc1")
    A(f"L_sdone{u}:")


import os
hdr = open(os.path.join(os.path.dirname(os.path.abspath(__file__)), "hdr.txt")).read().split("\n")
out = [l for l in hdr if l.startswith(";") and "@launch" not in l and "Override" not in l and "grid=ceil" not in l]
lst = opt.get("list", "")
if lst:
    for ch in lst:
        if ch == "m":
            out.append(f"; @launch kernel={NAME}_kernel grid=(256,1,1) block=(768,1,1) lds={LDS_BYTES}")
        elif ch == "n":
            out.append("; @launch kernel=noop_kernel grid=(1,1,1) block=(64,1,1) lds=0")
        else:
            out.append("; @launch kernel=noop_kernel grid=(256,1,1) block=(64,1,1) lds=0")
else:
    out.append(f"; @launch grid=(256,1,1) block=(768,1,1) lds={LDS_BYTES}")
out.append('.amdgcn_target "amdgcn-amd-amdhsa--gfx950"')
out.append(".text")
out.append(f".globl {NAME}_kernel")
out.append(".p2align 8")
out.append(f".type {NAME}_kernel,@function")
out.append(f"{NAME}_kernel:")

KR, VR = 40, 104
NE = opt["early"]
A("L_start:")
A("s_load_dwordx16 s[4:19], s[0:1], 0\ns_load_dwordx8 s[20:27], s[0:1], 64")
A(f"s_lshr_b32 s{sT0}, s2, 8\ns_cbranch_scc1 L_exit")
if opt["pf"] == 2:
    A(f"s_getpc_b64 s[{rA}:{rA+1}]")
    A("L_pc:")
    A("v_lshlrev_b32 v2, 4, v0\nv_min_u32 v2, (L_last-L_pc-16)&0xfffffff0, v2")
    A(f"global_load_dwordx4 v[164:167], v2, s[{rA}:{rA+1}]")
if opt.get("hx"):
    A(f"s_xor_b32 s2, s2, {opt['hx']}")
A(f"s_and_b32 s{sXG}, s2, 7\ns_lshl_b32 s{sT0}, s{sXG}, 8\ns_andn2_b32 s{sT1}, s2, 7\ns_add_u32 s{sSLOT}, s{sT0}, s{sT1}")
if NE <= 4:
    A(f"s_sub_u32 s{sT0}, s{sSLOT}, 6\ns_lshl_b32 s{sT0}, s{sT0}, 14")
else:
    A(f"s_lshl_b32 s{sT0}, s{sSLOT}, 14\ns_sub_u32 s{sT0}, s{sT0}, {6*16384-4096}")
A(f"v_lshrrev_b32 v1, 6, v0\nv_and_b32 v0, 63, v0\nv_readfirstlane_b32 s3, v1\nv_lshl_add_u32 v1, v1, 14, s{sT0}\nv_lshl_add_u32 v1, v0, 4, v1")
if NE:
    A("s_cmp_lt_u32 s3, 6\ns_cbranch_scc1 L_late\ns_waitcnt lgkmcnt(0)")
    for i in range(NE):
        A(f"global_load_dwordx4 {V(KR+4*i,4)}, v1, s[{pK}:{pK+1}] offset:{1024*i-(4096 if NE > 4 else 0)}{fl('kvfl')}")
    A("L_late:")
if STAMPS:
    for k in range(8):
        A(f"s_mov_b32 s{sST+2*k}, 0")
st(0)
if STAMPS or opt.get("diag"):
    A("s_memrealtime s[100:101]")
A(f"s_lshr_b32 s{sI}, s2, 3\ns_lshr_b32 s{sSLOT}, s{sSLOT}, 3")
A("v_lshlrev_b32 v8, 4, v0")
A("s_cmp_lg_u32 s3, 0\ns_cbranch_scc1 L_not0")
A(f"s_and_b32 s{sT0}, s{sSLOT}, 7\ns_lshl_b32 s{sT0}, s{sT0}, 6")
A(f"v_lshrrev_b32 v2, 4, v0\nv_lshl_add_u32 v2, v2, 4, s{sT0}\nv_lshlrev_b32 v3, 1, v2")
A(f"s_lshr_b32 s{sT0}, s{sSLOT}, 3\ns_lshl_b32 s{sT0}, s{sT0}, 8")
A(f"v_lshlrev_b32 v2, 13, v2\nv_and_b32 v9, 15, v0\nv_lshl_add_u32 v2, v9, 4, v2\nv_add_u32 v2, s{sT0}, v2")
A(f"s_movk_i32 s{sT0}, 0x2000\ns_waitcnt lgkmcnt(0)")
A(f"global_load_dwordx4 v[104:107], v8, s[{pX}:{pX+1}]")
A(f"global_load_dwordx4 v[12:15], v3, s[{pX}:{pX+1}]")
A(f"global_load_dwordx4 v[16:19], v3, s[{pX}:{pX+1}] offset:16")
for t in range(16):
    A(f"global_load_dwordx4 {V(40+4*t,4)}, v2, s[{pWQ}:{pWQ+1}]{fl('wqfl')}")
    if t < 15:
        A(f"v_add_u32 v2, s{sT0}, v2")
A("L_not0:")
A(f"s_lshl_b32 s{sT0}, s2, 4\ns_add_u32 s{sT0}, s{sT0}, s3\ns_cmp_eq_u32 s{sT0}, 2\ns_cbranch_scc0 L_notlead")
A(f"s_waitcnt lgkmcnt(0)\ns_load_dword s{sT0}, s[{pWS}:{pWS+1}], {hex(EPOCH)}")
A(f"v_mov_b32 v3, {EPOCH}\nv_lshlrev_b32 v4, 6, v0\ns_waitcnt lgkmcnt(0)")
A(f"s_add_u32 s{sT0}, s{sT0}, 0x0e3779b1\ns_and_b32 s{sT0}, s{sT0}, 0x0fffffff\ns_or_b32 s{sT1}, s{sT0}, 0x80000000")
A(f"v_mov_b32 v5, s{sT1}\nv_mov_b32 v6, s{sT0}\ns_mov_b64 exec, 15")
A(f"global_store_dword v4, v5, s[{pDBG}:{pDBG+1}] sc1")
A("s_mov_b64 exec, 1")
A(f"global_store_dword v3, v6, s[{pWS}:{pWS+1}] sc1")
A("s_mov_b64 exec, -1")
A("L_notlead:")
if NE > 4:
    A("v_subrev_u32 v1, 0x1000, v1")
if opt["pf"] == 1:
    A("s_cmp_eq_u32 s3, 1\ns_cbranch_scc0 L_pf_done")
    A(f"s_getpc_b64 s[{rA}:{rA+1}]")
    A("L_pc:")
    A(f"s_sub_u32 s{rA}, s{rA}, L_pc-L_start\ns_subb_u32 s{rA+1}, s{rA+1}, 0")
    A(f"s_and_b32 s{sT0}, s{sI}, 15\ns_lshl_b32 s{sT0}, s{sT0}, 10\nv_add_u32 v2, s{sT0}, v8")
    A("v_min_u32 v2, (L_last-L_start-16)&0xfffffff0, v2")
    A(f"global_load_dwordx4 v[160:163], v2, s[{rA}:{rA+1}]")
    A("L_pf_done:")
A("v_mov_b32 v4, 0\nv_mov_b32 v5, 0\nv_mov_b32 v6, 0\nv_mov_b32 v7, 0")
A(f"s_mov_b32 s{sT0}, 0xff800000\nv_writelane_b32 v4, s{sT0}, 0")
A(f"ds_write_b128 v8, v[4:7] offset:{MX}")
A(f"s_lshl_b32 s{sT0}, s3, 9\nv_lshl_add_u32 v9, v0, 3, s{sT0}\nds_write_b64 v9, v[6:7] offset:{OSL}")
TAB = {"7": ([2, 2, 1, 1, 1, 3, 3, 3], [2, 2, 1, 1, 3, 3, 2, 2], [2, 1, 1, 1, 3, 3, 3, 2]),
       "7n": ([2, 2, 1, 1, 1, 3, 3, 3], [2, 2, 1, 1, 3, 3, 2, 2], [2, 2, 1, 1, 3, 3, 2, 2]),
       "6": ([2, 2, 0, 0, 0, 4, 4, 4], [2, 2, 0, 0, 3, 3, 3, 3], [2, 1, 0, 0, 4, 3, 3, 3]),
       "0": ([2] * 8, [2] * 8, [2] * 8)}[str(opt["bal"])]


def pack(ne):
    assert sum(ne) == 16
    e = [sum(ne[:k]) for k in range(8)]
    return hex(sum(v << (4 * k) for k, v in enumerate(e))), hex(sum(v << (4 * k) for k, v in enumerate(ne)))


(E3, N3), (E2, N2), (EL, NL) = map(pack, TAB)
A(f"""s_and_b32 s80, s{sI}, 7
s_lshr_b32 s81, s{sI}, 3
s_cmp_lt_u32 s{sXG}, 6
s_cselect_b32 s82, 3, 2
s_mov_b32 s78, {E2}
s_mov_b32 s79, {N2}
s_cmp_lt_u32 s81, s82
s_cselect_b32 s83, 3, 2
s_cselect_b32 s78, {E3}, s78
s_cselect_b32 s79, {N3}, s79
s_cmp_eq_u32 s81, 3
s_cselect_b32 s78, {EL}, s78
s_cselect_b32 s79, {NL}, s79
s_lshl_b32 s77, s80, 2
s_lshr_b32 s78, s78, s77
s_lshr_b32 s79, s79, s77
s_and_b32 s78, s78, 15
s_and_b32 s79, s79, 15
s_add_u32 s{sNKV}, s79, 6
s_add_u32 s{sU}, s3, s79
s_sub_u32 s{sU}, s{sU}, 6""")
A(f"""s_cmp_ge_u32 s3, 6
s_cbranch_scc1 L_own_unit
s_add_u32 s78, s78, 5
s_sub_u32 s78, s78, s3
s_lshr_b32 s77, s78, 1
s_lshl_b32 s77, s77, 3
s_and_b32 s78, s78, 1
s_add_u32 s77, s77, s78
s_and_b32 s78, s{sSLOT}, 0xf8
s_lshl_b32 s78, s78, 3
s_add_u32 s77, s77, s78
s_add_u32 s77, s77, 6
s_lshl_b32 s77, s77, 14
v_add_u32 v1, s77, v8
L_own_unit:""")
for i in range(4):
    A(f"s_mov_b32 s{sOFF+i}, {i*4096}")
koff = lambda i: (f"s{sOFF+i//4}", (i % 4) * 1024)
A(f"s_mov_b32 s{sHI}, 0xffff0000\ns_mov_b32 s{sMASK}, {TAGMASK}")
A(f"v_mov_b32 v{vL}, {MX}\nv_mov_b32 v{vONE}, 1")
A("s_waitcnt lgkmcnt(0)")
srd(rD, pX, 1024)
srd(rA, pK, 0x2000000)
srd(rB, pV, 0x2000000)
srd(rWS, pWS, 0x10000000)
st(6)
A("s_barrier")
A(f"s_cmp_lt_i32 s{sU}, 0\ns_cbranch_scc1 L_helper")


def kvload(base, i, r):
    so, io = koff(i)
    o = f" offset:{io}" if io else ""
    A(f"buffer_load_dwordx4 {V(base+4*i,4)}, v1, {R(r)}, {so} offen{o}{fl('kvfl')}")
    if opt["gap"] >= 0:
        A(f"s_nop {opt['gap']}")


if NE:
    A("s_cmp_ge_u32 s3, 6\ns_cbranch_scc1 L_k_rest")
    for i in range(NE):
        kvload(KR, i, rA)
    A("L_k_rest:")
for i in range(NE, 16):
    kvload(KR, i, rA)
for i in range(NV1):
    kvload(VR, i, rB)
st(1)
A("""v_bfe_u32 v10, v0, 3, 1
v_mul_u32_u24 v10, 0x202, v10
v_add_u32 v10, 0x100, v10
v_and_b32 v11, 1, v0
v_lshlrev_b32 v11, 4, v11
v_lshlrev_b32 v10, v11, v10
v_mov_b32 v12, 0x0c0c0000
v_lshrrev_b32 v12, v11, v12
v_or_b32 v10, v10, v12
v_bfe_u32 v11, v0, 1, 2
v_mov_b32 v12, 0x0c0c0c0c""")
for i in range(4):
    A(f"v_cmp_eq_u32 vcc, {i}, v11\nv_cndmask_b32 v{6+i}, v12, v10, vcc")
A(f"s_mov_b32 s{sM1}, 0xcccccccc\ns_mov_b32 s{sM1+1}, 0xcccccccc\ns_mov_b32 s{sM0}, 0xaaaaaaaa\ns_mov_b32 s{sM0+1}, 0xaaaaaaaa")
A(f"s_mov_b32 s{sC2}, {f32(128 ** -0.5 * 1.4426950408889634)}")
A("v_and_b32 v32, 15, v0\nv_lshlrev_b32 v32, 4, v32")
A(f"v_lshrrev_b32 v34, 4, v0\nv_and_b32 v35, 7, v0\nv_lshl_add_u32 v34, v34, 3, v35\ns_lshl_b32 s{sT0}, s3, 9\nv_lshl_add_u32 v34, v34, 4, s{sT0}")
A("v_lshlrev_b32 v35, 3, v0")
A(f"s_lshl_b32 s{sT0}, s{sSLOT}, 9\ns_add_u32 s{sT0}, s{sT0}, {OS}\nv_lshl_add_u32 v36, v0, 3, s{sT0}")
A(f"s_lshl_b32 s{sT0}, s{sSLOT}, 4\ns_add_u32 s{sT0}, s{sT0}, {ST}\nv_mov_b32 v37, s{sT0}")
A(f"s_sub_u32 s{sN}, s{sNKV}, 1")
A(f"v_lshrrev_b32 v26, 1, v32\nv_add_u32 v26, {ML}, v26\ns_lshl_b32 s{sT0}, s3, 3\ns_add_u32 s{sT0}, s{sT0}, {ML}\nv_mov_b32 v27, s{sT0}")
spin(CQ, 1, 10, f"ds_read_b128 v[2:5], v32 offset:{QL}\nds_read_b64 v[28:29], v{vL} offset:{FAST-MX}", sleep=2)
st(2)
A(f"v_readfirstlane_b32 s{sFAST}, v28\nv_mov_b32 v{vT}, v29")
A(f"s_waitcnt vmcnt({NV1})")
for j in range(4):
    for i in range(16):
        c = "0" if j == 0 else f"v{10+i}"
        A(f"v_dot2_f32_bf16 v{10+i}, v{KR+4*i+j}, v{2+j}, {c}")
for i in range(8):
    A(f"v_add_f32_dpp v{10+i}, v{10+i}, v{10+i} row_ror:8 row_mask:0xf bank_mask:0x3")
    A(f"v_add_f32_dpp v{10+i}, v{18+i}, v{18+i} row_ror:8 row_mask:0xf bank_mask:0xc")
for i in range(4):
    A(f"v_add_f32_dpp v{10+i}, v{10+i}, v{10+i} row_ror:12 row_mask:0xf bank_mask:0x5")
    A(f"v_add_f32_dpp v{10+i}, v{14+i}, v{14+i} row_ror:4 row_mask:0xf bank_mask:0xa")
for i in range(4):
    A(f"v_add_f32_dpp v{10+i}, v{10+i}, v{10+i} quad_perm:[2,3,0,1] {DPP}")
for i in range(2):
    A(f"v_cndmask_b32 v{10+i}, v{10+i}, v{12+i}, s[{sM1}:{sM1+1}]")
for i in range(2):
    A(f"v_add_f32_dpp v{10+i}, v{10+i}, v{10+i} quad_perm:[1,0,3,2] {DPP}")
A(f"v_cndmask_b32 v10, v10, v11, s[{sM0}:{sM0+1}]")
A(f"v_mul_f32 v10, s{sC2}, v10")
A(f"v_max_f32_dpp v11, v10, v10 row_ror:8 {DPP}")
for n in (4, 2, 1):
    A(f"v_max_f32_dpp v11, v11, v11 row_ror:{n} {DPP}")
for sw in ("v_permlane16_swap_b32", "v_permlane32_swap_b32"):
    A(f"v_mov_b32 v12, v11\n{sw} v11, v12\nv_max_f32 v11, v11, v12")
A("v_sub_f32 v10, v10, v11\nv_exp_f32 v10, v10")
A("v_cvt_pk_bf16_f32 v13, v10, v10\nv_lshlrev_b32 v13, 16, v13\nv_sub_f32 v13, v10, v13\nv_cvt_pk_bf16_f32 v13, v10, v13")
wave_allreduce_add(10, 12)
A("v_mov_b32 v20, v11\nv_mov_b32 v21, v10\ns_mov_b64 exec, 1")
A(f"ds_write_b64 v27, v[20:21]\nds_max_f32 v{vL}, v11\nds_add_rtn_u32 v12, v{vL}, v{vONE} offset:{C1-MX}")
A("s_mov_b64 exec, -1")
A(f"ds_read_b64 v[22:23], v26\nds_read_b32 v20, v{vL}\ns_waitcnt lgkmcnt(0)")
A(f"v_readfirstlane_b32 s{sT0}, v12")
A(f"s_cmp_lg_u32 s{sT0}, s{sN}\ns_cbranch_scc1 L_kv_nost")
A("v_sub_f32 v22, v22, v20\nv_min_f32 v22, 0, v22\nv_exp_f32 v22, v22\nv_mul_f32 v21, v22, v23")
row_allreduce("v_add_f32", 21)
tag([20, 21])
A(f"v_mov_b32 v22, v{vT}\nv_mov_b32 v23, v{vT}\ns_mov_b64 exec, 1\ns_setprio 3")
store_fs(f"buffer_store_dwordx4 v[20:23], v37, {R(rWS)}, 0 offen")
A("s_setprio 0\ns_mov_b64 exec, -1")
st(7)
A("L_kv_nost:")
st(3)
for i in range(NV1, 16):
    kvload(VR, i, rB)
for t in range(16):
    A(f"v_mov_b32_dpp v{14+t%4}, v13 row_newbcast:{t} {DPP}")
    if t >= 1:
        for i in range(4):
            A(f"v_perm_b32 v{KR+4*(t-1)+i}, v{14+(t-1)%4}, v{14+(t-1)%4}, v{6+i}")
for i in range(4):
    A(f"v_perm_b32 v{KR+60+i}, v{14+15%4}, v{14+15%4}, v{6+i}")
spin(C1, f"s{sNKV}", 12, f"ds_read_b32 v19, v{vL}", sleep=2)
A("v_sub_f32 v11, v11, v19\nv_exp_f32 v11, v11")
st(4)
for t in range(16):
    A(f"s_waitcnt vmcnt({15-t})")
    c = "0" if t == 0 else "v[28:31]"
    A(f"v_mfma_f32_16x16x32_bf16 v[28:31], {V(VR+4*t,4)}, {V(KR+4*t,4)}, {c}")
st(5)
for i in range(4):
    A(f"v_add_f32_dpp v{28+i}, v{28+i}, v{28+i} row_ror:8 {DPP}")
for i in range(4):
    A(f"v_mul_f32 v{28+i}, v{28+i}, v11")
A("s_mov_b32 exec_lo, 0x00ff00ff\ns_mov_b32 exec_hi, 0x00ff00ff")
A(f"ds_write_b128 v34, v[28:31] offset:{OSL}")
A("s_mov_b64 exec, 1")
A(f"ds_add_rtn_u32 v12, v{vL}, v{vONE} offset:{C3-MX}")
A("s_mov_b64 exec, -1")
for w in range(2, 12):
    A(f"ds_read_b64 {V(KR+2*(w-2),2)}, v35 offset:{OSL+512*w}")
A("s_waitcnt lgkmcnt(6)")
A(f"v_readfirstlane_b32 s{sT0}, v12")
P = lambda k: V(KR + 2 * k, 2)
A(f"v_pk_add_f32 {P(0)}, {P(0)}, {P(1)}\nv_pk_add_f32 {P(2)}, {P(2)}, {P(3)}\ns_waitcnt lgkmcnt(2)")
A(f"v_pk_add_f32 {P(4)}, {P(4)}, {P(5)}\nv_pk_add_f32 {P(6)}, {P(6)}, {P(7)}\nv_pk_add_f32 {P(0)}, {P(0)}, {P(2)}\ns_waitcnt lgkmcnt(0)")
A(f"v_pk_add_f32 {P(8)}, {P(8)}, {P(9)}\nv_pk_add_f32 {P(4)}, {P(4)}, {P(6)}\nv_pk_add_f32 {P(0)}, {P(0)}, {P(8)}\nv_pk_add_f32 v[18:19], {P(0)}, {P(4)}")
tag([18, 19])
A(f"s_cmp_lg_u32 s{sT0}, s{sN}\ns_cbranch_scc1 L_kv_notlast")
store_fs(f"buffer_store_dwordx2 v[18:19], v36, {R(rWS)}, 0 offen")
A(f"ds_write_b32 v{vL}, v{vONE} offset:{C5-MX}")
st(6)
A("L_kv_notlast:")
A("L_kv_end:")
end_wave()

A("L_helper:")
A(f"""s_mov_b32 s{sROLE}, 0
s_lshl_b32 s{sR}, s81, 1
s_add_u32 s{sR}, s{sR}, s80
s_and_b32 s77, s{sR}, 3
s_cmp_eq_u32 s77, 3
s_cselect_b32 s77, 4, 0
s_xor_b32 s{sR}, s{sR}, s77
s_cmp_lt_u32 s80, 2
s_cbranch_scc1 L_role_done
s_mov_b32 s{sROLE}, 2
s_sub_u32 s80, s80, 2
s_cmp_lt_u32 s80, s83
s_cbranch_scc0 L_role_done
s_mov_b32 s{sROLE}, 1
s_min_u32 s82, s82, s81
s_lshl_b32 s{sR}, s81, 1
s_add_u32 s{sR}, s{sR}, s82
s_add_u32 s{sR}, s{sR}, s80
s_mul_i32 s82, s{sXG}, 11
s_add_u32 s{sR}, s{sR}, s82
s_cmp_eq_u32 s{sXG}, 7
s_subb_u32 s{sR}, s{sR}, 0
L_role_done:""")
A("s_cmp_eq_u32 s3, 0\ns_cbranch_scc1 L_q")
A("s_cmp_ge_u32 s3, 4\ns_cbranch_scc1 L_idle")
A("s_branch L_roles")
A("L_idle:")
end_wave()

A("L_q:")
A("""v_and_b32 v28, 1, v0
v_lshlrev_b32 v28, 4, v28
v_mov_b32 v29, 0x100
v_lshlrev_b32 v29, v28, v29
v_mov_b32 v30, 0x0c0c0000
v_lshrrev_b32 v30, v28, v30
v_or_b32 v29, v29, v30
v_bfe_u32 v28, v0, 1, 3
v_mov_b32 v30, 0x0c0c0c0c""")
for i in range(4):
    A(f"v_cmp_eq_u32 vcc, {i}, v28\nv_cndmask_b32 v{20+i}, v30, v29, vcc")
A("s_waitcnt vmcnt(16)")
for j in range(4):
    A(f"v_lshlrev_b32 v{112+2*j}, 16, v{104+j}\nv_and_b32 v{113+2*j}, s{sHI}, v{104+j}")
A("v_add_f32 v36, v112, v113\nv_add_f32 v37, v114, v115\nv_add_f32 v34, v116, v117\nv_add_f32 v35, v118, v119")
A("v_add_f32 v36, v36, v37\nv_add_f32 v34, v34, v35\nv_add_f32 v36, v36, v34")
wave_allreduce_add(36, 37)
A(f"v_mul_f32 v36, {f32(1/512)}, v36")
for j in range(8):
    A(f"v_sub_f32 v{112+j}, v{112+j}, v36")
A("v_mul_f32 v37, v112, v112")
for j in range(1, 8):
    A(f"v_fmac_f32 v37, v{112+j}, v{112+j}")
wave_allreduce_add(37, 34)
A(f"v_mul_f32 v37, {f32(1/512)}, v37")
A(f"""v_cvt_pk_bf16_f32 v34, v36, v37
v_lshlrev_b32 v36, 16, v34
v_and_b32 v37, s{sHI}, v34
v_add_f32 v37, {f32(1e-5)}, v37
v_cvt_pk_bf16_f32 v37, v37, v37
v_and_b32 v37, s{sHI}, v37
v_sqrt_f32 v37, v37
v_cvt_pk_bf16_f32 v37, v37, v37
v_and_b32 v37, s{sHI}, v37
v_rcp_f32 v37, v37""")
for j in range(8):
    r = 12 + j
    A(f"""v_lshlrev_b32 v28, 16, v{r}
v_and_b32 v29, s{sHI}, v{r}
v_sub_f32 v28, v28, v36
v_sub_f32 v29, v29, v36
v_cvt_pk_bf16_f32 v30, v28, v29
v_lshlrev_b32 v28, 16, v30
v_and_b32 v29, s{sHI}, v30
v_mul_f32 v28, v28, v37
v_mul_f32 v29, v29, v37
v_cvt_pk_bf16_f32 v{r}, v28, v29""")
A(f"s_load_dword s{sN}, s[{pDBG}:{pDBG+1}], 0")
A("s_waitcnt vmcnt(0)")
st(1)
for t in range(16):
    src = 12 + t // 2
    if t % 2:
        A(f"v_lshrrev_b32 v{src}, 16, v{src}")
    b = 104 + 4 * (t % 2)
    for i in range(4):
        A(f"v_perm_b32 v{b+i}, v{src}, v{src}, v{20+i}")
    c = "0" if t == 0 else "v[24:27]"
    A(f"v_mfma_f32_16x16x32_bf16 v[24:27], {V(40+4*t,4)}, {V(b,4)}, {c}")
for k in range(1, 4):
    A(f"s_waitcnt lgkmcnt(0)\ns_cmp_lg_u32 s{sN}, 0\ns_cbranch_scc1 L_num_ok")
    if k > 1:
        A(f"s_sleep {opt['nsl']}")
    A(f"s_load_dword s{sN}, s[{pDBG}:{pDBG+1}], {64*k}")
srd(rA, pDBG, 256)
A(f"s_mov_b32 s{sCNT}, {opt['spin']}\nv_mov_b32 v3, 0\ns_waitcnt lgkmcnt(0)")
A(f"""L_num:
s_cmp_lg_u32 s{sN}, 0
s_cbranch_scc1 L_num_ok
s_sub_u32 s{sCNT}, s{sCNT}, 1
s_cbranch_scc1 L_num_ok
buffer_load_dword v4, v3, {R(rA)}, 0 offen sc1
s_waitcnt vmcnt(0)
v_readfirstlane_b32 s{sN}, v4
s_branch L_num
L_num_ok:""")
st(2)
A(f"s_and_b32 s{sT0}, s{sN}, s{sMASK}\nv_mov_b32 v{vT}, s{sT0}")
A(f"s_getreg_b32 s{sT1}, hwreg(HW_REG_XCC_ID)\ns_and_b32 s{sT1}, s{sT1}, 15\ns_lshl_b32 s{sN}, s{sN}, 4\ns_or_b32 s{sN}, s{sN}, s{sT1}")
A(f"s_lshl_b32 s{sT0}, s{sSLOT}, 9\ns_add_u32 s{sT0}, s{sT0}, {QS}")
A(f"v_lshrrev_b32 v2, 4, v0\nv_and_b32 v3, 7, v0\nv_lshl_add_u32 v2, v2, 3, v3\nv_lshl_add_u32 v2, v2, 4, s{sT0}")
tag([24, 25, 26, 27])
A("s_mov_b32 exec_lo, 0x00ff00ff\ns_mov_b32 exec_hi, 0x00ff00ff")
A(f"buffer_store_dwordx4 v[24:27], v2, {R(rWS)}, 0 offen{fl('qst')}")
A("s_mov_b64 exec, -1")
A(f"s_lshl_b32 s{sT1}, s{sXG}, 7\ns_add_u32 s{sT1}, s{sT1}, {XC}\nv_lshl_add_u32 v5, v3, 2, s{sT1}")
A(f"s_cmp_eq_u32 s{sROLE}, 0\ns_cbranch_scc0 L_noxc")
A(f"s_lshl_b32 s{sT0}, s{sR}, 2\ns_add_u32 s{sT0}, s{sT0}, s{sT1}\nv_mov_b32 v3, s{sT0}\nv_mov_b32 v4, s{sN}\ns_mov_b64 exec, 1")
A(f"buffer_store_dword v4, v3, {R(rWS)}, 0 offen{fl('xst')}")
A("s_mov_b64 exec, -1")
A("L_noxc:")
A(f"s_and_b32 s{sT0}, s{sSLOT}, 0xf8\ns_lshl_b32 s{sT0}, s{sT0}, 9\ns_add_u32 s{sT0}, s{sT0}, {QS}")
A(f"v_lshl_add_u32 v7, v0, 4, s{sT0}")
A("v_bfe_u32 v2, v0, 3, 2\nv_lshlrev_b32 v2, 2, v2\nv_lshrrev_b32 v3, 5, v0\nv_add_u32 v2, v2, v3\nv_and_b32 v3, 7, v0\nv_lshl_add_u32 v2, v2, 3, v3\nv_lshlrev_b32 v2, 1, v2")
if opt["otouch"]:
    A(f"s_lshl_b32 s{sT0}, s{sSLOT}, 9\ns_add_u32 s{sT0}, s{sT0}, {OS}\nv_lshl_add_u32 v9, v0, 3, s{sT0}")
    A(f"buffer_load_dword v28, v9, {R(rWS)}, 0 offen")
    A(f"s_lshl_b32 s{sT0}, s{sSLOT}, 4\ns_add_u32 s{sT0}, s{sT0}, {ST}\nv_mov_b32 v9, s{sT0}")
    A(f"buffer_load_dword v29, v9, {R(rWS)}, 0 offen")
if opt["qsl"]:
    A(f"s_sleep {opt['qsl']}")
else:
    A("s_waitcnt vmcnt(0)")
st(3)


def q_poll():
    for t in range(4):
        A(f"buffer_load_dwordx4 {V(112+4*t,4)}, v7, {R(rWS)}, 0 offen offset:{1024*t} sc1")
    A(f"buffer_load_dword v6, v5, {R(rWS)}, 0 offen sc1")


if not opt.get("noq"):
    poll(q_poll, list(range(112, 128)), 10)
A(f"v_cmp_ne_u32 vcc, s{sN}, v6\ns_cmp_eq_u64 vcc, 0\ns_cselect_b32 s{sFAST}, 1, 0")
A(f"v_mov_b32 v4, s{sFAST}\nv_mov_b32 v5, v{vT}\nds_write_b64 v{vL}, v[4:5] offset:{FAST-MX}")
for i in range(4):
    A(f"v_add_f32 v{112+i}, v{112+i}, v{116+i}\nv_add_f32 v{120+i}, v{120+i}, v{124+i}")
for i in range(4):
    A(f"v_add_f32 v{112+i}, v{112+i}, v{120+i}")
A("v_permlane32_swap_b32 v112, v113\nv_permlane32_swap_b32 v114, v115")
A("v_add_f32 v112, v112, v113\nv_add_f32 v114, v114, v115")
A("v_cvt_pk_bf16_f32 v112, v112, v114")
A(f"ds_write_b16 v2, v112 offset:{QL}\nds_write_b16_d16_hi v2, v112 offset:{QL+32}")
A(f"ds_write_b32 v{vL}, v{vONE} offset:{CQ-MX}")
st(4)

A("L_roles:")
A(f"s_cmp_eq_u32 s{sROLE}, 1\ns_cbranch_scc1 L_mlp")
A(f"s_cmp_eq_u32 s{sROLE}, 0\ns_cbranch_scc1 L_z")
end_wave()


def trigger(trig, loads):
    if opt.get("now"):
        return
    if trig != "start":
        off, n = {"q": (CQ, 1), "c1": (C1, f"s{sNKV}"), "c1h": (C1, 4), "c1a": (C1, 1), "c1b": (C1, 2), "c1c": (C1, 5)}[trig]
        spin(off, n, 10, sleep=4)
    loads()


A("L_z:")
if opt.get("cgx"):
    A(f"s_xor_b32 s{sR}, s{sR}, {opt['cgx']}")
ZB, ZO, ZST, ZA, ZD = 40, 104, 120, 124, 140
srd(rA, pWO, 0x400000)
A(f"s_lshl_b32 s{sT0}, s{sXG}, 2\ns_add_u32 s{sT0}, s{sT0}, s3\ns_lshl_b32 s{sT0}, s{sT0}, 17\ns_lshl_b32 s{sT1}, s{sR}, 7\ns_add_u32 s{sT0}, s{sT0}, s{sT1}")
A(f"v_bfe_u32 v1, v0, 3, 2\nv_lshrrev_b32 v2, 5, v0\nv_lshl_add_u32 v1, v1, 3, v2\nv_lshlrev_b32 v1, 10, v1\nv_and_b32 v2, 7, v0\nv_lshl_add_u32 v1, v2, 4, v1\nv_add_u32 v1, s{sT0}, v1")
A(f"s_lshl_b32 s{sIMG}, s3, 14\ns_add_u32 s{sIMG}, s{sIMG}, {WIMG}")
A(f"v_lshrrev_b32 v3, 4, v0\nv_lshlrev_b32 v3, 3, v3\nv_bfe_u32 v4, v0, 2, 2\nv_add_u32 v3, v3, v4\nv_lshlrev_b32 v3, 7, v3\nv_and_b32 v4, 3, v0\nv_lshl_add_u32 v3, v4, 3, v3\nv_add_u32 v3, s{sIMG}, v3")
A(f"s_lshl_b32 s{sT0}, s{sXG}, 5\ns_lshl_b32 s{sT1}, s3, 3\ns_add_u32 s{sT0}, s{sT0}, s{sT1}")
A(f"s_lshl_b32 s{sT1}, s{sT0}, 9\ns_add_u32 s{sT1}, s{sT1}, {OS}\nv_add_u32 v4, s{sT1}, v8")
A(f"s_lshl_b32 s{sT1}, s{sT0}, 4\ns_add_u32 s{sT1}, s{sT1}, {ST}\nv_lshl_add_u32 v5, v2, 4, s{sT1}")
A(f"s_lshl_b32 s{sT0}, s3, 8\ns_add_u32 s{sT0}, s{sT0}, {SCR}\nv_lshl_add_u32 v6, v0, 2, s{sT0}")
A(f"v_lshrrev_b32 v7, 4, v0\nv_lshl_add_u32 v7, v7, 4, s{sT0}")
A(f"v_subrev_u32 v25, {SCR-ZP}, v6")
A(f"v_and_b32 v9, 31, v0\nv_lshlrev_b32 v9, 3, v9\nv_lshrrev_b32 v10, 5, v0\nv_lshl_add_u32 v9, v10, 2, v9\nv_add_u32 v9, s{sT0}, v9")
A(f"s_lshl_b32 s{sT0}, s{sXG}, 3\ns_add_u32 s{sT0}, s{sT0}, s{sR}\ns_lshl_b32 s{sT0}, s{sT0}, 1\ns_and_b32 s{sT1}, s3, 1\ns_add_u32 s{sT0}, s{sT0}, s{sT1}\ns_lshl_b32 s{sT0}, s{sT0}, 2")
A(f"v_lshrrev_b32 v20, 4, v0\nv_add_u32 v20, s{sT0}, v20\nv_lshlrev_b32 v21, 1, v20\nv_lshlrev_b32 v20, 2, v20\nv_add_u32 v20, {ZS}, v20")
A(f"s_lshl_b32 s{sT0}, s{sT0}, 2\nv_lshlrev_b32 v22, 11, v0\nv_add_u32 v22, s{sT0}, v22\nv_add_u32 v23, {64*2048}, v22")
A(f"s_lshl_b32 s{sT0}, s{sXG}, 11\ns_lshl_b32 s{sT1}, s{sR}, 8\ns_add_u32 s{sT0}, s{sT0}, s{sT1}\ns_add_u32 s{sT0}, s{sT0}, {ZS}\nv_add_u32 v24, s{sT0}, v8")
srd(rC, pWS, NMLP * 2048, PS)
srd(rB, pOUT, 1024)


def z_loads():
    if opt["ptouch"]:
        A(f"buffer_load_dword v28, v24, {R(rWS)}, 0 offen")
    A(f"buffer_load_ushort v26, v21, {R(rD)}, 0 offen")
    for t in range(16 if not opt.get("nowo") else 0):
        A(f"s_add_u32 m0, s{sIMG}, {t*1024}\ns_mov_b32 s{sT1}, {((t>>2)*32+(t&3)*2)*1024}")
        A(f"buffer_load_dwordx4 v1, {R(rA)}, s{sT1} offen{fl('wofl')} lds")


def z_prep():
    for kb in range(4):
        for nt in range(4):
            for hf in range(2):
                A(f"ds_read_b64_tr_b16 {V(ZB+(kb*4+nt)*4+2*hf,2)}, v3 offset:{kb*4096+hf*512+nt*32}")


def zs_poll():
    A(f"buffer_load_dwordx4 {V(ZST,4)}, v5, {R(rWS)}, 0 offen sc1")


def z_poll():
    for t in range(4):
        A(f"buffer_load_dwordx4 {V(ZO+4*t,4)}, v4, {R(rWS)}, 0 offen offset:{1024*t} sc1")


trigger(opt["trigz"], z_loads)
A("s_waitcnt vmcnt(0)")
z_prep()
st(5)
spin(C1, f"s{sNKV}", 10, f"ds_read_b32 v{vT}, v{vL} offset:{TAG-MX}")
poll(zs_poll, list(range(ZST, ZST + 4)), 10, sleep=opt["ssl"])
A(f"""v_max_f32_dpp v16, v{ZST}, v{ZST} quad_perm:[1,0,3,2] {DPP}
v_max_f32_dpp v16, v16, v16 quad_perm:[2,3,0,1] {DPP}
v_max_f32_dpp v16, v16, v16 row_half_mirror {DPP}
v_sub_f32 v16, v{ZST}, v16
v_exp_f32 v16, v16
v_mul_f32 v11, v16, v{ZST+1}
v_add_f32_dpp v11, v11, v11 quad_perm:[1,0,3,2] {DPP}
v_add_f32_dpp v11, v11, v11 quad_perm:[2,3,0,1] {DPP}
v_add_f32_dpp v11, v11, v11 row_half_mirror {DPP}
v_rcp_f32 v11, v11
v_mul_f32 v16, v16, v11
v_mov_b32_dpp v16, v16 row_ror:15 row_mask:0xc bank_mask:0xf""")
spin(C3, f"s{sNKV}", 10)
st(2)
if opt["p2"] & 1:
    poll2([(f"buffer_load_dwordx4 {V(ZO+4*t,4)}, v4, {R(rWS)}, 0 offen offset:{1024*t} sc1", [ZO + 4 * t, ZO + 4 * t + 2], None) for t in range(4)], 10, depth=opt["dz"])
else:
    poll(z_poll, [ZO + 2 * k for k in range(8)], 10, sleep=opt["zsl"])
if STAMPS:
    A(f"s_sub_u32 s{sFAST}, {opt['spin']*4}, s{sCNT}")
if opt.get("diag"):
    A("s_memrealtime s[98:99]")
st(6)
for t in range(4):
    for i in range(4):
        op = "v_mul_f32_dpp" if t == 0 else "v_fmac_f32_dpp"
        A(f"{op} v{12+i}, v16, v{ZO+4*t+i} row_newbcast:{2*t} {DPP}")
A("v_permlane32_swap_b32 v12, v14\nv_permlane32_swap_b32 v13, v15")
A("v_add_f32 v12, v12, v14\nv_add_f32 v13, v13, v15")
A("v_cvt_pk_bf16_f32 v12, v12, v13\nds_write_b32 v9, v12")
for kb in range(4):
    A(f"ds_read_b128 {V(ZA+4*kb,4)}, v7 offset:{64*kb}")
for kb in range(4):
    A(f"s_waitcnt lgkmcnt({3-kb})")
    for nt in range(4):
        c = "0" if kb == 0 else V(ZD + 4 * nt, 4)
        A(f"v_mfma_f32_16x16x32_bf16 {V(ZD+4*nt,4)}, {V(ZA+4*kb,4)}, {V(ZB+(kb*4+nt)*4,4)}, {c}")
for nt in range(1, 4):
    A(f"v_mov_b32_dpp v{ZD}, v{ZD+4*nt} quad_perm:[0,1,2,3] row_mask:{hex(1<<nt)} bank_mask:0xf")
A(f"ds_write_b32 v6, v{ZD} offset:{ZP-SCR+65536-65536}" if ZP >= SCR else f"ds_write_b32 v25, v{ZD}")
A("s_mov_b64 exec, 1")
A(f"ds_add_rtn_u32 v10, v{vL}, v{vONE} offset:{C4-MX}")
A("s_mov_b64 exec, 0xffff")
for w in range(4):
    A(f"ds_read_b128 {V(12 if w == 0 else ZA+4*w,4)}, v8 offset:{ZP+256*w}")
A("s_waitcnt lgkmcnt(2)")
A(f"v_readfirstlane_b32 s{sT0}, v10")
A(f"v_pk_add_f32 v[12:13], v[12:13], {V(ZA+4,2)}\nv_pk_add_f32 v[14:15], v[14:15], {V(ZA+6,2)}\ns_waitcnt lgkmcnt(0)")
A(f"v_pk_add_f32 {V(ZA+8,2)}, {V(ZA+8,2)}, {V(ZA+12,2)}\nv_pk_add_f32 {V(ZA+10,2)}, {V(ZA+10,2)}, {V(ZA+14,2)}")
A(f"v_pk_add_f32 v[12:13], v[12:13], {V(ZA+8,2)}\nv_pk_add_f32 v[14:15], v[14:15], {V(ZA+10,2)}")
tag([12, 13, 14, 15])
A(f"s_cmp_lg_u32 s{sT0}, 3\ns_cbranch_scc1 L_z_notlast")
A(f"buffer_store_dwordx4 v[12:15], v24, {R(rWS)}, 0 offen sc1")
st(7)
A("L_z_notlast:")
A("s_mov_b64 exec, -1")
A(f"s_sub_u32 s{sT0}, s3, 1\ns_cmp_lt_u32 s{sT0}, 2\ns_cbranch_scc1 L_fin")
end_wave()
A("L_fin:")


def f_poll1():
    for x in range(8):
        A(f"buffer_load_dword v{104+x}, v20, {R(rWS)}, s{sOFF+x//2} offen offset:{2048*(x%2)} sc1")


poll(f_poll1, list(range(104, 112)), 10, sleep=opt["fsl"])
st(1)


def f_poll2():
    A(f"buffer_load_dwordx4 v[112:115], v22, {R(rC)}, 0 offen sc1")
    A(f"buffer_load_dwordx4 v[116:119], v23, {R(rC)}, 0 offen sc1")


def f_h():
    A("""v_add_f32 v104, v104, v106
v_add_f32 v105, v105, v107
v_add_f32 v104, v104, v108
v_add_f32 v105, v105, v109
v_add_f32 v104, v104, v110
v_add_f32 v105, v105, v111
v_add_f32 v104, v104, v105
v_lshlrev_b32 v26, 16, v26
v_add_f32 v104, v104, v26
v_cvt_pk_bf16_f32 v104, v104, v104
v_lshlrev_b32 v104, 16, v104""")


f_h()
if opt["fdelay"]:
    A(f"s_sleep {opt['fdelay']}")
if opt["p2"] & 4:
    poll2([(f"buffer_load_dwordx4 v[112:115], v22, {R(rC)}, 0 offen sc1", [112, 113, 114, 115], None),
           (f"buffer_load_dwordx4 v[116:119], v23, {R(rC)}, 0 offen sc1", [116, 117, 118, 119], (1 << (NMLP - 64)) - 1)], 10, depth=opt["df"])
else:
    poll(f_poll2, list(range(112, 116)), 10, None, masked=((1 << (NMLP - 64)) - 1, list(range(116, 120))))
st(2)
for i in range(4):
    A(f"v_add_f32 v{112+i}, v{112+i}, v{116+i}")
A("v_permlane32_swap_b32 v112, v114\nv_permlane32_swap_b32 v113, v115")
A("v_add_f32 v112, v112, v114\nv_add_f32 v113, v113, v115")
A("v_permlane16_swap_b32 v112, v113\nv_add_f32 v112, v112, v113")
row_allreduce("v_add_f32", 112)
if "eps" in opt:
    A(f"v_mul_f32 v112, {f32(1 + opt['eps'] / 1000)}, v112")
A("v_add_f32 v112, v112, v104\nv_cvt_pk_bf16_f32 v112, v112, v112")
A("s_mov_b32 exec_lo, 0x00010001\ns_mov_b32 exec_hi, 0x00010001")
A(f"buffer_store_short v112, v21, {R(rB)}, 0 offen sc1")
if opt.get("diag"):
    A(f"s_cmp_eq_u32 s{sI}, 0\ns_cbranch_scc0 L_exit\ns_cmp_eq_u32 s3, 1\ns_cbranch_scc0 L_exit")
    A("s_memrealtime s[96:97]\ns_waitcnt lgkmcnt(0)")
    if "amp" in opt:
        if opt["amp"] != 8:
            A(f"s_cmp_eq_u32 s{sXG}, {opt['amp']}\ns_cbranch_scc0 L_exit")
        if opt.get("ampsrc") == "o":
            A("s_sub_u32 s94, s98, s100")
        else:
            A("s_sub_u32 s94, s96, s100")
        A("s_lshl_b32 s94, s94, 2\nL_amp:\ns_memrealtime s[92:93]\ns_waitcnt lgkmcnt(0)\ns_sub_u32 s92, s92, s96\ns_cmp_lt_u32 s92, s94\ns_cbranch_scc1 L_amp")
    srd(rA, pDBG, 64)
    A(f"s_sub_u32 s96, s96, s100\ns_sub_u32 s98, s98, s100\ns_lshl_b32 s100, s100, 16\ns_or_b32 s96, s96, s100")
    A(f"s_lshl_b32 s{sT0}, s{sXG}, 2\nv_mov_b32 v1, s{sT0}\nv_mov_b32 v2, s96\nv_mov_b32 v3, s98\ns_mov_b64 exec, 1")
    A(f"buffer_store_dword v2, v1, {R(rA)}, 0 offen offset:4 sc1\nbuffer_store_dword v3, v1, {R(rA)}, 0 offen offset:36 sc1")
st(3)
end_wave()

A("L_mlp:")
srd(rA, pWG, 512 * 2752)
srd(rB, pWU, 512 * 2752)
srd(rC, pWD, 1376 * 1024)
A(f"s_lshl_b32 s{sT0}, s3, 7\nv_lshrrev_b32 v1, 1, v0\nv_add_u32 v1, s{sT0}, v1\nv_mul_u32_u24 v1, 2752, v1")
A(f"v_and_b32 v2, 1, v0\nv_lshl_add_u32 v1, v2, 4, v1\ns_lshl_b32 s{sT0}, s{sR}, 5\nv_add_u32 v1, s{sT0}, v1")
A(f"s_lshl_b32 s{sIMG}, s3, 13\ns_add_u32 s{sIMG}, s{sIMG}, {WIMG}")
A(f"v_lshrrev_b32 v3, 4, v0\nv_lshlrev_b32 v3, 3, v3\nv_bfe_u32 v4, v0, 2, 2\nv_add_u32 v3, v3, v4\nv_lshlrev_b32 v3, 5, v3\nv_and_b32 v2, 3, v0\nv_lshl_add_u32 v3, v2, 3, v3\nv_add_u32 v3, s{sIMG}, v3")
A(f"s_lshl_b32 s{sT0}, s3, 9\ns_add_u32 s{sT0}, s{sT0}, {ZS}\nv_lshrrev_b32 v2, 5, v0\nv_and_b32 v5, 31, v0\nv_lshlrev_b32 v4, 11, v2\nv_lshl_add_u32 v4, v5, 4, v4\nv_add_u32 v4, s{sT0}, v4")
A(f"v_lshlrev_b32 v5, 3, v5\nv_lshl_add_u32 v5, v2, 2, v5\ns_lshl_b32 s{sT0}, s3, 8\nv_add_u32 v5, s{sT0}, v5\nv_add_u32 v6, {SCR}, v5")
A(f"s_add_u32 s{sT0}, s{sT0}, {SCR}\nv_lshrrev_b32 v7, 4, v0\nv_lshl_add_u32 v7, v7, 4, s{sT0}")
A("v_lshlrev_b32 v9, 2, v0")
A(f"s_lshl_b32 s{sT0}, s{sR}, 14\ns_lshl_b32 s{sT1}, s3, 8\ns_add_u32 s{sT0}, s{sT0}, s{sT1}\nv_add_u32 v20, s{sT0}, v9")
A(f"s_lshl_b32 s{sT0}, s{sR}, 11\ns_lshl_b32 s{sT1}, s3, 9\ns_add_u32 s{sT0}, s{sT0}, s{sT1}\ns_add_u32 s{sT0}, s{sT0}, {PS}\nv_lshl_add_u32 v21, v0, 3, s{sT0}")
A(f"v_and_b32 v22, 15, v0\nv_lshlrev_b32 v22, 3, v22\ns_lshl_b32 s{sT0}, s3, 7\ns_add_u32 s{sT0}, s{sT0}, {ZP}\nv_add_u32 v25, s{sT0}, v22")
A(f"v_lshrrev_b32 v23, 5, v0\nv_lshlrev_b32 v23, 2, v23\nv_add_u32 v23, {SQ}, v23\nv_mov_b32 v24, {SQ}")
for i in range(4):
    A(f"v_mov_b32 v{116+i}, 0x3f803f80")
A(f"s_mov_b32 s{sM1}, 0x05040100\ns_mov_b32 s{sM1+1}, 0x07060302")


NPRE = 4 - opt["npost"]


def gu_loads(ts):
    for t in ts:
        A(f"s_add_u32 m0, s{sIMG}, {t*1024}\ns_mov_b32 s{sT1}, {t*32*2752}")
        A(f"buffer_load_dwordx4 v1, {R(rA)}, s{sT1} offen{fl('gufl')} lds")
        A(f"s_add_u32 m0, s{sIMG}, {4096+t*1024}")
        A(f"buffer_load_dwordx4 v1, {R(rB)}, s{sT1} offen{fl('gufl')} lds")


def wd_loads():
    for r in range(16):
        A(f"buffer_load_dword v{120+r}, v20, {R(rC)}, s{sOFF+r//4} offen offset:{1024*(r%4)}{fl('wdfl')}")
        A("s_nop 0")


def wd_prep():
    for i in range(8):
        A(f"v_perm_b32 v{136+i}, v{121+2*i}, v{120+2*i}, s{sM1}\nv_perm_b32 v{144+i}, v{121+2*i}, v{120+2*i}, s{sM1+1}")


def gu_prep(kbs, mid=None):
    for kb in kbs:
        for tl in range(2):
            for hf in range(2):
                A(f"ds_read_b64_tr_b16 {V(40+(kb*2+tl)*4+2*hf,2)}, v3 offset:{kb*1024+hf*128+tl*4096}")
    if mid:
        mid()
    A("s_waitcnt lgkmcnt(0)")
    for kb in kbs:
        for tl in range(2):
            c = "0" if kb == 0 else V(108 + 4 * tl, 4)
            A(f"v_mfma_f32_16x16x32_bf16 {V(108+4*tl,4)}, v[116:119], {V(40+(kb*2+tl)*4,4)}, {c}")


def colsum_out():
    A("s_mov_b64 exec, 0xffff")
    A(f"ds_add_f32 v22, v108 offset:{CS}\nds_add_f32 v22, v112 offset:{CS+4}")
    A("s_mov_b64 exec, -1")


def m_loads():
    if opt["ptouch"]:
        A(f"buffer_load_dword v28, v21, {R(rWS)}, 0 offen")
    A(f"buffer_load_dword v26, v5, {R(rD)}, 0 offen")
    gu_loads(range(NPRE))
    if not opt["wdpost"]:
        wd_loads()


trigger(opt["trigm"], m_loads)
st(5)
A("s_waitcnt vmcnt(0)")
gu_prep(range(NPRE), None if opt["wdpost"] else wd_prep)
if NPRE == 4:
    colsum_out()
A(f"v_lshlrev_b32 v27, 16, v26\nv_and_b32 v26, s{sHI}, v26")
A(f"v_mov_b32 v30, 0\nv_mov_b32 v31, 0\nv_mov_b32 v29, {f32(1/512)}")
spin(C5, 1, 10, f"ds_read_b32 v{vT}, v{vL} offset:{TAG-MX}")
st(2)
gu_loads(range(NPRE, 4))
if opt["wdpost"]:
    wd_loads()


def m_poll():
    for t in range(4):
        A(f"buffer_load_dwordx4 {V(72+4*t,4)}, v4, {R(rWS)}, s{sOFF+t} offen sc1")


def m_post():
    if NPRE < 4 or opt["wdpost"]:
        A("s_waitcnt vmcnt(4)")
    if NPRE < 4:
        gu_prep(range(NPRE, 4), wd_prep if opt["wdpost"] else None)
        colsum_out()
    elif opt["wdpost"]:
        wd_prep()
    st(1)


if opt["p2"] & 2:
    poll2([(f"buffer_load_dwordx4 {V(72+4*t,4)}, v4, {R(rWS)}, s{sOFF+t} offen sc1", [72 + 4 * t], None) for t in range(4)], 10, m_post, depth=opt["dm"])
else:
    poll(m_poll, [72, 76, 80, 84], 10, m_post, sleep=opt["msl"])
if STAMPS:
    A(f"s_sub_u32 s{sFAST}, {opt['spin']*4}, s{sCNT}")
st(6)
for t in range(1, 4):
    for i in (0, 2):
        A(f"v_pk_add_f32 {V(72+i,2)}, {V(72+i,2)}, {V(72+4*t+i,2)}")
A("v_permlane32_swap_b32 v72, v74\nv_permlane32_swap_b32 v73, v75")
A("""v_add_f32 v72, v72, v74
v_add_f32 v73, v73, v75
v_add_f32 v72, v72, v27
v_add_f32 v73, v73, v26
v_cvt_pk_bf16_f32 v72, v72, v73
ds_write_b32 v6, v72""")
for kb in range(4):
    A(f"ds_read_b128 {V(92+4*kb,4)}, v7 offset:{64*kb}")
A(f"""v_lshlrev_b32 v73, 16, v72
v_and_b32 v72, s{sHI}, v72
v_add_f32 v74, v72, v73
v_mul_f32 v75, v72, v72
v_fmac_f32 v75, v73, v73""")
A("v_permlane32_swap_b32 v74, v75\nv_add_f32 v74, v74, v75")
rr = [8, 4, 2, 1]
for kb in range(4):
    A(f"s_waitcnt lgkmcnt({3-kb})")
    for tl in range(2):
        c = "0" if kb == 0 else V(108 + 4 * tl, 4)
        A(f"v_mfma_f32_16x16x32_bf16 {V(108+4*tl,4)}, {V(92+4*kb,4)}, {V(40+(kb*2+tl)*4,4)}, {c}")
    A(f"v_add_f32_dpp v74, v74, v74 row_ror:{rr[kb]} {DPP}")
A("s_mov_b32 exec_lo, 0x00010001\ns_mov_b32 exec_hi, 0x00010001")
A("ds_add_f32 v23, v74")
A("s_mov_b64 exec, 0xffff")
A("ds_write2_b32 v25, v108, v112 offset0:0 offset1:1")
A("s_mov_b64 exec, -1")
A("s_waitcnt lgkmcnt(0)\ns_barrier")
A(f"ds_read_b64 v[16:17], v24\nds_read_b64 v[14:15], v22 offset:{CS}")
for w in range(4):
    A(f"ds_read_b64 {V(12 if w == 0 else 92+2*w,2)}, v22 offset:{ZP+128*w}")
A(f"""s_waitcnt lgkmcnt(5)
v_mul_f32 v16, v16, v29
v_fmaak_f32 v17, v17, v29, {f32(1e-5)}
v_fma_f32 v17, -v16, v16, v17
v_max_f32 v17, {f32(1e-5)}, v17
v_rsq_f32 v17, v17
s_waitcnt lgkmcnt(0)
v_pk_add_f32 v[12:13], v[12:13], v[94:95]
v_pk_add_f32 v[96:97], v[96:97], v[98:99]
v_pk_add_f32 v[12:13], v[12:13], v[96:97]
v_mul_f32 v18, {f32(-1.4426950408889634)}, v17
v_fma_f32 v12, -v16, v14, v12
v_fma_f32 v13, -v16, v15, v13
v_mul_f32 v12, v12, v18
v_exp_f32 v12, v12
v_mul_f32 v13, v13, v17
v_add_f32 v12, 1.0, v12
v_rcp_f32 v12, v12
s_nop 0
v_mul_f32 v12, v12, v13
v_mov_b32_dpp v13, v12 quad_perm:[1,0,3,2] {DPP}
v_cvt_pk_bf16_f32 v12, v12, v13""")
for i in range(8):
    A(f"v_dot2c_f32_bf16_dpp v30, v12, v{136+i} row_newbcast:{2*i} {DPP}")
    A(f"v_dot2c_f32_bf16_dpp v31, v12, v{144+i} row_newbcast:{2*i} {DPP}")
tag([30, 31])
A(f"buffer_store_dwordx2 v[30:31], v21, {R(rWS)}, 0 offen sc1")
st(7)
end_wave()

if STAMPS:
    A("L_stamps:")
    A("s_mov_b64 exec, 1")
    A("s_waitcnt lgkmcnt(0)\ns_memrealtime s[4:5]\ns_waitcnt lgkmcnt(0)\ns_memtime s[6:7]")
    A(f"s_mul_i32 s{sT0}, s2, 12\ns_add_u32 s{sT0}, s{sT0}, s3\ns_lshl_b32 s{sT0}, s{sT0}, 6\ns_add_u32 s{sT0}, s{sT0}, {STAMP}")
    A(f"v_mov_b32 v1, s{sT0}\ns_waitcnt lgkmcnt(0)")
    for k in range(8):
        A(f"v_mov_b32 v{4+k}, s{sST+2*k}")
    A("v_mov_b32 v12, s100\nv_mov_b32 v13, s4\nv_mov_b32 v14, s6\nv_mov_b32 v15, s{0}".format(sFAST))
    A(f"v_mov_b32 v16, s{sROLE}\nv_mov_b32 v17, s{sNKV}\nbuffer_store_dwordx2 v[16:17], v1, {R(rWS)}, 0 offen offset:48")
    A(f"buffer_store_dwordx4 v[4:7], v1, {R(rWS)}, 0 offen\nbuffer_store_dwordx4 v[8:11], v1, {R(rWS)}, 0 offen offset:16\nbuffer_store_dwordx4 v[12:15], v1, {R(rWS)}, 0 offen offset:32")
A("L_exit:")
A("s_endpgm")
A("L_last:")

body, problems = fix_hazards(L)
for p in problems:
    print("HAZARD:", p, file=sys.stderr)
for line in body:
    out.append(line if line.endswith(":") else "    " + line)
if lst:
    out.append(""".globl noop_kernel
.p2align 8
.type noop_kernel,@function
noop_kernel:
    s_endpgm
.section .rodata,"a"
.p2align 6
.amdhsa_kernel noop_kernel
  .amdhsa_next_free_vgpr 8
  .amdhsa_next_free_sgpr 16
  .amdhsa_accum_offset 8
  .amdhsa_group_segment_fixed_size 0
  .amdhsa_kernarg_size 96
  .amdhsa_user_sgpr_count 2
  .amdhsa_user_sgpr_kernarg_segment_ptr 1
  .amdhsa_system_sgpr_workgroup_id_x 1
.end_amdhsa_kernel""")
out.append(f""".section .rodata,"a"
.p2align 6
.amdhsa_kernel {NAME}_kernel
  .amdhsa_next_free_vgpr 168
  .amdhsa_next_free_sgpr 102
  .amdhsa_accum_offset 168
  .amdhsa_group_segment_fixed_size 0
  .amdhsa_kernarg_size 96
  .amdhsa_user_sgpr_count 2
  .amdhsa_user_sgpr_kernarg_segment_ptr 1
  .amdhsa_system_sgpr_workgroup_id_x 1
  .amdhsa_float_denorm_mode_32 3
.end_amdhsa_kernel""")
open(sys.argv[1], "w").write("\n".join(out) + "\n")
```

```python
import sys, struct
from asmlib import fix_hazards

NAME = "sequential_preLN__mha_block_cached__glu_gated_glu__decode"
opt = dict(stamps=0, nv1=6, trigz="c1", trigm="c1h", pat="A", kvfl="nt", wqfl="nt", wofl="nt", gufl="plain",
           wdfl="nt", fast=1, pf=2, gap=0, prio=0, bal="a", early=4, p2=0, outfl="sc1", mwait=1, shed=0, wdelay=0, f1delay=0, dz=0, dm=0, df=0, otouch=1, npost=4, wdpost=1, qsl=0, qst="sc1", xst="sc1", ssl=0, zsl=0, msl=0, fsl=0, mdelay=0, bfirst=0, fdelay=31, ptouch=1, nsl=12, spin=20000)
for a in sys.argv[2:]:
    k, v = a.split("=")
    opt[k] = v if not v.lstrip("-").isdigit() else int(v)
STAMPS = opt["stamps"]
NV1 = opt["nv1"]


def fl(name):
    v = opt[name]
    return "" if v == "plain" else " " + v.replace("+", " ")


def f32(x):
    return "0x%08x" % struct.unpack("<I", struct.pack("<f", x))[0]


QS, OS, ST, ZS, XC, EPOCH, PS, STAMP = 0x0, 0x20000, 0x40000, 0x41000, 0x45000, 0x46000, 0x48000, 0x80000
NMLP = 86
TAGMASK = 0x3ff
QL, MX, LACC, SQ, CS, ZP, SCR, OSL, WIMG = 0, 256, 260, 272, 1024, 1536, 3072, 4096, 10240
CQ, C1, C5, C3, C4, CI, FAST, TAG, ML = 280, 284, 288, 292, 296, 300, 304, 308, 384
LDS_BYTES = WIMG + 4 * 16384
pX, pK, pV, pWQ, pWO, pWG, pWU, pWD, pOUT, pDBG, pWS = 4, 6, 8, 10, 12, 16, 18, 20, 22, 24, 26
rA, rB, rWS, rC, rD = 28, 32, 36, 44, 48
sNKV, sROLE, sMASK, sN = 40, 41, 42, 43
sXG, sI, sSLOT, sR, sT0, sT1, sCNT, sFAST = 52, 53, 54, 55, 56, 57, 58, 59
sM1, sM0, sU, sIMG, sC2, sHI, sQB = 60, 62, 64, 65, 66, 67, 76
sOFF = 68
sST = 84
vT = 38
vONE = 39
vL = 33

L = []


def A(s):
    for line in s.split("\n"):
        line = line.strip()
        if line:
            L.append(line)


def srd(r, p, size, add=None):
    if add is None:
        A(f"s_mov_b32 s{r}, s{p}\ns_mov_b32 s{r+1}, s{p+1}")
    else:
        A(f"s_add_u32 s{r}, s{p}, {add}\ns_addc_u32 s{r+1}, s{p+1}, 0")
    A(f"s_mov_b32 s{r+2}, {hex(size)}\ns_mov_b32 s{r+3}, 0x20000")


def R(r):
    return f"s[{r}:{r+3}]"


def V(a, n):
    return f"v[{a}:{a+n-1}]"


def st(k):
    if STAMPS and str(k) not in str(opt.get("nost", "")):
        A(f"s_memtime s[{sST+2*k}:{sST+2*k+1}]")


def end_wave():
    A("s_branch L_stamps" if STAMPS else "s_endpgm")


DPP = "row_mask:0xf bank_mask:0xf"


def row_allreduce(op, a):
    for n in (8, 4, 2, 1):
        A(f"{op}_dpp v{a}, v{a}, v{a} row_ror:{n} {DPP}")


def wave_allreduce_add(a, t):
    row_allreduce("v_add_f32", a)
    for sw in ("v_permlane16_swap_b32", "v_permlane32_swap_b32"):
        A(f"v_mov_b32 v{t}, v{a}\n{sw} v{a}, v{t}\nv_add_f32 v{a}, v{a}, v{t}")


def tag(regs):
    for r in regs:
        A(f"v_bfi_b32 v{r}, s{sMASK}, v{vT}, v{r}")


uid = [0]


def poll(loads, regs, tmp, between=None, masked=None, sleep=0):
    uid[0] += 1
    u = uid[0]
    loads()
    if between:
        between()
    A(f"s_mov_b32 s{sCNT}, {opt['spin']}")
    A(f"L_poll{u}:")
    A("s_waitcnt vmcnt(0)")
    rs = list(regs)
    A(f"v_xor_b32 v{tmp}, v{rs[0]}, v{vT}\nv_xor_b32 v{tmp+1}, v{rs[1]}, v{vT}")
    for n, r in enumerate(rs[2:]):
        A(f"v_bitop3_b32 v{tmp+n%2}, v{tmp+n%2}, v{r}, v{vT} bitop3:0xf6")
    if masked:
        A(f"s_mov_b64 exec, {hex(masked[0])}")
        for n, r in enumerate(masked[1]):
            A(f"v_bitop3_b32 v{tmp+n%2}, v{tmp+n%2}, v{r}, v{vT} bitop3:0xf6")
        A("s_mov_b64 exec, -1")
    A(f"v_bitop3_b32 v{tmp}, v{tmp}, v{tmp+1}, s{sMASK} bitop3:0xa8")
    A(f"v_cmp_ne_u32 vcc, 0, v{tmp}")
    A(f"s_cbranch_vccz L_ok{u}")
    A(f"s_sub_u32 s{sCNT}, s{sCNT}, 1\ns_cbranch_scc1 L_ok{u}")
    if sleep:
        A(f"s_sleep {sleep}")
    loads()
    A(f"s_branch L_poll{u}")
    A(f"L_ok{u}:")


def poll2(items, tmp, between=None, m0=72, depth=0):
    uid[0] += 1
    u = uid[0]
    if depth:
        for _, regs, _ in items:
            A(f"v_not_b32 v{regs[0]}, v{vT}")
    for ld, _, _ in items:
        A(ld)
    if between:
        between()
    A(f"s_mov_b32 s{sCNT}, {opt['spin'] * (4 if depth else 1)}")
    A(f"L_poll{u}:")
    A(f"s_waitcnt vmcnt({depth})")
    for k, (_, regs, _) in enumerate(items):
        t = tmp + k
        if len(regs) == 1:
            A(f"v_bitop3_b32 v{t}, v{regs[0]}, v{vT}, s{sMASK} bitop3:0x28")
        else:
            A(f"v_xor_b32 v{t}, v{regs[0]}, v{vT}")
            for r in regs[1:]:
                A(f"v_bitop3_b32 v{t}, v{t}, v{r}, v{vT} bitop3:0xf6")
            A(f"v_and_b32 v{t}, s{sMASK}, v{t}")
    for k in range(len(items)):
        A(f"v_cmp_ne_u32 s[{m0+2*k}:{m0+2*k+1}], 0, v{tmp+k}")
    for k, (_, _, lanes) in enumerate(items):
        if lanes:
            A(f"s_and_b64 s[{m0+2*k}:{m0+2*k+1}], s[{m0+2*k}:{m0+2*k+1}], {hex(lanes)}")
    acc = f"s[{m0}:{m0+1}]"
    for k in range(1, len(items)):
        A(f"s_or_b64 vcc, {acc}, s[{m0+2*k}:{m0+2*k+1}]")
        acc = "vcc"
    A(f"s_cbranch_scc0 L_ok{u}")
    A(f"s_sub_u32 s{sCNT}, s{sCNT}, 1\ns_cbranch_scc1 L_ok{u}")
    for k, (ld, _, _) in enumerate(items):
        A(f"s_mov_b64 exec, s[{m0+2*k}:{m0+2*k+1}]\ns_cbranch_execz L_skip{u}_{k}")
        A(ld)
        A(f"L_skip{u}_{k}:")
    A("s_mov_b64 exec, -1")
    A(f"s_branch L_poll{u}")
    A(f"L_ok{u}:")
    if depth:
        A("s_waitcnt vmcnt(0)")


def spin(off, n, tmp, extra=None, sleep=1):
    uid[0] += 1
    u = uid[0]
    A(f"L_spin{u}:")
    A(f"ds_read_b32 v{tmp}, v{vL} offset:{off-MX}")
    if extra:
        A(extra)
    A("s_waitcnt lgkmcnt(0)")
    A(f"v_readfirstlane_b32 s{sT0}, v{tmp}")
    A(f"s_cmp_ge_u32 s{sT0}, {n}\ns_cbranch_scc1 L_spun{u}")
    if sleep:
        A(f"s_sleep {sleep}")
    A(f"s_branch L_spin{u}")
    A(f"L_spun{u}:")


def store_fs(instr):
    uid[0] += 1
    u = uid[0]
    if not opt["fast"]:
        A(instr + " sc1")
        return
    A(f"s_cmp_eq_u32 s{sFAST}, 0\ns_cbranch_scc1 L_slow{u}")
    A(instr)
    A(f"s_branch L_sdone{u}")
    A(f"L_slow{u}:")
    A(instr + " sc1")
    A(f"L_sdone{u}:")


import os
hdr = open(os.path.join(os.path.dirname(os.path.abspath(__file__)), "hdr.txt")).read().split("\n")
out = [l for l in hdr if l.startswith(";") and "@launch" not in l and "Override" not in l and "grid=ceil" not in l]
lst = opt.get("list", "")
if lst:
    for ch in lst:
        if ch == "m":
            out.append(f"; @launch kernel={NAME}_kernel grid=(256,1,1) block=(768,1,1) lds={LDS_BYTES}")
        elif ch == "n":
            out.append("; @launch kernel=noop_kernel grid=(1,1,1) block=(64,1,1) lds=0")
        else:
            out.append("; @launch kernel=noop_kernel grid=(256,1,1) block=(64,1,1) lds=0")
else:
    out.append(f"; @launch grid=(256,1,1) block=(768,1,1) lds={LDS_BYTES}")
out.append('.amdgcn_target "amdgcn-amd-amdhsa--gfx950"')
out.append(".text")
out.append(f".globl {NAME}_kernel")
out.append(".p2align 8")
out.append(f".type {NAME}_kernel,@function")
out.append(f"{NAME}_kernel:")

KR, VR = 40, 104
NE = opt["early"]
A("L_start:")
A("s_load_dwordx16 s[4:19], s[0:1], 0\ns_load_dwordx8 s[20:27], s[0:1], 64")
A(f"s_lshr_b32 s{sT0}, s2, 8\ns_cbranch_scc1 L_exit")
if opt["pf"] == 2:
    A(f"s_getpc_b64 s[{rA}:{rA+1}]")
    A("L_pc:")
    A("v_lshlrev_b32 v2, 4, v0\nv_min_u32 v2, (L_last-L_pc-16)&0xfffffff0, v2")
    A(f"global_load_dwordx4 v[164:167], v2, s[{rA}:{rA+1}]")
if opt.get("hx"):
    A(f"s_xor_b32 s2, s2, {opt['hx']}")
A(f"s_and_b32 s{sXG}, s2, 7\ns_lshl_b32 s{sT0}, s{sXG}, 8\ns_andn2_b32 s{sT1}, s2, 7\ns_add_u32 s{sSLOT}, s{sT0}, s{sT1}")
if NE <= 4:
    A(f"s_sub_u32 s{sT0}, s{sSLOT}, 6\ns_lshl_b32 s{sT0}, s{sT0}, 14")
else:
    A(f"s_lshl_b32 s{sT0}, s{sSLOT}, 14\ns_sub_u32 s{sT0}, s{sT0}, {6*16384-4096}")
A(f"v_lshrrev_b32 v1, 6, v0\nv_and_b32 v0, 63, v0\nv_readfirstlane_b32 s3, v1\nv_lshl_add_u32 v1, v1, 14, s{sT0}\nv_lshl_add_u32 v1, v0, 4, v1")
if NE:
    A("s_cmp_lt_u32 s3, 6\ns_cbranch_scc1 L_late\ns_waitcnt lgkmcnt(0)")
    for i in range(NE):
        A(f"global_load_dwordx4 {V(KR+4*i,4)}, v1, s[{pK}:{pK+1}] offset:{1024*i-(4096 if NE > 4 else 0)}{fl('kvfl')}")
    A("L_late:")
if STAMPS:
    for k in range(8):
        A(f"s_mov_b32 s{sST+2*k}, 0")
st(0)
if STAMPS or opt.get("diag"):
    A("s_memrealtime s[100:101]")
A(f"s_lshr_b32 s{sI}, s2, 3\ns_lshr_b32 s{sSLOT}, s{sSLOT}, 3")
A("v_lshlrev_b32 v8, 4, v0")
A(f"""s_and_b32 s80, s{sI}, 7
s_lshr_b32 s81, s{sI}, 3
s_cmp_lt_u32 s{sXG}, 6
s_cselect_b32 s82, 3, 2
s_cmp_lt_u32 s81, s82
s_cselect_b32 s83, 3, 2
s_mov_b32 s{sQB}, -1""")
if opt["shed"]:
    A(f"""s_cmp_ge_u32 s3, 2
s_cbranch_scc1 L_not0
s_mul_i32 s{sT0}, s3, 3
s_sub_u32 s{sT0}, s80, s{sT0}
s_sub_u32 s{sT1}, s{sT0}, 2
s_cmp_lt_u32 s{sT1}, s83
s_cselect_b32 s{sT1}, 1, 0
s_cmp_eq_u32 s{sT1}, s3
s_cbranch_scc0 L_not0
s_mov_b32 s{sQB}, s{sT0}""")
else:
    A(f"s_cmp_lg_u32 s3, 0\ns_cbranch_scc1 L_not0\ns_mov_b32 s{sQB}, s80")
A(f"s_lshl_b32 s{sT0}, s{sQB}, 6")
A(f"v_lshrrev_b32 v2, 4, v0\nv_lshl_add_u32 v2, v2, 4, s{sT0}\nv_lshlrev_b32 v3, 1, v2")
A(f"s_lshr_b32 s{sT0}, s{sSLOT}, 3\ns_lshl_b32 s{sT0}, s{sT0}, 8")
A(f"v_lshlrev_b32 v2, 13, v2\nv_and_b32 v9, 15, v0\nv_lshl_add_u32 v2, v9, 4, v2\nv_add_u32 v2, s{sT0}, v2")
A(f"s_movk_i32 s{sT0}, 0x2000\ns_waitcnt lgkmcnt(0)")
A(f"global_load_dwordx4 v[104:107], v8, s[{pX}:{pX+1}]")
A(f"global_load_dwordx4 v[12:15], v3, s[{pX}:{pX+1}]")
A(f"global_load_dwordx4 v[16:19], v3, s[{pX}:{pX+1}] offset:16")
for t in range(16):
    A(f"global_load_dwordx4 {V(40+4*t,4)}, v2, s[{pWQ}:{pWQ+1}]{fl('wqfl')}")
    if t < 15:
        A(f"v_add_u32 v2, s{sT0}, v2")
A("L_not0:")
A(f"s_lshl_b32 s{sT0}, s2, 4\ns_add_u32 s{sT0}, s{sT0}, s3\ns_cmp_eq_u32 s{sT0}, 2\ns_cbranch_scc0 L_notlead")
A(f"s_waitcnt lgkmcnt(0)\ns_load_dword s{sT0}, s[{pWS}:{pWS+1}], {hex(EPOCH)}")
A(f"v_mov_b32 v3, {EPOCH}\nv_lshlrev_b32 v4, 6, v0\ns_waitcnt lgkmcnt(0)")
A(f"s_add_u32 s{sT0}, s{sT0}, 0x0e3779b1\ns_and_b32 s{sT0}, s{sT0}, 0x0fffffff\ns_or_b32 s{sT1}, s{sT0}, 0x80000000")
A(f"v_mov_b32 v5, s{sT1}\nv_mov_b32 v6, s{sT0}\ns_mov_b64 exec, 15")
A(f"global_store_dword v4, v5, s[{pDBG}:{pDBG+1}] sc1")
A("s_mov_b64 exec, 1")
A(f"global_store_dword v3, v6, s[{pWS}:{pWS+1}] sc1")
A("s_mov_b64 exec, -1")
A("L_notlead:")
if NE > 4:
    A("v_subrev_u32 v1, 0x1000, v1")
if opt["pf"] == 1:
    A("s_cmp_eq_u32 s3, 1\ns_cbranch_scc0 L_pf_done")
    A(f"s_getpc_b64 s[{rA}:{rA+1}]")
    A("L_pc:")
    A(f"s_sub_u32 s{rA}, s{rA}, L_pc-L_start\ns_subb_u32 s{rA+1}, s{rA+1}, 0")
    A(f"s_and_b32 s{sT0}, s{sI}, 15\ns_lshl_b32 s{sT0}, s{sT0}, 10\nv_add_u32 v2, s{sT0}, v8")
    A("v_min_u32 v2, (L_last-L_start-16)&0xfffffff0, v2")
    A(f"global_load_dwordx4 v[160:163], v2, s[{rA}:{rA+1}]")
    A("L_pf_done:")
A("v_mov_b32 v4, 0\nv_mov_b32 v5, 0\nv_mov_b32 v6, 0\nv_mov_b32 v7, 0")
A(f"s_mov_b32 s{sT0}, 0xff800000\nv_writelane_b32 v4, s{sT0}, 0")
A(f"ds_write_b128 v8, v[4:7] offset:{MX}")
A(f"s_lshl_b32 s{sT0}, s3, 9\nv_lshl_add_u32 v9, v0, 3, s{sT0}\nds_write_b64 v9, v[6:7] offset:{OSL}")
TAB = {"7": ([2, 2, 1, 1, 1, 3, 3, 3], [2, 2, 1, 1, 3, 3, 2, 2], [2, 1, 1, 1, 3, 3, 3, 2]),
       "7n": ([2, 2, 1, 1, 1, 3, 3, 3], [2, 2, 1, 1, 3, 3, 2, 2], [2, 2, 1, 1, 3, 3, 2, 2]),
       "6": ([2, 2, 0, 0, 0, 4, 4, 4], [2, 2, 0, 0, 3, 3, 3, 3], [2, 1, 0, 0, 4, 3, 3, 3]),
       "0": ([2] * 8, [2] * 8, [2] * 8),
       "a": ([1, 1, 1, 1, 1, 4, 4, 3], [1, 1, 1, 1, 3, 3, 3, 3], [1, 0, 1, 1, 4, 3, 3, 3]),
       "c": ([0, 0, 1, 1, 2, 4, 4, 4], [0, 0, 1, 1, 4, 4, 3, 3], [0, 0, 1, 1, 4, 4, 3, 3]),
       "d": ([1, 0, 1, 1, 1, 4, 4, 4], [1, 0, 1, 1, 4, 3, 3, 3], [1, 0, 1, 1, 4, 3, 3, 3]),
       "e": ([1, 1, 2, 2, 1, 3, 3, 3], [1, 1, 2, 2, 3, 3, 2, 2], [1, 0, 2, 2, 3, 3, 3, 2]),
       "b": ([1, 1, 2, 2, 1, 3, 3, 3], [1, 1, 1, 1, 3, 3, 3, 3], [1, 0, 2, 1, 3, 3, 3, 3]),
       "z": ([0, 1, 2, 2, 2, 3, 3, 3], [0, 1, 2, 2, 2, 3, 3, 3], [1, 0, 2, 2, 2, 3, 3, 3])}[str(opt["bal"])]


def pack(ne):
    assert sum(ne) == 16
    e = [sum(ne[:k]) for k in range(8)]
    return hex(sum(v << (4 * k) for k, v in enumerate(e))), hex(sum(v << (4 * k) for k, v in enumerate(ne)))


(E3, N3), (E2, N2), (EL, NL) = map(pack, TAB)
A(f"""s_mov_b32 s78, {E2}
s_mov_b32 s79, {N2}
s_cmp_lt_u32 s81, s82
s_cselect_b32 s78, {E3}, s78
s_cselect_b32 s79, {N3}, s79
s_cmp_eq_u32 s81, 3
s_cselect_b32 s78, {EL}, s78
s_cselect_b32 s79, {NL}, s79
s_lshl_b32 s77, s80, 2
s_lshr_b32 s78, s78, s77
s_lshr_b32 s79, s79, s77
s_and_b32 s78, s78, 15
s_and_b32 s79, s79, 15
s_add_u32 s{sNKV}, s79, 6
s_add_u32 s{sU}, s3, s79
s_sub_u32 s{sU}, s{sU}, 6""")
A(f"""s_cmp_ge_u32 s3, 6
s_cbranch_scc1 L_own_unit
s_add_u32 s78, s78, 5
s_sub_u32 s78, s78, s3
s_lshr_b32 s77, s78, 1
s_lshl_b32 s77, s77, 3
s_and_b32 s78, s78, 1
s_add_u32 s77, s77, s78
s_and_b32 s78, s{sSLOT}, 0xf8
s_lshl_b32 s78, s78, 3
s_add_u32 s77, s77, s78
s_add_u32 s77, s77, 6
s_lshl_b32 s77, s77, 14
v_add_u32 v1, s77, v8
L_own_unit:""")
for i in range(4):
    A(f"s_mov_b32 s{sOFF+i}, {i*4096}")
koff = lambda i: (f"s{sOFF+i//4}", (i % 4) * 1024)
A(f"s_mov_b32 s{sHI}, 0xffff0000\ns_mov_b32 s{sMASK}, {TAGMASK}")
A(f"v_mov_b32 v{vL}, {MX}\nv_mov_b32 v{vONE}, 1")
A("s_waitcnt lgkmcnt(0)")
srd(rD, pX, 1024)
srd(rA, pK, 0x2000000)
srd(rB, pV, 0x2000000)
srd(rWS, pWS, 0x10000000)
st(6)
A("s_barrier")
A(f"s_cmp_lt_i32 s{sU}, 0\ns_cbranch_scc1 L_helper")


def kvload(base, i, r):
    so, io = koff(i)
    o = f" offset:{io}" if io else ""
    A(f"buffer_load_dwordx4 {V(base+4*i,4)}, v1, {R(r)}, {so} offen{o}{fl('kvfl')}")
    if opt["gap"] >= 0:
        A(f"s_nop {opt['gap']}")


if NE:
    A("s_cmp_ge_u32 s3, 6\ns_cbranch_scc1 L_k_rest")
    for i in range(NE):
        kvload(KR, i, rA)
    A("L_k_rest:")
for i in range(NE, 16):
    kvload(KR, i, rA)
for i in range(NV1):
    kvload(VR, i, rB)
if opt["shed"]:
    A(f"ds_write_b32 v{vL}, v{vONE} offset:{CI-MX}")
st(1)
A("""v_bfe_u32 v10, v0, 3, 1
v_mul_u32_u24 v10, 0x202, v10
v_add_u32 v10, 0x100, v10
v_and_b32 v11, 1, v0
v_lshlrev_b32 v11, 4, v11
v_lshlrev_b32 v10, v11, v10
v_mov_b32 v12, 0x0c0c0000
v_lshrrev_b32 v12, v11, v12
v_or_b32 v10, v10, v12
v_bfe_u32 v11, v0, 1, 2
v_mov_b32 v12, 0x0c0c0c0c""")
for i in range(4):
    A(f"v_cmp_eq_u32 vcc, {i}, v11\nv_cndmask_b32 v{6+i}, v12, v10, vcc")
A(f"s_mov_b32 s{sM1}, 0xcccccccc\ns_mov_b32 s{sM1+1}, 0xcccccccc\ns_mov_b32 s{sM0}, 0xaaaaaaaa\ns_mov_b32 s{sM0+1}, 0xaaaaaaaa")
A(f"s_mov_b32 s{sC2}, {f32(128 ** -0.5 * 1.4426950408889634)}")
A("v_and_b32 v32, 15, v0\nv_lshlrev_b32 v32, 4, v32")
A(f"v_lshrrev_b32 v34, 4, v0\nv_and_b32 v35, 7, v0\nv_lshl_add_u32 v34, v34, 3, v35\ns_lshl_b32 s{sT0}, s3, 9\nv_lshl_add_u32 v34, v34, 4, s{sT0}")
A("v_lshlrev_b32 v35, 3, v0")
A(f"s_lshl_b32 s{sT0}, s{sSLOT}, 9\ns_add_u32 s{sT0}, s{sT0}, {OS}\nv_lshl_add_u32 v36, v0, 3, s{sT0}")
A(f"s_lshl_b32 s{sT0}, s{sSLOT}, 4\ns_add_u32 s{sT0}, s{sT0}, {ST}\nv_mov_b32 v37, s{sT0}")
A(f"s_sub_u32 s{sN}, s{sNKV}, 1")
A(f"v_lshrrev_b32 v26, 1, v32\nv_add_u32 v26, {ML}, v26\ns_lshl_b32 s{sT0}, s3, 3\ns_add_u32 s{sT0}, s{sT0}, {ML}\nv_mov_b32 v27, s{sT0}")
spin(CQ, 1, 10, f"ds_read_b128 v[2:5], v32 offset:{QL}\nds_read_b64 v[28:29], v{vL} offset:{FAST-MX}", sleep=2)
st(2)
A(f"v_readfirstlane_b32 s{sFAST}, v28\nv_mov_b32 v{vT}, v29")
A(f"s_waitcnt vmcnt({NV1})")
for j in range(4):
    for i in range(16):
        c = "0" if j == 0 else f"v{10+i}"
        A(f"v_dot2_f32_bf16 v{10+i}, v{KR+4*i+j}, v{2+j}, {c}")
for i in range(8):
    A(f"v_add_f32_dpp v{10+i}, v{10+i}, v{10+i} row_ror:8 row_mask:0xf bank_mask:0x3")
    A(f"v_add_f32_dpp v{10+i}, v{18+i}, v{18+i} row_ror:8 row_mask:0xf bank_mask:0xc")
for i in range(4):
    A(f"v_add_f32_dpp v{10+i}, v{10+i}, v{10+i} row_ror:12 row_mask:0xf bank_mask:0x5")
    A(f"v_add_f32_dpp v{10+i}, v{14+i}, v{14+i} row_ror:4 row_mask:0xf bank_mask:0xa")
for i in range(4):
    A(f"v_add_f32_dpp v{10+i}, v{10+i}, v{10+i} quad_perm:[2,3,0,1] {DPP}")
for i in range(2):
    A(f"v_cndmask_b32 v{10+i}, v{10+i}, v{12+i}, s[{sM1}:{sM1+1}]")
for i in range(2):
    A(f"v_add_f32_dpp v{10+i}, v{10+i}, v{10+i} quad_perm:[1,0,3,2] {DPP}")
A(f"v_cndmask_b32 v10, v10, v11, s[{sM0}:{sM0+1}]")
A(f"v_mul_f32 v10, s{sC2}, v10")
A(f"v_max_f32_dpp v11, v10, v10 row_ror:8 {DPP}")
for n in (4, 2, 1):
    A(f"v_max_f32_dpp v11, v11, v11 row_ror:{n} {DPP}")
for sw in ("v_permlane16_swap_b32", "v_permlane32_swap_b32"):
    A(f"v_mov_b32 v12, v11\n{sw} v11, v12\nv_max_f32 v11, v11, v12")
A("v_sub_f32 v10, v10, v11\nv_exp_f32 v10, v10")
A("v_cvt_pk_bf16_f32 v13, v10, v10\nv_lshlrev_b32 v13, 16, v13\nv_sub_f32 v13, v10, v13\nv_cvt_pk_bf16_f32 v13, v10, v13")
wave_allreduce_add(10, 12)
A("v_mov_b32 v20, v11\nv_mov_b32 v21, v10\ns_mov_b64 exec, 1")
A(f"ds_write_b64 v27, v[20:21]\nds_max_f32 v{vL}, v11\nds_add_rtn_u32 v12, v{vL}, v{vONE} offset:{C1-MX}")
A("s_mov_b64 exec, -1")
A(f"ds_read_b64 v[22:23], v26\nds_read_b32 v20, v{vL}\ns_waitcnt lgkmcnt(0)")
A(f"v_readfirstlane_b32 s{sT0}, v12")
A(f"s_cmp_lg_u32 s{sT0}, s{sN}\ns_cbranch_scc1 L_kv_nost")
A("v_sub_f32 v22, v22, v20\nv_min_f32 v22, 0, v22\nv_exp_f32 v22, v22\nv_mul_f32 v21, v22, v23")
row_allreduce("v_add_f32", 21)
tag([20, 21])
A(f"v_mov_b32 v22, v{vT}\nv_mov_b32 v23, v{vT}\ns_mov_b64 exec, 1\ns_setprio 3")
store_fs(f"buffer_store_dwordx4 v[20:23], v37, {R(rWS)}, 0 offen")
A("s_setprio 0\ns_mov_b64 exec, -1")
st(7)
A("L_kv_nost:")
st(3)
for i in range(NV1, 16):
    kvload(VR, i, rB)
for t in range(16):
    A(f"v_mov_b32_dpp v{14+t%4}, v13 row_newbcast:{t} {DPP}")
    if t >= 1:
        for i in range(4):
            A(f"v_perm_b32 v{KR+4*(t-1)+i}, v{14+(t-1)%4}, v{14+(t-1)%4}, v{6+i}")
for i in range(4):
    A(f"v_perm_b32 v{KR+60+i}, v{14+15%4}, v{14+15%4}, v{6+i}")
spin(C1, f"s{sNKV}", 12, f"ds_read_b32 v19, v{vL}", sleep=2)
A("v_sub_f32 v11, v11, v19\nv_exp_f32 v11, v11")
st(4)
for t in range(16):
    A(f"s_waitcnt vmcnt({15-t})")
    c = "0" if t == 0 else "v[28:31]"
    A(f"v_mfma_f32_16x16x32_bf16 v[28:31], {V(VR+4*t,4)}, {V(KR+4*t,4)}, {c}")
st(5)
for i in range(4):
    A(f"v_add_f32_dpp v{28+i}, v{28+i}, v{28+i} row_ror:8 {DPP}")
for i in range(4):
    A(f"v_mul_f32 v{28+i}, v{28+i}, v11")
A("s_mov_b32 exec_lo, 0x00ff00ff\ns_mov_b32 exec_hi, 0x00ff00ff")
A(f"ds_write_b128 v34, v[28:31] offset:{OSL}")
A("s_mov_b64 exec, 1")
A(f"ds_add_rtn_u32 v12, v{vL}, v{vONE} offset:{C3-MX}")
A("s_mov_b64 exec, -1")
for w in range(2, 12):
    A(f"ds_read_b64 {V(KR+2*(w-2),2)}, v35 offset:{OSL+512*w}")
A("s_waitcnt lgkmcnt(6)")
A(f"v_readfirstlane_b32 s{sT0}, v12")
P = lambda k: V(KR + 2 * k, 2)
A(f"v_pk_add_f32 {P(0)}, {P(0)}, {P(1)}\nv_pk_add_f32 {P(2)}, {P(2)}, {P(3)}\ns_waitcnt lgkmcnt(2)")
A(f"v_pk_add_f32 {P(4)}, {P(4)}, {P(5)}\nv_pk_add_f32 {P(6)}, {P(6)}, {P(7)}\nv_pk_add_f32 {P(0)}, {P(0)}, {P(2)}\ns_waitcnt lgkmcnt(0)")
A(f"v_pk_add_f32 {P(8)}, {P(8)}, {P(9)}\nv_pk_add_f32 {P(4)}, {P(4)}, {P(6)}\nv_pk_add_f32 {P(0)}, {P(0)}, {P(8)}\nv_pk_add_f32 v[18:19], {P(0)}, {P(4)}")
tag([18, 19])
A(f"s_cmp_lg_u32 s{sT0}, s{sN}\ns_cbranch_scc1 L_kv_notlast")
store_fs(f"buffer_store_dwordx2 v[18:19], v36, {R(rWS)}, 0 offen")
A(f"ds_write_b32 v{vL}, v{vONE} offset:{C5-MX}")
st(6)
A("L_kv_notlast:")
A("L_kv_end:")
end_wave()

A("L_helper:")
A(f"""s_mov_b32 s{sROLE}, 0
s_lshl_b32 s{sR}, s81, 1
s_add_u32 s{sR}, s{sR}, s80
s_and_b32 s77, s{sR}, 3
s_cmp_eq_u32 s77, 3
s_cselect_b32 s77, 4, 0
s_xor_b32 s{sR}, s{sR}, s77
s_cmp_lt_u32 s80, 2
s_cbranch_scc1 L_role_done
s_mov_b32 s{sROLE}, 2
s_sub_u32 s80, s80, 2
s_cmp_lt_u32 s80, s83
s_cbranch_scc0 L_role_done
s_mov_b32 s{sROLE}, 1
s_min_u32 s82, s82, s81
s_lshl_b32 s{sR}, s81, 1
s_add_u32 s{sR}, s{sR}, s82
s_add_u32 s{sR}, s{sR}, s80
s_mul_i32 s82, s{sXG}, 11
s_add_u32 s{sR}, s{sR}, s82
s_cmp_eq_u32 s{sXG}, 7
s_subb_u32 s{sR}, s{sR}, 0
L_role_done:""")
A(f"s_cmp_ge_i32 s{sQB}, 0\ns_cbranch_scc1 L_q")
if opt["shed"]:
    A("s_cmp_eq_u32 s3, 0\ns_cbranch_scc0 L_notq")
    spin(CI, 1, 10, sleep=4)
    A(f"s_load_dword s{sN}, s[{pDBG}:{pDBG+1}], 0\ns_branch L_qnum")
    A("L_notq:")
A("s_cmp_ge_u32 s3, 4\ns_cbranch_scc1 L_idle")
A("s_branch L_roles")
A("L_idle:")
end_wave()

A("L_q:")
A("""v_and_b32 v28, 1, v0
v_lshlrev_b32 v28, 4, v28
v_mov_b32 v29, 0x100
v_lshlrev_b32 v29, v28, v29
v_mov_b32 v30, 0x0c0c0000
v_lshrrev_b32 v30, v28, v30
v_or_b32 v29, v29, v30
v_bfe_u32 v28, v0, 1, 3
v_mov_b32 v30, 0x0c0c0c0c""")
for i in range(4):
    A(f"v_cmp_eq_u32 vcc, {i}, v28\nv_cndmask_b32 v{20+i}, v30, v29, vcc")
A("s_waitcnt vmcnt(16)")
for j in range(4):
    A(f"v_lshlrev_b32 v{112+2*j}, 16, v{104+j}\nv_and_b32 v{113+2*j}, s{sHI}, v{104+j}")
A("v_add_f32 v36, v112, v113\nv_add_f32 v37, v114, v115\nv_add_f32 v34, v116, v117\nv_add_f32 v35, v118, v119")
A("v_add_f32 v36, v36, v37\nv_add_f32 v34, v34, v35\nv_add_f32 v36, v36, v34")
wave_allreduce_add(36, 37)
A(f"v_mul_f32 v36, {f32(1/512)}, v36")
for j in range(8):
    A(f"v_sub_f32 v{112+j}, v{112+j}, v36")
A("v_mul_f32 v37, v112, v112")
for j in range(1, 8):
    A(f"v_fmac_f32 v37, v{112+j}, v{112+j}")
wave_allreduce_add(37, 34)
A(f"v_mul_f32 v37, {f32(1/512)}, v37")
A(f"""v_cvt_pk_bf16_f32 v34, v36, v37
v_lshlrev_b32 v36, 16, v34
v_and_b32 v37, s{sHI}, v34
v_add_f32 v37, {f32(1e-5)}, v37
v_cvt_pk_bf16_f32 v37, v37, v37
v_and_b32 v37, s{sHI}, v37
v_sqrt_f32 v37, v37
v_cvt_pk_bf16_f32 v37, v37, v37
v_and_b32 v37, s{sHI}, v37
v_rcp_f32 v37, v37""")
for j in range(8):
    r = 12 + j
    A(f"""v_lshlrev_b32 v28, 16, v{r}
v_and_b32 v29, s{sHI}, v{r}
v_sub_f32 v28, v28, v36
v_sub_f32 v29, v29, v36
v_cvt_pk_bf16_f32 v30, v28, v29
v_lshlrev_b32 v28, 16, v30
v_and_b32 v29, s{sHI}, v30
v_mul_f32 v28, v28, v37
v_mul_f32 v29, v29, v37
v_cvt_pk_bf16_f32 v{r}, v28, v29""")
A(f"s_load_dword s{sN}, s[{pDBG}:{pDBG+1}], 0")
A("s_waitcnt vmcnt(0)")
st(1)
for t in range(16):
    src = 12 + t // 2
    if t % 2:
        A(f"v_lshrrev_b32 v{src}, 16, v{src}")
    b = 104 + 4 * (t % 2)
    for i in range(4):
        A(f"v_perm_b32 v{b+i}, v{src}, v{src}, v{20+i}")
    c = "0" if t == 0 else "v[24:27]"
    A(f"v_mfma_f32_16x16x32_bf16 v[24:27], {V(40+4*t,4)}, {V(b,4)}, {c}")
A("L_qnum:")
for k in range(1, 4):
    A(f"s_waitcnt lgkmcnt(0)\ns_cmp_lg_u32 s{sN}, 0\ns_cbranch_scc1 L_num_ok")
    if k > 1:
        A(f"s_sleep {opt['nsl']}")
    A(f"s_load_dword s{sN}, s[{pDBG}:{pDBG+1}], {64*k}")
srd(rA, pDBG, 256)
A(f"s_mov_b32 s{sCNT}, {opt['spin']}\nv_mov_b32 v3, 0\ns_waitcnt lgkmcnt(0)")
A(f"""L_num:
s_cmp_lg_u32 s{sN}, 0
s_cbranch_scc1 L_num_ok
s_sub_u32 s{sCNT}, s{sCNT}, 1
s_cbranch_scc1 L_num_ok
buffer_load_dword v4, v3, {R(rA)}, 0 offen sc1
s_waitcnt vmcnt(0)
v_readfirstlane_b32 s{sN}, v4
s_branch L_num
L_num_ok:""")
st(2)
A(f"s_and_b32 s{sT0}, s{sN}, s{sMASK}\nv_mov_b32 v{vT}, s{sT0}")
A(f"s_getreg_b32 s{sT1}, hwreg(HW_REG_XCC_ID)\ns_and_b32 s{sT1}, s{sT1}, 15\ns_lshl_b32 s{sN}, s{sN}, 4\ns_or_b32 s{sN}, s{sN}, s{sT1}")
A(f"v_and_b32 v3, 7, v0\ns_cmp_lt_i32 s{sQB}, 0\ns_cbranch_scc1 L_nopub")
A(f"s_and_b32 s{sT0}, s{sSLOT}, 0xf8\ns_add_u32 s{sT0}, s{sT0}, s{sQB}\ns_lshl_b32 s{sT0}, s{sT0}, 9\ns_add_u32 s{sT0}, s{sT0}, {QS}")
A(f"v_lshrrev_b32 v2, 4, v0\nv_lshl_add_u32 v2, v2, 3, v3\nv_lshl_add_u32 v2, v2, 4, s{sT0}")
tag([24, 25, 26, 27])
A("s_mov_b32 exec_lo, 0x00ff00ff\ns_mov_b32 exec_hi, 0x00ff00ff")
A(f"buffer_store_dwordx4 v[24:27], v2, {R(rWS)}, 0 offen{fl('qst')}")
A("s_mov_b64 exec, -1")
A("s_cmp_lg_u32 s3, 0\ns_cbranch_scc1 L_idle")
A("L_nopub:")
A(f"s_lshl_b32 s{sT1}, s{sXG}, 7\ns_add_u32 s{sT1}, s{sT1}, {XC}\nv_lshl_add_u32 v5, v3, 2, s{sT1}")
A(f"s_cmp_eq_u32 s{sROLE}, 0\ns_cbranch_scc0 L_noxc")
A(f"s_lshl_b32 s{sT0}, s{sR}, 2\ns_add_u32 s{sT0}, s{sT0}, s{sT1}\nv_mov_b32 v3, s{sT0}\nv_mov_b32 v4, s{sN}\ns_mov_b64 exec, 1")
A(f"buffer_store_dword v4, v3, {R(rWS)}, 0 offen{fl('xst')}")
A("s_mov_b64 exec, -1")
A("L_noxc:")
A(f"s_and_b32 s{sT0}, s{sSLOT}, 0xf8\ns_lshl_b32 s{sT0}, s{sT0}, 9\ns_add_u32 s{sT0}, s{sT0}, {QS}")
A(f"v_lshl_add_u32 v7, v0, 4, s{sT0}")
A("v_bfe_u32 v2, v0, 3, 2\nv_lshlrev_b32 v2, 2, v2\nv_lshrrev_b32 v3, 5, v0\nv_add_u32 v2, v2, v3\nv_and_b32 v3, 7, v0\nv_lshl_add_u32 v2, v2, 3, v3\nv_lshlrev_b32 v2, 1, v2")
if opt["otouch"]:
    A(f"s_lshl_b32 s{sT0}, s{sSLOT}, 9\ns_add_u32 s{sT0}, s{sT0}, {OS}\nv_lshl_add_u32 v9, v0, 3, s{sT0}")
    A(f"buffer_load_dword v28, v9, {R(rWS)}, 0 offen")
    A(f"s_lshl_b32 s{sT0}, s{sSLOT}, 4\ns_add_u32 s{sT0}, s{sT0}, {ST}\nv_mov_b32 v9, s{sT0}")
    A(f"buffer_load_dword v29, v9, {R(rWS)}, 0 offen")
if opt["qsl"]:
    A(f"s_sleep {opt['qsl']}")
else:
    A("s_waitcnt vmcnt(0)")
st(3)


def q_poll():
    for t in range(4):
        A(f"buffer_load_dwordx4 {V(112+4*t,4)}, v7, {R(rWS)}, 0 offen offset:{1024*t} sc1")
    A(f"buffer_load_dword v6, v5, {R(rWS)}, 0 offen sc1")


if not opt.get("noq"):
    poll(q_poll, list(range(112, 128)), 10)
A(f"v_cmp_ne_u32 vcc, s{sN}, v6\ns_cmp_eq_u64 vcc, 0\ns_cselect_b32 s{sFAST}, 1, 0")
A(f"v_mov_b32 v4, s{sFAST}\nv_mov_b32 v5, v{vT}\nds_write_b64 v{vL}, v[4:5] offset:{FAST-MX}")
for i in range(4):
    A(f"v_add_f32 v{112+i}, v{112+i}, v{116+i}\nv_add_f32 v{120+i}, v{120+i}, v{124+i}")
for i in range(4):
    A(f"v_add_f32 v{112+i}, v{112+i}, v{120+i}")
A("v_permlane32_swap_b32 v112, v113\nv_permlane32_swap_b32 v114, v115")
A("v_add_f32 v112, v112, v113\nv_add_f32 v114, v114, v115")
A("v_cvt_pk_bf16_f32 v112, v112, v114")
A(f"ds_write_b16 v2, v112 offset:{QL}\nds_write_b16_d16_hi v2, v112 offset:{QL+32}")
A(f"ds_write_b32 v{vL}, v{vONE} offset:{CQ-MX}")
st(4)

A("L_roles:")
A(f"s_cmp_eq_u32 s{sROLE}, 1\ns_cbranch_scc1 L_mlp")
A(f"s_cmp_eq_u32 s{sROLE}, 0\ns_cbranch_scc1 L_z")
end_wave()


def trigger(trig, loads):
    if opt.get("now"):
        return
    if trig != "start":
        off, n = {"q": (CQ, 1), "c1": (C1, f"s{sNKV}"), "c1h": (C1, 4), "c1a": (C1, 1), "c1b": (C1, 2), "c1c": (C1, 5)}[trig]
        spin(off, n, 10, sleep=4)
    loads()


A("L_z:")
if opt.get("cgx"):
    A(f"s_xor_b32 s{sR}, s{sR}, {opt['cgx']}")
ZB, ZO, ZST, ZA, ZD = 40, 104, 120, 124, 140
srd(rA, pWO, 0x400000)
A(f"s_lshl_b32 s{sT0}, s{sXG}, 2\ns_add_u32 s{sT0}, s{sT0}, s3\ns_lshl_b32 s{sT0}, s{sT0}, 17\ns_lshl_b32 s{sT1}, s{sR}, 7\ns_add_u32 s{sT0}, s{sT0}, s{sT1}")
A(f"v_bfe_u32 v1, v0, 3, 2\nv_lshrrev_b32 v2, 5, v0\nv_lshl_add_u32 v1, v1, 3, v2\nv_lshlrev_b32 v1, 10, v1\nv_and_b32 v2, 7, v0\nv_lshl_add_u32 v1, v2, 4, v1\nv_add_u32 v1, s{sT0}, v1")
A(f"s_lshl_b32 s{sIMG}, s3, 14\ns_add_u32 s{sIMG}, s{sIMG}, {WIMG}")
A(f"v_lshrrev_b32 v3, 4, v0\nv_lshlrev_b32 v3, 3, v3\nv_bfe_u32 v4, v0, 2, 2\nv_add_u32 v3, v3, v4\nv_lshlrev_b32 v3, 7, v3\nv_and_b32 v4, 3, v0\nv_lshl_add_u32 v3, v4, 3, v3\nv_add_u32 v3, s{sIMG}, v3")
A(f"s_lshl_b32 s{sT0}, s{sXG}, 5\ns_lshl_b32 s{sT1}, s3, 3\ns_add_u32 s{sT0}, s{sT0}, s{sT1}")
A(f"s_lshl_b32 s{sT1}, s{sT0}, 9\ns_add_u32 s{sT1}, s{sT1}, {OS}\nv_add_u32 v4, s{sT1}, v8")
A(f"s_lshl_b32 s{sT1}, s{sT0}, 4\ns_add_u32 s{sT1}, s{sT1}, {ST}\nv_lshl_add_u32 v5, v2, 4, s{sT1}")
A(f"s_lshl_b32 s{sT0}, s3, 8\ns_add_u32 s{sT0}, s{sT0}, {SCR}\nv_lshl_add_u32 v6, v0, 2, s{sT0}")
A(f"v_lshrrev_b32 v7, 4, v0\nv_lshl_add_u32 v7, v7, 4, s{sT0}")
A(f"v_subrev_u32 v25, {SCR-ZP}, v6")
A(f"v_and_b32 v9, 31, v0\nv_lshlrev_b32 v9, 3, v9\nv_lshrrev_b32 v10, 5, v0\nv_lshl_add_u32 v9, v10, 2, v9\nv_add_u32 v9, s{sT0}, v9")
A(f"s_lshl_b32 s{sT0}, s{sXG}, 3\ns_add_u32 s{sT0}, s{sT0}, s{sR}\ns_lshl_b32 s{sT0}, s{sT0}, 1\ns_and_b32 s{sT1}, s3, 1\ns_add_u32 s{sT0}, s{sT0}, s{sT1}\ns_lshl_b32 s{sT0}, s{sT0}, 2")
A(f"v_lshrrev_b32 v20, 4, v0\nv_add_u32 v20, s{sT0}, v20\nv_lshlrev_b32 v21, 1, v20\nv_lshlrev_b32 v20, 2, v20\nv_add_u32 v20, {ZS}, v20")
A(f"s_lshl_b32 s{sT0}, s{sT0}, 2\nv_lshlrev_b32 v22, 11, v0\nv_add_u32 v22, s{sT0}, v22\nv_add_u32 v23, {64*2048}, v22")
A(f"s_lshl_b32 s{sT0}, s{sXG}, 11\ns_lshl_b32 s{sT1}, s{sR}, 8\ns_add_u32 s{sT0}, s{sT0}, s{sT1}\ns_add_u32 s{sT0}, s{sT0}, {ZS}\nv_add_u32 v24, s{sT0}, v8")
srd(rC, pWS, NMLP * 2048, PS)
srd(rB, pOUT, 1024)


def z_loads():
    if opt["ptouch"]:
        A(f"buffer_load_dword v28, v24, {R(rWS)}, 0 offen")
    A(f"buffer_load_ushort v26, v21, {R(rD)}, 0 offen")
    for t in range(16 if not opt.get("nowo") else 0):
        A(f"s_add_u32 m0, s{sIMG}, {t*1024}\ns_mov_b32 s{sT1}, {((t>>2)*32+(t&3)*2)*1024}")
        A(f"buffer_load_dwordx4 v1, {R(rA)}, s{sT1} offen{fl('wofl')} lds")


def z_prep():
    for kb in range(4):
        for nt in range(4):
            for hf in range(2):
                A(f"ds_read_b64_tr_b16 {V(ZB+(kb*4+nt)*4+2*hf,2)}, v3 offset:{kb*4096+hf*512+nt*32}")


def zs_poll():
    A(f"buffer_load_dwordx4 {V(ZST,4)}, v5, {R(rWS)}, 0 offen sc1")


def z_poll():
    for t in range(4):
        A(f"buffer_load_dwordx4 {V(ZO+4*t,4)}, v4, {R(rWS)}, 0 offen offset:{1024*t} sc1")


trigger(opt["trigz"], z_loads)
A("s_waitcnt vmcnt(0)")
z_prep()
st(5)
spin(C1, f"s{sNKV}", 10, f"ds_read_b32 v{vT}, v{vL} offset:{TAG-MX}")
poll(zs_poll, list(range(ZST, ZST + 4)), 10, sleep=opt["ssl"])
A(f"""v_max_f32_dpp v16, v{ZST}, v{ZST} quad_perm:[1,0,3,2] {DPP}
v_max_f32_dpp v16, v16, v16 quad_perm:[2,3,0,1] {DPP}
v_max_f32_dpp v16, v16, v16 row_half_mirror {DPP}
v_sub_f32 v16, v{ZST}, v16
v_exp_f32 v16, v16
v_mul_f32 v11, v16, v{ZST+1}
v_add_f32_dpp v11, v11, v11 quad_perm:[1,0,3,2] {DPP}
v_add_f32_dpp v11, v11, v11 quad_perm:[2,3,0,1] {DPP}
v_add_f32_dpp v11, v11, v11 row_half_mirror {DPP}
v_rcp_f32 v11, v11
v_mul_f32 v16, v16, v11
v_mov_b32_dpp v16, v16 row_ror:15 row_mask:0xc bank_mask:0xf""")
spin(C3, f"s{sNKV}", 10)
st(2)
if opt["p2"] & 1:
    poll2([(f"buffer_load_dwordx4 {V(ZO+4*t,4)}, v4, {R(rWS)}, 0 offen offset:{1024*t} sc1", [ZO + 4 * t, ZO + 4 * t + 2], None) for t in range(4)], 10, depth=opt["dz"])
else:
    poll(z_poll, [ZO + 2 * k for k in range(8)], 10, sleep=opt["zsl"])
if STAMPS:
    A(f"s_sub_u32 s{sFAST}, {opt['spin']*4}, s{sCNT}")
if opt.get("diag"):
    A("s_memrealtime s[98:99]")
st(6)
for t in range(4):
    for i in range(4):
        op = "v_mul_f32_dpp" if t == 0 else "v_fmac_f32_dpp"
        A(f"{op} v{12+i}, v16, v{ZO+4*t+i} row_newbcast:{2*t} {DPP}")
A("v_permlane32_swap_b32 v12, v14\nv_permlane32_swap_b32 v13, v15")
A("v_add_f32 v12, v12, v14\nv_add_f32 v13, v13, v15")
A("v_cvt_pk_bf16_f32 v12, v12, v13\nds_write_b32 v9, v12")
for kb in range(4):
    A(f"ds_read_b128 {V(ZA+4*kb,4)}, v7 offset:{64*kb}")
for kb in range(4):
    A(f"s_waitcnt lgkmcnt({3-kb})")
    for nt in range(4):
        c = "0" if kb == 0 else V(ZD + 4 * nt, 4)
        A(f"v_mfma_f32_16x16x32_bf16 {V(ZD+4*nt,4)}, {V(ZA+4*kb,4)}, {V(ZB+(kb*4+nt)*4,4)}, {c}")
for nt in range(1, 4):
    A(f"v_mov_b32_dpp v{ZD}, v{ZD+4*nt} quad_perm:[0,1,2,3] row_mask:{hex(1<<nt)} bank_mask:0xf")
A(f"ds_write_b32 v6, v{ZD} offset:{ZP-SCR+65536-65536}" if ZP >= SCR else f"ds_write_b32 v25, v{ZD}")
A("s_mov_b64 exec, 1")
A(f"ds_add_rtn_u32 v10, v{vL}, v{vONE} offset:{C4-MX}")
A("s_mov_b64 exec, 0xffff")
for w in range(4):
    A(f"ds_read_b128 {V(12 if w == 0 else ZA+4*w,4)}, v8 offset:{ZP+256*w}")
A("s_waitcnt lgkmcnt(2)")
A(f"v_readfirstlane_b32 s{sT0}, v10")
A(f"v_pk_add_f32 v[12:13], v[12:13], {V(ZA+4,2)}\nv_pk_add_f32 v[14:15], v[14:15], {V(ZA+6,2)}\ns_waitcnt lgkmcnt(0)")
A(f"v_pk_add_f32 {V(ZA+8,2)}, {V(ZA+8,2)}, {V(ZA+12,2)}\nv_pk_add_f32 {V(ZA+10,2)}, {V(ZA+10,2)}, {V(ZA+14,2)}")
A(f"v_pk_add_f32 v[12:13], v[12:13], {V(ZA+8,2)}\nv_pk_add_f32 v[14:15], v[14:15], {V(ZA+10,2)}")
tag([12, 13, 14, 15])
A(f"s_cmp_lg_u32 s{sT0}, 3\ns_cbranch_scc1 L_z_notlast")
A(f"buffer_store_dwordx4 v[12:15], v24, {R(rWS)}, 0 offen sc1")
st(7)
A("L_z_notlast:")
A("s_mov_b64 exec, -1")
A(f"s_sub_u32 s{sT0}, s3, 1\ns_cmp_lt_u32 s{sT0}, 2\ns_cbranch_scc1 L_fin")
end_wave()
A("L_fin:")


def f_poll1():
    for x in range(8):
        A(f"buffer_load_dword v{104+x}, v20, {R(rWS)}, s{sOFF+x//2} offen offset:{2048*(x%2)} sc1")


if opt["f1delay"]:
    A(f"s_sleep {opt['f1delay']}")
poll(f_poll1, list(range(104, 112)), 10, sleep=opt["fsl"])
st(1)


def f_poll2():
    A(f"buffer_load_dwordx4 v[112:115], v22, {R(rC)}, 0 offen sc1")
    A(f"buffer_load_dwordx4 v[116:119], v23, {R(rC)}, 0 offen sc1")


def f_h():
    A("""v_add_f32 v104, v104, v106
v_add_f32 v105, v105, v107
v_add_f32 v104, v104, v108
v_add_f32 v105, v105, v109
v_add_f32 v104, v104, v110
v_add_f32 v105, v105, v111
v_add_f32 v104, v104, v105
v_lshlrev_b32 v26, 16, v26
v_add_f32 v104, v104, v26
v_cvt_pk_bf16_f32 v104, v104, v104
v_lshlrev_b32 v104, 16, v104""")


f_h()
if opt["fdelay"]:
    A(f"s_sleep {opt['fdelay']}")
if opt["p2"] & 4:
    poll2([(f"buffer_load_dwordx4 v[112:115], v22, {R(rC)}, 0 offen sc1", [112, 113, 114, 115], None),
           (f"buffer_load_dwordx4 v[116:119], v23, {R(rC)}, 0 offen sc1", [116, 117, 118, 119], (1 << (NMLP - 64)) - 1)], 10, depth=opt["df"])
else:
    poll(f_poll2, list(range(112, 116)), 10, None, masked=((1 << (NMLP - 64)) - 1, list(range(116, 120))))
st(2)
for i in range(4):
    A(f"v_add_f32 v{112+i}, v{112+i}, v{116+i}")
A("v_permlane32_swap_b32 v112, v114\nv_permlane32_swap_b32 v113, v115")
A("v_add_f32 v112, v112, v114\nv_add_f32 v113, v113, v115")
A("v_permlane16_swap_b32 v112, v113\nv_add_f32 v112, v112, v113")
row_allreduce("v_add_f32", 112)
if "eps" in opt:
    A(f"v_mul_f32 v112, {f32(1 + opt['eps'] / 1000)}, v112")
A("v_add_f32 v112, v112, v104\nv_cvt_pk_bf16_f32 v112, v112, v112")
A("s_mov_b32 exec_lo, 0x00010001\ns_mov_b32 exec_hi, 0x00010001")
A(f"buffer_store_short v112, v21, {R(rB)}, 0 offen{fl('outfl')}")
if opt.get("diag"):
    A(f"s_cmp_eq_u32 s{sI}, 0\ns_cbranch_scc0 L_exit\ns_cmp_eq_u32 s3, 1\ns_cbranch_scc0 L_exit")
    A("s_memrealtime s[96:97]\ns_waitcnt lgkmcnt(0)")
    if "amp" in opt:
        if opt["amp"] != 8:
            A(f"s_cmp_eq_u32 s{sXG}, {opt['amp']}\ns_cbranch_scc0 L_exit")
        if opt.get("ampsrc") == "o":
            A("s_sub_u32 s94, s98, s100")
        else:
            A("s_sub_u32 s94, s96, s100")
        A("s_lshl_b32 s94, s94, 2\nL_amp:\ns_memrealtime s[92:93]\ns_waitcnt lgkmcnt(0)\ns_sub_u32 s92, s92, s96\ns_cmp_lt_u32 s92, s94\ns_cbranch_scc1 L_amp")
    srd(rA, pDBG, 64)
    A(f"s_sub_u32 s96, s96, s100\ns_sub_u32 s98, s98, s100\ns_lshl_b32 s100, s100, 16\ns_or_b32 s96, s96, s100")
    A(f"s_lshl_b32 s{sT0}, s{sXG}, 2\nv_mov_b32 v1, s{sT0}\nv_mov_b32 v2, s96\nv_mov_b32 v3, s98\ns_mov_b64 exec, 1")
    A(f"buffer_store_dword v2, v1, {R(rA)}, 0 offen offset:4 sc1\nbuffer_store_dword v3, v1, {R(rA)}, 0 offen offset:36 sc1")
st(3)
end_wave()

A("L_mlp:")
srd(rA, pWG, 512 * 2752)
srd(rB, pWU, 512 * 2752)
srd(rC, pWD, 1376 * 1024)
A(f"s_lshl_b32 s{sT0}, s3, 7\nv_lshrrev_b32 v1, 1, v0\nv_add_u32 v1, s{sT0}, v1\nv_mul_u32_u24 v1, 2752, v1")
A(f"v_and_b32 v2, 1, v0\nv_lshl_add_u32 v1, v2, 4, v1\ns_lshl_b32 s{sT0}, s{sR}, 5\nv_add_u32 v1, s{sT0}, v1")
A(f"s_lshl_b32 s{sIMG}, s3, 14\ns_add_u32 s{sIMG}, s{sIMG}, {WIMG}")
A(f"v_lshrrev_b32 v3, 4, v0\nv_lshlrev_b32 v3, 3, v3\nv_bfe_u32 v4, v0, 2, 2\nv_add_u32 v3, v3, v4\nv_lshlrev_b32 v3, 5, v3\nv_and_b32 v2, 3, v0\nv_lshl_add_u32 v3, v2, 3, v3\nv_add_u32 v3, s{sIMG}, v3")
A(f"s_lshl_b32 s{sT0}, s3, 9\ns_add_u32 s{sT0}, s{sT0}, {ZS}\nv_lshrrev_b32 v2, 5, v0\nv_and_b32 v5, 31, v0\nv_lshlrev_b32 v4, 11, v2\nv_lshl_add_u32 v4, v5, 4, v4\nv_add_u32 v4, s{sT0}, v4")
A(f"v_lshlrev_b32 v5, 3, v5\nv_lshl_add_u32 v5, v2, 2, v5\ns_lshl_b32 s{sT0}, s3, 8\nv_add_u32 v5, s{sT0}, v5\nv_add_u32 v6, {SCR}, v5")
A(f"s_add_u32 s{sT0}, s{sT0}, {SCR}\nv_lshrrev_b32 v7, 4, v0\nv_lshl_add_u32 v7, v7, 4, s{sT0}")
A("v_lshlrev_b32 v9, 2, v0")
A(f"s_lshl_b32 s{sT0}, s{sR}, 14\ns_lshl_b32 s{sT1}, s3, 8\ns_add_u32 s{sT0}, s{sT0}, s{sT1}")
A(f"v_lshrrev_b32 v20, 4, v0\nv_lshlrev_b32 v20, 10, v20\nv_and_b32 v19, 15, v0\nv_lshl_add_u32 v20, v19, 4, v20\nv_add_u32 v20, s{sT0}, v20")
A(f"s_add_u32 s{sT0}, s{sIMG}, 8192\nv_add_u32 v19, s{sT0}, v9")
A(f"s_lshl_b32 s{sT0}, s{sR}, 11\ns_lshl_b32 s{sT1}, s3, 9\ns_add_u32 s{sT0}, s{sT0}, s{sT1}\ns_add_u32 s{sT0}, s{sT0}, {PS}\nv_lshl_add_u32 v21, v0, 3, s{sT0}")
A(f"v_and_b32 v22, 15, v0\nv_lshlrev_b32 v22, 3, v22\ns_lshl_b32 s{sT0}, s3, 7\ns_add_u32 s{sT0}, s{sT0}, {ZP}\nv_add_u32 v25, s{sT0}, v22")
A(f"v_lshrrev_b32 v23, 5, v0\nv_lshlrev_b32 v23, 2, v23\nv_add_u32 v23, {SQ}, v23\nv_mov_b32 v24, {SQ}")
for i in range(4):
    A(f"v_mov_b32 v{116+i}, 0x3f803f80")
A(f"s_mov_b32 s{sM1}, 0x05040100\ns_mov_b32 s{sM1+1}, 0x07060302")


NPRE = 4 - opt["npost"]


def gu_loads(ts):
    for t in ts:
        A(f"s_add_u32 m0, s{sIMG}, {t*1024}\ns_mov_b32 s{sT1}, {t*32*2752}")
        A(f"buffer_load_dwordx4 v1, {R(rA)}, s{sT1} offen{fl('gufl')} lds")
        A(f"s_add_u32 m0, s{sIMG}, {4096+t*1024}")
        A(f"buffer_load_dwordx4 v1, {R(rB)}, s{sT1} offen{fl('gufl')} lds")


def wd_loads():
    for t in range(4):
        A(f"s_add_u32 m0, s{sIMG}, {8192+t*1024}\ns_nop 0")
        A(f"buffer_load_dwordx4 v20, {R(rC)}, s{sOFF+t} offen{fl('wdfl')} lds")


def wd_prep():
    for r in range(0, 16, 2):
        A(f"ds_read2st64_b32 {V(120+r,2)}, v19 offset0:{r} offset1:{r+1}")
    A("s_waitcnt lgkmcnt(0)")
    for i in range(8):
        A(f"v_perm_b32 v{136+i}, v{121+2*i}, v{120+2*i}, s{sM1}\nv_perm_b32 v{144+i}, v{121+2*i}, v{120+2*i}, s{sM1+1}")


def gu_prep(kbs, mid=None):
    if not len(kbs):
        return
    for kb in kbs:
        for tl in range(2):
            for hf in range(2):
                A(f"ds_read_b64_tr_b16 {V(40+(kb*2+tl)*4+2*hf,2)}, v3 offset:{kb*1024+hf*128+tl*4096}")
    if mid:
        mid()
    A("s_waitcnt lgkmcnt(0)")
    for kb in kbs:
        for tl in range(2):
            c = "0" if kb == 0 else V(108 + 4 * tl, 4)
            A(f"v_mfma_f32_16x16x32_bf16 {V(108+4*tl,4)}, v[116:119], {V(40+(kb*2+tl)*4,4)}, {c}")


def colsum_out():
    A("s_mov_b64 exec, 0xffff")
    A(f"ds_add_f32 v22, v108 offset:{CS}\nds_add_f32 v22, v112 offset:{CS+4}")
    A("s_mov_b64 exec, -1")


def m_loads():
    if opt["ptouch"]:
        A(f"buffer_load_dword v28, v21, {R(rWS)}, 0 offen")
    A(f"buffer_load_dword v26, v5, {R(rD)}, 0 offen")
    gu_loads(range(NPRE))
    if not opt["wdpost"]:
        wd_loads()


trigger(opt["trigm"], m_loads)
st(5)
A("s_waitcnt vmcnt(0)")
gu_prep(range(NPRE), None if opt["wdpost"] else wd_prep)
if NPRE == 4:
    colsum_out()
A(f"v_lshlrev_b32 v27, 16, v26\nv_and_b32 v26, s{sHI}, v26")
A(f"v_mov_b32 v30, 0\nv_mov_b32 v31, 0\nv_mov_b32 v29, {f32(1/512)}")
spin(C5, 1, 10, f"ds_read_b32 v{vT}, v{vL} offset:{TAG-MX}")
st(2)
if opt["wdelay"]:
    A(f"s_sleep {opt['wdelay']}")
gu_loads(range(NPRE, 4))
if opt["wdpost"]:
    wd_loads()
if opt["mwait"]:
    A("s_waitcnt vmcnt(0)")
    gu_prep(range(NPRE, 4), wd_prep if opt["wdpost"] else None)
    colsum_out()
    st(1)


def m_poll():
    for t in range(4):
        A(f"buffer_load_dwordx4 {V(72+4*t,4)}, v4, {R(rWS)}, s{sOFF+t} offen sc1")


def m_post():
    if opt["mwait"]:
        return
    if NPRE < 4 or opt["wdpost"]:
        A("s_waitcnt vmcnt(4)")
    if NPRE < 4:
        gu_prep(range(NPRE, 4), wd_prep if opt["wdpost"] else None)
        colsum_out()
    elif opt["wdpost"]:
        wd_prep()
    st(1)


if opt["p2"] & 2:
    poll2([(f"buffer_load_dwordx4 {V(72+4*t,4)}, v4, {R(rWS)}, s{sOFF+t} offen sc1", [72 + 4 * t], None) for t in range(4)], 10, m_post, depth=opt["dm"])
else:
    poll(m_poll, [72, 76, 80, 84], 10, m_post, sleep=opt["msl"])
if STAMPS:
    A(f"s_sub_u32 s{sFAST}, {opt['spin']*4}, s{sCNT}")
st(6)
for t in range(1, 4):
    for i in (0, 2):
        A(f"v_pk_add_f32 {V(72+i,2)}, {V(72+i,2)}, {V(72+4*t+i,2)}")
A("v_permlane32_swap_b32 v72, v74\nv_permlane32_swap_b32 v73, v75")
A("""v_add_f32 v72, v72, v74
v_add_f32 v73, v73, v75
v_add_f32 v72, v72, v27
v_add_f32 v73, v73, v26
v_cvt_pk_bf16_f32 v72, v72, v73
ds_write_b32 v6, v72""")
for kb in range(4):
    A(f"ds_read_b128 {V(92+4*kb,4)}, v7 offset:{64*kb}")
A(f"""v_lshlrev_b32 v73, 16, v72
v_and_b32 v72, s{sHI}, v72
v_add_f32 v74, v72, v73
v_mul_f32 v75, v72, v72
v_fmac_f32 v75, v73, v73""")
A("v_permlane32_swap_b32 v74, v75\nv_add_f32 v74, v74, v75")
rr = [8, 4, 2, 1]
for kb in range(4):
    A(f"s_waitcnt lgkmcnt({3-kb})")
    for tl in range(2):
        c = "0" if kb == 0 else V(108 + 4 * tl, 4)
        A(f"v_mfma_f32_16x16x32_bf16 {V(108+4*tl,4)}, {V(92+4*kb,4)}, {V(40+(kb*2+tl)*4,4)}, {c}")
    A(f"v_add_f32_dpp v74, v74, v74 row_ror:{rr[kb]} {DPP}")
A("s_mov_b32 exec_lo, 0x00010001\ns_mov_b32 exec_hi, 0x00010001")
A("ds_add_f32 v23, v74")
A("s_mov_b64 exec, 0xffff")
A("ds_write2_b32 v25, v108, v112 offset0:0 offset1:1")
A("s_mov_b64 exec, -1")
A("s_waitcnt lgkmcnt(0)\ns_barrier")
A(f"ds_read_b64 v[16:17], v24\nds_read_b64 v[14:15], v22 offset:{CS}")
for w in range(4):
    A(f"ds_read_b64 {V(12 if w == 0 else 92+2*w,2)}, v22 offset:{ZP+128*w}")
A(f"""s_waitcnt lgkmcnt(5)
v_mul_f32 v16, v16, v29
v_fmaak_f32 v17, v17, v29, {f32(1e-5)}
v_fma_f32 v17, -v16, v16, v17
v_max_f32 v17, {f32(1e-5)}, v17
v_rsq_f32 v17, v17
s_waitcnt lgkmcnt(0)
v_pk_add_f32 v[12:13], v[12:13], v[94:95]
v_pk_add_f32 v[96:97], v[96:97], v[98:99]
v_pk_add_f32 v[12:13], v[12:13], v[96:97]
v_mul_f32 v18, {f32(-1.4426950408889634)}, v17
v_fma_f32 v12, -v16, v14, v12
v_fma_f32 v13, -v16, v15, v13
v_mul_f32 v12, v12, v18
v_exp_f32 v12, v12
v_mul_f32 v13, v13, v17
v_add_f32 v12, 1.0, v12
v_rcp_f32 v12, v12
s_nop 0
v_mul_f32 v12, v12, v13
v_mov_b32_dpp v13, v12 quad_perm:[1,0,3,2] {DPP}
v_cvt_pk_bf16_f32 v12, v12, v13""")
for i in range(8):
    A(f"v_dot2c_f32_bf16_dpp v30, v12, v{136+i} row_newbcast:{2*i} {DPP}")
    A(f"v_dot2c_f32_bf16_dpp v31, v12, v{144+i} row_newbcast:{2*i} {DPP}")
tag([30, 31])
A(f"buffer_store_dwordx2 v[30:31], v21, {R(rWS)}, 0 offen sc1")
st(7)
end_wave()

if STAMPS:
    A("L_stamps:")
    A("s_mov_b64 exec, 1")
    A("s_waitcnt lgkmcnt(0)\ns_memrealtime s[4:5]\ns_waitcnt lgkmcnt(0)\ns_memtime s[6:7]")
    A(f"s_mul_i32 s{sT0}, s2, 12\ns_add_u32 s{sT0}, s{sT0}, s3\ns_lshl_b32 s{sT0}, s{sT0}, 6\ns_add_u32 s{sT0}, s{sT0}, {STAMP}")
    A(f"v_mov_b32 v1, s{sT0}\ns_waitcnt lgkmcnt(0)")
    for k in range(8):
        A(f"v_mov_b32 v{4+k}, s{sST+2*k}")
    A("v_mov_b32 v12, s100\nv_mov_b32 v13, s4\nv_mov_b32 v14, s6\nv_mov_b32 v15, s{0}".format(sFAST))
    A(f"v_mov_b32 v16, s{sROLE}\nv_mov_b32 v17, s{sNKV}\nbuffer_store_dwordx2 v[16:17], v1, {R(rWS)}, 0 offen offset:48")
    A(f"buffer_store_dwordx4 v[4:7], v1, {R(rWS)}, 0 offen\nbuffer_store_dwordx4 v[8:11], v1, {R(rWS)}, 0 offen offset:16\nbuffer_store_dwordx4 v[12:15], v1, {R(rWS)}, 0 offen offset:32")
A("L_exit:")
A("s_endpgm")
A("L_last:")

body, problems = fix_hazards(L)
for p in problems:
    print("HAZARD:", p, file=sys.stderr)
for line in body:
    out.append(line if line.endswith(":") else "    " + line)
if lst:
    out.append(""".globl noop_kernel
.p2align 8
.type noop_kernel,@function
noop_kernel:
    s_endpgm
.section .rodata,"a"
.p2align 6
.amdhsa_kernel noop_kernel
  .amdhsa_next_free_vgpr 8
  .amdhsa_next_free_sgpr 16
  .amdhsa_accum_offset 8
  .amdhsa_group_segment_fixed_size 0
  .amdhsa_kernarg_size 96
  .amdhsa_user_sgpr_count 2
  .amdhsa_user_sgpr_kernarg_segment_ptr 1
  .amdhsa_system_sgpr_workgroup_id_x 1
.end_amdhsa_kernel""")
out.append(f""".section .rodata,"a"
.p2align 6
.amdhsa_kernel {NAME}_kernel
  .amdhsa_next_free_vgpr 168
  .amdhsa_next_free_sgpr 102
  .amdhsa_accum_offset 168
  .amdhsa_group_segment_fixed_size 0
  .amdhsa_kernarg_size 96
  .amdhsa_user_sgpr_count 2
  .amdhsa_user_sgpr_kernarg_segment_ptr 1
  .amdhsa_system_sgpr_workgroup_id_x 1
  .amdhsa_float_denorm_mode_32 3
.end_amdhsa_kernel""")
open(sys.argv[1], "w").write("\n".join(out) + "\n")
```

```python
import sys, struct
from asmlib import fix_hazards

NAME = "sequential_preLN__mha_block_cached__glu_gated_glu__decode"
opt = dict(stamps=0, nv1=6, trigz="c1", trigm="c1h", pat="A", kvfl="nt", wqfl="nt", wofl="nt", gufl="plain",
           wdfl="nt", fast=1, pf=2, gap=0, prio=0, bal="a", early=4, p2=0, outfl="plain", mwait=1, shed=0, wdelay=0, f1delay=0, dz=0, dm=0, df=0, otouch=1, npost=4, wdpost=1, qsl=0, qst="sc1", xst="sc1", ssl=0, zsl=0, msl=0, fsl=0, mdelay=0, bfirst=0, fdelay=31, ptouch=1, nsl=12, spin=20000)
for a in sys.argv[2:]:
    k, v = a.split("=")
    opt[k] = v if not v.lstrip("-").isdigit() else int(v)
STAMPS = opt["stamps"]
NV1 = opt["nv1"]


def fl(name):
    v = opt[name]
    return "" if v == "plain" else " " + v.replace("+", " ")


def f32(x):
    return "0x%08x" % struct.unpack("<I", struct.pack("<f", x))[0]


QS, OS, ST, ZS, XC, EPOCH, PS, STAMP = 0x0, 0x20000, 0x40000, 0x41000, 0x45000, 0x46000, 0x48000, 0x80000
NMLP = 86
TAGMASK = 0x3ff
QL, MX, LACC, SQ, CS, ZP, SCR, OSL, WIMG = 0, 256, 260, 272, 1024, 1536, 3072, 4096, 10240
CQ, C1, C5, C3, C4, CI, FAST, TAG, ML = 280, 284, 288, 292, 296, 300, 304, 308, 384
LDS_BYTES = WIMG + 4 * 16384
pX, pK, pV, pWQ, pWO, pWG, pWU, pWD, pOUT, pDBG, pWS = 4, 6, 8, 10, 12, 16, 18, 20, 22, 24, 26
rA, rB, rWS, rC, rD = 28, 32, 36, 44, 48
sNKV, sROLE, sMASK, sN = 40, 41, 42, 43
sXG, sI, sSLOT, sR, sT0, sT1, sCNT, sFAST = 52, 53, 54, 55, 56, 57, 58, 59
sM1, sM0, sU, sIMG, sC2, sHI, sQB = 60, 62, 64, 65, 66, 67, 76
sOFF = 68
sST = 84
vT = 38
vONE = 39
vL = 33

L = []


def A(s):
    for line in s.split("\n"):
        line = line.strip()
        if line:
            L.append(line)


def srd(r, p, size, add=None):
    if add is None:
        A(f"s_mov_b32 s{r}, s{p}\ns_mov_b32 s{r+1}, s{p+1}")
    else:
        A(f"s_add_u32 s{r}, s{p}, {add}\ns_addc_u32 s{r+1}, s{p+1}, 0")
    A(f"s_mov_b32 s{r+2}, {hex(size)}\ns_mov_b32 s{r+3}, 0x20000")


def R(r):
    return f"s[{r}:{r+3}]"


def V(a, n):
    return f"v[{a}:{a+n-1}]"


def st(k):
    if STAMPS and str(k) not in str(opt.get("nost", "")):
        A(f"s_memtime s[{sST+2*k}:{sST+2*k+1}]")


def end_wave():
    A("s_branch L_stamps" if STAMPS else "s_endpgm")


DPP = "row_mask:0xf bank_mask:0xf"


def row_allreduce(op, a):
    for n in (8, 4, 2, 1):
        A(f"{op}_dpp v{a}, v{a}, v{a} row_ror:{n} {DPP}")


def wave_allreduce_add(a, t):
    row_allreduce("v_add_f32", a)
    for sw in ("v_permlane16_swap_b32", "v_permlane32_swap_b32"):
        A(f"v_mov_b32 v{t}, v{a}\n{sw} v{a}, v{t}\nv_add_f32 v{a}, v{a}, v{t}")


def tag(regs):
    for r in regs:
        A(f"v_bfi_b32 v{r}, s{sMASK}, v{vT}, v{r}")


uid = [0]


def poll(loads, regs, tmp, between=None, masked=None, sleep=0):
    uid[0] += 1
    u = uid[0]
    loads()
    if between:
        between()
    A(f"s_mov_b32 s{sCNT}, {opt['spin']}")
    A(f"L_poll{u}:")
    A("s_waitcnt vmcnt(0)")
    rs = list(regs)
    A(f"v_xor_b32 v{tmp}, v{rs[0]}, v{vT}\nv_xor_b32 v{tmp+1}, v{rs[1]}, v{vT}")
    for n, r in enumerate(rs[2:]):
        A(f"v_bitop3_b32 v{tmp+n%2}, v{tmp+n%2}, v{r}, v{vT} bitop3:0xf6")
    if masked:
        A(f"s_mov_b64 exec, {hex(masked[0])}")
        for n, r in enumerate(masked[1]):
            A(f"v_bitop3_b32 v{tmp+n%2}, v{tmp+n%2}, v{r}, v{vT} bitop3:0xf6")
        A("s_mov_b64 exec, -1")
    A(f"v_bitop3_b32 v{tmp}, v{tmp}, v{tmp+1}, s{sMASK} bitop3:0xa8")
    A(f"v_cmp_ne_u32 vcc, 0, v{tmp}")
    A(f"s_cbranch_vccz L_ok{u}")
    A(f"s_sub_u32 s{sCNT}, s{sCNT}, 1\ns_cbranch_scc1 L_ok{u}")
    if sleep:
        A(f"s_sleep {sleep}")
    loads()
    A(f"s_branch L_poll{u}")
    A(f"L_ok{u}:")


def poll2(items, tmp, between=None, m0=72, depth=0):
    uid[0] += 1
    u = uid[0]
    if depth:
        for _, regs, _ in items:
            A(f"v_not_b32 v{regs[0]}, v{vT}")
    for ld, _, _ in items:
        A(ld)
    if between:
        between()
    A(f"s_mov_b32 s{sCNT}, {opt['spin'] * (4 if depth else 1)}")
    A(f"L_poll{u}:")
    A(f"s_waitcnt vmcnt({depth})")
    for k, (_, regs, _) in enumerate(items):
        t = tmp + k
        if len(regs) == 1:
            A(f"v_bitop3_b32 v{t}, v{regs[0]}, v{vT}, s{sMASK} bitop3:0x28")
        else:
            A(f"v_xor_b32 v{t}, v{regs[0]}, v{vT}")
            for r in regs[1:]:
                A(f"v_bitop3_b32 v{t}, v{t}, v{r}, v{vT} bitop3:0xf6")
            A(f"v_and_b32 v{t}, s{sMASK}, v{t}")
    for k in range(len(items)):
        A(f"v_cmp_ne_u32 s[{m0+2*k}:{m0+2*k+1}], 0, v{tmp+k}")
    for k, (_, _, lanes) in enumerate(items):
        if lanes:
            A(f"s_and_b64 s[{m0+2*k}:{m0+2*k+1}], s[{m0+2*k}:{m0+2*k+1}], {hex(lanes)}")
    acc = f"s[{m0}:{m0+1}]"
    for k in range(1, len(items)):
        A(f"s_or_b64 vcc, {acc}, s[{m0+2*k}:{m0+2*k+1}]")
        acc = "vcc"
    A(f"s_cbranch_scc0 L_ok{u}")
    A(f"s_sub_u32 s{sCNT}, s{sCNT}, 1\ns_cbranch_scc1 L_ok{u}")
    for k, (ld, _, _) in enumerate(items):
        A(f"s_mov_b64 exec, s[{m0+2*k}:{m0+2*k+1}]\ns_cbranch_execz L_skip{u}_{k}")
        A(ld)
        A(f"L_skip{u}_{k}:")
    A("s_mov_b64 exec, -1")
    A(f"s_branch L_poll{u}")
    A(f"L_ok{u}:")
    if depth:
        A("s_waitcnt vmcnt(0)")


def spin(off, n, tmp, extra=None, sleep=1):
    uid[0] += 1
    u = uid[0]
    A(f"L_spin{u}:")
    A(f"ds_read_b32 v{tmp}, v{vL} offset:{off-MX}")
    if extra:
        A(extra)
    A("s_waitcnt lgkmcnt(0)")
    A(f"v_readfirstlane_b32 s{sT0}, v{tmp}")
    A(f"s_cmp_ge_u32 s{sT0}, {n}\ns_cbranch_scc1 L_spun{u}")
    if sleep:
        A(f"s_sleep {sleep}")
    A(f"s_branch L_spin{u}")
    A(f"L_spun{u}:")


def store_fs(instr):
    uid[0] += 1
    u = uid[0]
    if not opt["fast"]:
        A(instr + " sc1")
        return
    A(f"s_cmp_eq_u32 s{sFAST}, 0\ns_cbranch_scc1 L_slow{u}")
    A(instr)
    A(f"s_branch L_sdone{u}")
    A(f"L_slow{u}:")
    A(instr + " sc1")
    A(f"L_sdone{u}:")


import os
hdr = open(os.path.join(os.path.dirname(os.path.abspath(__file__)), "hdr.txt")).read().split("\n")
out = [l for l in hdr if l.startswith(";") and "@launch" not in l and "Override" not in l and "grid=ceil" not in l]
lst = opt.get("list", "")
if lst:
    for ch in lst:
        if ch == "m":
            out.append(f"; @launch kernel={NAME}_kernel grid=(256,1,1) block=(768,1,1) lds={LDS_BYTES}")
        elif ch == "n":
            out.append("; @launch kernel=noop_kernel grid=(1,1,1) block=(64,1,1) lds=0")
        else:
            out.append("; @launch kernel=noop_kernel grid=(256,1,1) block=(64,1,1) lds=0")
else:
    out.append(f"; @launch grid=(256,1,1) block=(768,1,1) lds={LDS_BYTES}")
out.append('.amdgcn_target "amdgcn-amd-amdhsa--gfx950"')
out.append(".text")
out.append(f".globl {NAME}_kernel")
out.append(".p2align 8")
out.append(f".type {NAME}_kernel,@function")
out.append(f"{NAME}_kernel:")

KR, VR = 40, 104
NE = opt["early"]
A("L_start:")
A("s_load_dwordx16 s[4:19], s[0:1], 0\ns_load_dwordx8 s[20:27], s[0:1], 64")
A(f"s_lshr_b32 s{sT0}, s2, 8\ns_cbranch_scc1 L_exit")
if opt["pf"] == 2:
    A(f"s_getpc_b64 s[{rA}:{rA+1}]")
    A("L_pc:")
    A("v_lshlrev_b32 v2, 4, v0\nv_min_u32 v2, (L_last-L_pc-16)&0xfffffff0, v2")
    A(f"global_load_dwordx4 v[164:167], v2, s[{rA}:{rA+1}]")
if opt.get("hx"):
    A(f"s_xor_b32 s2, s2, {opt['hx']}")
A(f"s_and_b32 s{sXG}, s2, 7\ns_lshl_b32 s{sT0}, s{sXG}, 8\ns_andn2_b32 s{sT1}, s2, 7\ns_add_u32 s{sSLOT}, s{sT0}, s{sT1}")
if NE <= 4:
    A(f"s_sub_u32 s{sT0}, s{sSLOT}, 6\ns_lshl_b32 s{sT0}, s{sT0}, 14")
else:
    A(f"s_lshl_b32 s{sT0}, s{sSLOT}, 14\ns_sub_u32 s{sT0}, s{sT0}, {6*16384-4096}")
A(f"v_lshrrev_b32 v1, 6, v0\nv_and_b32 v0, 63, v0\nv_readfirstlane_b32 s3, v1\nv_lshl_add_u32 v1, v1, 14, s{sT0}\nv_lshl_add_u32 v1, v0, 4, v1")
if NE:
    A("s_cmp_lt_u32 s3, 6\ns_cbranch_scc1 L_late\ns_waitcnt lgkmcnt(0)")
    for i in range(NE):
        A(f"global_load_dwordx4 {V(KR+4*i,4)}, v1, s[{pK}:{pK+1}] offset:{1024*i-(4096 if NE > 4 else 0)}{fl('kvfl')}")
    A("L_late:")
if STAMPS:
    for k in range(8):
        A(f"s_mov_b32 s{sST+2*k}, 0")
st(0)
if STAMPS or opt.get("diag"):
    A("s_memrealtime s[100:101]")
A(f"s_lshr_b32 s{sI}, s2, 3\ns_lshr_b32 s{sSLOT}, s{sSLOT}, 3")
A("v_lshlrev_b32 v8, 4, v0")
A(f"""s_and_b32 s80, s{sI}, 7
s_lshr_b32 s81, s{sI}, 3
s_cmp_lt_u32 s{sXG}, 6
s_cselect_b32 s82, 3, 2
s_cmp_lt_u32 s81, s82
s_cselect_b32 s83, 3, 2
s_mov_b32 s{sQB}, -1""")
if opt["shed"]:
    A(f"""s_cmp_ge_u32 s3, 2
s_cbranch_scc1 L_not0
s_mul_i32 s{sT0}, s3, 3
s_sub_u32 s{sT0}, s80, s{sT0}
s_sub_u32 s{sT1}, s{sT0}, 2
s_cmp_lt_u32 s{sT1}, s83
s_cselect_b32 s{sT1}, 1, 0
s_cmp_eq_u32 s{sT1}, s3
s_cbranch_scc0 L_not0
s_mov_b32 s{sQB}, s{sT0}""")
else:
    A(f"s_cmp_lg_u32 s3, 0\ns_cbranch_scc1 L_not0\ns_mov_b32 s{sQB}, s80")
A(f"s_lshl_b32 s{sT0}, s{sQB}, 6")
A(f"v_lshrrev_b32 v2, 4, v0\nv_lshl_add_u32 v2, v2, 4, s{sT0}\nv_lshlrev_b32 v3, 1, v2")
A(f"s_lshr_b32 s{sT0}, s{sSLOT}, 3\ns_lshl_b32 s{sT0}, s{sT0}, 8")
A(f"v_lshlrev_b32 v2, 13, v2\nv_and_b32 v9, 15, v0\nv_lshl_add_u32 v2, v9, 4, v2\nv_add_u32 v2, s{sT0}, v2")
A(f"s_movk_i32 s{sT0}, 0x2000\ns_waitcnt lgkmcnt(0)")
A(f"global_load_dwordx4 v[104:107], v8, s[{pX}:{pX+1}]")
A(f"global_load_dwordx4 v[12:15], v3, s[{pX}:{pX+1}]")
A(f"global_load_dwordx4 v[16:19], v3, s[{pX}:{pX+1}] offset:16")
for t in range(16):
    A(f"global_load_dwordx4 {V(40+4*t,4)}, v2, s[{pWQ}:{pWQ+1}]{fl('wqfl')}")
    if t < 15:
        A(f"v_add_u32 v2, s{sT0}, v2")
A("L_not0:")
A(f"s_lshl_b32 s{sT0}, s2, 4\ns_add_u32 s{sT0}, s{sT0}, s3\ns_cmp_eq_u32 s{sT0}, 2\ns_cbranch_scc0 L_notlead")
A(f"s_waitcnt lgkmcnt(0)\ns_load_dword s{sT0}, s[{pWS}:{pWS+1}], {hex(EPOCH)}")
A(f"v_mov_b32 v3, {EPOCH}\nv_lshlrev_b32 v4, 6, v0\ns_waitcnt lgkmcnt(0)")
A(f"s_add_u32 s{sT0}, s{sT0}, 0x0e3779b1\ns_and_b32 s{sT0}, s{sT0}, 0x0fffffff\ns_or_b32 s{sT1}, s{sT0}, 0x80000000")
A(f"v_mov_b32 v5, s{sT1}\nv_mov_b32 v6, s{sT0}\ns_mov_b64 exec, 15")
A(f"global_store_dword v4, v5, s[{pDBG}:{pDBG+1}] sc1")
A("s_mov_b64 exec, 1")
A(f"global_store_dword v3, v6, s[{pWS}:{pWS+1}] sc1")
A("s_mov_b64 exec, -1")
A("L_notlead:")
if NE > 4:
    A("v_subrev_u32 v1, 0x1000, v1")
if opt["pf"] == 1:
    A("s_cmp_eq_u32 s3, 1\ns_cbranch_scc0 L_pf_done")
    A(f"s_getpc_b64 s[{rA}:{rA+1}]")
    A("L_pc:")
    A(f"s_sub_u32 s{rA}, s{rA}, L_pc-L_start\ns_subb_u32 s{rA+1}, s{rA+1}, 0")
    A(f"s_and_b32 s{sT0}, s{sI}, 15\ns_lshl_b32 s{sT0}, s{sT0}, 10\nv_add_u32 v2, s{sT0}, v8")
    A("v_min_u32 v2, (L_last-L_start-16)&0xfffffff0, v2")
    A(f"global_load_dwordx4 v[160:163], v2, s[{rA}:{rA+1}]")
    A("L_pf_done:")
A("v_mov_b32 v4, 0\nv_mov_b32 v5, 0\nv_mov_b32 v6, 0\nv_mov_b32 v7, 0")
A(f"s_mov_b32 s{sT0}, 0xff800000\nv_writelane_b32 v4, s{sT0}, 0")
A(f"ds_write_b128 v8, v[4:7] offset:{MX}")
A(f"s_lshl_b32 s{sT0}, s3, 9\nv_lshl_add_u32 v9, v0, 3, s{sT0}\nds_write_b64 v9, v[6:7] offset:{OSL}")
TAB = {"7": ([2, 2, 1, 1, 1, 3, 3, 3], [2, 2, 1, 1, 3, 3, 2, 2], [2, 1, 1, 1, 3, 3, 3, 2]),
       "7n": ([2, 2, 1, 1, 1, 3, 3, 3], [2, 2, 1, 1, 3, 3, 2, 2], [2, 2, 1, 1, 3, 3, 2, 2]),
       "6": ([2, 2, 0, 0, 0, 4, 4, 4], [2, 2, 0, 0, 3, 3, 3, 3], [2, 1, 0, 0, 4, 3, 3, 3]),
       "0": ([2] * 8, [2] * 8, [2] * 8),
       "a": ([1, 1, 1, 1, 1, 4, 4, 3], [1, 1, 1, 1, 3, 3, 3, 3], [1, 0, 1, 1, 4, 3, 3, 3]),
       "c": ([0, 0, 1, 1, 2, 4, 4, 4], [0, 0, 1, 1, 4, 4, 3, 3], [0, 0, 1, 1, 4, 4, 3, 3]),
       "d": ([1, 0, 1, 1, 1, 4, 4, 4], [1, 0, 1, 1, 4, 3, 3, 3], [1, 0, 1, 1, 4, 3, 3, 3]),
       "e": ([1, 1, 2, 2, 1, 3, 3, 3], [1, 1, 2, 2, 3, 3, 2, 2], [1, 0, 2, 2, 3, 3, 3, 2]),
       "b": ([1, 1, 2, 2, 1, 3, 3, 3], [1, 1, 1, 1, 3, 3, 3, 3], [1, 0, 2, 1, 3, 3, 3, 3]),
       "z": ([0, 1, 2, 2, 2, 3, 3, 3], [0, 1, 2, 2, 2, 3, 3, 3], [1, 0, 2, 2, 2, 3, 3, 3])}[str(opt["bal"])]


def pack(ne):
    assert sum(ne) == 16
    e = [sum(ne[:k]) for k in range(8)]
    return hex(sum(v << (4 * k) for k, v in enumerate(e))), hex(sum(v << (4 * k) for k, v in enumerate(ne)))


(E3, N3), (E2, N2), (EL, NL) = map(pack, TAB)
A(f"""s_mov_b32 s78, {E2}
s_mov_b32 s79, {N2}
s_cmp_lt_u32 s81, s82
s_cselect_b32 s78, {E3}, s78
s_cselect_b32 s79, {N3}, s79
s_cmp_eq_u32 s81, 3
s_cselect_b32 s78, {EL}, s78
s_cselect_b32 s79, {NL}, s79
s_lshl_b32 s77, s80, 2
s_lshr_b32 s78, s78, s77
s_lshr_b32 s79, s79, s77
s_and_b32 s78, s78, 15
s_and_b32 s79, s79, 15
s_add_u32 s{sNKV}, s79, 6
s_add_u32 s{sU}, s3, s79
s_sub_u32 s{sU}, s{sU}, 6""")
A(f"""s_cmp_ge_u32 s3, 6
s_cbranch_scc1 L_own_unit
s_add_u32 s78, s78, 5
s_sub_u32 s78, s78, s3
s_lshr_b32 s77, s78, 1
s_lshl_b32 s77, s77, 3
s_and_b32 s78, s78, 1
s_add_u32 s77, s77, s78
s_and_b32 s78, s{sSLOT}, 0xf8
s_lshl_b32 s78, s78, 3
s_add_u32 s77, s77, s78
s_add_u32 s77, s77, 6
s_lshl_b32 s77, s77, 14
v_add_u32 v1, s77, v8
L_own_unit:""")
for i in range(4):
    A(f"s_mov_b32 s{sOFF+i}, {i*4096}")
koff = lambda i: (f"s{sOFF+i//4}", (i % 4) * 1024)
A(f"s_mov_b32 s{sHI}, 0xffff0000\ns_mov_b32 s{sMASK}, {TAGMASK}")
A(f"v_mov_b32 v{vL}, {MX}\nv_mov_b32 v{vONE}, 1")
A("s_waitcnt lgkmcnt(0)")
srd(rD, pX, 1024)
srd(rA, pK, 0x2000000)
srd(rB, pV, 0x2000000)
srd(rWS, pWS, 0x10000000)
st(6)
A("s_barrier")
A(f"s_cmp_lt_i32 s{sU}, 0\ns_cbranch_scc1 L_helper")


def kvload(base, i, r):
    so, io = koff(i)
    o = f" offset:{io}" if io else ""
    A(f"buffer_load_dwordx4 {V(base+4*i,4)}, v1, {R(r)}, {so} offen{o}{fl('kvfl')}")
    if opt["gap"] >= 0:
        A(f"s_nop {opt['gap']}")


if NE:
    A("s_cmp_ge_u32 s3, 6\ns_cbranch_scc1 L_k_rest")
    for i in range(NE):
        kvload(KR, i, rA)
    A("L_k_rest:")
for i in range(NE, 16):
    kvload(KR, i, rA)
for i in range(NV1):
    kvload(VR, i, rB)
if opt["shed"]:
    A(f"ds_write_b32 v{vL}, v{vONE} offset:{CI-MX}")
st(1)
A("""v_bfe_u32 v10, v0, 3, 1
v_mul_u32_u24 v10, 0x202, v10
v_add_u32 v10, 0x100, v10
v_and_b32 v11, 1, v0
v_lshlrev_b32 v11, 4, v11
v_lshlrev_b32 v10, v11, v10
v_mov_b32 v12, 0x0c0c0000
v_lshrrev_b32 v12, v11, v12
v_or_b32 v10, v10, v12
v_bfe_u32 v11, v0, 1, 2
v_mov_b32 v12, 0x0c0c0c0c""")
for i in range(4):
    A(f"v_cmp_eq_u32 vcc, {i}, v11\nv_cndmask_b32 v{6+i}, v12, v10, vcc")
A(f"s_mov_b32 s{sM1}, 0xcccccccc\ns_mov_b32 s{sM1+1}, 0xcccccccc\ns_mov_b32 s{sM0}, 0xaaaaaaaa\ns_mov_b32 s{sM0+1}, 0xaaaaaaaa")
A(f"s_mov_b32 s{sC2}, {f32(128 ** -0.5 * 1.4426950408889634)}")
A("v_and_b32 v32, 15, v0\nv_lshlrev_b32 v32, 4, v32")
A(f"v_lshrrev_b32 v34, 4, v0\nv_and_b32 v35, 7, v0\nv_lshl_add_u32 v34, v34, 3, v35\ns_lshl_b32 s{sT0}, s3, 9\nv_lshl_add_u32 v34, v34, 4, s{sT0}")
A("v_lshlrev_b32 v35, 3, v0")
A(f"s_lshl_b32 s{sT0}, s{sSLOT}, 9\ns_add_u32 s{sT0}, s{sT0}, {OS}\nv_lshl_add_u32 v36, v0, 3, s{sT0}")
A(f"s_lshl_b32 s{sT0}, s{sSLOT}, 4\ns_add_u32 s{sT0}, s{sT0}, {ST}\nv_mov_b32 v37, s{sT0}")
A(f"s_sub_u32 s{sN}, s{sNKV}, 1")
A(f"v_lshrrev_b32 v26, 1, v32\nv_add_u32 v26, {ML}, v26\ns_lshl_b32 s{sT0}, s3, 3\ns_add_u32 s{sT0}, s{sT0}, {ML}\nv_mov_b32 v27, s{sT0}")
spin(CQ, 1, 10, f"ds_read_b128 v[2:5], v32 offset:{QL}\nds_read_b64 v[28:29], v{vL} offset:{FAST-MX}", sleep=2)
st(2)
A(f"v_readfirstlane_b32 s{sFAST}, v28\nv_mov_b32 v{vT}, v29")
A(f"s_waitcnt vmcnt({NV1})")
for j in range(4):
    for i in range(16):
        c = "0" if j == 0 else f"v{10+i}"
        A(f"v_dot2_f32_bf16 v{10+i}, v{KR+4*i+j}, v{2+j}, {c}")
for i in range(8):
    A(f"v_add_f32_dpp v{10+i}, v{10+i}, v{10+i} row_ror:8 row_mask:0xf bank_mask:0x3")
    A(f"v_add_f32_dpp v{10+i}, v{18+i}, v{18+i} row_ror:8 row_mask:0xf bank_mask:0xc")
for i in range(4):
    A(f"v_add_f32_dpp v{10+i}, v{10+i}, v{10+i} row_ror:12 row_mask:0xf bank_mask:0x5")
    A(f"v_add_f32_dpp v{10+i}, v{14+i}, v{14+i} row_ror:4 row_mask:0xf bank_mask:0xa")
for i in range(4):
    A(f"v_add_f32_dpp v{10+i}, v{10+i}, v{10+i} quad_perm:[2,3,0,1] {DPP}")
for i in range(2):
    A(f"v_cndmask_b32 v{10+i}, v{10+i}, v{12+i}, s[{sM1}:{sM1+1}]")
for i in range(2):
    A(f"v_add_f32_dpp v{10+i}, v{10+i}, v{10+i} quad_perm:[1,0,3,2] {DPP}")
A(f"v_cndmask_b32 v10, v10, v11, s[{sM0}:{sM0+1}]")
A(f"v_mul_f32 v10, s{sC2}, v10")
A(f"v_max_f32_dpp v11, v10, v10 row_ror:8 {DPP}")
for n in (4, 2, 1):
    A(f"v_max_f32_dpp v11, v11, v11 row_ror:{n} {DPP}")
for sw in ("v_permlane16_swap_b32", "v_permlane32_swap_b32"):
    A(f"v_mov_b32 v12, v11\n{sw} v11, v12\nv_max_f32 v11, v11, v12")
A("v_sub_f32 v10, v10, v11\nv_exp_f32 v10, v10")
A("v_cvt_pk_bf16_f32 v13, v10, v10\nv_lshlrev_b32 v13, 16, v13\nv_sub_f32 v13, v10, v13\nv_cvt_pk_bf16_f32 v13, v10, v13")
wave_allreduce_add(10, 12)
A("v_mov_b32 v20, v11\nv_mov_b32 v21, v10\ns_mov_b64 exec, 1")
A(f"ds_write_b64 v27, v[20:21]\nds_max_f32 v{vL}, v11\nds_add_rtn_u32 v12, v{vL}, v{vONE} offset:{C1-MX}")
A("s_mov_b64 exec, -1")
A(f"ds_read_b64 v[22:23], v26\nds_read_b32 v20, v{vL}\ns_waitcnt lgkmcnt(0)")
A(f"v_readfirstlane_b32 s{sT0}, v12")
A(f"s_cmp_lg_u32 s{sT0}, s{sN}\ns_cbranch_scc1 L_kv_nost")
A("v_sub_f32 v22, v22, v20\nv_min_f32 v22, 0, v22\nv_exp_f32 v22, v22\nv_mul_f32 v21, v22, v23")
row_allreduce("v_add_f32", 21)
tag([20, 21])
A(f"v_mov_b32 v22, v{vT}\nv_mov_b32 v23, v{vT}\ns_mov_b64 exec, 1\ns_setprio 3")
store_fs(f"buffer_store_dwordx4 v[20:23], v37, {R(rWS)}, 0 offen")
A("s_setprio 0\ns_mov_b64 exec, -1")
st(7)
A("L_kv_nost:")
st(3)
for i in range(NV1, 16):
    kvload(VR, i, rB)
for t in range(16):
    A(f"v_mov_b32_dpp v{14+t%4}, v13 row_newbcast:{t} {DPP}")
    if t >= 1:
        for i in range(4):
            A(f"v_perm_b32 v{KR+4*(t-1)+i}, v{14+(t-1)%4}, v{14+(t-1)%4}, v{6+i}")
for i in range(4):
    A(f"v_perm_b32 v{KR+60+i}, v{14+15%4}, v{14+15%4}, v{6+i}")
spin(C1, f"s{sNKV}", 12, f"ds_read_b32 v19, v{vL}", sleep=2)
A("v_sub_f32 v11, v11, v19\nv_exp_f32 v11, v11")
st(4)
for t in range(16):
    A(f"s_waitcnt vmcnt({15-t})")
    c = "0" if t == 0 else "v[28:31]"
    A(f"v_mfma_f32_16x16x32_bf16 v[28:31], {V(VR+4*t,4)}, {V(KR+4*t,4)}, {c}")
st(5)
for i in range(4):
    A(f"v_add_f32_dpp v{28+i}, v{28+i}, v{28+i} row_ror:8 {DPP}")
for i in range(4):
    A(f"v_mul_f32 v{28+i}, v{28+i}, v11")
A("s_mov_b32 exec_lo, 0x00ff00ff\ns_mov_b32 exec_hi, 0x00ff00ff")
A(f"ds_write_b128 v34, v[28:31] offset:{OSL}")
A("s_mov_b64 exec, 1")
A(f"ds_add_rtn_u32 v12, v{vL}, v{vONE} offset:{C3-MX}")
A("s_mov_b64 exec, -1")
for w in range(2, 12):
    A(f"ds_read_b64 {V(KR+2*(w-2),2)}, v35 offset:{OSL+512*w}")
A("s_waitcnt lgkmcnt(6)")
A(f"v_readfirstlane_b32 s{sT0}, v12")
P = lambda k: V(KR + 2 * k, 2)
A(f"v_pk_add_f32 {P(0)}, {P(0)}, {P(1)}\nv_pk_add_f32 {P(2)}, {P(2)}, {P(3)}\ns_waitcnt lgkmcnt(2)")
A(f"v_pk_add_f32 {P(4)}, {P(4)}, {P(5)}\nv_pk_add_f32 {P(6)}, {P(6)}, {P(7)}\nv_pk_add_f32 {P(0)}, {P(0)}, {P(2)}\ns_waitcnt lgkmcnt(0)")
A(f"v_pk_add_f32 {P(8)}, {P(8)}, {P(9)}\nv_pk_add_f32 {P(4)}, {P(4)}, {P(6)}\nv_pk_add_f32 {P(0)}, {P(0)}, {P(8)}\nv_pk_add_f32 v[18:19], {P(0)}, {P(4)}")
tag([18, 19])
A(f"s_cmp_lg_u32 s{sT0}, s{sN}\ns_cbranch_scc1 L_kv_notlast")
store_fs(f"buffer_store_dwordx2 v[18:19], v36, {R(rWS)}, 0 offen")
A(f"ds_write_b32 v{vL}, v{vONE} offset:{C5-MX}")
st(6)
A("L_kv_notlast:")
A("L_kv_end:")
end_wave()

A("L_helper:")
A(f"""s_mov_b32 s{sROLE}, 0
s_lshl_b32 s{sR}, s81, 1
s_add_u32 s{sR}, s{sR}, s80
s_and_b32 s77, s{sR}, 3
s_cmp_eq_u32 s77, 3
s_cselect_b32 s77, 4, 0
s_xor_b32 s{sR}, s{sR}, s77
s_cmp_lt_u32 s80, 2
s_cbranch_scc1 L_role_done
s_mov_b32 s{sROLE}, 2
s_sub_u32 s80, s80, 2
s_cmp_lt_u32 s80, s83
s_cbranch_scc0 L_role_done
s_mov_b32 s{sROLE}, 1
s_min_u32 s82, s82, s81
s_lshl_b32 s{sR}, s81, 1
s_add_u32 s{sR}, s{sR}, s82
s_add_u32 s{sR}, s{sR}, s80
s_mul_i32 s82, s{sXG}, 11
s_add_u32 s{sR}, s{sR}, s82
s_cmp_eq_u32 s{sXG}, 7
s_subb_u32 s{sR}, s{sR}, 0
L_role_done:""")
A(f"s_cmp_ge_i32 s{sQB}, 0\ns_cbranch_scc1 L_q")
if opt["shed"]:
    A("s_cmp_eq_u32 s3, 0\ns_cbranch_scc0 L_notq")
    spin(CI, 1, 10, sleep=4)
    A(f"s_load_dword s{sN}, s[{pDBG}:{pDBG+1}], 0\ns_branch L_qnum")
    A("L_notq:")
A("s_cmp_ge_u32 s3, 4\ns_cbranch_scc1 L_idle")
A("s_branch L_roles")
A("L_idle:")
end_wave()

A("L_q:")
A("""v_and_b32 v28, 1, v0
v_lshlrev_b32 v28, 4, v28
v_mov_b32 v29, 0x100
v_lshlrev_b32 v29, v28, v29
v_mov_b32 v30, 0x0c0c0000
v_lshrrev_b32 v30, v28, v30
v_or_b32 v29, v29, v30
v_bfe_u32 v28, v0, 1, 3
v_mov_b32 v30, 0x0c0c0c0c""")
for i in range(4):
    A(f"v_cmp_eq_u32 vcc, {i}, v28\nv_cndmask_b32 v{20+i}, v30, v29, vcc")
A("s_waitcnt vmcnt(16)")
for j in range(4):
    A(f"v_lshlrev_b32 v{112+2*j}, 16, v{104+j}\nv_and_b32 v{113+2*j}, s{sHI}, v{104+j}")
A("v_add_f32 v36, v112, v113\nv_add_f32 v37, v114, v115\nv_add_f32 v34, v116, v117\nv_add_f32 v35, v118, v119")
A("v_add_f32 v36, v36, v37\nv_add_f32 v34, v34, v35\nv_add_f32 v36, v36, v34")
wave_allreduce_add(36, 37)
A(f"v_mul_f32 v36, {f32(1/512)}, v36")
for j in range(8):
    A(f"v_sub_f32 v{112+j}, v{112+j}, v36")
A("v_mul_f32 v37, v112, v112")
for j in range(1, 8):
    A(f"v_fmac_f32 v37, v{112+j}, v{112+j}")
wave_allreduce_add(37, 34)
A(f"v_mul_f32 v37, {f32(1/512)}, v37")
A(f"""v_cvt_pk_bf16_f32 v34, v36, v37
v_lshlrev_b32 v36, 16, v34
v_and_b32 v37, s{sHI}, v34
v_add_f32 v37, {f32(1e-5)}, v37
v_cvt_pk_bf16_f32 v37, v37, v37
v_and_b32 v37, s{sHI}, v37
v_sqrt_f32 v37, v37
v_cvt_pk_bf16_f32 v37, v37, v37
v_and_b32 v37, s{sHI}, v37
v_rcp_f32 v37, v37""")
for j in range(8):
    r = 12 + j
    A(f"""v_lshlrev_b32 v28, 16, v{r}
v_and_b32 v29, s{sHI}, v{r}
v_sub_f32 v28, v28, v36
v_sub_f32 v29, v29, v36
v_cvt_pk_bf16_f32 v30, v28, v29
v_lshlrev_b32 v28, 16, v30
v_and_b32 v29, s{sHI}, v30
v_mul_f32 v28, v28, v37
v_mul_f32 v29, v29, v37
v_cvt_pk_bf16_f32 v{r}, v28, v29""")
A(f"s_load_dword s{sN}, s[{pDBG}:{pDBG+1}], 0")
A("s_waitcnt vmcnt(0)")
st(1)
for t in range(16):
    src = 12 + t // 2
    if t % 2:
        A(f"v_lshrrev_b32 v{src}, 16, v{src}")
    b = 104 + 4 * (t % 2)
    for i in range(4):
        A(f"v_perm_b32 v{b+i}, v{src}, v{src}, v{20+i}")
    c = "0" if t == 0 else "v[24:27]"
    A(f"v_mfma_f32_16x16x32_bf16 v[24:27], {V(40+4*t,4)}, {V(b,4)}, {c}")
A("L_qnum:")
for k in range(1, 4):
    A(f"s_waitcnt lgkmcnt(0)\ns_cmp_lg_u32 s{sN}, 0\ns_cbranch_scc1 L_num_ok")
    if k > 1:
        A(f"s_sleep {opt['nsl']}")
    A(f"s_load_dword s{sN}, s[{pDBG}:{pDBG+1}], {64*k}")
srd(rA, pDBG, 256)
A(f"s_mov_b32 s{sCNT}, {opt['spin']}\nv_mov_b32 v3, 0\ns_waitcnt lgkmcnt(0)")
A(f"""L_num:
s_cmp_lg_u32 s{sN}, 0
s_cbranch_scc1 L_num_ok
s_sub_u32 s{sCNT}, s{sCNT}, 1
s_cbranch_scc1 L_num_ok
buffer_load_dword v4, v3, {R(rA)}, 0 offen sc1
s_waitcnt vmcnt(0)
v_readfirstlane_b32 s{sN}, v4
s_branch L_num
L_num_ok:""")
st(2)
A(f"s_and_b32 s{sT0}, s{sN}, s{sMASK}\nv_mov_b32 v{vT}, s{sT0}")
A(f"s_getreg_b32 s{sT1}, hwreg(HW_REG_XCC_ID)\ns_and_b32 s{sT1}, s{sT1}, 15\ns_lshl_b32 s{sN}, s{sN}, 4\ns_or_b32 s{sN}, s{sN}, s{sT1}")
A(f"v_and_b32 v3, 7, v0\ns_cmp_lt_i32 s{sQB}, 0\ns_cbranch_scc1 L_nopub")
A(f"s_and_b32 s{sT0}, s{sSLOT}, 0xf8\ns_add_u32 s{sT0}, s{sT0}, s{sQB}\ns_lshl_b32 s{sT0}, s{sT0}, 9\ns_add_u32 s{sT0}, s{sT0}, {QS}")
A(f"v_lshrrev_b32 v2, 4, v0\nv_lshl_add_u32 v2, v2, 3, v3\nv_lshl_add_u32 v2, v2, 4, s{sT0}")
tag([24, 25, 26, 27])
A("s_mov_b32 exec_lo, 0x00ff00ff\ns_mov_b32 exec_hi, 0x00ff00ff")
A(f"buffer_store_dwordx4 v[24:27], v2, {R(rWS)}, 0 offen{fl('qst')}")
A("s_mov_b64 exec, -1")
A("s_cmp_lg_u32 s3, 0\ns_cbranch_scc1 L_idle")
A("L_nopub:")
A(f"s_lshl_b32 s{sT1}, s{sXG}, 7\ns_add_u32 s{sT1}, s{sT1}, {XC}\nv_lshl_add_u32 v5, v3, 2, s{sT1}")
A(f"s_cmp_eq_u32 s{sROLE}, 0\ns_cbranch_scc0 L_noxc")
A(f"s_lshl_b32 s{sT0}, s{sR}, 2\ns_add_u32 s{sT0}, s{sT0}, s{sT1}\nv_mov_b32 v3, s{sT0}\nv_mov_b32 v4, s{sN}\ns_mov_b64 exec, 1")
A(f"buffer_store_dword v4, v3, {R(rWS)}, 0 offen{fl('xst')}")
A("s_mov_b64 exec, -1")
A("L_noxc:")
A(f"s_and_b32 s{sT0}, s{sSLOT}, 0xf8\ns_lshl_b32 s{sT0}, s{sT0}, 9\ns_add_u32 s{sT0}, s{sT0}, {QS}")
A(f"v_lshl_add_u32 v7, v0, 4, s{sT0}")
A("v_bfe_u32 v2, v0, 3, 2\nv_lshlrev_b32 v2, 2, v2\nv_lshrrev_b32 v3, 5, v0\nv_add_u32 v2, v2, v3\nv_and_b32 v3, 7, v0\nv_lshl_add_u32 v2, v2, 3, v3\nv_lshlrev_b32 v2, 1, v2")
if opt["otouch"]:
    A(f"s_lshl_b32 s{sT0}, s{sSLOT}, 9\ns_add_u32 s{sT0}, s{sT0}, {OS}\nv_lshl_add_u32 v9, v0, 3, s{sT0}")
    A(f"buffer_load_dword v28, v9, {R(rWS)}, 0 offen")
    A(f"s_lshl_b32 s{sT0}, s{sSLOT}, 4\ns_add_u32 s{sT0}, s{sT0}, {ST}\nv_mov_b32 v9, s{sT0}")
    A(f"buffer_load_dword v29, v9, {R(rWS)}, 0 offen")
if opt["qsl"]:
    A(f"s_sleep {opt['qsl']}")
else:
    A("s_waitcnt vmcnt(0)")
st(3)


def q_poll():
    for t in range(4):
        A(f"buffer_load_dwordx4 {V(112+4*t,4)}, v7, {R(rWS)}, 0 offen offset:{1024*t} sc1")
    A(f"buffer_load_dword v6, v5, {R(rWS)}, 0 offen sc1")


if not opt.get("noq"):
    poll(q_poll, list(range(112, 128)), 10)
A(f"v_cmp_ne_u32 vcc, s{sN}, v6\ns_cmp_eq_u64 vcc, 0\ns_cselect_b32 s{sFAST}, 1, 0")
A(f"v_mov_b32 v4, s{sFAST}\nv_mov_b32 v5, v{vT}\nds_write_b64 v{vL}, v[4:5] offset:{FAST-MX}")
for i in range(4):
    A(f"v_add_f32 v{112+i}, v{112+i}, v{116+i}\nv_add_f32 v{120+i}, v{120+i}, v{124+i}")
for i in range(4):
    A(f"v_add_f32 v{112+i}, v{112+i}, v{120+i}")
A("v_permlane32_swap_b32 v112, v113\nv_permlane32_swap_b32 v114, v115")
A("v_add_f32 v112, v112, v113\nv_add_f32 v114, v114, v115")
A("v_cvt_pk_bf16_f32 v112, v112, v114")
A(f"ds_write_b16 v2, v112 offset:{QL}\nds_write_b16_d16_hi v2, v112 offset:{QL+32}")
A(f"ds_write_b32 v{vL}, v{vONE} offset:{CQ-MX}")
if opt.get("dirty"):
    A(f"s_lshl_b32 s{sT0}, s{sSLOT}, 14\ns_add_u32 s{sT0}, s{sT0}, 0x400000\nv_add_u32 v2, s{sT0}, v8")
    for k in range(opt["dirty"]):
        A(f"buffer_store_dwordx4 v[112:115], v2, {R(rWS)}, s{sOFF+k//4} offen offset:{1024*(k%4)}")
st(4)

A("L_roles:")
A(f"s_cmp_eq_u32 s{sROLE}, 1\ns_cbranch_scc1 L_mlp")
A(f"s_cmp_eq_u32 s{sROLE}, 0\ns_cbranch_scc1 L_z")
end_wave()


def trigger(trig, loads):
    if opt.get("now"):
        return
    if trig != "start":
        off, n = {"q": (CQ, 1), "c1": (C1, f"s{sNKV}"), "c1h": (C1, 4), "c1a": (C1, 1), "c1b": (C1, 2), "c1c": (C1, 5)}[trig]
        spin(off, n, 10, sleep=4)
    loads()


A("L_z:")
if opt.get("cgx"):
    A(f"s_xor_b32 s{sR}, s{sR}, {opt['cgx']}")
ZB, ZO, ZST, ZA, ZD = 40, 104, 120, 124, 140
srd(rA, pWO, 0x400000)
A(f"s_lshl_b32 s{sT0}, s{sXG}, 2\ns_add_u32 s{sT0}, s{sT0}, s3\ns_lshl_b32 s{sT0}, s{sT0}, 17\ns_lshl_b32 s{sT1}, s{sR}, 7\ns_add_u32 s{sT0}, s{sT0}, s{sT1}")
A(f"v_bfe_u32 v1, v0, 3, 2\nv_lshrrev_b32 v2, 5, v0\nv_lshl_add_u32 v1, v1, 3, v2\nv_lshlrev_b32 v1, 10, v1\nv_and_b32 v2, 7, v0\nv_lshl_add_u32 v1, v2, 4, v1\nv_add_u32 v1, s{sT0}, v1")
A(f"s_lshl_b32 s{sIMG}, s3, 14\ns_add_u32 s{sIMG}, s{sIMG}, {WIMG}")
A(f"v_lshrrev_b32 v3, 4, v0\nv_lshlrev_b32 v3, 3, v3\nv_bfe_u32 v4, v0, 2, 2\nv_add_u32 v3, v3, v4\nv_lshlrev_b32 v3, 7, v3\nv_and_b32 v4, 3, v0\nv_lshl_add_u32 v3, v4, 3, v3\nv_add_u32 v3, s{sIMG}, v3")
A(f"s_lshl_b32 s{sT0}, s{sXG}, 5\ns_lshl_b32 s{sT1}, s3, 3\ns_add_u32 s{sT0}, s{sT0}, s{sT1}")
A(f"s_lshl_b32 s{sT1}, s{sT0}, 9\ns_add_u32 s{sT1}, s{sT1}, {OS}\nv_add_u32 v4, s{sT1}, v8")
A(f"s_lshl_b32 s{sT1}, s{sT0}, 4\ns_add_u32 s{sT1}, s{sT1}, {ST}\nv_lshl_add_u32 v5, v2, 4, s{sT1}")
A(f"s_lshl_b32 s{sT0}, s3, 8\ns_add_u32 s{sT0}, s{sT0}, {SCR}\nv_lshl_add_u32 v6, v0, 2, s{sT0}")
A(f"v_lshrrev_b32 v7, 4, v0\nv_lshl_add_u32 v7, v7, 4, s{sT0}")
A(f"v_subrev_u32 v25, {SCR-ZP}, v6")
A(f"v_and_b32 v9, 31, v0\nv_lshlrev_b32 v9, 3, v9\nv_lshrrev_b32 v10, 5, v0\nv_lshl_add_u32 v9, v10, 2, v9\nv_add_u32 v9, s{sT0}, v9")
A(f"s_lshl_b32 s{sT0}, s{sXG}, 3\ns_add_u32 s{sT0}, s{sT0}, s{sR}\ns_lshl_b32 s{sT0}, s{sT0}, 1\ns_and_b32 s{sT1}, s3, 1\ns_add_u32 s{sT0}, s{sT0}, s{sT1}\ns_lshl_b32 s{sT0}, s{sT0}, 2")
A(f"v_lshrrev_b32 v20, 4, v0\nv_add_u32 v20, s{sT0}, v20\nv_lshlrev_b32 v21, 1, v20\nv_lshlrev_b32 v20, 2, v20\nv_add_u32 v20, {ZS}, v20")
A(f"s_lshl_b32 s{sT0}, s{sT0}, 2\nv_lshlrev_b32 v22, 11, v0\nv_add_u32 v22, s{sT0}, v22\nv_add_u32 v23, {64*2048}, v22")
A(f"s_lshl_b32 s{sT0}, s{sXG}, 11\ns_lshl_b32 s{sT1}, s{sR}, 8\ns_add_u32 s{sT0}, s{sT0}, s{sT1}\ns_add_u32 s{sT0}, s{sT0}, {ZS}\nv_add_u32 v24, s{sT0}, v8")
srd(rC, pWS, NMLP * 2048, PS)
srd(rB, pOUT, 1024)


def z_loads():
    if opt["ptouch"]:
        A(f"buffer_load_dword v28, v24, {R(rWS)}, 0 offen")
    A(f"buffer_load_ushort v26, v21, {R(rD)}, 0 offen")
    for t in range(16 if not opt.get("nowo") else 0):
        A(f"s_add_u32 m0, s{sIMG}, {t*1024}\ns_mov_b32 s{sT1}, {((t>>2)*32+(t&3)*2)*1024}")
        A(f"buffer_load_dwordx4 v1, {R(rA)}, s{sT1} offen{fl('wofl')} lds")


def z_prep():
    for kb in range(4):
        for nt in range(4):
            for hf in range(2):
                A(f"ds_read_b64_tr_b16 {V(ZB+(kb*4+nt)*4+2*hf,2)}, v3 offset:{kb*4096+hf*512+nt*32}")


def zs_poll():
    A(f"buffer_load_dwordx4 {V(ZST,4)}, v5, {R(rWS)}, 0 offen sc1")


def z_poll():
    for t in range(4):
        A(f"buffer_load_dwordx4 {V(ZO+4*t,4)}, v4, {R(rWS)}, 0 offen offset:{1024*t} sc1")


trigger(opt["trigz"], z_loads)
A("s_waitcnt vmcnt(0)")
z_prep()
st(5)
spin(C1, f"s{sNKV}", 10, f"ds_read_b32 v{vT}, v{vL} offset:{TAG-MX}")
poll(zs_poll, list(range(ZST, ZST + 4)), 10, sleep=opt["ssl"])
A(f"""v_max_f32_dpp v16, v{ZST}, v{ZST} quad_perm:[1,0,3,2] {DPP}
v_max_f32_dpp v16, v16, v16 quad_perm:[2,3,0,1] {DPP}
v_max_f32_dpp v16, v16, v16 row_half_mirror {DPP}
v_sub_f32 v16, v{ZST}, v16
v_exp_f32 v16, v16
v_mul_f32 v11, v16, v{ZST+1}
v_add_f32_dpp v11, v11, v11 quad_perm:[1,0,3,2] {DPP}
v_add_f32_dpp v11, v11, v11 quad_perm:[2,3,0,1] {DPP}
v_add_f32_dpp v11, v11, v11 row_half_mirror {DPP}
v_rcp_f32 v11, v11
v_mul_f32 v16, v16, v11
v_mov_b32_dpp v16, v16 row_ror:15 row_mask:0xc bank_mask:0xf""")
spin(C3, f"s{sNKV}", 10)
st(2)
if opt["p2"] & 1:
    poll2([(f"buffer_load_dwordx4 {V(ZO+4*t,4)}, v4, {R(rWS)}, 0 offen offset:{1024*t} sc1", [ZO + 4 * t, ZO + 4 * t + 2], None) for t in range(4)], 10, depth=opt["dz"])
else:
    poll(z_poll, [ZO + 2 * k for k in range(8)], 10, sleep=opt["zsl"])
if STAMPS:
    A(f"s_sub_u32 s{sFAST}, {opt['spin']*4}, s{sCNT}")
if opt.get("diag"):
    A("s_memrealtime s[98:99]")
st(6)
for t in range(4):
    for i in range(4):
        op = "v_mul_f32_dpp" if t == 0 else "v_fmac_f32_dpp"
        A(f"{op} v{12+i}, v16, v{ZO+4*t+i} row_newbcast:{2*t} {DPP}")
A("v_permlane32_swap_b32 v12, v14\nv_permlane32_swap_b32 v13, v15")
A("v_add_f32 v12, v12, v14\nv_add_f32 v13, v13, v15")
A("v_cvt_pk_bf16_f32 v12, v12, v13\nds_write_b32 v9, v12")
for kb in range(4):
    A(f"ds_read_b128 {V(ZA+4*kb,4)}, v7 offset:{64*kb}")
for kb in range(4):
    A(f"s_waitcnt lgkmcnt({3-kb})")
    for nt in range(4):
        c = "0" if kb == 0 else V(ZD + 4 * nt, 4)
        A(f"v_mfma_f32_16x16x32_bf16 {V(ZD+4*nt,4)}, {V(ZA+4*kb,4)}, {V(ZB+(kb*4+nt)*4,4)}, {c}")
for nt in range(1, 4):
    A(f"v_mov_b32_dpp v{ZD}, v{ZD+4*nt} quad_perm:[0,1,2,3] row_mask:{hex(1<<nt)} bank_mask:0xf")
A(f"ds_write_b32 v6, v{ZD} offset:{ZP-SCR+65536-65536}" if ZP >= SCR else f"ds_write_b32 v25, v{ZD}")
A("s_mov_b64 exec, 1")
A(f"ds_add_rtn_u32 v10, v{vL}, v{vONE} offset:{C4-MX}")
A("s_mov_b64 exec, 0xffff")
for w in range(4):
    A(f"ds_read_b128 {V(12 if w == 0 else ZA+4*w,4)}, v8 offset:{ZP+256*w}")
A("s_waitcnt lgkmcnt(2)")
A(f"v_readfirstlane_b32 s{sT0}, v10")
A(f"v_pk_add_f32 v[12:13], v[12:13], {V(ZA+4,2)}\nv_pk_add_f32 v[14:15], v[14:15], {V(ZA+6,2)}\ns_waitcnt lgkmcnt(0)")
A(f"v_pk_add_f32 {V(ZA+8,2)}, {V(ZA+8,2)}, {V(ZA+12,2)}\nv_pk_add_f32 {V(ZA+10,2)}, {V(ZA+10,2)}, {V(ZA+14,2)}")
A(f"v_pk_add_f32 v[12:13], v[12:13], {V(ZA+8,2)}\nv_pk_add_f32 v[14:15], v[14:15], {V(ZA+10,2)}")
tag([12, 13, 14, 15])
A(f"s_cmp_lg_u32 s{sT0}, 3\ns_cbranch_scc1 L_z_notlast")
A(f"buffer_store_dwordx4 v[12:15], v24, {R(rWS)}, 0 offen sc1")
st(7)
A("L_z_notlast:")
A("s_mov_b64 exec, -1")
A(f"s_sub_u32 s{sT0}, s3, 1\ns_cmp_lt_u32 s{sT0}, 2\ns_cbranch_scc1 L_fin")
end_wave()
A("L_fin:")


def f_poll1():
    for x in range(8):
        A(f"buffer_load_dword v{104+x}, v20, {R(rWS)}, s{sOFF+x//2} offen offset:{2048*(x%2)} sc1")


if opt["f1delay"]:
    A(f"s_sleep {opt['f1delay']}")
poll(f_poll1, list(range(104, 112)), 10, sleep=opt["fsl"])
st(1)


def f_poll2():
    A(f"buffer_load_dwordx4 v[112:115], v22, {R(rC)}, 0 offen sc1")
    A(f"buffer_load_dwordx4 v[116:119], v23, {R(rC)}, 0 offen sc1")


def f_h():
    A("""v_add_f32 v104, v104, v106
v_add_f32 v105, v105, v107
v_add_f32 v104, v104, v108
v_add_f32 v105, v105, v109
v_add_f32 v104, v104, v110
v_add_f32 v105, v105, v111
v_add_f32 v104, v104, v105
v_lshlrev_b32 v26, 16, v26
v_add_f32 v104, v104, v26
v_cvt_pk_bf16_f32 v104, v104, v104
v_lshlrev_b32 v104, 16, v104""")


f_h()
if opt["fdelay"]:
    A(f"s_sleep {opt['fdelay']}")
if opt["p2"] & 4:
    poll2([(f"buffer_load_dwordx4 v[112:115], v22, {R(rC)}, 0 offen sc1", [112, 113, 114, 115], None),
           (f"buffer_load_dwordx4 v[116:119], v23, {R(rC)}, 0 offen sc1", [116, 117, 118, 119], (1 << (NMLP - 64)) - 1)], 10, depth=opt["df"])
else:
    poll(f_poll2, list(range(112, 116)), 10, None, masked=((1 << (NMLP - 64)) - 1, list(range(116, 120))))
st(2)
for i in range(4):
    A(f"v_add_f32 v{112+i}, v{112+i}, v{116+i}")
A("v_permlane32_swap_b32 v112, v114\nv_permlane32_swap_b32 v113, v115")
A("v_add_f32 v112, v112, v114\nv_add_f32 v113, v113, v115")
A("v_permlane16_swap_b32 v112, v113\nv_add_f32 v112, v112, v113")
row_allreduce("v_add_f32", 112)
if "eps" in opt:
    A(f"v_mul_f32 v112, {f32(1 + opt['eps'] / 1000)}, v112")
A("v_add_f32 v112, v112, v104\nv_cvt_pk_bf16_f32 v112, v112, v112")
A("s_mov_b32 exec_lo, 0x00010001\ns_mov_b32 exec_hi, 0x00010001")
A(f"buffer_store_short v112, v21, {R(rB)}, 0 offen{fl('outfl')}")
if opt.get("diag"):
    A(f"s_cmp_eq_u32 s{sI}, 0\ns_cbranch_scc0 L_exit\ns_cmp_eq_u32 s3, 1\ns_cbranch_scc0 L_exit")
    A("s_memrealtime s[96:97]\ns_waitcnt lgkmcnt(0)")
    if "amp" in opt:
        if opt["amp"] != 8:
            A(f"s_cmp_eq_u32 s{sXG}, {opt['amp']}\ns_cbranch_scc0 L_exit")
        if opt.get("ampsrc") == "o":
            A("s_sub_u32 s94, s98, s100")
        else:
            A("s_sub_u32 s94, s96, s100")
        A("s_lshl_b32 s94, s94, 2\nL_amp:\ns_memrealtime s[92:93]\ns_waitcnt lgkmcnt(0)\ns_sub_u32 s92, s92, s96\ns_cmp_lt_u32 s92, s94\ns_cbranch_scc1 L_amp")
    srd(rA, pDBG, 64)
    A(f"s_sub_u32 s96, s96, s100\ns_sub_u32 s98, s98, s100\ns_lshl_b32 s100, s100, 16\ns_or_b32 s96, s96, s100")
    A(f"s_lshl_b32 s{sT0}, s{sXG}, 2\nv_mov_b32 v1, s{sT0}\nv_mov_b32 v2, s96\nv_mov_b32 v3, s98\ns_mov_b64 exec, 1")
    A(f"buffer_store_dword v2, v1, {R(rA)}, 0 offen offset:4 sc1\nbuffer_store_dword v3, v1, {R(rA)}, 0 offen offset:36 sc1")
st(3)
end_wave()

A("L_mlp:")
srd(rA, pWG, 512 * 2752)
srd(rB, pWU, 512 * 2752)
srd(rC, pWD, 1376 * 1024)
A(f"s_lshl_b32 s{sT0}, s3, 7\nv_lshrrev_b32 v1, 1, v0\nv_add_u32 v1, s{sT0}, v1\nv_mul_u32_u24 v1, 2752, v1")
A(f"v_and_b32 v2, 1, v0\nv_lshl_add_u32 v1, v2, 4, v1\ns_lshl_b32 s{sT0}, s{sR}, 5\nv_add_u32 v1, s{sT0}, v1")
A(f"s_lshl_b32 s{sIMG}, s3, 14\ns_add_u32 s{sIMG}, s{sIMG}, {WIMG}")
A(f"v_lshrrev_b32 v3, 4, v0\nv_lshlrev_b32 v3, 3, v3\nv_bfe_u32 v4, v0, 2, 2\nv_add_u32 v3, v3, v4\nv_lshlrev_b32 v3, 5, v3\nv_and_b32 v2, 3, v0\nv_lshl_add_u32 v3, v2, 3, v3\nv_add_u32 v3, s{sIMG}, v3")
A(f"s_lshl_b32 s{sT0}, s3, 9\ns_add_u32 s{sT0}, s{sT0}, {ZS}\nv_lshrrev_b32 v2, 5, v0\nv_and_b32 v5, 31, v0\nv_lshlrev_b32 v4, 11, v2\nv_lshl_add_u32 v4, v5, 4, v4\nv_add_u32 v4, s{sT0}, v4")
A(f"v_lshlrev_b32 v5, 3, v5\nv_lshl_add_u32 v5, v2, 2, v5\ns_lshl_b32 s{sT0}, s3, 8\nv_add_u32 v5, s{sT0}, v5\nv_add_u32 v6, {SCR}, v5")
A(f"s_add_u32 s{sT0}, s{sT0}, {SCR}\nv_lshrrev_b32 v7, 4, v0\nv_lshl_add_u32 v7, v7, 4, s{sT0}")
A("v_lshlrev_b32 v9, 2, v0")
A(f"s_lshl_b32 s{sT0}, s{sR}, 14\ns_lshl_b32 s{sT1}, s3, 8\ns_add_u32 s{sT0}, s{sT0}, s{sT1}")
A(f"v_lshrrev_b32 v20, 4, v0\nv_lshlrev_b32 v20, 10, v20\nv_and_b32 v19, 15, v0\nv_lshl_add_u32 v20, v19, 4, v20\nv_add_u32 v20, s{sT0}, v20")
A(f"s_add_u32 s{sT0}, s{sIMG}, 8192\nv_add_u32 v19, s{sT0}, v9")
A(f"s_lshl_b32 s{sT0}, s{sR}, 11\ns_lshl_b32 s{sT1}, s3, 9\ns_add_u32 s{sT0}, s{sT0}, s{sT1}\ns_add_u32 s{sT0}, s{sT0}, {PS}\nv_lshl_add_u32 v21, v0, 3, s{sT0}")
A(f"v_and_b32 v22, 15, v0\nv_lshlrev_b32 v22, 3, v22\ns_lshl_b32 s{sT0}, s3, 7\ns_add_u32 s{sT0}, s{sT0}, {ZP}\nv_add_u32 v25, s{sT0}, v22")
A(f"v_lshrrev_b32 v23, 5, v0\nv_lshlrev_b32 v23, 2, v23\nv_add_u32 v23, {SQ}, v23\nv_mov_b32 v24, {SQ}")
for i in range(4):
    A(f"v_mov_b32 v{116+i}, 0x3f803f80")
A(f"s_mov_b32 s{sM1}, 0x05040100\ns_mov_b32 s{sM1+1}, 0x07060302")


NPRE = 4 - opt["npost"]


def gu_loads(ts):
    for t in ts:
        A(f"s_add_u32 m0, s{sIMG}, {t*1024}\ns_mov_b32 s{sT1}, {t*32*2752}")
        A(f"buffer_load_dwordx4 v1, {R(rA)}, s{sT1} offen{fl('gufl')} lds")
        A(f"s_add_u32 m0, s{sIMG}, {4096+t*1024}")
        A(f"buffer_load_dwordx4 v1, {R(rB)}, s{sT1} offen{fl('gufl')} lds")


def wd_loads():
    for t in range(4):
        A(f"s_add_u32 m0, s{sIMG}, {8192+t*1024}\ns_nop 0")
        A(f"buffer_load_dwordx4 v20, {R(rC)}, s{sOFF+t} offen{fl('wdfl')} lds")


def wd_prep():
    for r in range(0, 16, 2):
        A(f"ds_read2st64_b32 {V(120+r,2)}, v19 offset0:{r} offset1:{r+1}")
    A("s_waitcnt lgkmcnt(0)")
    for i in range(8):
        A(f"v_perm_b32 v{136+i}, v{121+2*i}, v{120+2*i}, s{sM1}\nv_perm_b32 v{144+i}, v{121+2*i}, v{120+2*i}, s{sM1+1}")


def gu_prep(kbs, mid=None):
    if not len(kbs):
        return
    for kb in kbs:
        for tl in range(2):
            for hf in range(2):
                A(f"ds_read_b64_tr_b16 {V(40+(kb*2+tl)*4+2*hf,2)}, v3 offset:{kb*1024+hf*128+tl*4096}")
    if mid:
        mid()
    A("s_waitcnt lgkmcnt(0)")
    for kb in kbs:
        for tl in range(2):
            c = "0" if kb == 0 else V(108 + 4 * tl, 4)
            A(f"v_mfma_f32_16x16x32_bf16 {V(108+4*tl,4)}, v[116:119], {V(40+(kb*2+tl)*4,4)}, {c}")


def colsum_out():
    A("s_mov_b64 exec, 0xffff")
    A(f"ds_add_f32 v22, v108 offset:{CS}\nds_add_f32 v22, v112 offset:{CS+4}")
    A("s_mov_b64 exec, -1")


def m_loads():
    if opt["ptouch"]:
        A(f"buffer_load_dword v28, v21, {R(rWS)}, 0 offen")
    A(f"buffer_load_dword v26, v5, {R(rD)}, 0 offen")
    gu_loads(range(NPRE))
    if not opt["wdpost"]:
        wd_loads()


trigger(opt["trigm"], m_loads)
st(5)
A("s_waitcnt vmcnt(0)")
gu_prep(range(NPRE), None if opt["wdpost"] else wd_prep)
if NPRE == 4:
    colsum_out()
A(f"v_lshlrev_b32 v27, 16, v26\nv_and_b32 v26, s{sHI}, v26")
A(f"v_mov_b32 v30, 0\nv_mov_b32 v31, 0\nv_mov_b32 v29, {f32(1/512)}")
spin(C5, 1, 10, f"ds_read_b32 v{vT}, v{vL} offset:{TAG-MX}")
st(2)
if opt["wdelay"]:
    A(f"s_sleep {opt['wdelay']}")
gu_loads(range(NPRE, 4))
if opt["wdpost"]:
    wd_loads()
if opt["mwait"]:
    A("s_waitcnt vmcnt(0)")
    gu_prep(range(NPRE, 4), wd_prep if opt["wdpost"] else None)
    colsum_out()
    st(1)


def m_poll():
    for t in range(4):
        A(f"buffer_load_dwordx4 {V(72+4*t,4)}, v4, {R(rWS)}, s{sOFF+t} offen sc1")


def m_post():
    if opt["mwait"]:
        return
    if NPRE < 4 or opt["wdpost"]:
        A("s_waitcnt vmcnt(4)")
    if NPRE < 4:
        gu_prep(range(NPRE, 4), wd_prep if opt["wdpost"] else None)
        colsum_out()
    elif opt["wdpost"]:
        wd_prep()
    st(1)


if opt["p2"] & 2:
    poll2([(f"buffer_load_dwordx4 {V(72+4*t,4)}, v4, {R(rWS)}, s{sOFF+t} offen sc1", [72 + 4 * t], None) for t in range(4)], 10, m_post, depth=opt["dm"])
else:
    poll(m_poll, [72, 76, 80, 84], 10, m_post, sleep=opt["msl"])
if STAMPS:
    A(f"s_sub_u32 s{sFAST}, {opt['spin']*4}, s{sCNT}")
st(6)
for t in range(1, 4):
    for i in (0, 2):
        A(f"v_pk_add_f32 {V(72+i,2)}, {V(72+i,2)}, {V(72+4*t+i,2)}")
A("v_permlane32_swap_b32 v72, v74\nv_permlane32_swap_b32 v73, v75")
A("""v_add_f32 v72, v72, v74
v_add_f32 v73, v73, v75
v_add_f32 v72, v72, v27
v_add_f32 v73, v73, v26
v_cvt_pk_bf16_f32 v72, v72, v73
ds_write_b32 v6, v72""")
for kb in range(4):
    A(f"ds_read_b128 {V(92+4*kb,4)}, v7 offset:{64*kb}")
A(f"""v_lshlrev_b32 v73, 16, v72
v_and_b32 v72, s{sHI}, v72
v_add_f32 v74, v72, v73
v_mul_f32 v75, v72, v72
v_fmac_f32 v75, v73, v73""")
A("v_permlane32_swap_b32 v74, v75\nv_add_f32 v74, v74, v75")
rr = [8, 4, 2, 1]
for kb in range(4):
    A(f"s_waitcnt lgkmcnt({3-kb})")
    for tl in range(2):
        c = "0" if kb == 0 else V(108 + 4 * tl, 4)
        A(f"v_mfma_f32_16x16x32_bf16 {V(108+4*tl,4)}, {V(92+4*kb,4)}, {V(40+(kb*2+tl)*4,4)}, {c}")
    A(f"v_add_f32_dpp v74, v74, v74 row_ror:{rr[kb]} {DPP}")
A("s_mov_b32 exec_lo, 0x00010001\ns_mov_b32 exec_hi, 0x00010001")
A("ds_add_f32 v23, v74")
A("s_mov_b64 exec, 0xffff")
A("ds_write2_b32 v25, v108, v112 offset0:0 offset1:1")
A("s_mov_b64 exec, -1")
A("s_waitcnt lgkmcnt(0)\ns_barrier")
A(f"ds_read_b64 v[16:17], v24\nds_read_b64 v[14:15], v22 offset:{CS}")
for w in range(4):
    A(f"ds_read_b64 {V(12 if w == 0 else 92+2*w,2)}, v22 offset:{ZP+128*w}")
A(f"""s_waitcnt lgkmcnt(5)
v_mul_f32 v16, v16, v29
v_fmaak_f32 v17, v17, v29, {f32(1e-5)}
v_fma_f32 v17, -v16, v16, v17
v_max_f32 v17, {f32(1e-5)}, v17
v_rsq_f32 v17, v17
s_waitcnt lgkmcnt(0)
v_pk_add_f32 v[12:13], v[12:13], v[94:95]
v_pk_add_f32 v[96:97], v[96:97], v[98:99]
v_pk_add_f32 v[12:13], v[12:13], v[96:97]
v_mul_f32 v18, {f32(-1.4426950408889634)}, v17
v_fma_f32 v12, -v16, v14, v12
v_fma_f32 v13, -v16, v15, v13
v_mul_f32 v12, v12, v18
v_exp_f32 v12, v12
v_mul_f32 v13, v13, v17
v_add_f32 v12, 1.0, v12
v_rcp_f32 v12, v12
s_nop 0
v_mul_f32 v12, v12, v13
v_mov_b32_dpp v13, v12 quad_perm:[1,0,3,2] {DPP}
v_cvt_pk_bf16_f32 v12, v12, v13""")
for i in range(8):
    A(f"v_dot2c_f32_bf16_dpp v30, v12, v{136+i} row_newbcast:{2*i} {DPP}")
    A(f"v_dot2c_f32_bf16_dpp v31, v12, v{144+i} row_newbcast:{2*i} {DPP}")
tag([30, 31])
A(f"buffer_store_dwordx2 v[30:31], v21, {R(rWS)}, 0 offen sc1")
st(7)
end_wave()

if STAMPS:
    A("L_stamps:")
    A("s_mov_b64 exec, 1")
    A("s_waitcnt lgkmcnt(0)\ns_memrealtime s[4:5]\ns_waitcnt lgkmcnt(0)\ns_memtime s[6:7]")
    A(f"s_mul_i32 s{sT0}, s2, 12\ns_add_u32 s{sT0}, s{sT0}, s3\ns_lshl_b32 s{sT0}, s{sT0}, 6\ns_add_u32 s{sT0}, s{sT0}, {STAMP}")
    A(f"v_mov_b32 v1, s{sT0}\ns_waitcnt lgkmcnt(0)")
    for k in range(8):
        A(f"v_mov_b32 v{4+k}, s{sST+2*k}")
    A("v_mov_b32 v12, s100\nv_mov_b32 v13, s4\nv_mov_b32 v14, s6\nv_mov_b32 v15, s{0}".format(sFAST))
    A(f"v_mov_b32 v16, s{sROLE}\nv_mov_b32 v17, s{sNKV}\nbuffer_store_dwordx2 v[16:17], v1, {R(rWS)}, 0 offen offset:48")
    A(f"buffer_store_dwordx4 v[4:7], v1, {R(rWS)}, 0 offen\nbuffer_store_dwordx4 v[8:11], v1, {R(rWS)}, 0 offen offset:16\nbuffer_store_dwordx4 v[12:15], v1, {R(rWS)}, 0 offen offset:32")
A("L_exit:")
A("s_endpgm")
A("L_last:")

body, problems = fix_hazards(L)
for p in problems:
    print("HAZARD:", p, file=sys.stderr)
for line in body:
    out.append(line if line.endswith(":") else "    " + line)
if lst:
    out.append(""".globl noop_kernel
.p2align 8
.type noop_kernel,@function
noop_kernel:
    s_endpgm
.section .rodata,"a"
.p2align 6
.amdhsa_kernel noop_kernel
  .amdhsa_next_free_vgpr 8
  .amdhsa_next_free_sgpr 16
  .amdhsa_accum_offset 8
  .amdhsa_group_segment_fixed_size 0
  .amdhsa_kernarg_size 96
  .amdhsa_user_sgpr_count 2
  .amdhsa_user_sgpr_kernarg_segment_ptr 1
  .amdhsa_system_sgpr_workgroup_id_x 1
.end_amdhsa_kernel""")
out.append(f""".section .rodata,"a"
.p2align 6
.amdhsa_kernel {NAME}_kernel
  .amdhsa_next_free_vgpr 168
  .amdhsa_next_free_sgpr 102
  .amdhsa_accum_offset 168
  .amdhsa_group_segment_fixed_size 0
  .amdhsa_kernarg_size 96
  .amdhsa_user_sgpr_count 2
  .amdhsa_user_sgpr_kernarg_segment_ptr 1
  .amdhsa_system_sgpr_workgroup_id_x 1
  .amdhsa_float_denorm_mode_32 3
.end_amdhsa_kernel""")
open(sys.argv[1], "w").write("\n".join(out) + "\n")
```

```python
import sys, struct
from asmlib import fix_hazards

NAME = "sequential_preLN__mha_block_cached__glu_gated_glu__decode"
opt = dict(stamps=0, nv1=4, trigz="c1", trigm="c1h", pat="A", kvfl="nt", wqfl="nt", wofl="nt", gufl="plain",
           wdfl="nt", fast=1, pf=2, gap=0, prio=0, bal="f", early=4, p2=0, gtry=12, gneed=24, outtouch=0, wpf=1, wres="x3024", sp2="x11004433", spl="x10104433", sp3="x21100444", nmx="bbbbbbaa", ftight=0, c3sl=1, gpf=0, gtrig="c5", zwin=0, outfl="plain", mwait=1, shed=0, wdelay=0, f1delay=0, dz=0, dm=0, df=0, otouch=1, npost=4, wdpost=1, qsl=0, qst="sc1", xst="sc1", ssl=0, zsl=0, msl=0, fsl=0, mdelay=0, bfirst=0, fdelay=31, ptouch=1, nsl=12, spin=200000)
for a in sys.argv[2:]:
    k, v = a.split("=")
    opt[k] = v if not v.lstrip("-").isdigit() else int(v)
STAMPS = opt["stamps"]
NV1 = opt["nv1"]


def fl(name):
    v = opt[name]
    return "" if v == "plain" else " " + v.replace("+", " ")


def f32(x):
    return "0x%08x" % struct.unpack("<I", struct.pack("<f", x))[0]


QS, OS, ST, ZS, XC, PFL, EPOCH, PS, STAMP = 0x0, 0x20000, 0x40000, 0x41000, 0x45000, 0x45800, 0x46000, 0x48000, 0x80000
NMLP = 86
TAGMASK = 0x3ff
QL, MX, LACC, SQ, CS, ZP, SCR, OSL, WIMG = 0, 256, 260, 272, 1024, 1536, 3072, 4096, 10240
CQ, C1, C5, C3, C4, CI, FAST, TAG, ML = 280, 284, 288, 292, 296, 300, 304, 308, 384
LDS_BYTES = WIMG + 4 * 16384
pX, pK, pV, pWQ, pWO, pWG, pWU, pWD, pOUT, pDBG, pWS = 4, 6, 8, 10, 12, 16, 18, 20, 22, 24, 26
rA, rB, rWS, rC, rD = 28, 32, 36, 44, 48
sNKV, sROLE, sMASK, sN = 40, 41, 42, 43
sXG, sI, sSLOT, sR, sT0, sT1, sCNT, sFAST = 52, 53, 54, 55, 56, 57, 58, 59
sM1, sM0, sU, sIMG, sC2, sHI, sQB, sTAB, sCUR = 60, 62, 64, 65, 66, 67, 76, 75, 74
sOFF = 68
sST = 84
vT = 38
vONE = 39
vL = 33

L = []


def A(s):
    for line in s.split("\n"):
        line = line.strip()
        if line:
            L.append(line)


def srd(r, p, size, add=None):
    if add is None:
        A(f"s_mov_b32 s{r}, s{p}\ns_mov_b32 s{r+1}, s{p+1}")
    else:
        A(f"s_add_u32 s{r}, s{p}, {add}\ns_addc_u32 s{r+1}, s{p+1}, 0")
    A(f"s_mov_b32 s{r+2}, {hex(size)}\ns_mov_b32 s{r+3}, 0x20000")


def R(r):
    return f"s[{r}:{r+3}]"


def V(a, n):
    return f"v[{a}:{a+n-1}]"


def st(k):
    if STAMPS and str(k) not in str(opt.get("nost", "")):
        A(f"s_memtime s[{sST+2*k}:{sST+2*k+1}]")


def end_wave():
    A("s_branch L_stamps" if STAMPS else "s_endpgm")


DPP = "row_mask:0xf bank_mask:0xf"


def row_allreduce(op, a):
    for n in (8, 4, 2, 1):
        A(f"{op}_dpp v{a}, v{a}, v{a} row_ror:{n} {DPP}")


def wave_allreduce_add(a, t):
    row_allreduce("v_add_f32", a)
    for sw in ("v_permlane16_swap_b32", "v_permlane32_swap_b32"):
        A(f"v_mov_b32 v{t}, v{a}\n{sw} v{a}, v{t}\nv_add_f32 v{a}, v{a}, v{t}")


def tag(regs):
    for r in regs:
        A(f"v_bfi_b32 v{r}, s{sMASK}, v{vT}, v{r}")


uid = [0]


def poll(loads, regs, tmp, between=None, masked=None, sleep=0):
    uid[0] += 1
    u = uid[0]
    loads()
    if between:
        between()
    A(f"s_mov_b32 s{sCNT}, {opt['spin']}")
    A(f"L_poll{u}:")
    A("s_waitcnt vmcnt(0)")
    rs = list(regs)
    A(f"v_xor_b32 v{tmp}, v{rs[0]}, v{vT}\nv_xor_b32 v{tmp+1}, v{rs[1]}, v{vT}")
    for n, r in enumerate(rs[2:]):
        A(f"v_bitop3_b32 v{tmp+n%2}, v{tmp+n%2}, v{r}, v{vT} bitop3:0xf6")
    if masked:
        A(f"s_mov_b64 exec, {hex(masked[0])}")
        for n, r in enumerate(masked[1]):
            A(f"v_bitop3_b32 v{tmp+n%2}, v{tmp+n%2}, v{r}, v{vT} bitop3:0xf6")
        A("s_mov_b64 exec, -1")
    A(f"v_bitop3_b32 v{tmp}, v{tmp}, v{tmp+1}, s{sMASK} bitop3:0xa8")
    A(f"v_cmp_ne_u32 vcc, 0, v{tmp}")
    A(f"s_cbranch_vccz L_ok{u}")
    A(f"s_sub_u32 s{sCNT}, s{sCNT}, 1\ns_cbranch_scc1 L_ok{u}")
    if sleep:
        A(f"s_sleep {sleep}")
    loads()
    A(f"s_branch L_poll{u}")
    A(f"L_ok{u}:")


def poll2(items, tmp, between=None, m0=72, depth=0):
    uid[0] += 1
    u = uid[0]
    if depth:
        for _, regs, _ in items:
            A(f"v_not_b32 v{regs[0]}, v{vT}")
    for ld, _, _ in items:
        A(ld)
    if between:
        between()
    A(f"s_mov_b32 s{sCNT}, {opt['spin'] * (4 if depth else 1)}")
    A(f"L_poll{u}:")
    A(f"s_waitcnt vmcnt({depth})")
    for k, (_, regs, _) in enumerate(items):
        t = tmp + k
        if len(regs) == 1:
            A(f"v_bitop3_b32 v{t}, v{regs[0]}, v{vT}, s{sMASK} bitop3:0x28")
        else:
            A(f"v_xor_b32 v{t}, v{regs[0]}, v{vT}")
            for r in regs[1:]:
                A(f"v_bitop3_b32 v{t}, v{t}, v{r}, v{vT} bitop3:0xf6")
            A(f"v_and_b32 v{t}, s{sMASK}, v{t}")
    for k in range(len(items)):
        A(f"v_cmp_ne_u32 s[{m0+2*k}:{m0+2*k+1}], 0, v{tmp+k}")
    for k, (_, _, lanes) in enumerate(items):
        if lanes:
            A(f"s_and_b64 s[{m0+2*k}:{m0+2*k+1}], s[{m0+2*k}:{m0+2*k+1}], {hex(lanes)}")
    acc = f"s[{m0}:{m0+1}]"
    for k in range(1, len(items)):
        A(f"s_or_b64 vcc, {acc}, s[{m0+2*k}:{m0+2*k+1}]")
        acc = "vcc"
    A(f"s_cbranch_scc0 L_ok{u}")
    A(f"s_sub_u32 s{sCNT}, s{sCNT}, 1\ns_cbranch_scc1 L_ok{u}")
    for k, (ld, _, _) in enumerate(items):
        A(f"s_mov_b64 exec, s[{m0+2*k}:{m0+2*k+1}]\ns_cbranch_execz L_skip{u}_{k}")
        A(ld)
        A(f"L_skip{u}_{k}:")
    A("s_mov_b64 exec, -1")
    A(f"s_branch L_poll{u}")
    A(f"L_ok{u}:")
    if depth:
        A("s_waitcnt vmcnt(0)")


def spin(off, n, tmp, extra=None, sleep=1):
    uid[0] += 1
    u = uid[0]
    A(f"L_spin{u}:")
    A(f"ds_read_b32 v{tmp}, v{vL} offset:{off-MX}")
    if extra:
        A(extra)
    A("s_waitcnt lgkmcnt(0)")
    A(f"v_readfirstlane_b32 s{sT0}, v{tmp}")
    A(f"s_cmp_ge_u32 s{sT0}, {n}\ns_cbranch_scc1 L_spun{u}")
    if sleep:
        A(f"s_sleep {sleep}")
    A(f"s_branch L_spin{u}")
    A(f"L_spun{u}:")


def store_fs(instr):
    uid[0] += 1
    u = uid[0]
    if not opt["fast"]:
        A(instr + " sc1")
        return
    A(f"s_cmp_eq_u32 s{sFAST}, 0\ns_cbranch_scc1 L_slow{u}")
    A(instr)
    A(f"s_branch L_sdone{u}")
    A(f"L_slow{u}:")
    A(instr + " sc1")
    A(f"L_sdone{u}:")


import os
hdr = open(os.path.join(os.path.dirname(os.path.abspath(__file__)), "hdr.txt")).read().split("\n")
out = [l for l in hdr if l.startswith(";") and "@launch" not in l and "Override" not in l and "grid=ceil" not in l]
lst = opt.get("list", "")
if lst:
    for ch in lst:
        if ch == "m":
            out.append(f"; @launch kernel={NAME}_kernel grid=(256,1,1) block=(768,1,1) lds={LDS_BYTES}")
        elif ch == "n":
            out.append("; @launch kernel=noop_kernel grid=(1,1,1) block=(64,1,1) lds=0")
        else:
            out.append("; @launch kernel=noop_kernel grid=(256,1,1) block=(64,1,1) lds=0")
else:
    out.append(f"; @launch grid=(256,1,1) block=(768,1,1) lds={LDS_BYTES}")
out.append(""";
; Stores are write-through (sc1) unless every reader was seen to run on this XCD (HW_REG_XCC_ID); reads bypass L1.""")
out.append('.amdgcn_target "amdgcn-amd-amdhsa--gfx950"')
out.append(".text")
out.append(f".globl {NAME}_kernel")
out.append(".p2align 8")
out.append(f".type {NAME}_kernel,@function")
out.append(f"{NAME}_kernel:")

SP = {"f": {4: [2, 2, 2, 1, 1, 0, 4, 4], 3: [int(c) for c in str(opt["sp3"])[1:]], 2: [int(c) for c in str(opt["sp2"])[1:]], 1: [1, 1, 0, 3, 3, 3, 3, 2], 0: [1, 0, 3, 3, 3, 2, 2, 2]},
      }[str(opt["bal"])]
SPL = {4: [2, 1, 2, 2, 1, 0, 4, 4], 3: [2, 0, 1, 1, 0, 4, 4, 4], 2: [int(c) for c in str(opt["spl"])[1:]], 1: [1, 0, 0, 3, 3, 3, 3, 3], 0: [1, 0, 3, 3, 3, 2, 2, 2]}
NMX = [int(c, 36) for c in str(opt["nmx"])]
assert sum(NMX) == NMLP
TABLE, TAB = [], []
fg = 0
for xg in range(8):
    fr = 0
    for hl in range(4):
        nm = NMX[xg] // 4 + (1 if hl < NMX[xg] % 4 else 0)
        ne = (SPL if hl == 3 else SP)[nm]
        assert sum(ne) == 16
        TAB.append(ne)
        for sp in range(8):
            if sp < 2:
                role, grp = 0, hl * 2 + sp
                grp ^= 4 if grp & 3 == 3 else 0
            elif sp < 2 + nm:
                role, grp = 1, fg
                fg += 1
            else:
                role, grp = 2, fr
                fr += 1
            assert role == 2 or ne[sp] <= 2
            TABLE.append(role | grp << 2 | ne[sp] << 9 | sum(ne[:sp]) % 16 << 12)

KR, VR = 40, 104
NE = opt["early"]
A("L_start:")
A("s_load_dwordx16 s[4:19], s[0:1], 0\ns_load_dwordx8 s[20:27], s[0:1], 64")
A(f"s_lshr_b32 s{sT0}, s2, 8\ns_cbranch_scc1 L_exit")
if opt["pf"] == 2:
    A(f"s_getpc_b64 s[{rA}:{rA+1}]")
    A("L_pc:")
    A("v_lshlrev_b32 v2, 4, v0\nv_min_u32 v2, (L_last-L_pc-16)&0xfffffff0, v2")
    A(f"global_load_dwordx4 v[164:167], v2, s[{rA}:{rA+1}]")
if opt.get("hx"):
    A(f"s_xor_b32 s2, s2, {opt['hx']}")
A(f"s_and_b32 s{sXG}, s2, 7\ns_lshl_b32 s{sT0}, s{sXG}, 8\ns_andn2_b32 s{sT1}, s2, 7\ns_add_u32 s{sSLOT}, s{sT0}, s{sT1}")
if NE <= 4:
    A(f"s_sub_u32 s{sT0}, s{sSLOT}, 6\ns_lshl_b32 s{sT0}, s{sT0}, 14")
else:
    A(f"s_lshl_b32 s{sT0}, s{sSLOT}, 14\ns_sub_u32 s{sT0}, s{sT0}, {6*16384-4096}")
A(f"v_lshrrev_b32 v1, 6, v0\nv_and_b32 v0, 63, v0\nv_readfirstlane_b32 s3, v1\nv_lshl_add_u32 v1, v1, 14, s{sT0}\nv_lshl_add_u32 v1, v0, 4, v1")
if NE:
    A("s_cmp_lt_u32 s3, 6\ns_cbranch_scc1 L_late\ns_waitcnt lgkmcnt(0)")
    for i in range(NE):
        A(f"global_load_dwordx4 {V(KR+4*i,4)}, v1, s[{pK}:{pK+1}] offset:{1024*i-(4096 if NE > 4 else 0)}{fl('kvfl')}")
    A("L_late:")
if STAMPS:
    for k in range(8):
        A(f"s_mov_b32 s{sST+2*k}, 0")
st(0)
if STAMPS or opt.get("diag"):
    A("s_memrealtime s[100:101]")
A(f"s_lshr_b32 s{sI}, s2, 3\ns_lshr_b32 s{sSLOT}, s{sSLOT}, 3")
A("v_lshlrev_b32 v8, 4, v0")
A(f"s_mov_b32 s{sQB}, -1\ns_cmp_lg_u32 s3, 0\ns_cbranch_scc1 L_not0\ns_and_b32 s{sQB}, s{sI}, 7")
A(f"s_lshl_b32 s{sT0}, s{sQB}, 6")
A(f"v_lshrrev_b32 v2, 4, v0\nv_lshl_add_u32 v2, v2, 4, s{sT0}\nv_lshlrev_b32 v3, 1, v2")
A(f"s_lshr_b32 s{sT0}, s{sSLOT}, 3\ns_lshl_b32 s{sT0}, s{sT0}, 8")
A(f"v_lshlrev_b32 v2, 13, v2\nv_and_b32 v9, 15, v0\nv_lshl_add_u32 v2, v9, 4, v2\nv_add_u32 v2, s{sT0}, v2")
A(f"s_movk_i32 s{sT0}, 0x2000\ns_waitcnt lgkmcnt(0)")
A(f"global_load_dwordx4 v[104:107], v8, s[{pX}:{pX+1}]")
A(f"global_load_dwordx4 v[12:15], v3, s[{pX}:{pX+1}]")
A(f"global_load_dwordx4 v[16:19], v3, s[{pX}:{pX+1}] offset:16")
for t in range(16):
    A(f"global_load_dwordx4 {V(40+4*t,4)}, v2, s[{pWQ}:{pWQ+1}]{fl('wqfl')}")
    if t < 15:
        A(f"v_add_u32 v2, s{sT0}, v2")
A("L_not0:")
A(f"s_and_b32 s{sT0}, s{sSLOT}, 0xfe\ns_lshl_b32 s{sT0}, s{sT0}, 1\ns_add_u32 s{sT0}, s{sT0}, L_table-L_pc\ns_load_dword s{sTAB}, s[{rA}:{rA+1}], s{sT0}")
A(f"s_lshl_b32 s{sT0}, s2, 4\ns_add_u32 s{sT0}, s{sT0}, s3\ns_cmp_eq_u32 s{sT0}, 2\ns_cbranch_scc0 L_notlead")
A(f"s_waitcnt lgkmcnt(0)\ns_load_dword s{sT0}, s[{pWS}:{pWS+1}], {hex(EPOCH)}")
A(f"v_mov_b32 v3, {EPOCH}\nv_lshlrev_b32 v4, 6, v0\ns_waitcnt lgkmcnt(0)")
A(f"s_add_u32 s{sT0}, s{sT0}, 0x0e3779b1\ns_and_b32 s{sT0}, s{sT0}, 0x0fffffff\ns_or_b32 s{sT1}, s{sT0}, 0x80000000")
A(f"v_mov_b32 v5, s{sT1}\nv_mov_b32 v6, s{sT0}\ns_mov_b64 exec, 15")
A(f"global_store_dword v4, v5, s[{pDBG}:{pDBG+1}] sc1")
A("s_mov_b64 exec, 1")
A(f"global_store_dword v3, v6, s[{pWS}:{pWS+1}] sc1")
A("s_mov_b64 exec, -1")
A("L_notlead:")
if NE > 4:
    A("v_subrev_u32 v1, 0x1000, v1")
if opt["pf"] == 1:
    A("s_cmp_eq_u32 s3, 1\ns_cbranch_scc0 L_pf_done")
    A(f"s_getpc_b64 s[{rA}:{rA+1}]")
    A("L_pc:")
    A(f"s_sub_u32 s{rA}, s{rA}, L_pc-L_start\ns_subb_u32 s{rA+1}, s{rA+1}, 0")
    A(f"s_and_b32 s{sT0}, s{sI}, 15\ns_lshl_b32 s{sT0}, s{sT0}, 10\nv_add_u32 v2, s{sT0}, v8")
    A("v_min_u32 v2, (L_last-L_start-16)&0xfffffff0, v2")
    A(f"global_load_dwordx4 v[160:163], v2, s[{rA}:{rA+1}]")
    A("L_pf_done:")
A("v_mov_b32 v4, 0\nv_mov_b32 v5, 0\nv_mov_b32 v6, 0\nv_mov_b32 v7, 0")
A(f"s_mov_b32 s{sT0}, 0xff800000\nv_writelane_b32 v4, s{sT0}, 0")
A(f"ds_write_b128 v8, v[4:7] offset:{MX}")
A(f"s_lshl_b32 s{sT0}, s3, 9\nv_lshl_add_u32 v9, v0, 3, s{sT0}\nds_write_b64 v9, v[6:7] offset:{OSL}")
A(f"""s_waitcnt lgkmcnt(0)
s_bitcmp1_b32 s{sI}, 0
s_cselect_b32 s77, 16, 0
s_lshr_b32 s77, s{sTAB}, s77
s_and_b32 s{sROLE}, s77, 3
s_bfe_u32 s{sR}, s77, 0x70002
s_bfe_u32 s79, s77, 0x30009
s_bfe_u32 s78, s77, 0x4000c
s_add_u32 s{sNKV}, s79, 6
s_add_u32 s{sU}, s3, s79
s_sub_u32 s{sU}, s{sU}, 6""")
A(f"""s_cmp_ge_u32 s3, 6
s_cbranch_scc1 L_own_unit
s_add_u32 s78, s78, 5
s_sub_u32 s78, s78, s3
s_lshr_b32 s77, s78, 1
s_lshl_b32 s77, s77, 3
s_and_b32 s78, s78, 1
s_add_u32 s77, s77, s78
s_and_b32 s78, s{sSLOT}, 0xf8
s_lshl_b32 s78, s78, 3
s_add_u32 s77, s77, s78
s_add_u32 s77, s77, 6
s_lshl_b32 s77, s77, 14
v_add_u32 v1, s77, v8
L_own_unit:""")
for i in range(4):
    A(f"s_mov_b32 s{sOFF+i}, {i*4096}")
koff = lambda i: (f"s{sOFF+i//4}", (i % 4) * 1024)
A(f"s_mov_b32 s{sHI}, 0xffff0000\ns_mov_b32 s{sMASK}, {TAGMASK}")
A(f"v_mov_b32 v{vL}, {MX}\nv_mov_b32 v{vONE}, 1")
A("s_waitcnt lgkmcnt(0)")
srd(rD, pX, 1024)
srd(rA, pK, 0x2000000)
srd(rB, pV, 0x2000000)
srd(rWS, pWS, 0x10000000)
st(6)
A("s_barrier")
A(f"s_cmp_lt_i32 s{sU}, 0\ns_cbranch_scc1 L_helper")


def kvload(base, i, r):
    A(f"buffer_load_dwordx4 {V(base+4*i,4)}, v1, {R(r)}, s{sCUR} offen{fl('kvfl')}")
    A(f"s_addk_i32 s{sCUR}, 0x400" if i < 15 else f"s_mov_b32 s{sCUR}, 0")


A(f"s_mov_b32 s{sCUR}, {NE*1024}")
if NE:
    A(f"s_cmp_ge_u32 s3, 6\ns_cbranch_scc1 L_k_rest\ns_mov_b32 s{sCUR}, 0")
    for i in range(NE):
        kvload(KR, i, rA)
    A("L_k_rest:")
for i in range(NE, 16):
    kvload(KR, i, rA)
for i in range(NV1):
    kvload(VR, i, rB)
st(1)
A("""v_bfe_u32 v10, v0, 3, 1
v_mul_u32_u24 v10, 0x202, v10
v_add_u32 v10, 0x100, v10
v_and_b32 v11, 1, v0
v_lshlrev_b32 v11, 4, v11
v_lshlrev_b32 v10, v11, v10
v_mov_b32 v12, 0x0c0c0000
v_lshrrev_b32 v12, v11, v12
v_or_b32 v10, v10, v12
v_bfe_u32 v11, v0, 1, 2
v_mov_b32 v12, 0x0c0c0c0c""")
for i in range(4):
    A(f"v_cmp_eq_u32 vcc, {i}, v11\nv_cndmask_b32 v{6+i}, v12, v10, vcc")
A(f"s_mov_b32 s{sM1}, 0xcccccccc\ns_mov_b32 s{sM1+1}, 0xcccccccc\ns_mov_b32 s{sM0}, 0xaaaaaaaa\ns_mov_b32 s{sM0+1}, 0xaaaaaaaa")
A(f"s_mov_b32 s{sC2}, {f32(128 ** -0.5 * 1.4426950408889634)}")
A("v_and_b32 v32, 15, v0\nv_lshlrev_b32 v32, 4, v32")
A(f"v_lshrrev_b32 v34, 4, v0\nv_and_b32 v35, 7, v0\nv_lshl_add_u32 v34, v34, 3, v35\ns_lshl_b32 s{sT0}, s3, 9\nv_lshl_add_u32 v34, v34, 4, s{sT0}")
A("v_lshlrev_b32 v35, 3, v0")
A(f"s_lshl_b32 s{sT0}, s{sSLOT}, 9\ns_add_u32 s{sT0}, s{sT0}, {OS}\nv_lshl_add_u32 v36, v0, 3, s{sT0}")
A(f"s_lshl_b32 s{sT0}, s{sSLOT}, 4\ns_add_u32 s{sT0}, s{sT0}, {ST}\nv_mov_b32 v37, s{sT0}")
A(f"s_sub_u32 s{sN}, s{sNKV}, 1")
A(f"v_lshrrev_b32 v26, 1, v32\nv_add_u32 v26, {ML}, v26\ns_lshl_b32 s{sT0}, s3, 3\ns_add_u32 s{sT0}, s{sT0}, {ML}\nv_mov_b32 v27, s{sT0}")
spin(CQ, 1, 10, f"ds_read_b128 v[2:5], v32 offset:{QL}\nds_read_b64 v[28:29], v{vL} offset:{FAST-MX}", sleep=2)
st(2)
A(f"v_readfirstlane_b32 s{sFAST}, v28\nv_mov_b32 v{vT}, v29")
A(f"s_waitcnt vmcnt({NV1})")
for j in range(4):
    for i in range(16):
        c = "0" if j == 0 else f"v{10+i}"
        A(f"v_dot2_f32_bf16 v{10+i}, v{KR+4*i+j}, v{2+j}, {c}")
for i in range(8):
    A(f"v_add_f32_dpp v{10+i}, v{10+i}, v{10+i} row_ror:8 row_mask:0xf bank_mask:0x3")
    A(f"v_add_f32_dpp v{10+i}, v{18+i}, v{18+i} row_ror:8 row_mask:0xf bank_mask:0xc")
for i in range(4):
    A(f"v_add_f32_dpp v{10+i}, v{10+i}, v{10+i} row_ror:12 row_mask:0xf bank_mask:0x5")
    A(f"v_add_f32_dpp v{10+i}, v{14+i}, v{14+i} row_ror:4 row_mask:0xf bank_mask:0xa")
for i in range(4):
    A(f"v_add_f32_dpp v{10+i}, v{10+i}, v{10+i} quad_perm:[2,3,0,1] {DPP}")
for i in range(2):
    A(f"v_cndmask_b32 v{10+i}, v{10+i}, v{12+i}, s[{sM1}:{sM1+1}]")
for i in range(2):
    A(f"v_add_f32_dpp v{10+i}, v{10+i}, v{10+i} quad_perm:[1,0,3,2] {DPP}")
A(f"v_cndmask_b32 v10, v10, v11, s[{sM0}:{sM0+1}]")
A(f"v_mul_f32 v10, s{sC2}, v10")
A(f"v_max_f32_dpp v11, v10, v10 row_ror:8 {DPP}")
for n in (4, 2, 1):
    A(f"v_max_f32_dpp v11, v11, v11 row_ror:{n} {DPP}")
for sw in ("v_permlane16_swap_b32", "v_permlane32_swap_b32"):
    A(f"v_mov_b32 v12, v11\n{sw} v11, v12\nv_max_f32 v11, v11, v12")
A("v_sub_f32 v10, v10, v11\nv_exp_f32 v10, v10")
A("v_cvt_pk_bf16_f32 v13, v10, v10\nv_lshlrev_b32 v13, 16, v13\nv_sub_f32 v13, v10, v13\nv_cvt_pk_bf16_f32 v13, v10, v13")
wave_allreduce_add(10, 12)
A("v_mov_b32 v20, v11\nv_mov_b32 v21, v10\ns_mov_b64 exec, 1")
A(f"ds_write_b64 v27, v[20:21]\nds_max_f32 v{vL}, v11\nds_add_rtn_u32 v12, v{vL}, v{vONE} offset:{C1-MX}")
A("s_mov_b64 exec, -1")
A(f"ds_read_b64 v[22:23], v26\nds_read_b32 v20, v{vL}\ns_waitcnt lgkmcnt(0)")
A(f"v_readfirstlane_b32 s{sT0}, v12")
A(f"s_cmp_lg_u32 s{sT0}, s{sN}\ns_cbranch_scc1 L_kv_nost")
tag([20])
A("v_sub_f32 v22, v22, v20\nv_min_f32 v22, 0x42800000, v22\nv_exp_f32 v22, v22\nv_mul_f32 v21, v22, v23")
row_allreduce("v_add_f32", 21)
tag([21])
A(f"v_mov_b32 v22, v{vT}\nv_mov_b32 v23, v{vT}\ns_mov_b64 exec, 1\ns_setprio 3")
store_fs(f"buffer_store_dwordx4 v[20:23], v37, {R(rWS)}, 0 offen")
A("s_setprio 0\ns_mov_b64 exec, -1")
st(7)
A("L_kv_nost:")
st(3)
for i in range(NV1, 16):
    kvload(VR, i, rB)
for t in range(16):
    A(f"v_mov_b32_dpp v{14+t%4}, v13 row_newbcast:{t} {DPP}")
    if t >= 1:
        for i in range(4):
            A(f"v_perm_b32 v{KR+4*(t-1)+i}, v{14+(t-1)%4}, v{14+(t-1)%4}, v{6+i}")
for i in range(4):
    A(f"v_perm_b32 v{KR+60+i}, v{14+15%4}, v{14+15%4}, v{6+i}")
spin(C1, f"s{sNKV}", 12, f"ds_read_b32 v19, v{vL}", sleep=2)
tag([19])
A("v_sub_f32 v11, v11, v19\nv_exp_f32 v11, v11")
st(4)
for t in range(16):
    A(f"s_waitcnt vmcnt({15-t})")
    c = "0" if t == 0 else "v[28:31]"
    A(f"v_mfma_f32_16x16x32_bf16 v[28:31], {V(VR+4*t,4)}, {V(KR+4*t,4)}, {c}")
st(5)
for i in range(4):
    A(f"v_add_f32_dpp v{28+i}, v{28+i}, v{28+i} row_ror:8 {DPP}")
for i in range(4):
    A(f"v_mul_f32 v{28+i}, v{28+i}, v11")
A("s_mov_b32 exec_lo, 0x00ff00ff\ns_mov_b32 exec_hi, 0x00ff00ff")
A(f"ds_write_b128 v34, v[28:31] offset:{OSL}")
A("s_mov_b64 exec, 1")
A(f"ds_add_rtn_u32 v12, v{vL}, v{vONE} offset:{C3-MX}")
A("s_mov_b64 exec, -1")
W0 = 6 - max(max(t) for t in TAB)
P = lambda k: V(KR + 2 * k, 2)
nsl = 12 - W0
for k in range(nsl):
    A(f"ds_read_b64 {P(k)}, v35 offset:{OSL+512*(W0+k)}")
A(f"s_waitcnt lgkmcnt({nsl-4})")
A(f"v_readfirstlane_b32 s{sT0}, v12")
A(f"v_pk_add_f32 {P(0)}, {P(0)}, {P(1)}\nv_pk_add_f32 {P(2)}, {P(2)}, {P(3)}\ns_waitcnt lgkmcnt({nsl-8})")
A(f"v_pk_add_f32 {P(4)}, {P(4)}, {P(5)}\nv_pk_add_f32 {P(6)}, {P(6)}, {P(7)}\nv_pk_add_f32 {P(0)}, {P(0)}, {P(2)}\ns_waitcnt lgkmcnt(0)")
if nsl >= 10:
    A(f"v_pk_add_f32 {P(8)}, {P(8)}, {P(9)}")
A(f"v_pk_add_f32 {P(4)}, {P(4)}, {P(6)}")
if nsl >= 9:
    A(f"v_pk_add_f32 {P(0)}, {P(0)}, {P(8)}")
if nsl >= 11:
    A(f"v_pk_add_f32 {P(4)}, {P(4)}, {P(10)}")
A(f"v_pk_add_f32 v[18:19], {P(0)}, {P(4)}")
tag([18, 19])
A(f"s_cmp_lg_u32 s{sT0}, s{sN}\ns_cbranch_scc1 L_kv_notlast")
store_fs(f"buffer_store_dwordx2 v[18:19], v36, {R(rWS)}, 0 offen")
A(f"ds_write_b32 v{vL}, v{vONE} offset:{C5-MX}")
st(6)
A("L_kv_notlast:")
A("L_kv_end:")
end_wave()

A("L_helper:")
A(f"s_cmp_ge_i32 s{sQB}, 0\ns_cbranch_scc1 L_q")
A("s_cmp_ge_u32 s3, 4\ns_cbranch_scc1 L_idle")
A("s_branch L_roles")
A("L_idle:")
end_wave()

A("L_q:")
A("""v_and_b32 v28, 1, v0
v_lshlrev_b32 v28, 4, v28
v_mov_b32 v29, 0x100
v_lshlrev_b32 v29, v28, v29
v_mov_b32 v30, 0x0c0c0000
v_lshrrev_b32 v30, v28, v30
v_or_b32 v29, v29, v30
v_bfe_u32 v28, v0, 1, 3
v_mov_b32 v30, 0x0c0c0c0c""")
for i in range(4):
    A(f"v_cmp_eq_u32 vcc, {i}, v28\nv_cndmask_b32 v{20+i}, v30, v29, vcc")
A("s_waitcnt vmcnt(16)")
for j in range(4):
    A(f"v_lshlrev_b32 v{112+2*j}, 16, v{104+j}\nv_and_b32 v{113+2*j}, s{sHI}, v{104+j}")
A("v_add_f32 v36, v112, v113\nv_add_f32 v37, v114, v115\nv_add_f32 v34, v116, v117\nv_add_f32 v35, v118, v119")
A("v_add_f32 v36, v36, v37\nv_add_f32 v34, v34, v35\nv_add_f32 v36, v36, v34")
wave_allreduce_add(36, 37)
A(f"v_mul_f32 v36, {f32(1/512)}, v36")
for j in range(8):
    A(f"v_sub_f32 v{112+j}, v{112+j}, v36")
A("v_mul_f32 v37, v112, v112")
for j in range(1, 8):
    A(f"v_fmac_f32 v37, v{112+j}, v{112+j}")
wave_allreduce_add(37, 34)
A(f"v_mul_f32 v37, {f32(1/512)}, v37")
A(f"""v_cvt_pk_bf16_f32 v34, v36, v37
v_lshlrev_b32 v36, 16, v34
v_and_b32 v37, s{sHI}, v34
v_add_f32 v37, {f32(1e-5)}, v37
v_cvt_pk_bf16_f32 v37, v37, v37
v_and_b32 v37, s{sHI}, v37
v_sqrt_f32 v37, v37
v_cvt_pk_bf16_f32 v37, v37, v37
v_and_b32 v37, s{sHI}, v37
v_rcp_f32 v37, v37""")
for j in range(8):
    r = 12 + j
    A(f"""v_lshlrev_b32 v28, 16, v{r}
v_and_b32 v29, s{sHI}, v{r}
v_sub_f32 v28, v28, v36
v_sub_f32 v29, v29, v36
v_cvt_pk_bf16_f32 v30, v28, v29
v_lshlrev_b32 v28, 16, v30
v_and_b32 v29, s{sHI}, v30
v_mul_f32 v28, v28, v37
v_mul_f32 v29, v29, v37
v_cvt_pk_bf16_f32 v{r}, v28, v29""")
A(f"s_load_dword s{sN}, s[{pDBG}:{pDBG+1}], 0")
A("s_waitcnt vmcnt(0)")
st(1)
for t in range(16):
    src = 12 + t // 2
    if t % 2:
        A(f"v_lshrrev_b32 v{src}, 16, v{src}")
    b = 104 + 4 * (t % 2)
    for i in range(4):
        A(f"v_perm_b32 v{b+i}, v{src}, v{src}, v{20+i}")
    c = "0" if t == 0 else "v[24:27]"
    A(f"v_mfma_f32_16x16x32_bf16 v[24:27], {V(40+4*t,4)}, {V(b,4)}, {c}")
A("L_qnum:")
for k in range(1, 4):
    A(f"s_waitcnt lgkmcnt(0)\ns_cmp_lg_u32 s{sN}, 0\ns_cbranch_scc1 L_num_ok")
    if k > 1:
        A(f"s_sleep {opt['nsl']}")
    A(f"s_load_dword s{sN}, s[{pDBG}:{pDBG+1}], {64*k}")
srd(rA, pDBG, 256)
A(f"s_mov_b32 s{sCNT}, {opt['spin']}\nv_mov_b32 v3, 0\ns_waitcnt lgkmcnt(0)")
A(f"""L_num:
s_cmp_lg_u32 s{sN}, 0
s_cbranch_scc1 L_num_ok
s_sub_u32 s{sCNT}, s{sCNT}, 1
s_cbranch_scc1 L_num_ok
buffer_load_dword v4, v3, {R(rA)}, 0 offen sc1
s_waitcnt vmcnt(0)
v_readfirstlane_b32 s{sN}, v4
s_branch L_num
L_num_ok:""")
st(2)
A(f"s_and_b32 s{sT0}, s{sN}, s{sMASK}\nv_mov_b32 v{vT}, s{sT0}")
A(f"s_getreg_b32 s{sT1}, hwreg(HW_REG_XCC_ID)\ns_and_b32 s{sT1}, s{sT1}, 15\ns_lshl_b32 s{sN}, s{sN}, 4\ns_or_b32 s{sN}, s{sN}, s{sT1}")
A(f"v_and_b32 v3, 7, v0\ns_cmp_lt_i32 s{sQB}, 0\ns_cbranch_scc1 L_nopub")
A(f"s_and_b32 s{sT0}, s{sSLOT}, 0xf8\ns_add_u32 s{sT0}, s{sT0}, s{sQB}\ns_lshl_b32 s{sT0}, s{sT0}, 9\ns_add_u32 s{sT0}, s{sT0}, {QS}")
A(f"v_lshrrev_b32 v2, 4, v0\nv_lshl_add_u32 v2, v2, 3, v3\nv_lshl_add_u32 v2, v2, 4, s{sT0}")
tag([24, 25, 26, 27])
A("s_mov_b32 exec_lo, 0x00ff00ff\ns_mov_b32 exec_hi, 0x00ff00ff")
A(f"buffer_store_dwordx4 v[24:27], v2, {R(rWS)}, 0 offen{fl('qst')}")
A("s_mov_b64 exec, -1")
A("s_cmp_lg_u32 s3, 0\ns_cbranch_scc1 L_idle")
A("L_nopub:")
A(f"s_lshl_b32 s{sT1}, s{sXG}, 7\ns_add_u32 s{sT1}, s{sT1}, {XC}\nv_lshl_add_u32 v5, v3, 2, s{sT1}")
A(f"s_cmp_eq_u32 s{sROLE}, 0\ns_cbranch_scc0 L_noxc")
A(f"s_lshl_b32 s{sT0}, s{sR}, 2\ns_add_u32 s{sT0}, s{sT0}, s{sT1}\nv_mov_b32 v3, s{sT0}\nv_mov_b32 v4, s{sN}\ns_mov_b64 exec, 1")
A(f"buffer_store_dword v4, v3, {R(rWS)}, 0 offen{fl('xst')}")
A("s_mov_b64 exec, -1")
A("L_noxc:")
A(f"s_and_b32 s{sT0}, s{sSLOT}, 0xf8\ns_lshl_b32 s{sT0}, s{sT0}, 9\ns_add_u32 s{sT0}, s{sT0}, {QS}")
A(f"v_lshl_add_u32 v7, v0, 4, s{sT0}")
A("v_bfe_u32 v2, v0, 3, 2\nv_lshlrev_b32 v2, 2, v2\nv_lshrrev_b32 v3, 5, v0\nv_add_u32 v2, v2, v3\nv_and_b32 v3, 7, v0\nv_lshl_add_u32 v2, v2, 3, v3\nv_lshlrev_b32 v2, 1, v2")
if opt["otouch"]:
    A(f"s_lshl_b32 s{sT0}, s{sSLOT}, 9\ns_add_u32 s{sT0}, s{sT0}, {OS}\nv_lshl_add_u32 v9, v0, 3, s{sT0}")
    A(f"buffer_load_dword v28, v9, {R(rWS)}, 0 offen")
    A(f"s_lshl_b32 s{sT0}, s{sSLOT}, 4\ns_add_u32 s{sT0}, s{sT0}, {ST}\nv_mov_b32 v9, s{sT0}")
    A(f"buffer_load_dword v29, v9, {R(rWS)}, 0 offen")
if opt["qsl"]:
    A(f"s_sleep {opt['qsl']}")
else:
    A("s_waitcnt vmcnt(0)")
st(3)


def q_poll():
    for t in range(4):
        A(f"buffer_load_dwordx4 {V(112+4*t,4)}, v7, {R(rWS)}, 0 offen offset:{1024*t} sc1")
    A(f"buffer_load_dword v6, v5, {R(rWS)}, 0 offen sc1")


if not opt.get("noq"):
    poll(q_poll, list(range(112, 128)), 10)
A(f"v_cmp_ne_u32 vcc, s{sN}, v6\ns_cmp_eq_u64 vcc, 0\ns_cselect_b32 s{sFAST}, 1, 0")
if opt.get("noq"):
    A(f"s_mov_b32 s{sFAST}, 1\nv_mov_b32 v112, 0\nv_mov_b32 v113, 0\nv_mov_b32 v114, 0\nv_mov_b32 v115, 0")
    for r in range(116, 128):
        A(f"v_mov_b32 v{r}, 0")
A(f"v_mov_b32 v4, s{sFAST}\nv_mov_b32 v5, v{vT}\nds_write_b64 v{vL}, v[4:5] offset:{FAST-MX}")
for i in range(4):
    A(f"v_add_f32 v{112+i}, v{112+i}, v{116+i}\nv_add_f32 v{120+i}, v{120+i}, v{124+i}")
for i in range(4):
    A(f"v_add_f32 v{112+i}, v{112+i}, v{120+i}")
A("v_permlane32_swap_b32 v112, v113\nv_permlane32_swap_b32 v114, v115")
A("v_add_f32 v112, v112, v113\nv_add_f32 v114, v114, v115")
A("v_cvt_pk_bf16_f32 v112, v112, v114")
A(f"ds_write_b16 v2, v112 offset:{QL}\nds_write_b16_d16_hi v2, v112 offset:{QL+32}")
A(f"ds_write_b32 v{vL}, v{vONE} offset:{CQ-MX}")
if opt.get("dirty"):
    A(f"s_lshl_b32 s{sT0}, s{sSLOT}, 14\ns_add_u32 s{sT0}, s{sT0}, 0x400000\nv_add_u32 v2, s{sT0}, v8")
    for k in range(opt["dirty"]):
        A(f"buffer_store_dwordx4 v[112:115], v2, {R(rWS)}, s{sOFF+k//4} offen offset:{1024*(k%4)}")
st(4)

if opt["wpf"]:
    srd(rA, pWO, 0x400000)
    if opt["wpf"] == 1:
        A(f"v_and_b32 v1, 15, v0\nv_lshlrev_b32 v1, 10, v1\ns_lshl_b32 s{sT0}, s{sSLOT}, 14\ns_add_u32 s{sT0}, s{sT0}, 384")
        A(f"buffer_load_dword v162, v1, {R(rA)}, s{sT0} offen")
    elif opt["wpf"] >= 3:
        res = [int(c) for c in str(opt["wres"])[1:]]
        packed = sum(r << (8 * k) for k, r in enumerate((res * 4)[:4]))
        A(f"v_and_b32 v1, 15, v0\nv_lshlrev_b32 v1, 10, v1\nv_lshrrev_b32 v2, 4, v0\nv_lshlrev_b32 v2, 3, v2\nv_mov_b32 v3, {hex(packed)}\nv_bfe_u32 v2, v3, v2, 8\nv_lshl_add_u32 v1, v2, 7, v1")
        A(f"s_lshl_b32 s{sT0}, s{sSLOT}, 14")
        A(f"buffer_load_dword v162, v1, {R(rA)}, s{sT0} offen")
    else:
        A(f"v_lshlrev_b32 v1, 7, v0\ns_lshl_b32 s{sT0}, s{sSLOT}, 14")
        A(f"buffer_load_dword v162, v1, {R(rA)}, s{sT0} offen\ns_add_u32 s{sT0}, s{sT0}, 8192\nbuffer_load_dword v163, v1, {R(rA)}, s{sT0} offen")
A("L_roles:")
A(f"s_cmp_eq_u32 s{sROLE}, 1\ns_cbranch_scc1 L_mlp")
A(f"s_cmp_eq_u32 s{sROLE}, 0\ns_cbranch_scc1 L_z")


def share_setup():
    A(f"""s_lshr_b32 s{sT0}, s{sI}, 3
s_mul_i32 s{sT0}, s{sT0}, 6
s_and_b32 s{sT1}, s{sI}, 7
s_add_u32 s77, s{sT0}, s{sT1}
s_sub_u32 s77, s77, 2
s_mul_i32 s78, s{sXG}, 11
s_cmp_eq_u32 s{sXG}, 7
s_subb_u32 s78, s78, 0
s_mul_i32 s{sT0}, s77, 22
s_lshl_b32 s{sT1}, s78, 5
v_lshrrev_b32 v152, 2, v0
v_add_u32 v152, s{sT0}, v152
v_mul_u32_u24 v152, 2752, v152
v_and_b32 v153, 3, v0
v_lshlrev_b32 v153, 7, v153
v_min_u32 v153, 348, v153
v_add3_u32 v152, v152, v153, s{sT1}
s_mul_i32 s{sT0}, s77, {59*128}
s_lshl_b32 s{sT1}, s78, 14
s_add_u32 s{sT0}, s{sT0}, s{sT1}
v_min_u32 v153, 58, v0
v_lshl_add_u32 v153, v153, 7, s{sT0}
s_lshl_b32 s{sT0}, s{sXG}, 7
s_add_u32 s{sT0}, s{sT0}, {PFL}
s_lshl_b32 s{sT1}, s77, 2
s_add_u32 s{sT1}, s{sT1}, s{sT0}
v_mov_b32 v154, s{sT1}""")


def share_loads():
    A(f"buffer_load_dword v156, v152, {R(rA)}, 0 offen\nbuffer_load_dword v157, v152, {R(rB)}, 0 offen")
    A(f"buffer_load_dword v158, v153, {R(rC)}, 0 offen")
    A(f"s_mov_b32 s{sT1}, {16*2752}\ns_mov_b64 exec, 0xffffff")
    A(f"buffer_load_dword v159, v152, {R(rA)}, s{sT1} offen\nbuffer_load_dword v160, v152, {R(rB)}, s{sT1} offen")
    A("s_mov_b64 exec, 1\ns_waitcnt vmcnt(0)")
    A(f"buffer_store_dword v{vT}, v154, {R(rWS)}, 0 offen")
    A("s_mov_b64 exec, -1")


if opt["gpf"] == 2:
    A("s_cmp_eq_u32 s3, 0\ns_cbranch_scc0 L_idle")
    srd(rA, pWG, 512 * 2752)
    srd(rB, pWU, 512 * 2752)
    srd(rC, pWD, 1376 * 1024)
    share_setup()
    spin({"c5": C5, "c1": C1}[opt["gtrig"]], {"c5": 1, "c1": f"s{sNKV}"}[opt["gtrig"]], 10, sleep=2)
    share_loads()
if opt["gpf"] == 1:
    A("s_cmp_eq_u32 s3, 0\ns_cbranch_scc0 L_idle")
    srd(rA, pWG, 512 * 2752)
    srd(rB, pWU, 512 * 2752)
    A(f"""s_mul_i32 s{sT0}, s{sR}, 40
s_mul_i32 s{sT1}, s{sXG}, 11
s_cmp_eq_u32 s{sXG}, 7
s_subb_u32 s{sT1}, s{sT1}, 0
s_lshl_b32 s{sT1}, s{sT1}, 5
v_lshrrev_b32 v1, 2, v0
v_add_u32 v1, s{sT0}, v1
v_mul_u32_u24 v1, 2752, v1
v_and_b32 v2, 3, v0
v_lshlrev_b32 v2, 7, v2
v_min_u32 v2, 348, v2
v_add3_u32 v1, v1, v2, s{sT1}""")
    spin({"c5": C5, "c1": C1, "c1h": C1}[opt["gtrig"]], {"c5": 1, "c1": f"s{sNKV}", "c1h": 6}[opt["gtrig"]], 10, sleep=4)
    for k in range(3):
        if k == 2:
            A("s_mov_b32 exec_hi, 0")
        A(f"s_mov_b32 s{sT1}, {k*16*2752}")
        A(f"buffer_load_dword v4, v1, {R(rA)}, s{sT1} offen\nbuffer_load_dword v5, v1, {R(rB)}, s{sT1} offen")
    A("s_mov_b64 exec, -1")
end_wave()


def trigger(trig, loads):
    if opt.get("now"):
        return
    if trig != "start":
        off, n = {"q": (CQ, 1), "c1": (C1, f"s{sNKV}"), "c1h": (C1, 4), "c1a": (C1, 1), "c1b": (C1, 2), "c1c": (C1, 5), "c5": (C5, 1)}[trig]
        spin(off, n, 10, sleep=4)
    loads()


A("L_z:")
if opt.get("cgx"):
    A(f"s_xor_b32 s{sR}, s{sR}, {opt['cgx']}")
ZB, ZO, ZST, ZA, ZD = 40, 104, 120, 124, 140
srd(rA, pWO, 0x400000)
A(f"s_lshl_b32 s{sT0}, s{sXG}, 2\ns_add_u32 s{sT0}, s{sT0}, s3\ns_lshl_b32 s{sT0}, s{sT0}, 17\ns_lshl_b32 s{sT1}, s{sR}, 7\ns_add_u32 s{sT0}, s{sT0}, s{sT1}")
A(f"v_bfe_u32 v1, v0, 3, 2\nv_lshrrev_b32 v2, 5, v0\nv_lshl_add_u32 v1, v1, 3, v2\nv_lshlrev_b32 v1, 10, v1\nv_and_b32 v2, 7, v0\nv_lshl_add_u32 v1, v2, 4, v1\nv_add_u32 v1, s{sT0}, v1")
A(f"s_lshl_b32 s{sIMG}, s3, 14\ns_add_u32 s{sIMG}, s{sIMG}, {WIMG}")
A(f"v_lshrrev_b32 v3, 4, v0\nv_lshlrev_b32 v3, 3, v3\nv_bfe_u32 v4, v0, 2, 2\nv_add_u32 v3, v3, v4\nv_lshlrev_b32 v3, 7, v3\nv_and_b32 v4, 3, v0\nv_lshl_add_u32 v3, v4, 3, v3\nv_add_u32 v3, s{sIMG}, v3")
A(f"s_lshl_b32 s{sT0}, s{sXG}, 5\ns_lshl_b32 s{sT1}, s3, 3\ns_add_u32 s{sT0}, s{sT0}, s{sT1}")
A(f"s_lshl_b32 s{sT1}, s{sT0}, 9\ns_add_u32 s{sT1}, s{sT1}, {OS}\nv_add_u32 v4, s{sT1}, v8")
A(f"s_lshl_b32 s{sT1}, s{sT0}, 4\ns_add_u32 s{sT1}, s{sT1}, {ST}\nv_lshl_add_u32 v5, v2, 4, s{sT1}")
A(f"s_lshl_b32 s{sT0}, s3, 8\ns_add_u32 s{sT0}, s{sT0}, {SCR}\nv_lshl_add_u32 v6, v0, 2, s{sT0}")
A(f"v_lshrrev_b32 v7, 4, v0\nv_lshl_add_u32 v7, v7, 4, s{sT0}")
A(f"v_subrev_u32 v25, {SCR-ZP}, v6")
A(f"v_and_b32 v9, 31, v0\nv_lshlrev_b32 v9, 3, v9\nv_lshrrev_b32 v10, 5, v0\nv_lshl_add_u32 v9, v10, 2, v9\nv_add_u32 v9, s{sT0}, v9")
A(f"s_lshl_b32 s{sT0}, s{sXG}, 3\ns_add_u32 s{sT0}, s{sT0}, s{sR}\ns_lshl_b32 s{sT0}, s{sT0}, 1\ns_and_b32 s{sT1}, s3, 1\ns_add_u32 s{sT0}, s{sT0}, s{sT1}\ns_lshl_b32 s{sT0}, s{sT0}, 2")
A(f"v_lshrrev_b32 v20, 4, v0\nv_add_u32 v20, s{sT0}, v20\nv_lshlrev_b32 v21, 1, v20\nv_lshlrev_b32 v20, 2, v20\nv_add_u32 v20, {ZS}, v20")
A(f"s_lshl_b32 s{sT0}, s{sT0}, 2\nv_lshlrev_b32 v22, 11, v0\nv_add_u32 v22, s{sT0}, v22\nv_add_u32 v23, {64*2048}, v22")
A(f"s_lshl_b32 s{sT0}, s{sXG}, 11\ns_lshl_b32 s{sT1}, s{sR}, 8\ns_add_u32 s{sT0}, s{sT0}, s{sT1}\ns_add_u32 s{sT0}, s{sT0}, {ZS}\nv_add_u32 v24, s{sT0}, v8")
srd(rC, pWS, NMLP * 2048, PS)
srd(rB, pOUT, 1024)


def z_loads():
    if opt["ptouch"]:
        A(f"s_mov_b64 exec, 0xffff\nbuffer_load_dword v28, v24, {R(rWS)}, 0 offen\ns_mov_b64 exec, -1")
    A(f"buffer_load_ushort v26, v21, {R(rD)}, 0 offen")
    if opt["outtouch"]:
        A(f"buffer_load_ushort v29, v21, {R(rB)}, 0 offen")
    for t in range(16 if not opt.get("nowo") else 0):
        A(f"s_add_u32 m0, s{sIMG}, {t*1024}\ns_mov_b32 s{sT1}, {((t>>2)*32+(t&3)*2)*1024}")
        A(f"buffer_load_dwordx4 v1, {R(rA)}, s{sT1} offen{fl('wofl')} lds")
        if opt["zwin"] and t >= opt["zwin"] - 1:
            A(f"s_waitcnt vmcnt({opt['zwin']-1})")


def z_prep():
    for kb in range(4):
        for nt in range(4):
            for hf in range(2):
                A(f"ds_read_b64_tr_b16 {V(ZB+(kb*4+nt)*4+2*hf,2)}, v3 offset:{kb*4096+hf*512+nt*32}")


def zs_poll():
    A(f"buffer_load_dwordx4 {V(ZST,4)}, v5, {R(rWS)}, 0 offen sc1")


def z_poll():
    for t in range(4):
        A(f"buffer_load_dwordx4 {V(ZO+4*t,4)}, v4, {R(rWS)}, 0 offen offset:{1024*t} sc1")


trigger(opt["trigz"], z_loads)
A("s_waitcnt vmcnt(0)")
z_prep()
st(5)
spin(C1, f"s{sNKV}", 10, f"ds_read_b32 v{vT}, v{vL} offset:{TAG-MX}")
poll(zs_poll, list(range(ZST, ZST + 4)), 10, sleep=opt["ssl"])
A(f"""v_max_f32_dpp v16, v{ZST}, v{ZST} quad_perm:[1,0,3,2] {DPP}
v_max_f32_dpp v16, v16, v16 quad_perm:[2,3,0,1] {DPP}
v_max_f32_dpp v16, v16, v16 row_half_mirror {DPP}
v_sub_f32 v16, v{ZST}, v16
v_exp_f32 v16, v16
v_mul_f32 v11, v16, v{ZST+1}
v_add_f32_dpp v11, v11, v11 quad_perm:[1,0,3,2] {DPP}
v_add_f32_dpp v11, v11, v11 quad_perm:[2,3,0,1] {DPP}
v_add_f32_dpp v11, v11, v11 row_half_mirror {DPP}
v_rcp_f32 v11, v11
v_mul_f32 v16, v16, v11
v_mov_b32_dpp v16, v16 row_ror:15 row_mask:0xc bank_mask:0xf""")
spin(C3, f"s{sNKV}", 10, sleep=opt["c3sl"])
st(2)
if opt["p2"] & 1:
    poll2([(f"buffer_load_dwordx4 {V(ZO+4*t,4)}, v4, {R(rWS)}, 0 offen offset:{1024*t} sc1", [ZO + 4 * t, ZO + 4 * t + 2], None) for t in range(4)], 10, depth=opt["dz"])
else:
    poll(z_poll, [ZO + 2 * k for k in range(8)], 10, sleep=opt["zsl"])
if STAMPS:
    A(f"s_sub_u32 s{sFAST}, {opt['spin']*4}, s{sCNT}")
if opt.get("diag"):
    A("s_memrealtime s[98:99]")
st(6)
for t in range(4):
    for i in range(4):
        op = "v_mul_f32_dpp" if t == 0 else "v_fmac_f32_dpp"
        A(f"{op} v{12+i}, v16, v{ZO+4*t+i} row_newbcast:{2*t} {DPP}")
A("v_permlane32_swap_b32 v12, v14\nv_permlane32_swap_b32 v13, v15")
A("v_add_f32 v12, v12, v14\nv_add_f32 v13, v13, v15")
A("v_cvt_pk_bf16_f32 v12, v12, v13\nds_write_b32 v9, v12")
for kb in range(4):
    A(f"ds_read_b128 {V(ZA+4*kb,4)}, v7 offset:{64*kb}")
for kb in range(4):
    A(f"s_waitcnt lgkmcnt({3-kb})")
    for nt in range(4):
        c = "0" if kb == 0 else V(ZD + 4 * nt, 4)
        A(f"v_mfma_f32_16x16x32_bf16 {V(ZD+4*nt,4)}, {V(ZA+4*kb,4)}, {V(ZB+(kb*4+nt)*4,4)}, {c}")
for nt in range(1, 4):
    A(f"v_mov_b32_dpp v{ZD}, v{ZD+4*nt} quad_perm:[0,1,2,3] row_mask:{hex(1<<nt)} bank_mask:0xf")
A(f"ds_write_b32 v6, v{ZD} offset:{ZP-SCR+65536-65536}" if ZP >= SCR else f"ds_write_b32 v25, v{ZD}")
A("s_mov_b64 exec, 1")
A(f"ds_add_rtn_u32 v10, v{vL}, v{vONE} offset:{C4-MX}")
A("s_mov_b64 exec, 0xffff")
for w in range(4):
    A(f"ds_read_b128 {V(12 if w == 0 else ZA+4*w,4)}, v8 offset:{ZP+256*w}")
A("s_waitcnt lgkmcnt(2)")
A(f"v_readfirstlane_b32 s{sT0}, v10")
A(f"v_pk_add_f32 v[12:13], v[12:13], {V(ZA+4,2)}\nv_pk_add_f32 v[14:15], v[14:15], {V(ZA+6,2)}\ns_waitcnt lgkmcnt(0)")
A(f"v_pk_add_f32 {V(ZA+8,2)}, {V(ZA+8,2)}, {V(ZA+12,2)}\nv_pk_add_f32 {V(ZA+10,2)}, {V(ZA+10,2)}, {V(ZA+14,2)}")
A(f"v_pk_add_f32 v[12:13], v[12:13], {V(ZA+8,2)}\nv_pk_add_f32 v[14:15], v[14:15], {V(ZA+10,2)}")
tag([12, 13, 14, 15])
A(f"s_cmp_lg_u32 s{sT0}, 3\ns_cbranch_scc1 L_z_notlast")
A(f"buffer_store_dwordx4 v[12:15], v24, {R(rWS)}, 0 offen sc1")
st(7)
A("L_z_notlast:")
A("s_mov_b64 exec, -1")
A(f"s_sub_u32 s{sT0}, s3, 1\ns_cmp_lt_u32 s{sT0}, 2\ns_cbranch_scc1 L_fin")
end_wave()
A("L_fin:")


def f_poll1():
    for x in range(8):
        A(f"buffer_load_dword v{104+x}, v20, {R(rWS)}, s{sOFF+x//2} offen offset:{2048*(x%2)} sc1")


if opt["f1delay"]:
    A(f"s_sleep {opt['f1delay']}")
if opt["ftight"]:
    A(f"v_and_b32 v27, 7, v0\nv_lshlrev_b32 v27, 11, v27\nv_readfirstlane_b32 s{sT0}, v20\nv_add_u32 v27, s{sT0}, v27")
    poll2([(f"buffer_load_dword v28, v27, {R(rWS)}, 0 offen sc1", [28], 0xff), ], 10)
poll(f_poll1, list(range(104, 112)), 10, sleep=opt["fsl"])
st(1)


def f_poll2():
    A(f"buffer_load_dwordx4 v[112:115], v22, {R(rC)}, 0 offen sc1")
    A(f"buffer_load_dwordx4 v[116:119], v23, {R(rC)}, 0 offen sc1")


def f_h():
    A("""v_add_f32 v104, v104, v106
v_add_f32 v105, v105, v107
v_add_f32 v104, v104, v108
v_add_f32 v105, v105, v109
v_add_f32 v104, v104, v110
v_add_f32 v105, v105, v111
v_add_f32 v104, v104, v105
v_lshlrev_b32 v26, 16, v26
v_add_f32 v104, v104, v26
v_cvt_pk_bf16_f32 v104, v104, v104
v_lshlrev_b32 v104, 16, v104""")


f_h()
if opt["fdelay"]:
    A(f"s_sleep {opt['fdelay']}")
if opt["p2"] & 4:
    poll2([(f"buffer_load_dwordx4 v[112:115], v22, {R(rC)}, 0 offen sc1", [112, 113, 114, 115], None),
           (f"buffer_load_dwordx4 v[116:119], v23, {R(rC)}, 0 offen sc1", [116, 117, 118, 119], (1 << (NMLP - 64)) - 1)], 10, depth=opt["df"])
else:
    poll(f_poll2, list(range(112, 116)), 10, None, masked=((1 << (NMLP - 64)) - 1, list(range(116, 120))))
st(2)
for i in range(4):
    A(f"v_add_f32 v{112+i}, v{112+i}, v{116+i}")
A("v_permlane32_swap_b32 v112, v114\nv_permlane32_swap_b32 v113, v115")
A("v_add_f32 v112, v112, v114\nv_add_f32 v113, v113, v115")
A("v_permlane16_swap_b32 v112, v113\nv_add_f32 v112, v112, v113")
row_allreduce("v_add_f32", 112)
if "eps" in opt:
    A(f"v_mul_f32 v112, {f32(1 + opt['eps'] / 1000)}, v112")
A("v_add_f32 v112, v112, v104\nv_cvt_pk_bf16_f32 v112, v112, v112")
A("s_mov_b32 exec_lo, 0x00010001\ns_mov_b32 exec_hi, 0x00010001")
A(f"buffer_store_short v112, v21, {R(rB)}, 0 offen{fl('outfl')}")
if opt.get("diag"):
    A(f"s_cmp_eq_u32 s{sI}, 0\ns_cbranch_scc0 L_exit\ns_cmp_eq_u32 s3, 1\ns_cbranch_scc0 L_exit")
    A("s_memrealtime s[96:97]\ns_waitcnt lgkmcnt(0)")
    if "amp" in opt:
        if opt["amp"] != 8:
            A(f"s_cmp_eq_u32 s{sXG}, {opt['amp']}\ns_cbranch_scc0 L_exit")
        if opt.get("ampsrc") == "o":
            A("s_sub_u32 s94, s98, s100")
        else:
            A("s_sub_u32 s94, s96, s100")
        A("s_lshl_b32 s94, s94, 2\nL_amp:\ns_memrealtime s[92:93]\ns_waitcnt lgkmcnt(0)\ns_sub_u32 s92, s92, s96\ns_cmp_lt_u32 s92, s94\ns_cbranch_scc1 L_amp")
    srd(rA, pDBG, 64)
    A(f"s_sub_u32 s96, s96, s100\ns_sub_u32 s98, s98, s100\ns_lshl_b32 s100, s100, 16\ns_or_b32 s96, s96, s100")
    A(f"s_lshl_b32 s{sT0}, s{sXG}, 2\nv_mov_b32 v1, s{sT0}\nv_mov_b32 v2, s96\nv_mov_b32 v3, s98\ns_mov_b64 exec, 1")
    A(f"buffer_store_dword v2, v1, {R(rA)}, 0 offen offset:4 sc1\nbuffer_store_dword v3, v1, {R(rA)}, 0 offen offset:36 sc1")
st(3)
end_wave()

A("L_mlp:")
srd(rA, pWG, 512 * 2752)
srd(rB, pWU, 512 * 2752)
srd(rC, pWD, 1376 * 1024)
A(f"s_lshl_b32 s{sT0}, s3, 7\nv_lshrrev_b32 v1, 1, v0\nv_add_u32 v1, s{sT0}, v1\nv_mul_u32_u24 v1, 2752, v1")
A(f"v_and_b32 v2, 1, v0\nv_lshl_add_u32 v1, v2, 4, v1\ns_lshl_b32 s{sT0}, s{sR}, 5\nv_add_u32 v1, s{sT0}, v1")
A(f"s_lshl_b32 s{sIMG}, s3, 14\ns_add_u32 s{sIMG}, s{sIMG}, {WIMG}")
A(f"v_lshrrev_b32 v3, 4, v0\nv_lshlrev_b32 v3, 3, v3\nv_bfe_u32 v4, v0, 2, 2\nv_add_u32 v3, v3, v4\nv_lshlrev_b32 v3, 5, v3\nv_and_b32 v2, 3, v0\nv_lshl_add_u32 v3, v2, 3, v3\nv_add_u32 v3, s{sIMG}, v3")
A(f"s_lshl_b32 s{sT0}, s3, 9\ns_add_u32 s{sT0}, s{sT0}, {ZS}\nv_lshrrev_b32 v2, 5, v0\nv_and_b32 v5, 31, v0\nv_lshlrev_b32 v4, 11, v2\nv_lshl_add_u32 v4, v5, 4, v4\nv_add_u32 v4, s{sT0}, v4")
A(f"v_lshlrev_b32 v5, 3, v5\nv_lshl_add_u32 v5, v2, 2, v5\ns_lshl_b32 s{sT0}, s3, 8\nv_add_u32 v5, s{sT0}, v5\nv_add_u32 v6, {SCR}, v5")
A(f"s_add_u32 s{sT0}, s{sT0}, {SCR}\nv_lshrrev_b32 v7, 4, v0\nv_lshl_add_u32 v7, v7, 4, s{sT0}")
A("v_lshlrev_b32 v9, 2, v0")
A(f"s_lshl_b32 s{sT0}, s{sR}, 14\ns_lshl_b32 s{sT1}, s3, 8\ns_add_u32 s{sT0}, s{sT0}, s{sT1}")
A(f"v_lshrrev_b32 v20, 4, v0\nv_lshlrev_b32 v20, 10, v20\nv_and_b32 v19, 15, v0\nv_lshl_add_u32 v20, v19, 4, v20\nv_add_u32 v20, s{sT0}, v20")
A(f"s_add_u32 s{sT0}, s{sIMG}, 8192\nv_add_u32 v19, s{sT0}, v9")
A(f"s_lshl_b32 s{sT0}, s{sR}, 11\ns_lshl_b32 s{sT1}, s3, 9\ns_add_u32 s{sT0}, s{sT0}, s{sT1}\ns_add_u32 s{sT0}, s{sT0}, {PS}\nv_lshl_add_u32 v21, v0, 3, s{sT0}")
A(f"v_and_b32 v22, 15, v0\nv_lshlrev_b32 v22, 3, v22\ns_lshl_b32 s{sT0}, s3, 7\ns_add_u32 s{sT0}, s{sT0}, {ZP}\nv_add_u32 v25, s{sT0}, v22")
A(f"v_lshrrev_b32 v23, 5, v0\nv_lshlrev_b32 v23, 2, v23\nv_add_u32 v23, {SQ}, v23\nv_mov_b32 v24, {SQ}")
for i in range(4):
    A(f"v_mov_b32 v{116+i}, 0x3f803f80")
A(f"s_mov_b32 s{sM1}, 0x05040100\ns_mov_b32 s{sM1+1}, 0x07060302")


NPRE = 4 - opt["npost"]


def gu_loads(ts):
    for t in ts:
        A(f"s_add_u32 m0, s{sIMG}, {t*1024}\ns_mov_b32 s{sT1}, {t*32*2752}")
        A(f"buffer_load_dwordx4 v1, {R(rA)}, s{sT1} offen{fl('gufl')} lds")
        A(f"s_add_u32 m0, s{sIMG}, {4096+t*1024}")
        A(f"buffer_load_dwordx4 v1, {R(rB)}, s{sT1} offen{fl('gufl')} lds")


def wd_loads():
    for t in range(4):
        A(f"s_add_u32 m0, s{sIMG}, {8192+t*1024}\ns_nop 0")
        A(f"buffer_load_dwordx4 v20, {R(rC)}, s{sOFF+t} offen{fl('wdfl')} lds")


def wd_prep():
    for r in range(0, 16, 2):
        A(f"ds_read2st64_b32 {V(120+r,2)}, v19 offset0:{r} offset1:{r+1}")
    A("s_waitcnt lgkmcnt(0)")
    for i in range(8):
        A(f"v_perm_b32 v{136+i}, v{121+2*i}, v{120+2*i}, s{sM1}\nv_perm_b32 v{144+i}, v{121+2*i}, v{120+2*i}, s{sM1+1}")


def gu_prep(kbs, mid=None):
    if not len(kbs):
        return
    for kb in kbs:
        for tl in range(2):
            for hf in range(2):
                A(f"ds_read_b64_tr_b16 {V(40+(kb*2+tl)*4+2*hf,2)}, v3 offset:{kb*1024+hf*128+tl*4096}")
    if mid:
        mid()
    A("s_waitcnt lgkmcnt(0)")
    for kb in kbs:
        for tl in range(2):
            c = "0" if kb == 0 else V(108 + 4 * tl, 4)
            A(f"v_mfma_f32_16x16x32_bf16 {V(108+4*tl,4)}, v[116:119], {V(40+(kb*2+tl)*4,4)}, {c}")


def colsum_out():
    A("s_mov_b64 exec, 0xffff")
    A(f"ds_add_f32 v22, v108 offset:{CS}\nds_add_f32 v22, v112 offset:{CS+4}")
    A("s_mov_b64 exec, -1")


def m_loads():
    if opt["ptouch"]:
        A(f"buffer_load_dword v28, v21, {R(rWS)}, 0 offen")
    A(f"buffer_load_dword v26, v5, {R(rD)}, 0 offen")
    gu_loads(range(NPRE))
    if not opt["wdpost"]:
        wd_loads()


if opt["gpf"] == 2:
    share_setup()
    A(f"v_min_u32 v155, {opt['gneed']-1}, v0\nv_lshl_add_u32 v155, v155, 2, s{sT0}")
trigger(opt["trigm"], m_loads)
st(5)
A("s_waitcnt vmcnt(0)")
gu_prep(range(NPRE), None if opt["wdpost"] else wd_prep)
if NPRE == 4:
    colsum_out()
A(f"v_lshlrev_b32 v27, 16, v26\nv_and_b32 v26, s{sHI}, v26")
A(f"v_mov_b32 v30, 0\nv_mov_b32 v31, 0\nv_mov_b32 v29, {f32(1/512)}")
spin(C5, 1, 10, f"ds_read_b32 v{vT}, v{vL} offset:{TAG-MX}")
st(2)
if opt["gpf"] == 2:
    A("s_cmp_eq_u32 s3, 0\ns_cbranch_scc0 L_m_noshare")
    share_loads()
    A("L_m_noshare:")
    A(f"""s_mov_b32 s{sCNT}, {opt['gtry']}
L_m_wait:
buffer_load_dword v156, v155, {R(rWS)}, 0 offen sc1
s_waitcnt vmcnt(0)
v_bitop3_b32 v156, v156, v{vT}, s{sMASK} bitop3:0x28
v_cmp_ne_u32 vcc, 0, v156
s_cbranch_vccz L_m_go
s_sub_u32 s{sCNT}, s{sCNT}, 1
s_cbranch_scc1 L_m_go
s_sleep 2
s_branch L_m_wait
L_m_go:""")
if opt["wdelay"]:
    A(f"s_sleep {opt['wdelay']}")
gu_loads(range(NPRE, 4))
if opt["wdpost"]:
    wd_loads()
if opt["mwait"]:
    A("s_waitcnt vmcnt(0)")
    gu_prep(range(NPRE, 4), wd_prep if opt["wdpost"] else None)
    colsum_out()
    st(1)


def m_poll():
    for t in range(4):
        A(f"buffer_load_dwordx4 {V(72+4*t,4)}, v4, {R(rWS)}, s{sOFF+t} offen sc1")


def m_post():
    if opt["mwait"]:
        return
    if NPRE < 4 or opt["wdpost"]:
        A("s_waitcnt vmcnt(4)")
    if NPRE < 4:
        gu_prep(range(NPRE, 4), wd_prep if opt["wdpost"] else None)
        colsum_out()
    elif opt["wdpost"]:
        wd_prep()
    st(1)


if opt["p2"] & 2:
    poll2([(f"buffer_load_dwordx4 {V(72+4*t,4)}, v4, {R(rWS)}, s{sOFF+t} offen sc1", [72 + 4 * t], None) for t in range(4)], 10, m_post, depth=opt["dm"])
else:
    poll(m_poll, [72, 76, 80, 84], 10, m_post, sleep=opt["msl"])
if STAMPS:
    A(f"s_sub_u32 s{sFAST}, {opt['spin']*4}, s{sCNT}")
st(6)
for t in range(1, 4):
    for i in (0, 2):
        A(f"v_pk_add_f32 {V(72+i,2)}, {V(72+i,2)}, {V(72+4*t+i,2)}")
A("v_permlane32_swap_b32 v72, v74\nv_permlane32_swap_b32 v73, v75")
A("""v_add_f32 v72, v72, v74
v_add_f32 v73, v73, v75
v_add_f32 v72, v72, v27
v_add_f32 v73, v73, v26
v_cvt_pk_bf16_f32 v72, v72, v73
ds_write_b32 v6, v72""")
for kb in range(4):
    A(f"ds_read_b128 {V(92+4*kb,4)}, v7 offset:{64*kb}")
A(f"""v_lshlrev_b32 v73, 16, v72
v_and_b32 v72, s{sHI}, v72
v_add_f32 v74, v72, v73
v_mul_f32 v75, v72, v72
v_fmac_f32 v75, v73, v73""")
A("v_permlane32_swap_b32 v74, v75\nv_add_f32 v74, v74, v75")
rr = [8, 4, 2, 1]
for kb in range(4):
    A(f"s_waitcnt lgkmcnt({3-kb})")
    for tl in range(2):
        c = "0" if kb == 0 else V(108 + 4 * tl, 4)
        A(f"v_mfma_f32_16x16x32_bf16 {V(108+4*tl,4)}, {V(92+4*kb,4)}, {V(40+(kb*2+tl)*4,4)}, {c}")
    A(f"v_add_f32_dpp v74, v74, v74 row_ror:{rr[kb]} {DPP}")
A("s_mov_b32 exec_lo, 0x00010001\ns_mov_b32 exec_hi, 0x00010001")
A("ds_add_f32 v23, v74")
A("s_mov_b64 exec, 0xffff")
A("ds_write2_b32 v25, v108, v112 offset0:0 offset1:1")
A("s_mov_b64 exec, -1")
A("s_waitcnt lgkmcnt(0)\ns_barrier")
A(f"ds_read_b64 v[16:17], v24\nds_read_b64 v[14:15], v22 offset:{CS}")
for w in range(4):
    A(f"ds_read_b64 {V(12 if w == 0 else 92+2*w,2)}, v22 offset:{ZP+128*w}")
A(f"""s_waitcnt lgkmcnt(5)
v_mul_f32 v16, v16, v29
v_fmaak_f32 v17, v17, v29, {f32(1e-5)}
v_fma_f32 v17, -v16, v16, v17
v_max_f32 v17, {f32(1e-5)}, v17
v_rsq_f32 v17, v17
s_waitcnt lgkmcnt(0)
v_pk_add_f32 v[12:13], v[12:13], v[94:95]
v_pk_add_f32 v[96:97], v[96:97], v[98:99]
v_pk_add_f32 v[12:13], v[12:13], v[96:97]
v_mul_f32 v18, {f32(-1.4426950408889634)}, v17
v_fma_f32 v12, -v16, v14, v12
v_fma_f32 v13, -v16, v15, v13
v_mul_f32 v12, v12, v18
v_exp_f32 v12, v12
v_mul_f32 v13, v13, v17
v_add_f32 v12, 1.0, v12
v_rcp_f32 v12, v12
s_nop 0
v_mul_f32 v12, v12, v13
v_mov_b32_dpp v13, v12 quad_perm:[1,0,3,2] {DPP}
v_cvt_pk_bf16_f32 v12, v12, v13""")
for i in range(8):
    A(f"v_dot2c_f32_bf16_dpp v30, v12, v{136+i} row_newbcast:{2*i} {DPP}")
    A(f"v_dot2c_f32_bf16_dpp v31, v12, v{144+i} row_newbcast:{2*i} {DPP}")
tag([30, 31])
A(f"buffer_store_dwordx2 v[30:31], v21, {R(rWS)}, 0 offen sc1")
st(7)
end_wave()

if STAMPS:
    A("L_stamps:")
    A("s_mov_b64 exec, 1")
    A("s_waitcnt lgkmcnt(0)\ns_memrealtime s[4:5]\ns_waitcnt lgkmcnt(0)\ns_memtime s[6:7]")
    A(f"s_mul_i32 s{sT0}, s2, 12\ns_add_u32 s{sT0}, s{sT0}, s3\ns_lshl_b32 s{sT0}, s{sT0}, 6\ns_add_u32 s{sT0}, s{sT0}, {STAMP}")
    A(f"v_mov_b32 v1, s{sT0}\ns_waitcnt lgkmcnt(0)")
    for k in range(8):
        A(f"v_mov_b32 v{4+k}, s{sST+2*k}")
    A("v_mov_b32 v12, s100\nv_mov_b32 v13, s4\nv_mov_b32 v14, s6\nv_mov_b32 v15, s{0}".format(sFAST))
    A(f"v_mov_b32 v16, s{sROLE}\nv_mov_b32 v17, s{sNKV}\nbuffer_store_dwordx2 v[16:17], v1, {R(rWS)}, 0 offen offset:48")
    A(f"buffer_store_dwordx4 v[4:7], v1, {R(rWS)}, 0 offen\nbuffer_store_dwordx4 v[8:11], v1, {R(rWS)}, 0 offen offset:16\nbuffer_store_dwordx4 v[12:15], v1, {R(rWS)}, 0 offen offset:32")
A("L_exit:")
A("s_endpgm")

body, problems = fix_hazards(L)
for p in problems:
    print("HAZARD:", p, file=sys.stderr)
for line in body:
    out.append(line if line.endswith(":") else "    " + line)
if lst:
    out.append(""".globl noop_kernel
.p2align 8
.type noop_kernel,@function
noop_kernel:
    s_endpgm
.section .rodata,"a"
.p2align 6
.amdhsa_kernel noop_kernel
  .amdhsa_next_free_vgpr 8
  .amdhsa_next_free_sgpr 16
  .amdhsa_accum_offset 8
  .amdhsa_group_segment_fixed_size 0
  .amdhsa_kernarg_size 96
  .amdhsa_user_sgpr_count 2
  .amdhsa_user_sgpr_kernarg_segment_ptr 1
  .amdhsa_system_sgpr_workgroup_id_x 1
.end_amdhsa_kernel""")
out.append(".p2align 2\n.type L_table,@object\nL_table:")
for k in range(0, 256, 8):
    out.append("    .short " + ", ".join(hex(v) for v in TABLE[k:k+8]))
out.append(".size L_table, 512\nL_last:")
out.append(f""".section .rodata,"a"
.p2align 6
.amdhsa_kernel {NAME}_kernel
  .amdhsa_next_free_vgpr 168
  .amdhsa_next_free_sgpr 102
  .amdhsa_accum_offset 168
  .amdhsa_group_segment_fixed_size 0
  .amdhsa_kernarg_size 96
  .amdhsa_user_sgpr_count 2
  .amdhsa_user_sgpr_kernarg_segment_ptr 1
  .amdhsa_system_sgpr_workgroup_id_x 1
  .amdhsa_float_denorm_mode_32 3
.end_amdhsa_kernel""")
open(sys.argv[1], "w").write("\n".join(out) + "\n")
```

```python
import sys, struct
from asmlib import fix_hazards

NAME = "sequential_preLN__mha_block_cached__glu_gated_glu__decode"
opt = dict(stamps=0, nv1=4, trigz="c1", trigm="c1h", pat="A", kvfl="nt", wqfl="nt", wofl="nt", gufl="plain",
           wdfl="nt", fast=1, pf=2, gap=0, prio=0, bal="f", early=4, p2=0, fsplit=1, f0delay=20, fx=6, t1="x22044444", t2="x33005544", tl1="x22044444", tl2="x33005544", sp1="x11033332", spl1="x10033333", gtry=12, gneed=24, outtouch=0, wpf=1, wres="x3024", sp2="x11004433", spl="x10104433", sp3="x21100444", nmx="bbbbbbaa", ftight=0, c3sl=1, gpf=0, gtrig="c5", zwin=0, outfl="plain", mwait=1, shed=0, wdelay=0, f1delay=0, dz=0, dm=0, df=0, otouch=1, npost=4, wdpost=1, qsl=0, qst="sc1", xst="sc1", ssl=0, zsl=0, msl=0, fsl=0, mdelay=0, bfirst=0, fdelay=25, ptouch=1, nsl=12, spin=200000)
for a in sys.argv[2:]:
    k, v = a.split("=")
    opt[k] = v if not v.lstrip("-").isdigit() else int(v)
STAMPS = opt["stamps"]
NV1 = opt["nv1"]


def fl(name):
    v = opt[name]
    return "" if v == "plain" else " " + v.replace("+", " ")


def f32(x):
    return "0x%08x" % struct.unpack("<I", struct.pack("<f", x))[0]


QS, OS, ST, ZS, XC, PFL, EPOCH, PS, STAMP = 0x0, 0x20000, 0x40000, 0x41000, 0x45000, 0x45800, 0x46000, 0x48000, 0x80000
NMLP = 43 if opt.get('m43') else 86
TAGMASK = 0x3ff
QL, MX, LACC, SQ, CS, ZP, SCR, OSL, WIMG = 0, 256, 260, 272, 1024, 1536, 3072, 4096, 10240
CQ, C1, C5, C3, C4, CI, FAST, TAG, ML = 280, 284, 288, 292, 296, 300, 304, 308, 384
LDS_BYTES = WIMG + 4 * 16384
pX, pK, pV, pWQ, pWO, pWG, pWU, pWD, pOUT, pDBG, pWS = 4, 6, 8, 10, 12, 16, 18, 20, 22, 24, 26
rA, rB, rWS, rC, rD = 28, 32, 36, 44, 48
sNKV, sROLE, sMASK, sN = 40, 41, 42, 43
sXG, sI, sSLOT, sR, sT0, sT1, sCNT, sFAST = 52, 53, 54, 55, 56, 57, 58, 59
sM1, sM0, sU, sIMG, sC2, sHI, sQB, sTAB, sCUR = 60, 62, 64, 65, 66, 67, 76, 75, 74
sOFF = 68
sST = 84
vT = 38
vONE = 39
vL = 33

L = []


def A(s):
    for line in s.split("\n"):
        line = line.strip()
        if line:
            L.append(line)


def srd(r, p, size, add=None):
    if add is None:
        A(f"s_mov_b32 s{r}, s{p}\ns_mov_b32 s{r+1}, s{p+1}")
    else:
        A(f"s_add_u32 s{r}, s{p}, {add}\ns_addc_u32 s{r+1}, s{p+1}, 0")
    A(f"s_mov_b32 s{r+2}, {hex(size)}\ns_mov_b32 s{r+3}, 0x20000")


def R(r):
    return f"s[{r}:{r+3}]"


def V(a, n):
    return f"v[{a}:{a+n-1}]"


def st(k):
    if STAMPS and str(k) not in str(opt.get("nost", "")):
        A(f"s_memtime s[{sST+2*k}:{sST+2*k+1}]")


def end_wave():
    A("s_branch L_stamps" if STAMPS else "s_endpgm")


DPP = "row_mask:0xf bank_mask:0xf"


def row_allreduce(op, a):
    for n in (8, 4, 2, 1):
        A(f"{op}_dpp v{a}, v{a}, v{a} row_ror:{n} {DPP}")


def wave_allreduce_add(a, t):
    row_allreduce("v_add_f32", a)
    for sw in ("v_permlane16_swap_b32", "v_permlane32_swap_b32"):
        A(f"v_mov_b32 v{t}, v{a}\n{sw} v{a}, v{t}\nv_add_f32 v{a}, v{a}, v{t}")


def tag(regs):
    for r in regs:
        A(f"v_bfi_b32 v{r}, s{sMASK}, v{vT}, v{r}")


uid = [0]


def poll(loads, regs, tmp, between=None, masked=None, sleep=0):
    uid[0] += 1
    u = uid[0]
    loads()
    if between:
        between()
    A(f"s_mov_b32 s{sCNT}, {opt['spin']}")
    A(f"L_poll{u}:")
    A("s_waitcnt vmcnt(0)")
    rs = list(regs)
    for r in rs:
        A(f"v_xor_b32 v{r}, v{r}, v{vT}")
    if masked:
        A(f"s_mov_b64 exec, {hex(masked[0])}")
        for r in masked[1]:
            A(f"v_xor_b32 v{r}, v{r}, v{vT}")
        A("s_mov_b64 exec, -1")
        rs += masked[1]
    acc, rs = rs[0], rs[1:]
    while len(rs) >= 2:
        A(f"v_or3_b32 v{tmp}, v{acc}, v{rs[0]}, v{rs[1]}")
        acc, rs = tmp, rs[2:]
    if rs:
        A(f"v_bitop3_b32 v{tmp}, v{acc}, v{rs[0]}, s{sMASK} bitop3:0xa8")
    else:
        A(f"v_and_b32 v{tmp}, s{sMASK}, v{acc}")
    A(f"v_cmp_ne_u32 vcc, 0, v{tmp}")
    A(f"s_cbranch_vccz L_ok{u}")
    A(f"s_sub_u32 s{sCNT}, s{sCNT}, 1\ns_cbranch_scc1 L_ok{u}")
    if sleep:
        A(f"s_sleep {sleep}")
    loads()
    A(f"s_branch L_poll{u}")
    A(f"L_ok{u}:")


def poll2(items, tmp, between=None, m0=72, depth=0):
    uid[0] += 1
    u = uid[0]
    if depth:
        for _, regs, _ in items:
            A(f"v_not_b32 v{regs[0]}, v{vT}")
    for ld, _, _ in items:
        A(ld)
    if between:
        between()
    A(f"s_mov_b32 s{sCNT}, {opt['spin'] * (4 if depth else 1)}")
    A(f"L_poll{u}:")
    A(f"s_waitcnt vmcnt({depth})")
    for k, (_, regs, _) in enumerate(items):
        t = tmp + k
        if len(regs) == 1:
            A(f"v_bitop3_b32 v{t}, v{regs[0]}, v{vT}, s{sMASK} bitop3:0x28")
        else:
            A(f"v_xor_b32 v{t}, v{regs[0]}, v{vT}")
            for r in regs[1:]:
                A(f"v_bitop3_b32 v{t}, v{t}, v{r}, v{vT} bitop3:0xf6")
            A(f"v_and_b32 v{t}, s{sMASK}, v{t}")
    for k in range(len(items)):
        A(f"v_cmp_ne_u32 s[{m0+2*k}:{m0+2*k+1}], 0, v{tmp+k}")
    for k, (_, _, lanes) in enumerate(items):
        if lanes:
            A(f"s_and_b64 s[{m0+2*k}:{m0+2*k+1}], s[{m0+2*k}:{m0+2*k+1}], {hex(lanes)}")
    acc = f"s[{m0}:{m0+1}]"
    for k in range(1, len(items)):
        A(f"s_or_b64 vcc, {acc}, s[{m0+2*k}:{m0+2*k+1}]")
        acc = "vcc"
    A(f"s_cbranch_scc0 L_ok{u}")
    A(f"s_sub_u32 s{sCNT}, s{sCNT}, 1\ns_cbranch_scc1 L_ok{u}")
    for k, (ld, _, _) in enumerate(items):
        A(f"s_mov_b64 exec, s[{m0+2*k}:{m0+2*k+1}]\ns_cbranch_execz L_skip{u}_{k}")
        A(ld)
        A(f"L_skip{u}_{k}:")
    A("s_mov_b64 exec, -1")
    A(f"s_branch L_poll{u}")
    A(f"L_ok{u}:")
    if depth:
        A("s_waitcnt vmcnt(0)")


def spin(off, n, tmp, extra=None, sleep=1):
    uid[0] += 1
    u = uid[0]
    A(f"L_spin{u}:")
    A(f"ds_read_b32 v{tmp}, v{vL} offset:{off-MX}")
    if extra:
        A(extra)
    A("s_waitcnt lgkmcnt(0)")
    A(f"v_readfirstlane_b32 s{sT0}, v{tmp}")
    A(f"s_cmp_ge_u32 s{sT0}, {n}\ns_cbranch_scc1 L_spun{u}")
    if sleep:
        A(f"s_sleep {sleep}")
    A(f"s_branch L_spin{u}")
    A(f"L_spun{u}:")


def store_fs(instr):
    uid[0] += 1
    u = uid[0]
    if not opt["fast"]:
        A(instr + " sc1")
        return
    A(f"s_cmp_eq_u32 s{sFAST}, 0\ns_cbranch_scc1 L_slow{u}")
    A(instr)
    A(f"s_branch L_sdone{u}")
    A(f"L_slow{u}:")
    A(instr + " sc1")
    A(f"L_sdone{u}:")


import os
hdr = open(os.path.join(os.path.dirname(os.path.abspath(__file__)), "hdr.txt")).read().split("\n")
out = [l for l in hdr if l.startswith(";") and "@launch" not in l and "Override" not in l and "grid=ceil" not in l]
lst = opt.get("list", "")
if lst:
    for ch in lst:
        if ch == "m":
            out.append(f"; @launch kernel={NAME}_kernel grid=(256,1,1) block=(768,1,1) lds={LDS_BYTES}")
        elif ch == "n":
            out.append("; @launch kernel=noop_kernel grid=(1,1,1) block=(64,1,1) lds=0")
        else:
            out.append("; @launch kernel=noop_kernel grid=(256,1,1) block=(64,1,1) lds=0")
else:
    out.append(f"; @launch grid=(256,1,1) block=(768,1,1) lds={LDS_BYTES}")
out.append(""";
; Stores are write-through (sc1) unless every reader was seen to run on this XCD (HW_REG_XCC_ID); reads bypass L1.""")
out.append('.amdgcn_target "amdgcn-amd-amdhsa--gfx950"')
out.append(".text")
out.append(f".globl {NAME}_kernel")
out.append(".p2align 8")
out.append(f".type {NAME}_kernel,@function")
out.append(f"{NAME}_kernel:")

FX = opt["fx"]
W1 = 12 - FX
GB = 6 if FX == 5 else 7
SP = {"f": {4: [2, 2, 2, 1, 1, 0, 4, 4], 3: [int(c) for c in str(opt["sp3"])[1:]], 2: [int(c) for c in str(opt["sp2"])[1:]], 1: [int(c) for c in str(opt["sp1"])[1:]], 0: [1, 0, 3, 3, 3, 2, 2, 2]},
      }[str(opt["bal"])]
SPL = {4: [2, 1, 2, 2, 1, 0, 4, 4], 3: [2, 0, 1, 1, 0, 4, 4, 4], 2: [int(c) for c in str(opt["spl"])[1:]], 1: [int(c) for c in str(opt["spl1"])[1:]], 0: [1, 0, 3, 3, 3, 2, 2, 2]}
NMX = [int(c, 36) for c in str(opt["nmx"])]
assert sum(NMX) == NMLP
TABLE, TAB = [], []
fg = 0
for xg in range(8):
    fr = 0
    for hl in range(4):
        nm = NMX[xg] // 4 + (1 if hl < NMX[xg] % 4 else 0)
        ne = (SPL if hl == 3 else SP)[nm]
        if "don" in opt:
            d = opt["don"]
            par = (xg & 1) ^ (1 if d < 0 else 0)
            tabs = {(1, 0): {3: [2, 2, 1, 0, 0, 4, 4, 4], 2: [1, 1, 1, 0, 4, 4, 3, 3]}, (1, 1): {3: [1, 1, 1, 0, 0, 4, 4, 4], 2: [1, 0, 0, 0, 4, 4, 3, 3]},
                    (2, 0): {3: [2, 2, 1, 1, 0, 4, 4, 4], 2: [1, 1, 1, 0, 4, 4, 4, 3]}, (2, 1): {3: [1, 1, 0, 0, 0, 4, 4, 4], 2: [1, 0, 0, 0, 4, 3, 3, 3]},
                    (3, 0): {3: [2, 2, 1, 1, 1, 4, 4, 4], 2: [1, 1, 1, 0, 4, 4, 4, 4]}, (3, 1): {3: [1, 1, 0, 0, 0, 4, 4, 3], 2: [1, 0, 0, 0, 3, 3, 3, 3]}}
            ne = tabs[(abs(d), par)][nm]
        else:
            if FX == 5:
                ne = [int(c) for c in str(opt[("tl%d" if hl == 3 else "t%d") % nm])[1:]]
            assert sum(ne) == 64 - 8 * FX
        TAB.append(ne)
        for sp in range(8):
            if sp < 2:
                role, grp = 0, hl * 2 + sp
                grp ^= 4 if grp & 3 == 3 else 0
            elif sp < 2 + nm:
                role, grp = 1, fg
                fg += 1
            else:
                role, grp = 2, fr
                fr += 1
            assert role == 2 or ne[sp] <= 8 - FX
            TABLE.append(role | grp << 2 | ne[sp] << (2 + GB) | sum(ne[:sp]) % (1 << (11 - GB)) << (5 + GB))

KR, VR = 40, 104
NE = opt["early"]
A("L_start:")
A("s_load_dwordx16 s[4:19], s[0:1], 0\ns_load_dwordx8 s[20:27], s[0:1], 64")
A(f"s_lshr_b32 s{sT0}, s2, 8\ns_cbranch_scc1 L_exit")
if opt["pf"] == 2:
    A(f"s_getpc_b64 s[{rA}:{rA+1}]")
    A("L_pc:")
    A("v_lshlrev_b32 v2, 4, v0\nv_min_u32 v2, (L_last-L_pc-16)&0xfffffff0, v2")
    A(f"global_load_dwordx4 v[164:167], v2, s[{rA}:{rA+1}]")
if opt.get("hx"):
    A(f"s_xor_b32 s2, s2, {opt['hx']}")
A(f"s_and_b32 s{sXG}, s2, 7\ns_lshl_b32 s{sT0}, s{sXG}, 8\ns_andn2_b32 s{sT1}, s2, 7\ns_add_u32 s{sSLOT}, s{sT0}, s{sT1}")
if NE <= 4:
    A(f"s_sub_u32 s{sT0}, s{sSLOT}, {W1}\ns_lshl_b32 s{sT0}, s{sT0}, 14")
else:
    A(f"s_lshl_b32 s{sT0}, s{sSLOT}, 14\ns_sub_u32 s{sT0}, s{sT0}, {W1*16384-4096}")
A(f"v_lshrrev_b32 v1, 6, v0\nv_and_b32 v0, 63, v0\nv_readfirstlane_b32 s3, v1\nv_lshl_add_u32 v1, v1, 14, s{sT0}\nv_lshl_add_u32 v1, v0, 4, v1")
if NE:
    A(f"s_cmp_lt_u32 s3, {W1}\ns_cbranch_scc1 L_late\ns_waitcnt lgkmcnt(0)")
    for i in range(NE):
        A(f"global_load_dwordx4 {V(KR+4*i,4)}, v1, s[{pK}:{pK+1}] offset:{1024*i-(4096 if NE > 4 else 0)}{fl('kvfl')}")
    A("L_late:")
if STAMPS:
    for k in range(8):
        A(f"s_mov_b32 s{sST+2*k}, 0")
st(0)
if STAMPS or opt.get("diag"):
    A("s_memrealtime s[100:101]")
A(f"s_lshr_b32 s{sI}, s2, 3\ns_lshr_b32 s{sSLOT}, s{sSLOT}, 3")
A("v_lshlrev_b32 v8, 4, v0")
A(f"s_mov_b32 s{sQB}, -1\ns_cmp_lg_u32 s3, 0\ns_cbranch_scc1 L_not0\ns_and_b32 s{sQB}, s{sI}, 7")
A(f"s_lshl_b32 s{sT0}, s{sQB}, 6")
A(f"v_lshrrev_b32 v2, 4, v0\nv_lshl_add_u32 v2, v2, 4, s{sT0}\nv_lshlrev_b32 v3, 1, v2")
A(f"s_lshr_b32 s{sT0}, s{sSLOT}, 3\ns_lshl_b32 s{sT0}, s{sT0}, 8")
A(f"v_lshlrev_b32 v2, 13, v2\nv_and_b32 v9, 15, v0\nv_lshl_add_u32 v2, v9, 4, v2\nv_add_u32 v2, s{sT0}, v2")
A(f"s_movk_i32 s{sT0}, 0x2000\ns_waitcnt lgkmcnt(0)")
A(f"global_load_dwordx4 v[104:107], v8, s[{pX}:{pX+1}]")
A(f"global_load_dwordx4 v[12:15], v3, s[{pX}:{pX+1}]")
A(f"global_load_dwordx4 v[16:19], v3, s[{pX}:{pX+1}] offset:16")
for t in range(16):
    A(f"global_load_dwordx4 {V(40+4*t,4)}, v2, s[{pWQ}:{pWQ+1}]{fl('wqfl')}")
    if t < 15:
        A(f"v_add_u32 v2, s{sT0}, v2")
A("L_not0:")
A(f"s_and_b32 s{sT0}, s{sSLOT}, 0xfe\ns_lshl_b32 s{sT0}, s{sT0}, 1\ns_add_u32 s{sT0}, s{sT0}, L_table-L_pc\ns_load_dword s{sTAB}, s[{rA}:{rA+1}], s{sT0}")
A(f"s_lshl_b32 s{sT0}, s2, 4\ns_add_u32 s{sT0}, s{sT0}, s3\ns_cmp_eq_u32 s{sT0}, 2\ns_cbranch_scc0 L_notlead")
A(f"s_waitcnt lgkmcnt(0)\ns_load_dword s{sT0}, s[{pWS}:{pWS+1}], {hex(EPOCH)}")
A(f"v_mov_b32 v3, {EPOCH}\nv_lshlrev_b32 v4, 6, v0\ns_waitcnt lgkmcnt(0)")
A(f"s_add_u32 s{sT0}, s{sT0}, 0x0e3779b1\ns_and_b32 s{sT0}, s{sT0}, 0x0fffffff\ns_or_b32 s{sT1}, s{sT0}, 0x80000000")
A(f"v_mov_b32 v5, s{sT1}\nv_mov_b32 v6, s{sT0}\ns_mov_b64 exec, 15")
A(f"global_store_dword v4, v5, s[{pDBG}:{pDBG+1}] sc1")
A("s_mov_b64 exec, 1")
A(f"global_store_dword v3, v6, s[{pWS}:{pWS+1}] sc1")
A("s_mov_b64 exec, -1")
A("L_notlead:")
if NE > 4:
    A("v_subrev_u32 v1, 0x1000, v1")
if opt["pf"] == 1:
    A("s_cmp_eq_u32 s3, 1\ns_cbranch_scc0 L_pf_done")
    A(f"s_getpc_b64 s[{rA}:{rA+1}]")
    A("L_pc:")
    A(f"s_sub_u32 s{rA}, s{rA}, L_pc-L_start\ns_subb_u32 s{rA+1}, s{rA+1}, 0")
    A(f"s_and_b32 s{sT0}, s{sI}, 15\ns_lshl_b32 s{sT0}, s{sT0}, 10\nv_add_u32 v2, s{sT0}, v8")
    A("v_min_u32 v2, (L_last-L_start-16)&0xfffffff0, v2")
    A(f"global_load_dwordx4 v[160:163], v2, s[{rA}:{rA+1}]")
    A("L_pf_done:")
A("v_mov_b32 v4, 0\nv_mov_b32 v5, 0\nv_mov_b32 v6, 0\nv_mov_b32 v7, 0")
A(f"s_mov_b32 s{sT0}, 0xff800000\nv_writelane_b32 v4, s{sT0}, 0")
A(f"ds_write_b128 v8, v[4:7] offset:{MX}")
A(f"s_lshl_b32 s{sT0}, s3, 9\nv_lshl_add_u32 v9, v0, 3, s{sT0}\nds_write_b64 v9, v[6:7] offset:{OSL}")
A(f"""s_waitcnt lgkmcnt(0)
s_bitcmp1_b32 s{sI}, 0
s_cselect_b32 s77, 16, 0
s_lshr_b32 s77, s{sTAB}, s77
s_and_b32 s{sROLE}, s77, 3
s_bfe_u32 s{sR}, s77, {hex(GB << 16 | 2)}
s_bfe_u32 s79, s77, {hex(3 << 16 | 2 + GB)}
s_bfe_u32 s78, s77, {hex(11 - GB << 16 | 5 + GB)}
s_add_u32 s{sNKV}, s79, {FX}
s_add_u32 s{sU}, s3, s79
s_sub_u32 s{sU}, s{sU}, {W1}""")
DIV = ("s_lshr_b32 s77, s78, 1\ns_mul_i32 s77, s77, 6" if FX == 6 else "s_mul_i32 s77, s78, 43\ns_lshr_b32 s77, s77, 7\ns_mul_i32 s77, s77, 5")
A(f"""s_cmp_ge_u32 s3, {W1}
s_cbranch_scc1 L_own_unit
s_add_u32 s78, s78, {W1-1}
s_sub_u32 s78, s78, s3
{DIV}
s_add_u32 s77, s77, s78
s_and_b32 s78, s{sSLOT}, 0xf8
s_lshl_b32 s78, s78, 3
s_add_u32 s77, s77, s78
s_add_u32 s77, s77, {FX}
s_lshl_b32 s77, s77, 14
v_add_u32 v1, s77, v8
L_own_unit:""")
for i in range(4):
    A(f"s_mov_b32 s{sOFF+i}, {i*4096}")
koff = lambda i: (f"s{sOFF+i//4}", (i % 4) * 1024)
A(f"s_mov_b32 s{sHI}, 0xffff0000\ns_mov_b32 s{sMASK}, {TAGMASK}")
A(f"v_mov_b32 v{vL}, {MX}\nv_mov_b32 v{vONE}, 1")
A("s_waitcnt lgkmcnt(0)")
srd(rD, pX, 1024)
srd(rA, pK, 0x2000000)
srd(rB, pV, 0x2000000)
srd(rWS, pWS, 0x10000000)
st(6)
A("s_barrier")
A(f"s_cmp_lt_i32 s{sU}, 0\ns_cbranch_scc1 L_helper")


def kvload(base, i, r):
    A(f"buffer_load_dwordx4 {V(base+4*i,4)}, v1, {R(r)}, s{sCUR} offen{fl('kvfl')}")
    A(f"s_addk_i32 s{sCUR}, 0x400" if i < 15 else f"s_mov_b32 s{sCUR}, 0")


A(f"s_mov_b32 s{sCUR}, {NE*1024}")
if NE:
    A(f"s_cmp_ge_u32 s3, {W1}\ns_cbranch_scc1 L_k_rest\ns_mov_b32 s{sCUR}, 0")
    for i in range(NE):
        kvload(KR, i, rA)
    A("L_k_rest:")
for i in range(NE, 16):
    kvload(KR, i, rA)
for i in range(NV1):
    kvload(VR, i, rB)
st(1)
A("""v_bfe_u32 v10, v0, 3, 1
v_mul_u32_u24 v10, 0x202, v10
v_add_u32 v10, 0x100, v10
v_and_b32 v11, 1, v0
v_lshlrev_b32 v11, 4, v11
v_lshlrev_b32 v10, v11, v10
v_mov_b32 v12, 0x0c0c0000
v_lshrrev_b32 v12, v11, v12
v_or_b32 v10, v10, v12
v_bfe_u32 v11, v0, 1, 2
v_mov_b32 v12, 0x0c0c0c0c""")
for i in range(4):
    A(f"v_cmp_eq_u32 vcc, {i}, v11\nv_cndmask_b32 v{6+i}, v12, v10, vcc")
A(f"s_mov_b32 s{sM1}, 0xcccccccc\ns_mov_b32 s{sM1+1}, 0xcccccccc\ns_mov_b32 s{sM0}, 0xaaaaaaaa\ns_mov_b32 s{sM0+1}, 0xaaaaaaaa")
A(f"s_mov_b32 s{sC2}, {f32(128 ** -0.5 * 1.4426950408889634)}")
A("v_and_b32 v32, 15, v0\nv_lshlrev_b32 v32, 4, v32")
A(f"v_lshrrev_b32 v34, 4, v0\nv_and_b32 v35, 7, v0\nv_lshl_add_u32 v34, v34, 3, v35\ns_lshl_b32 s{sT0}, s3, 9\nv_lshl_add_u32 v34, v34, 4, s{sT0}")
A("v_lshlrev_b32 v35, 3, v0")
A(f"s_lshl_b32 s{sT0}, s{sSLOT}, 9\ns_add_u32 s{sT0}, s{sT0}, {OS}\nv_lshl_add_u32 v36, v0, 3, s{sT0}")
A(f"s_lshl_b32 s{sT0}, s{sSLOT}, 4\ns_add_u32 s{sT0}, s{sT0}, {ST}\nv_mov_b32 v37, s{sT0}")
A(f"s_sub_u32 s{sN}, s{sNKV}, 1")
A(f"v_lshrrev_b32 v26, 1, v32\nv_add_u32 v26, {ML}, v26\ns_lshl_b32 s{sT0}, s3, 3\ns_add_u32 s{sT0}, s{sT0}, {ML}\nv_mov_b32 v27, s{sT0}")
spin(CQ, 1, 10, f"ds_read_b128 v[2:5], v32 offset:{QL}\nds_read_b64 v[28:29], v{vL} offset:{FAST-MX}", sleep=2)
st(2)
A(f"v_readfirstlane_b32 s{sFAST}, v28\nv_mov_b32 v{vT}, v29")
A(f"s_waitcnt vmcnt({NV1})")
for j in range(4):
    for i in range(16):
        c = "0" if j == 0 else f"v{10+i}"
        A(f"v_dot2_f32_bf16 v{10+i}, v{KR+4*i+j}, v{2+j}, {c}")
for i in range(8):
    A(f"v_add_f32_dpp v{10+i}, v{10+i}, v{10+i} row_ror:8 row_mask:0xf bank_mask:0x3")
    A(f"v_add_f32_dpp v{10+i}, v{18+i}, v{18+i} row_ror:8 row_mask:0xf bank_mask:0xc")
for i in range(4):
    A(f"v_add_f32_dpp v{10+i}, v{10+i}, v{10+i} row_ror:12 row_mask:0xf bank_mask:0x5")
    A(f"v_add_f32_dpp v{10+i}, v{14+i}, v{14+i} row_ror:4 row_mask:0xf bank_mask:0xa")
for i in range(4):
    A(f"v_add_f32_dpp v{10+i}, v{10+i}, v{10+i} quad_perm:[2,3,0,1] {DPP}")
for i in range(2):
    A(f"v_cndmask_b32 v{10+i}, v{10+i}, v{12+i}, s[{sM1}:{sM1+1}]")
for i in range(2):
    A(f"v_add_f32_dpp v{10+i}, v{10+i}, v{10+i} quad_perm:[1,0,3,2] {DPP}")
A(f"v_cndmask_b32 v10, v10, v11, s[{sM0}:{sM0+1}]")
A(f"v_mul_f32 v10, s{sC2}, v10")
A(f"v_max_f32_dpp v11, v10, v10 row_ror:8 {DPP}")
for n in (4, 2, 1):
    A(f"v_max_f32_dpp v11, v11, v11 row_ror:{n} {DPP}")
for sw in ("v_permlane16_swap_b32", "v_permlane32_swap_b32"):
    A(f"v_mov_b32 v12, v11\n{sw} v11, v12\nv_max_f32 v11, v11, v12")
A("v_sub_f32 v10, v10, v11\nv_exp_f32 v10, v10")
A("v_cvt_pk_bf16_f32 v13, v10, v10\nv_lshlrev_b32 v13, 16, v13\nv_sub_f32 v13, v10, v13\nv_cvt_pk_bf16_f32 v13, v10, v13")
wave_allreduce_add(10, 12)
A("v_mov_b32 v20, v11\nv_mov_b32 v21, v10\ns_mov_b64 exec, 1")
A(f"ds_write_b64 v27, v[20:21]\nds_max_f32 v{vL}, v11\nds_add_rtn_u32 v12, v{vL}, v{vONE} offset:{C1-MX}")
A("s_mov_b64 exec, -1")
A(f"ds_read_b64 v[22:23], v26\nds_read_b32 v20, v{vL}\ns_waitcnt lgkmcnt(0)")
A(f"v_readfirstlane_b32 s{sT0}, v12")
A(f"s_cmp_lg_u32 s{sT0}, s{sN}\ns_cbranch_scc1 L_kv_nost")
A(f"v_bfi_b32 v20, s{sMASK}, 0, v20")
A("v_sub_f32 v22, v22, v20\nv_min_f32 v22, 0x42800000, v22\nv_exp_f32 v22, v22\nv_mul_f32 v21, v22, v23")
row_allreduce("v_add_f32", 21)
tag([20, 21])
A(f"v_mov_b32 v22, v{vT}\nv_mov_b32 v23, v{vT}\ns_mov_b64 exec, 1\ns_setprio 3")
store_fs(f"buffer_store_dwordx4 v[20:23], v37, {R(rWS)}, 0 offen")
A("s_setprio 0\ns_mov_b64 exec, -1")
st(7)
A("L_kv_nost:")
st(3)
for i in range(NV1, 16):
    kvload(VR, i, rB)
for t in range(16):
    A(f"v_mov_b32_dpp v{14+t%4}, v13 row_newbcast:{t} {DPP}")
    if t >= 1:
        for i in range(4):
            A(f"v_perm_b32 v{KR+4*(t-1)+i}, v{14+(t-1)%4}, v{14+(t-1)%4}, v{6+i}")
for i in range(4):
    A(f"v_perm_b32 v{KR+60+i}, v{14+15%4}, v{14+15%4}, v{6+i}")
spin(C1, f"s{sNKV}", 12, f"ds_read_b32 v19, v{vL}", sleep=2)
A(f"v_bfi_b32 v19, s{sMASK}, 0, v19")
A("v_sub_f32 v11, v11, v19\nv_exp_f32 v11, v11")
st(4)
for t in range(16):
    A(f"s_waitcnt vmcnt({15-t})")
    c = "0" if t == 0 else "v[28:31]"
    A(f"v_mfma_f32_16x16x32_bf16 v[28:31], {V(VR+4*t,4)}, {V(KR+4*t,4)}, {c}")
st(5)
for i in range(4):
    A(f"v_add_f32_dpp v{28+i}, v{28+i}, v{28+i} row_ror:8 {DPP}")
for i in range(4):
    A(f"v_mul_f32 v{28+i}, v{28+i}, v11")
A("s_mov_b32 exec_lo, 0x00ff00ff\ns_mov_b32 exec_hi, 0x00ff00ff")
A(f"ds_write_b128 v34, v[28:31] offset:{OSL}")
A("s_mov_b64 exec, 1")
A(f"ds_add_rtn_u32 v12, v{vL}, v{vONE} offset:{C3-MX}")
A("s_mov_b64 exec, -1")
W0 = W1 - max(max(t) for t in TAB)
P = lambda k: V(KR + 2 * k, 2)
nsl = 12 - W0
for k in range(nsl):
    A(f"ds_read_b64 {P(k)}, v35 offset:{OSL+512*(W0+k)}")
A(f"s_waitcnt lgkmcnt({nsl-4})")
A(f"v_readfirstlane_b32 s{sT0}, v12")
A(f"v_pk_add_f32 {P(0)}, {P(0)}, {P(1)}\nv_pk_add_f32 {P(2)}, {P(2)}, {P(3)}\ns_waitcnt lgkmcnt({nsl-8})")
A(f"v_pk_add_f32 {P(4)}, {P(4)}, {P(5)}\nv_pk_add_f32 {P(6)}, {P(6)}, {P(7)}\nv_pk_add_f32 {P(0)}, {P(0)}, {P(2)}\ns_waitcnt lgkmcnt(0)")
if nsl >= 10:
    A(f"v_pk_add_f32 {P(8)}, {P(8)}, {P(9)}")
A(f"v_pk_add_f32 {P(4)}, {P(4)}, {P(6)}")
if nsl >= 9:
    A(f"v_pk_add_f32 {P(0)}, {P(0)}, {P(8)}")
if nsl >= 11:
    A(f"v_pk_add_f32 {P(4)}, {P(4)}, {P(10)}")
A(f"v_pk_add_f32 v[18:19], {P(0)}, {P(4)}")
tag([18])
A(f"s_cmp_lg_u32 s{sT0}, s{sN}\ns_cbranch_scc1 L_kv_notlast")
store_fs(f"buffer_store_dwordx2 v[18:19], v36, {R(rWS)}, 0 offen")
A(f"ds_write_b32 v{vL}, v{vONE} offset:{C5-MX}")
st(6)
A("L_kv_notlast:")
A("L_kv_end:")
end_wave()

A("L_helper:")
A(f"s_cmp_ge_i32 s{sQB}, 0\ns_cbranch_scc1 L_q")
A("s_cmp_ge_u32 s3, 4\ns_cbranch_scc1 L_idle")
A("s_branch L_roles")
A("L_idle:")
end_wave()

A("L_q:")
A("""v_and_b32 v28, 1, v0
v_lshlrev_b32 v28, 4, v28
v_mov_b32 v29, 0x100
v_lshlrev_b32 v29, v28, v29
v_mov_b32 v30, 0x0c0c0000
v_lshrrev_b32 v30, v28, v30
v_or_b32 v29, v29, v30
v_bfe_u32 v28, v0, 1, 3
v_mov_b32 v30, 0x0c0c0c0c""")
for i in range(4):
    A(f"v_cmp_eq_u32 vcc, {i}, v28\nv_cndmask_b32 v{20+i}, v30, v29, vcc")
A("s_waitcnt vmcnt(16)")
for j in range(4):
    A(f"v_lshlrev_b32 v{112+2*j}, 16, v{104+j}\nv_and_b32 v{113+2*j}, s{sHI}, v{104+j}")
A("v_add_f32 v36, v112, v113\nv_add_f32 v37, v114, v115\nv_add_f32 v34, v116, v117\nv_add_f32 v35, v118, v119")
A("v_add_f32 v36, v36, v37\nv_add_f32 v34, v34, v35\nv_add_f32 v36, v36, v34")
wave_allreduce_add(36, 37)
A(f"v_mul_f32 v36, {f32(1/512)}, v36")
for j in range(8):
    A(f"v_sub_f32 v{112+j}, v{112+j}, v36")
A("v_mul_f32 v37, v112, v112")
for j in range(1, 8):
    A(f"v_fmac_f32 v37, v{112+j}, v{112+j}")
wave_allreduce_add(37, 34)
A(f"v_mul_f32 v37, {f32(1/512)}, v37")
A(f"""v_cvt_pk_bf16_f32 v34, v36, v37
v_lshlrev_b32 v36, 16, v34
v_and_b32 v37, s{sHI}, v34
v_add_f32 v37, {f32(1e-5)}, v37
v_cvt_pk_bf16_f32 v37, v37, v37
v_and_b32 v37, s{sHI}, v37
v_sqrt_f32 v37, v37
v_cvt_pk_bf16_f32 v37, v37, v37
v_and_b32 v37, s{sHI}, v37
v_rcp_f32 v37, v37""")
for j in range(8):
    r = 12 + j
    A(f"""v_lshlrev_b32 v28, 16, v{r}
v_and_b32 v29, s{sHI}, v{r}
v_sub_f32 v28, v28, v36
v_sub_f32 v29, v29, v36
v_cvt_pk_bf16_f32 v30, v28, v29
v_lshlrev_b32 v28, 16, v30
v_and_b32 v29, s{sHI}, v30
v_mul_f32 v28, v28, v37
v_mul_f32 v29, v29, v37
v_cvt_pk_bf16_f32 v{r}, v28, v29""")
A(f"s_load_dword s{sN}, s[{pDBG}:{pDBG+1}], 0")
A("s_waitcnt vmcnt(0)")
st(1)
for t in range(16):
    src = 12 + t // 2
    if t % 2:
        A(f"v_lshrrev_b32 v{src}, 16, v{src}")
    b = 104 + 4 * (t % 2)
    for i in range(4):
        A(f"v_perm_b32 v{b+i}, v{src}, v{src}, v{20+i}")
    c = "0" if t == 0 else "v[24:27]"
    A(f"v_mfma_f32_16x16x32_bf16 v[24:27], {V(40+4*t,4)}, {V(b,4)}, {c}")
A("L_qnum:")
for k in range(1, 4):
    A(f"s_waitcnt lgkmcnt(0)\ns_cmp_lg_u32 s{sN}, 0\ns_cbranch_scc1 L_num_ok")
    if k > 1:
        A(f"s_sleep {opt['nsl']}")
    A(f"s_load_dword s{sN}, s[{pDBG}:{pDBG+1}], {64*k}")
srd(rA, pDBG, 256)
A(f"s_mov_b32 s{sCNT}, {opt['spin']}\nv_mov_b32 v3, 0\ns_waitcnt lgkmcnt(0)")
A(f"""L_num:
s_cmp_lg_u32 s{sN}, 0
s_cbranch_scc1 L_num_ok
s_sub_u32 s{sCNT}, s{sCNT}, 1
s_cbranch_scc1 L_num_ok
buffer_load_dword v4, v3, {R(rA)}, 0 offen sc1
s_waitcnt vmcnt(0)
v_readfirstlane_b32 s{sN}, v4
s_branch L_num
L_num_ok:""")
st(2)
A(f"s_and_b32 s{sT0}, s{sN}, s{sMASK}\nv_mov_b32 v{vT}, s{sT0}")
A(f"s_getreg_b32 s{sT1}, hwreg(HW_REG_XCC_ID)\ns_and_b32 s{sT1}, s{sT1}, 15\ns_lshl_b32 s{sN}, s{sN}, 4\ns_or_b32 s{sN}, s{sN}, s{sT1}")
A(f"v_and_b32 v3, 7, v0\ns_cmp_lt_i32 s{sQB}, 0\ns_cbranch_scc1 L_nopub")
A(f"s_and_b32 s{sT0}, s{sSLOT}, 0xf8\ns_add_u32 s{sT0}, s{sT0}, s{sQB}\ns_lshl_b32 s{sT0}, s{sT0}, 9\ns_add_u32 s{sT0}, s{sT0}, {QS}")
A(f"v_lshrrev_b32 v2, 4, v0\nv_lshl_add_u32 v2, v2, 3, v3\nv_lshl_add_u32 v2, v2, 4, s{sT0}")
tag([24])
A("s_mov_b32 exec_lo, 0x00ff00ff\ns_mov_b32 exec_hi, 0x00ff00ff")
A(f"buffer_store_dwordx4 v[24:27], v2, {R(rWS)}, 0 offen{fl('qst')}")
A("s_mov_b64 exec, -1")
A("s_cmp_lg_u32 s3, 0\ns_cbranch_scc1 L_idle")
A("L_nopub:")
A(f"s_lshl_b32 s{sT1}, s{sXG}, 7\ns_add_u32 s{sT1}, s{sT1}, {XC}\nv_lshl_add_u32 v5, v3, 2, s{sT1}")
A(f"s_cmp_eq_u32 s{sROLE}, 0\ns_cbranch_scc0 L_noxc")
A(f"s_lshl_b32 s{sT0}, s{sR}, 2\ns_add_u32 s{sT0}, s{sT0}, s{sT1}\nv_mov_b32 v3, s{sT0}\nv_mov_b32 v4, s{sN}\ns_mov_b64 exec, 1")
A(f"buffer_store_dword v4, v3, {R(rWS)}, 0 offen{fl('xst')}")
A("s_mov_b64 exec, -1")
A("L_noxc:")
A(f"s_and_b32 s{sT0}, s{sSLOT}, 0xf8\ns_lshl_b32 s{sT0}, s{sT0}, 9\ns_add_u32 s{sT0}, s{sT0}, {QS}")
A(f"v_lshl_add_u32 v7, v0, 4, s{sT0}")
A("v_bfe_u32 v2, v0, 3, 2\nv_lshlrev_b32 v2, 2, v2\nv_lshrrev_b32 v3, 5, v0\nv_add_u32 v2, v2, v3\nv_and_b32 v3, 7, v0\nv_lshl_add_u32 v2, v2, 3, v3\nv_lshlrev_b32 v2, 1, v2")
if opt["otouch"]:
    A(f"s_lshl_b32 s{sT0}, s{sSLOT}, 9\ns_add_u32 s{sT0}, s{sT0}, {OS}\nv_lshl_add_u32 v9, v0, 3, s{sT0}")
    A(f"buffer_load_dword v28, v9, {R(rWS)}, 0 offen")
    A(f"s_lshl_b32 s{sT0}, s{sSLOT}, 4\ns_add_u32 s{sT0}, s{sT0}, {ST}\nv_mov_b32 v9, s{sT0}")
    A(f"buffer_load_dword v29, v9, {R(rWS)}, 0 offen")
if opt["qsl"]:
    A(f"s_sleep {opt['qsl']}")
else:
    A("s_waitcnt vmcnt(0)")
st(3)


def q_poll():
    for t in range(4):
        A(f"buffer_load_dwordx4 {V(112+4*t,4)}, v7, {R(rWS)}, 0 offen offset:{1024*t} sc1")
    A(f"buffer_load_dword v6, v5, {R(rWS)}, 0 offen sc1")


if not opt.get("noq"):
    poll(q_poll, [112, 116, 120, 124], 10)
A(f"v_cmp_ne_u32 vcc, s{sN}, v6\ns_cmp_eq_u64 vcc, 0\ns_cselect_b32 s{sFAST}, 1, 0")
if opt.get("noq"):
    A(f"s_mov_b32 s{sFAST}, 1\nv_mov_b32 v112, 0\nv_mov_b32 v113, 0\nv_mov_b32 v114, 0\nv_mov_b32 v115, 0")
    for r in range(116, 128):
        A(f"v_mov_b32 v{r}, 0")
A(f"v_mov_b32 v4, s{sFAST}\nv_mov_b32 v5, v{vT}\nds_write_b64 v{vL}, v[4:5] offset:{FAST-MX}")
for i in range(4):
    A(f"v_add_f32 v{112+i}, v{112+i}, v{116+i}\nv_add_f32 v{120+i}, v{120+i}, v{124+i}")
for i in range(4):
    A(f"v_add_f32 v{112+i}, v{112+i}, v{120+i}")
A("v_permlane32_swap_b32 v112, v113\nv_permlane32_swap_b32 v114, v115")
A("v_add_f32 v112, v112, v113\nv_add_f32 v114, v114, v115")
A("v_cvt_pk_bf16_f32 v112, v112, v114")
A(f"ds_write_b16 v2, v112 offset:{QL}\nds_write_b16_d16_hi v2, v112 offset:{QL+32}")
A(f"ds_write_b32 v{vL}, v{vONE} offset:{CQ-MX}")
if opt.get("dirty"):
    A(f"s_lshl_b32 s{sT0}, s{sSLOT}, 14\ns_add_u32 s{sT0}, s{sT0}, 0x400000\nv_add_u32 v2, s{sT0}, v8")
    for k in range(opt["dirty"]):
        A(f"buffer_store_dwordx4 v[112:115], v2, {R(rWS)}, s{sOFF+k//4} offen offset:{1024*(k%4)}")
st(4)

if opt["wpf"]:
    srd(rA, pWO, 0x400000)
    if opt["wpf"] == 1:
        A(f"v_and_b32 v1, 15, v0\nv_lshlrev_b32 v1, 10, v1\ns_lshl_b32 s{sT0}, s{sSLOT}, 14\ns_add_u32 s{sT0}, s{sT0}, 384")
        A(f"buffer_load_dword v162, v1, {R(rA)}, s{sT0} offen")
    elif opt["wpf"] >= 3:
        res = [int(c) for c in str(opt["wres"])[1:]]
        packed = sum(r << (8 * k) for k, r in enumerate((res * 4)[:4]))
        A(f"v_and_b32 v1, 15, v0\nv_lshlrev_b32 v1, 10, v1\nv_lshrrev_b32 v2, 4, v0\nv_lshlrev_b32 v2, 3, v2\nv_mov_b32 v3, {hex(packed)}\nv_bfe_u32 v2, v3, v2, 8\nv_lshl_add_u32 v1, v2, 7, v1")
        A(f"s_lshl_b32 s{sT0}, s{sSLOT}, 14")
        A(f"buffer_load_dword v162, v1, {R(rA)}, s{sT0} offen")
    else:
        A(f"v_lshlrev_b32 v1, 7, v0\ns_lshl_b32 s{sT0}, s{sSLOT}, 14")
        A(f"buffer_load_dword v162, v1, {R(rA)}, s{sT0} offen\ns_add_u32 s{sT0}, s{sT0}, 8192\nbuffer_load_dword v163, v1, {R(rA)}, s{sT0} offen")
def f_setup(par):
    odd = f"s_and_b32 s{sT1}, s3, 1\ns_add_u32 s{sT0}, s{sT0}, s{sT1}\n" if par is None else (f"s_add_u32 s{sT0}, s{sT0}, 1\n" if par else "")
    A(f"s_lshl_b32 s{sT0}, s{sXG}, 3\ns_add_u32 s{sT0}, s{sT0}, s{sR}\ns_lshl_b32 s{sT0}, s{sT0}, 1\n{odd}s_lshl_b32 s{sT0}, s{sT0}, 2")
    A(f"v_lshrrev_b32 v20, 4, v0\nv_add_u32 v20, s{sT0}, v20\nv_lshlrev_b32 v21, 1, v20\nv_lshlrev_b32 v20, 2, v20\nv_add_u32 v20, {ZS}, v20")
    A(f"s_lshl_b32 s{sT0}, s{sT0}, 2\ns_and_b32 s{sT1}, s{sT0}, 0x780\ns_add_u32 s{sT1}, s{sT1}, {ZS}\nv_lshrrev_b32 v27, 3, v0\nv_lshlrev_b32 v27, 11, v27\nv_lshl_add_u32 v27, v2, 4, v27\nv_add_u32 v27, s{sT1}, v27")
    A(f"v_lshlrev_b32 v22, 11, v0\nv_add_u32 v22, s{sT0}, v22\nv_add_u32 v23, {64*2048}, v22")
    srd(rC, pWS, NMLP * 2048, PS)
    srd(rB, pOUT, 1024)


A("L_roles:")
A(f"s_cmp_eq_u32 s{sROLE}, 1\ns_cbranch_scc1 L_mlp")
A(f"s_cmp_eq_u32 s{sROLE}, 0\ns_cbranch_scc1 L_z")
if opt["fsplit"]:
    A("; wave 0 of the group's first 8 role-free workgroups takes the other half of the F stage")
    A(f"s_cmp_eq_u32 s3, 0\ns_cbranch_scc0 L_idle\ns_cmp_lt_u32 s{sR}, 8\ns_cbranch_scc0 L_idle\nv_and_b32 v2, 7, v0")
    f_setup(1)
    A(f"buffer_load_ushort v26, v21, {R(rD)}, 0 offen")
    spin(C5, 1, 10, sleep=4)
    if opt["f0delay"]:
        A("; z cannot be there before the group's o has been merged: stay off the memory pipeline until then")
        A(f"s_sleep {opt['f0delay']}")
    A("s_branch L_fin")


def share_setup():
    A(f"""s_lshr_b32 s{sT0}, s{sI}, 3
s_mul_i32 s{sT0}, s{sT0}, 6
s_and_b32 s{sT1}, s{sI}, 7
s_add_u32 s77, s{sT0}, s{sT1}
s_sub_u32 s77, s77, 2
s_mul_i32 s78, s{sXG}, 11
s_cmp_eq_u32 s{sXG}, 7
s_subb_u32 s78, s78, 0
s_mul_i32 s{sT0}, s77, 22
s_lshl_b32 s{sT1}, s78, 5
v_lshrrev_b32 v152, 2, v0
v_add_u32 v152, s{sT0}, v152
v_mul_u32_u24 v152, 2752, v152
v_and_b32 v153, 3, v0
v_lshlrev_b32 v153, 7, v153
v_min_u32 v153, 348, v153
v_add3_u32 v152, v152, v153, s{sT1}
s_mul_i32 s{sT0}, s77, {59*128}
s_lshl_b32 s{sT1}, s78, 14
s_add_u32 s{sT0}, s{sT0}, s{sT1}
v_min_u32 v153, 58, v0
v_lshl_add_u32 v153, v153, 7, s{sT0}
s_lshl_b32 s{sT0}, s{sXG}, 7
s_add_u32 s{sT0}, s{sT0}, {PFL}
s_lshl_b32 s{sT1}, s77, 2
s_add_u32 s{sT1}, s{sT1}, s{sT0}
v_mov_b32 v154, s{sT1}""")


def share_loads():
    A(f"buffer_load_dword v156, v152, {R(rA)}, 0 offen\nbuffer_load_dword v157, v152, {R(rB)}, 0 offen")
    A(f"buffer_load_dword v158, v153, {R(rC)}, 0 offen")
    A(f"s_mov_b32 s{sT1}, {16*2752}\ns_mov_b64 exec, 0xffffff")
    A(f"buffer_load_dword v159, v152, {R(rA)}, s{sT1} offen\nbuffer_load_dword v160, v152, {R(rB)}, s{sT1} offen")
    A("s_mov_b64 exec, 1\ns_waitcnt vmcnt(0)")
    A(f"buffer_store_dword v{vT}, v154, {R(rWS)}, 0 offen")
    A("s_mov_b64 exec, -1")


if opt["gpf"] == 2:
    A("s_cmp_eq_u32 s3, 0\ns_cbranch_scc0 L_idle")
    srd(rA, pWG, 512 * 2752)
    srd(rB, pWU, 512 * 2752)
    srd(rC, pWD, 1376 * 1024)
    share_setup()
    spin({"c5": C5, "c1": C1}[opt["gtrig"]], {"c5": 1, "c1": f"s{sNKV}"}[opt["gtrig"]], 10, sleep=2)
    share_loads()
if opt["gpf"] == 1:
    A("s_cmp_eq_u32 s3, 0\ns_cbranch_scc0 L_idle")
    srd(rA, pWG, 512 * 2752)
    srd(rB, pWU, 512 * 2752)
    A(f"""s_mul_i32 s{sT0}, s{sR}, 40
s_mul_i32 s{sT1}, s{sXG}, 11
s_cmp_eq_u32 s{sXG}, 7
s_subb_u32 s{sT1}, s{sT1}, 0
s_lshl_b32 s{sT1}, s{sT1}, 5
v_lshrrev_b32 v1, 2, v0
v_add_u32 v1, s{sT0}, v1
v_mul_u32_u24 v1, 2752, v1
v_and_b32 v2, 3, v0
v_lshlrev_b32 v2, 7, v2
v_min_u32 v2, 348, v2
v_add3_u32 v1, v1, v2, s{sT1}""")
    spin({"c5": C5, "c1": C1, "c1h": C1}[opt["gtrig"]], {"c5": 1, "c1": f"s{sNKV}", "c1h": 6}[opt["gtrig"]], 10, sleep=4)
    for k in range(3):
        if k == 2:
            A("s_mov_b32 exec_hi, 0")
        A(f"s_mov_b32 s{sT1}, {k*16*2752}")
        A(f"buffer_load_dword v4, v1, {R(rA)}, s{sT1} offen\nbuffer_load_dword v5, v1, {R(rB)}, s{sT1} offen")
    A("s_mov_b64 exec, -1")
end_wave()


def trigger(trig, loads):
    if opt.get("now"):
        return
    if trig != "start":
        off, n = {"q": (CQ, 1), "c1": (C1, f"s{sNKV}"), "c1h": (C1, 4), "c1a": (C1, 1), "c1b": (C1, 2), "c1c": (C1, 5), "c5": (C5, 1)}[trig]
        spin(off, n, 10, sleep=4)
    loads()


A("L_z:")
if opt.get("cgx"):
    A(f"s_xor_b32 s{sR}, s{sR}, {opt['cgx']}")
ZB, ZO, ZST, ZA, ZD = 40, 104, 120, 124, 140
srd(rA, pWO, 0x400000)
A(f"s_lshl_b32 s{sT0}, s{sXG}, 2\ns_add_u32 s{sT0}, s{sT0}, s3\ns_lshl_b32 s{sT0}, s{sT0}, 17\ns_lshl_b32 s{sT1}, s{sR}, 7\ns_add_u32 s{sT0}, s{sT0}, s{sT1}")
A(f"v_bfe_u32 v1, v0, 3, 2\nv_lshrrev_b32 v2, 5, v0\nv_lshl_add_u32 v1, v1, 3, v2\nv_lshlrev_b32 v1, 10, v1\nv_and_b32 v2, 7, v0\nv_lshl_add_u32 v1, v2, 4, v1\nv_add_u32 v1, s{sT0}, v1")
A(f"s_lshl_b32 s{sIMG}, s3, 14\ns_add_u32 s{sIMG}, s{sIMG}, {WIMG}")
A(f"v_lshrrev_b32 v3, 4, v0\nv_lshlrev_b32 v3, 3, v3\nv_bfe_u32 v4, v0, 2, 2\nv_add_u32 v3, v3, v4\nv_lshlrev_b32 v3, 7, v3\nv_and_b32 v4, 3, v0\nv_lshl_add_u32 v3, v4, 3, v3\nv_add_u32 v3, s{sIMG}, v3")
A(f"s_lshl_b32 s{sT0}, s{sXG}, 5\ns_lshl_b32 s{sT1}, s3, 3\ns_add_u32 s{sT0}, s{sT0}, s{sT1}")
A(f"s_lshl_b32 s{sT1}, s{sT0}, 9\ns_add_u32 s{sT1}, s{sT1}, {OS}\nv_add_u32 v4, s{sT1}, v8")
A(f"s_lshl_b32 s{sT1}, s{sT0}, 4\ns_add_u32 s{sT1}, s{sT1}, {ST}\nv_lshl_add_u32 v5, v2, 4, s{sT1}")
A(f"s_lshl_b32 s{sT0}, s3, 8\ns_add_u32 s{sT0}, s{sT0}, {SCR}\nv_lshl_add_u32 v6, v0, 2, s{sT0}")
A(f"v_lshrrev_b32 v7, 4, v0\nv_lshl_add_u32 v7, v7, 4, s{sT0}")
A(f"v_subrev_u32 v25, {SCR-ZP}, v6")
A(f"v_and_b32 v9, 31, v0\nv_lshlrev_b32 v9, 3, v9\nv_lshrrev_b32 v10, 5, v0\nv_lshl_add_u32 v9, v10, 2, v9\nv_add_u32 v9, s{sT0}, v9")
f_setup(None if not opt["fsplit"] else 0)
A(f"s_lshl_b32 s{sT0}, s{sXG}, 11\ns_lshl_b32 s{sT1}, s{sR}, 8\ns_add_u32 s{sT0}, s{sT0}, s{sT1}\ns_add_u32 s{sT0}, s{sT0}, {ZS}\nv_add_u32 v24, s{sT0}, v8")


def z_loads():
    if opt["ptouch"]:
        A(f"s_mov_b64 exec, 0xffff\nbuffer_load_dword v28, v24, {R(rWS)}, 0 offen\ns_mov_b64 exec, -1")
    A(f"buffer_load_ushort v26, v21, {R(rD)}, 0 offen")
    if opt["outtouch"]:
        A(f"buffer_load_ushort v29, v21, {R(rB)}, 0 offen")
    for t in range(16 if not opt.get("nowo") else 0):
        A(f"s_add_u32 m0, s{sIMG}, {t*1024}\ns_mov_b32 s{sT1}, {((t>>2)*32+(t&3)*2)*1024}")
        A(f"buffer_load_dwordx4 v1, {R(rA)}, s{sT1} offen{fl('wofl')} lds")
        if opt["zwin"] and t >= opt["zwin"] - 1:
            A(f"s_waitcnt vmcnt({opt['zwin']-1})")


def z_prep():
    for kb in range(4):
        for nt in range(4):
            for hf in range(2):
                A(f"ds_read_b64_tr_b16 {V(ZB+(kb*4+nt)*4+2*hf,2)}, v3 offset:{kb*4096+hf*512+nt*32}")


def zs_poll():
    A(f"buffer_load_dwordx4 {V(ZST,4)}, v5, {R(rWS)}, 0 offen sc1")


def z_poll():
    for t in range(4):
        A(f"buffer_load_dwordx4 {V(ZO+4*t,4)}, v4, {R(rWS)}, 0 offen offset:{1024*t} sc1")


trigger(opt["trigz"], z_loads)
A("s_waitcnt vmcnt(0)")
z_prep()
st(5)
spin(C1, f"s{sNKV}", 10, f"ds_read_b32 v{vT}, v{vL} offset:{TAG-MX}")
poll(zs_poll, list(range(ZST, ZST + 4)), 10, sleep=opt["ssl"])
A(f"""v_max_f32_dpp v16, v{ZST}, v{ZST} quad_perm:[1,0,3,2] {DPP}
v_max_f32_dpp v16, v16, v16 quad_perm:[2,3,0,1] {DPP}
v_max_f32_dpp v16, v16, v16 row_half_mirror {DPP}
v_sub_f32 v16, v{ZST}, v16
v_exp_f32 v16, v16
v_mul_f32 v11, v16, v{ZST+1}
v_add_f32_dpp v11, v11, v11 quad_perm:[1,0,3,2] {DPP}
v_add_f32_dpp v11, v11, v11 quad_perm:[2,3,0,1] {DPP}
v_add_f32_dpp v11, v11, v11 row_half_mirror {DPP}
v_rcp_f32 v11, v11
v_mul_f32 v16, v16, v11
v_mov_b32_dpp v16, v16 row_ror:15 row_mask:0xc bank_mask:0xf""")
spin(C3, f"s{sNKV}", 10, sleep=opt["c3sl"])
st(2)
if opt["p2"] & 1:
    poll2([(f"buffer_load_dwordx4 {V(ZO+4*t,4)}, v4, {R(rWS)}, 0 offen offset:{1024*t} sc1", [ZO + 4 * t, ZO + 4 * t + 2], None) for t in range(4)], 10, depth=opt["dz"])
else:
    poll(z_poll, [ZO + 2 * k for k in range(8)], 10, sleep=opt["zsl"])
if STAMPS:
    A(f"s_sub_u32 s{sFAST}, {opt['spin']*4}, s{sCNT}")
if opt.get("diag"):
    A("s_memrealtime s[98:99]")
st(6)
for t in range(4):
    for i in range(4):
        op = "v_mul_f32_dpp" if t == 0 else "v_fmac_f32_dpp"
        A(f"{op} v{12+i}, v16, v{ZO+4*t+i} row_newbcast:{2*t} {DPP}")
A("v_permlane32_swap_b32 v12, v14\nv_permlane32_swap_b32 v13, v15")
A("v_add_f32 v12, v12, v14\nv_add_f32 v13, v13, v15")
A("v_cvt_pk_bf16_f32 v12, v12, v13\nds_write_b32 v9, v12")
for kb in range(4):
    A(f"ds_read_b128 {V(ZA+4*kb,4)}, v7 offset:{64*kb}")
for kb in range(4):
    A(f"s_waitcnt lgkmcnt({3-kb})")
    for nt in range(4):
        c = "0" if kb == 0 else V(ZD + 4 * nt, 4)
        A(f"v_mfma_f32_16x16x32_bf16 {V(ZD+4*nt,4)}, {V(ZA+4*kb,4)}, {V(ZB+(kb*4+nt)*4,4)}, {c}")
for nt in range(1, 4):
    A(f"v_mov_b32_dpp v{ZD}, v{ZD+4*nt} quad_perm:[0,1,2,3] row_mask:{hex(1<<nt)} bank_mask:0xf")
A(f"ds_write_b32 v6, v{ZD} offset:{ZP-SCR+65536-65536}" if ZP >= SCR else f"ds_write_b32 v25, v{ZD}")
A("s_mov_b64 exec, 1")
A(f"ds_add_rtn_u32 v10, v{vL}, v{vONE} offset:{C4-MX}")
A("s_mov_b64 exec, 0xffff")
for w in range(4):
    A(f"ds_read_b128 {V(12 if w == 0 else ZA+4*w,4)}, v8 offset:{ZP+256*w}")
A("s_waitcnt lgkmcnt(2)")
A(f"v_readfirstlane_b32 s{sT0}, v10")
A(f"v_pk_add_f32 v[12:13], v[12:13], {V(ZA+4,2)}\nv_pk_add_f32 v[14:15], v[14:15], {V(ZA+6,2)}\ns_waitcnt lgkmcnt(0)")
A(f"v_pk_add_f32 {V(ZA+8,2)}, {V(ZA+8,2)}, {V(ZA+12,2)}\nv_pk_add_f32 {V(ZA+10,2)}, {V(ZA+10,2)}, {V(ZA+14,2)}")
A(f"v_pk_add_f32 v[12:13], v[12:13], {V(ZA+8,2)}\nv_pk_add_f32 v[14:15], v[14:15], {V(ZA+10,2)}")
tag([12])
A(f"s_cmp_lg_u32 s{sT0}, 3\ns_cbranch_scc1 L_z_notlast")
A(f"buffer_store_dwordx4 v[12:15], v24, {R(rWS)}, 0 offen sc1")
st(7)
A("L_z_notlast:")
A("s_mov_b64 exec, -1")
if opt["fsplit"]:
    A("s_cmp_eq_u32 s3, 1\ns_cbranch_scc1 L_fin")
else:
    A(f"s_sub_u32 s{sT0}, s3, 1\ns_cmp_lt_u32 s{sT0}, 2\ns_cbranch_scc1 L_fin")
end_wave()
A("L_fin:")


def f_poll1():
    A(f"buffer_load_dword v28, v27, {R(rWS)}, 0 offen sc1")


poll(f_poll1, [28], 10, sleep=opt["fsl"])
for x in range(8):
    A(f"buffer_load_dword v{104+x}, v20, {R(rWS)}, s{sOFF+x//2} offen offset:{2048*(x%2)} sc1")
A("s_waitcnt vmcnt(0)\ns_mov_b64 exec, 0xffff")
for x in range(8):
    A(f"v_xor_b32 v{104+x}, v{104+x}, v{vT}")
A("s_mov_b64 exec, -1")
st(1)


def f_poll2():
    A(f"buffer_load_dwordx4 v[112:115], v22, {R(rC)}, 0 offen sc1")
    A(f"buffer_load_dwordx4 v[116:119], v23, {R(rC)}, 0 offen sc1")


def f_h():
    A("""v_add_f32 v104, v104, v106
v_add_f32 v105, v105, v107
v_add_f32 v104, v104, v108
v_add_f32 v105, v105, v109
v_add_f32 v104, v104, v110
v_add_f32 v105, v105, v111
v_add_f32 v104, v104, v105
v_lshlrev_b32 v26, 16, v26
v_add_f32 v104, v104, v26
v_cvt_pk_bf16_f32 v104, v104, v104
v_lshlrev_b32 v104, 16, v104""")


f_h()
A('; back off until the MLP stage is about done: a line read before it is written costs its writer an invalidation')
if opt["fdelay"]:
    A(f"s_sleep {opt['fdelay']}")
if opt["p2"] & 4:
    poll2([(f"buffer_load_dwordx4 v[112:115], v22, {R(rC)}, 0 offen sc1", [112, 113, 114, 115], None),
           (f"buffer_load_dwordx4 v[116:119], v23, {R(rC)}, 0 offen sc1", [116, 117, 118, 119], (1 << (NMLP - 64)) - 1)], 10, depth=opt["df"])
else:
    if opt.get("m43"):
        A("s_mov_b32 exec_hi, 0x7ff")
        poll(lambda: A(f"buffer_load_dwordx4 v[112:115], v22, {R(rC)}, 0 offen sc1"), list(range(112, 116)), 10)
        A("s_mov_b64 exec, -1")
    else:
        poll(f_poll2, list(range(112, 116)), 10, None, masked=((1 << (NMLP - 64)) - 1, list(range(116, 120))))
st(2)
for i in range(4):
    A(f"v_add_f32 v{112+i}, v{112+i}, v{116+i}")
A("v_permlane32_swap_b32 v112, v114\nv_permlane32_swap_b32 v113, v115")
A("v_add_f32 v112, v112, v114\nv_add_f32 v113, v113, v115")
A("v_permlane16_swap_b32 v112, v113\nv_add_f32 v112, v112, v113")
row_allreduce("v_add_f32", 112)
if "eps" in opt:
    A(f"v_mul_f32 v112, {f32(1 + opt['eps'] / 1000)}, v112")
A("v_add_f32 v112, v112, v104\nv_cvt_pk_bf16_f32 v112, v112, v112")
A("s_mov_b32 exec_lo, 0x00010001\ns_mov_b32 exec_hi, 0x00010001")
A(f"buffer_store_short v112, v21, {R(rB)}, 0 offen{fl('outfl')}")
if opt.get("diag"):
    A(f"s_cmp_eq_u32 s{sI}, 0\ns_cbranch_scc0 L_exit\ns_cmp_eq_u32 s3, 1\ns_cbranch_scc0 L_exit")
    A("s_memrealtime s[96:97]\ns_waitcnt lgkmcnt(0)")
    if "amp" in opt:
        if opt["amp"] != 8:
            A(f"s_cmp_eq_u32 s{sXG}, {opt['amp']}\ns_cbranch_scc0 L_exit")
        if opt.get("ampsrc") == "o":
            A("s_sub_u32 s94, s98, s100")
        else:
            A("s_sub_u32 s94, s96, s100")
        A("s_lshl_b32 s94, s94, 2\nL_amp:\ns_memrealtime s[92:93]\ns_waitcnt lgkmcnt(0)\ns_sub_u32 s92, s92, s96\ns_cmp_lt_u32 s92, s94\ns_cbranch_scc1 L_amp")
    srd(rA, pDBG, 64)
    A(f"s_sub_u32 s96, s96, s100\ns_sub_u32 s98, s98, s100\ns_lshl_b32 s100, s100, 16\ns_or_b32 s96, s96, s100")
    A(f"s_lshl_b32 s{sT0}, s{sXG}, 2\nv_mov_b32 v1, s{sT0}\nv_mov_b32 v2, s96\nv_mov_b32 v3, s98\ns_mov_b64 exec, 1")
    A(f"buffer_store_dword v2, v1, {R(rA)}, 0 offen offset:4 sc1\nbuffer_store_dword v3, v1, {R(rA)}, 0 offen offset:36 sc1")
st(3)
end_wave()

A("L_mlp:")
srd(rA, pWG, 512 * 2752)
srd(rB, pWU, 512 * 2752)
srd(rC, pWD, 1376 * 1024)
A(f"s_lshl_b32 s{sT0}, s3, 7\nv_lshrrev_b32 v1, 1, v0\nv_add_u32 v1, s{sT0}, v1\nv_mul_u32_u24 v1, 2752, v1")
A(f"v_and_b32 v2, 1, v0\nv_lshl_add_u32 v1, v2, 4, v1\ns_lshl_b32 s{sT0}, s{sR}, {6 if opt.get('m43') else 5}\nv_add_u32 v1, s{sT0}, v1")
A(f"s_lshl_b32 s{sIMG}, s3, 14\ns_add_u32 s{sIMG}, s{sIMG}, {WIMG}")
A(f"v_lshrrev_b32 v3, 4, v0\nv_lshlrev_b32 v3, 3, v3\nv_bfe_u32 v4, v0, 2, 2\nv_add_u32 v3, v3, v4\nv_lshlrev_b32 v3, 5, v3\nv_and_b32 v2, 3, v0\nv_lshl_add_u32 v3, v2, 3, v3\nv_add_u32 v3, s{sIMG}, v3")
A(f"s_lshl_b32 s{sT0}, s3, 9\ns_add_u32 s{sT0}, s{sT0}, {ZS}\nv_lshrrev_b32 v2, 5, v0\nv_and_b32 v5, 31, v0\nv_lshlrev_b32 v4, 11, v2\nv_lshl_add_u32 v4, v5, 4, v4\nv_add_u32 v4, s{sT0}, v4")
A(f"v_lshlrev_b32 v5, 3, v5\nv_lshl_add_u32 v5, v2, 2, v5\ns_lshl_b32 s{sT0}, s3, 8\nv_add_u32 v5, s{sT0}, v5\nv_add_u32 v6, {SCR}, v5")
A(f"s_add_u32 s{sT0}, s{sT0}, {SCR}\nv_lshrrev_b32 v7, 4, v0\nv_lshl_add_u32 v7, v7, 4, s{sT0}")
A("v_lshlrev_b32 v9, 2, v0")
A(f"s_lshl_b32 s{sT0}, s{sR}, {15 if opt.get('m43') else 14}\ns_lshl_b32 s{sT1}, s3, 8\ns_add_u32 s{sT0}, s{sT0}, s{sT1}")
A(f"v_lshrrev_b32 v20, 4, v0\nv_lshlrev_b32 v20, 10, v20\nv_and_b32 v19, 15, v0\nv_lshl_add_u32 v20, v19, 4, v20\nv_add_u32 v20, s{sT0}, v20")
A(f"s_add_u32 s{sT0}, s{sIMG}, 8192\nv_add_u32 v19, s{sT0}, v9")
A(f"s_lshl_b32 s{sT0}, s{sR}, 11\ns_lshl_b32 s{sT1}, s3, 9\ns_add_u32 s{sT0}, s{sT0}, s{sT1}\ns_add_u32 s{sT0}, s{sT0}, {PS}\nv_lshl_add_u32 v21, v0, 3, s{sT0}")
A(f"v_and_b32 v22, 15, v0\nv_lshlrev_b32 v22, 3, v22\ns_lshl_b32 s{sT0}, s3, 7\ns_add_u32 s{sT0}, s{sT0}, {ZP}\nv_add_u32 v25, s{sT0}, v22")
A(f"v_lshrrev_b32 v23, 5, v0\nv_lshlrev_b32 v23, 2, v23\nv_add_u32 v23, {SQ}, v23\nv_mov_b32 v24, {SQ}")
for i in range(4):
    A(f"v_mov_b32 v{116+i}, 0x3f803f80")
A(f"s_mov_b32 s{sM1}, 0x05040100\ns_mov_b32 s{sM1+1}, 0x07060302")


NPRE = 4 - opt["npost"]


def gu_loads(ts):
    for t in ts:
        A(f"s_add_u32 m0, s{sIMG}, {t*1024}\ns_mov_b32 s{sT1}, {t*32*2752}")
        A(f"buffer_load_dwordx4 v1, {R(rA)}, s{sT1} offen{fl('gufl')} lds")
        A(f"s_add_u32 m0, s{sIMG}, {4096+t*1024}")
        A(f"buffer_load_dwordx4 v1, {R(rB)}, s{sT1} offen{fl('gufl')} lds")


def wd_loads():
    for t in range(4):
        A(f"s_add_u32 m0, s{sIMG}, {8192+t*1024}\ns_nop 0")
        A(f"buffer_load_dwordx4 v20, {R(rC)}, s{sOFF+t} offen{fl('wdfl')} lds")
        if opt.get("m43"):
            A(f"s_add_u32 s{sT1}, s{sOFF+t}, 16384\nbuffer_load_dwordx4 v20, {R(rC)}, s{sT1} offen{fl('wdfl')} lds")


def wd_prep():
    for r in range(0, 16, 2):
        A(f"ds_read2st64_b32 {V(120+r,2)}, v19 offset0:{r} offset1:{r+1}")
    A("s_waitcnt lgkmcnt(0)")
    for i in range(8):
        A(f"v_perm_b32 v{136+i}, v{121+2*i}, v{120+2*i}, s{sM1}\nv_perm_b32 v{144+i}, v{121+2*i}, v{120+2*i}, s{sM1+1}")


def gu_prep(kbs, mid=None):
    if not len(kbs):
        return
    for kb in kbs:
        for tl in range(2):
            for hf in range(2):
                A(f"ds_read_b64_tr_b16 {V(40+(kb*2+tl)*4+2*hf,2)}, v3 offset:{kb*1024+hf*128+tl*4096}")
    if mid:
        mid()
    A("s_waitcnt lgkmcnt(0)")
    for kb in kbs:
        for tl in range(2):
            c = "0" if kb == 0 else V(108 + 4 * tl, 4)
            A(f"v_mfma_f32_16x16x32_bf16 {V(108+4*tl,4)}, v[116:119], {V(40+(kb*2+tl)*4,4)}, {c}")


def colsum_out():
    A("s_mov_b64 exec, 0xffff")
    A(f"ds_add_f32 v22, v108 offset:{CS}\nds_add_f32 v22, v112 offset:{CS+4}")
    A("s_mov_b64 exec, -1")


def m_loads():
    if opt["ptouch"]:
        A(f"buffer_load_dword v28, v21, {R(rWS)}, 0 offen")
    A(f"buffer_load_dword v26, v5, {R(rD)}, 0 offen")
    gu_loads(range(NPRE))
    if not opt["wdpost"]:
        wd_loads()


if opt["gpf"] == 2:
    share_setup()
    A(f"v_min_u32 v155, {opt['gneed']-1}, v0\nv_lshl_add_u32 v155, v155, 2, s{sT0}")
trigger(opt["trigm"], m_loads)
st(5)
A("s_waitcnt vmcnt(0)")
gu_prep(range(NPRE), None if opt["wdpost"] else wd_prep)
if NPRE == 4:
    colsum_out()
A(f"v_lshlrev_b32 v27, 16, v26\nv_and_b32 v26, s{sHI}, v26")
A(f"v_mov_b32 v30, 0\nv_mov_b32 v31, 0\nv_mov_b32 v29, {f32(1/512)}")
spin(C5, 1, 10, f"ds_read_b32 v{vT}, v{vL} offset:{TAG-MX}")
st(2)
if opt["gpf"] == 2:
    A("s_cmp_eq_u32 s3, 0\ns_cbranch_scc0 L_m_noshare")
    share_loads()
    A("L_m_noshare:")
    A(f"""s_mov_b32 s{sCNT}, {opt['gtry']}
L_m_wait:
buffer_load_dword v156, v155, {R(rWS)}, 0 offen sc1
s_waitcnt vmcnt(0)
v_bitop3_b32 v156, v156, v{vT}, s{sMASK} bitop3:0x28
v_cmp_ne_u32 vcc, 0, v156
s_cbranch_vccz L_m_go
s_sub_u32 s{sCNT}, s{sCNT}, 1
s_cbranch_scc1 L_m_go
s_sleep 2
s_branch L_m_wait
L_m_go:""")
if opt["wdelay"]:
    A(f"s_sleep {opt['wdelay']}")
gu_loads(range(NPRE, 4))
if opt["wdpost"]:
    wd_loads()
if opt["mwait"]:
    A("s_waitcnt vmcnt(0)")
    gu_prep(range(NPRE, 4), wd_prep if opt["wdpost"] else None)
    colsum_out()
    st(1)


def m_poll():
    for t in range(4):
        A(f"buffer_load_dwordx4 {V(72+4*t,4)}, v4, {R(rWS)}, s{sOFF+t} offen sc1")


def m_post():
    if opt["mwait"]:
        return
    if NPRE < 4 or opt["wdpost"]:
        A("s_waitcnt vmcnt(4)")
    if NPRE < 4:
        gu_prep(range(NPRE, 4), wd_prep if opt["wdpost"] else None)
        colsum_out()
    elif opt["wdpost"]:
        wd_prep()
    st(1)


if opt["p2"] & 2:
    poll2([(f"buffer_load_dwordx4 {V(72+4*t,4)}, v4, {R(rWS)}, s{sOFF+t} offen sc1", [72 + 4 * t], None) for t in range(4)], 10, m_post, depth=opt["dm"])
else:
    poll(m_poll, [72, 76, 80, 84], 10, m_post, sleep=opt["msl"])
if STAMPS:
    A(f"s_sub_u32 s{sFAST}, {opt['spin']*4}, s{sCNT}")
st(6)
for t in range(1, 4):
    for i in (0, 2):
        A(f"v_pk_add_f32 {V(72+i,2)}, {V(72+i,2)}, {V(72+4*t+i,2)}")
A("v_permlane32_swap_b32 v72, v74\nv_permlane32_swap_b32 v73, v75")
A("""v_add_f32 v72, v72, v74
v_add_f32 v73, v73, v75
v_add_f32 v72, v72, v27
v_add_f32 v73, v73, v26
v_cvt_pk_bf16_f32 v72, v72, v73
ds_write_b32 v6, v72""")
for kb in range(4):
    A(f"ds_read_b128 {V(92+4*kb,4)}, v7 offset:{64*kb}")
A(f"""v_lshlrev_b32 v73, 16, v72
v_and_b32 v72, s{sHI}, v72
v_add_f32 v74, v72, v73
v_mul_f32 v75, v72, v72
v_fmac_f32 v75, v73, v73""")
A("v_permlane32_swap_b32 v74, v75\nv_add_f32 v74, v74, v75")
rr = [8, 4, 2, 1]
for kb in range(4):
    A(f"s_waitcnt lgkmcnt({3-kb})")
    for tl in range(2):
        c = "0" if kb == 0 else V(108 + 4 * tl, 4)
        A(f"v_mfma_f32_16x16x32_bf16 {V(108+4*tl,4)}, {V(92+4*kb,4)}, {V(40+(kb*2+tl)*4,4)}, {c}")
    A(f"v_add_f32_dpp v74, v74, v74 row_ror:{rr[kb]} {DPP}")
A("s_mov_b32 exec_lo, 0x00010001\ns_mov_b32 exec_hi, 0x00010001")
A("ds_add_f32 v23, v74")
A("s_mov_b64 exec, 0xffff")
A("ds_write2_b32 v25, v108, v112 offset0:0 offset1:1")
A("s_mov_b64 exec, -1")
A("s_waitcnt lgkmcnt(0)\ns_barrier")
A(f"ds_read_b64 v[16:17], v24\nds_read_b64 v[14:15], v22 offset:{CS}")
for w in range(4):
    A(f"ds_read_b64 {V(12 if w == 0 else 92+2*w,2)}, v22 offset:{ZP+128*w}")
A(f"""s_waitcnt lgkmcnt(5)
v_mul_f32 v16, v16, v29
v_fmaak_f32 v17, v17, v29, {f32(1e-5)}
v_fma_f32 v17, -v16, v16, v17
v_max_f32 v17, {f32(1e-5)}, v17
v_rsq_f32 v17, v17
s_waitcnt lgkmcnt(0)
v_pk_add_f32 v[12:13], v[12:13], v[94:95]
v_pk_add_f32 v[96:97], v[96:97], v[98:99]
v_pk_add_f32 v[12:13], v[12:13], v[96:97]
v_mul_f32 v18, {f32(-1.4426950408889634)}, v17
v_fma_f32 v12, -v16, v14, v12
v_fma_f32 v13, -v16, v15, v13
v_mul_f32 v12, v12, v18
v_exp_f32 v12, v12
v_mul_f32 v13, v13, v17
v_add_f32 v12, 1.0, v12
v_rcp_f32 v12, v12
s_nop 0
v_mul_f32 v12, v12, v13
v_mov_b32_dpp v13, v12 quad_perm:[1,0,3,2] {DPP}
v_cvt_pk_bf16_f32 v12, v12, v13""")
for i in range(8):
    A(f"v_dot2c_f32_bf16_dpp v30, v12, v{136+i} row_newbcast:{2*i} {DPP}")
    A(f"v_dot2c_f32_bf16_dpp v31, v12, v{144+i} row_newbcast:{2*i} {DPP}")
tag([30, 31])
A(f"buffer_store_dwordx2 v[30:31], v21, {R(rWS)}, 0 offen sc1")
st(7)
end_wave()

if STAMPS:
    A("L_stamps:")
    A("s_mov_b64 exec, 1")
    A("s_waitcnt lgkmcnt(0)\ns_memrealtime s[4:5]\ns_waitcnt lgkmcnt(0)\ns_memtime s[6:7]")
    A(f"s_mul_i32 s{sT0}, s2, 12\ns_add_u32 s{sT0}, s{sT0}, s3\ns_lshl_b32 s{sT0}, s{sT0}, 6\ns_add_u32 s{sT0}, s{sT0}, {STAMP}")
    A(f"v_mov_b32 v1, s{sT0}\ns_waitcnt lgkmcnt(0)")
    for k in range(8):
        A(f"v_mov_b32 v{4+k}, s{sST+2*k}")
    A("v_mov_b32 v12, s100\nv_mov_b32 v13, s4\nv_mov_b32 v14, s6\nv_mov_b32 v15, s{0}".format(sFAST))
    A(f"v_mov_b32 v16, s{sROLE}\nv_mov_b32 v17, s{sNKV}\nbuffer_store_dwordx2 v[16:17], v1, {R(rWS)}, 0 offen offset:48")
    A(f"buffer_store_dwordx4 v[4:7], v1, {R(rWS)}, 0 offen\nbuffer_store_dwordx4 v[8:11], v1, {R(rWS)}, 0 offen offset:16\nbuffer_store_dwordx4 v[12:15], v1, {R(rWS)}, 0 offen offset:32")
A("L_exit:")
A("s_endpgm")

body, problems = fix_hazards(L)
for p in problems:
    print("HAZARD:", p, file=sys.stderr)
for line in body:
    out.append(line if line.endswith(":") else "    " + line)
if lst:
    out.append(""".globl noop_kernel
.p2align 8
.type noop_kernel,@function
noop_kernel:
    s_endpgm
.section .rodata,"a"
.p2align 6
.amdhsa_kernel noop_kernel
  .amdhsa_next_free_vgpr 8
  .amdhsa_next_free_sgpr 16
  .amdhsa_accum_offset 8
  .amdhsa_group_segment_fixed_size 0
  .amdhsa_kernarg_size 96
  .amdhsa_user_sgpr_count 2
  .amdhsa_user_sgpr_kernarg_segment_ptr 1
  .amdhsa_system_sgpr_workgroup_id_x 1
.end_amdhsa_kernel""")
out.append(".p2align 2\n.type L_table,@object\nL_table:")
for k in range(0, 256, 8):
    out.append("    .short " + ", ".join(hex(v) for v in TABLE[k:k+8]))
out.append(".size L_table, 512\nL_last:")
out.append(f""".section .rodata,"a"
.p2align 6
.amdhsa_kernel {NAME}_kernel
  .amdhsa_next_free_vgpr 168
  .amdhsa_next_free_sgpr 102
  .amdhsa_accum_offset 168
  .amdhsa_group_segment_fixed_size 0
  .amdhsa_kernarg_size 96
  .amdhsa_user_sgpr_count 2
  .amdhsa_user_sgpr_kernarg_segment_ptr 1
  .amdhsa_system_sgpr_workgroup_id_x 1
  .amdhsa_float_denorm_mode_32 3
.end_amdhsa_kernel""")
open(sys.argv[1], "w").write("\n".join(out) + "\n")
```

```python
import sys, struct
from asmlib import fix_hazards

NAME = "sequential_preLN__mha_block_cached__glu_gated_glu__decode"
opt = dict(stamps=0, nv1=4, trigz="c1", trigm="c1h", pat="A", kvfl="nt", wqfl="nt", wofl="nt", gufl="plain",
           wdfl="nt", fast=1, pf=2, gap=0, prio=0, bal="f", early=4, p2=0, z4=0, zla=6, p3=3, fsplit=1, f0delay=20, fx=6, t1="x22044444", t2="x33005544", tl1="x22044444", tl2="x33005544", sp1="x11033332", spl1="x10033333", gtry=12, gneed=24, outtouch=0, wpf=1, wres="x3024", sp2="x11004433", spl="x10104433", sp3="x21100444", nmx="bbbbbbaa", ftight=0, c3sl=1, gpf=0, gtrig="c5", zwin=0, outfl="plain", mwait=1, shed=0, wdelay=0, f1delay=0, dz=0, dm=0, df=0, otouch=1, npost=4, wdpost=1, qsl=0, qst="sc1", xst="sc1", ssl=0, zsl=0, msl=0, fsl=0, mdelay=0, bfirst=0, fdelay=25, ptouch=1, nsl=12, spin=200000)
for a in sys.argv[2:]:
    k, v = a.split("=")
    opt[k] = v if not v.lstrip("-").isdigit() else int(v)
STAMPS = opt["stamps"]
NV1 = opt["nv1"]


def fl(name):
    v = opt[name]
    return "" if v == "plain" else " " + v.replace("+", " ")


def f32(x):
    return "0x%08x" % struct.unpack("<I", struct.pack("<f", x))[0]


QS, OS, ST, ZS, XC, PFL, EPOCH, PS, STAMP = 0x0, 0x20000, 0x40000, 0x41000, 0x45000, 0x45800, 0x46000, 0x48000, 0x80000
NMLP = 43 if opt.get('m43') else 86
TAGMASK = 0x3ff
QL, MX, LACC, SQ, CS, ZP, SCR, OSL, WIMG = 0, 256, 260, 272, 1024, 1536, 3072, 4096, 10240
CQ, C1, C5, C3, C4, CI, FAST, TAG, ML = 280, 284, 288, 292, 296, 300, 304, 308, 384
LDS_BYTES = WIMG + 4 * 16384
pX, pK, pV, pWQ, pWO, pWG, pWU, pWD, pOUT, pDBG, pWS = 4, 6, 8, 10, 12, 16, 18, 20, 22, 24, 26
rA, rB, rWS, rC, rD = 28, 32, 36, 44, 48
sNKV, sROLE, sMASK, sN = 40, 41, 42, 43
sXG, sI, sSLOT, sR, sT0, sT1, sCNT, sFAST = 52, 53, 54, 55, 56, 57, 58, 59
sM1, sM0, sU, sIMG, sC2, sHI, sQB, sTAB, sCUR = 60, 62, 64, 65, 66, 67, 76, 75, 74
sOFF = 68
sST = 84
vT = 38
vONE = 39
vL = 33

L = []


def A(s):
    for line in s.split("\n"):
        line = line.strip()
        if line:
            L.append(line)


def srd(r, p, size, add=None):
    if add is None:
        A(f"s_mov_b32 s{r}, s{p}\ns_mov_b32 s{r+1}, s{p+1}")
    else:
        A(f"s_add_u32 s{r}, s{p}, {add}\ns_addc_u32 s{r+1}, s{p+1}, 0")
    A(f"s_mov_b32 s{r+2}, {hex(size)}\ns_mov_b32 s{r+3}, 0x20000")


def R(r):
    return f"s[{r}:{r+3}]"


def V(a, n):
    return f"v[{a}:{a+n-1}]"


def st(k):
    if STAMPS and str(k) not in str(opt.get("nost", "")):
        A(f"s_memtime s[{sST+2*k}:{sST+2*k+1}]")


def end_wave():
    A("s_branch L_stamps" if STAMPS else "s_endpgm")


DPP = "row_mask:0xf bank_mask:0xf"


def row_allreduce(op, a):
    for n in (8, 4, 2, 1):
        A(f"{op}_dpp v{a}, v{a}, v{a} row_ror:{n} {DPP}")


def wave_allreduce_add(a, t):
    row_allreduce("v_add_f32", a)
    for sw in ("v_permlane16_swap_b32", "v_permlane32_swap_b32"):
        A(f"v_mov_b32 v{t}, v{a}\n{sw} v{a}, v{t}\nv_add_f32 v{a}, v{a}, v{t}")


def tag(regs):
    for r in regs:
        A(f"v_bfi_b32 v{r}, s{sMASK}, v{vT}, v{r}")


uid = [0]


def poll(loads, regs, tmp, between=None, masked=None, sleep=0):
    uid[0] += 1
    u = uid[0]
    loads()
    if between:
        between()
    A(f"s_mov_b32 s{sCNT}, {opt['spin']}")
    A(f"L_poll{u}:")
    A("s_waitcnt vmcnt(0)")
    rs = list(regs)
    for r in rs:
        A(f"v_xor_b32 v{r}, v{r}, v{vT}")
    if masked:
        A(f"s_mov_b64 exec, {hex(masked[0])}")
        for r in masked[1]:
            A(f"v_xor_b32 v{r}, v{r}, v{vT}")
        A("s_mov_b64 exec, -1")
        rs += masked[1]
    acc, rs = rs[0], rs[1:]
    while len(rs) >= 2:
        A(f"v_or3_b32 v{tmp}, v{acc}, v{rs[0]}, v{rs[1]}")
        acc, rs = tmp, rs[2:]
    if rs:
        A(f"v_bitop3_b32 v{tmp}, v{acc}, v{rs[0]}, s{sMASK} bitop3:0xa8")
    else:
        A(f"v_and_b32 v{tmp}, s{sMASK}, v{acc}")
    A(f"v_cmp_ne_u32 vcc, 0, v{tmp}")
    A(f"s_cbranch_vccz L_ok{u}")
    A(f"s_sub_u32 s{sCNT}, s{sCNT}, 1\ns_cbranch_scc1 L_ok{u}")
    if sleep:
        A(f"s_sleep {sleep}")
    loads()
    A(f"s_branch L_poll{u}")
    A(f"L_ok{u}:")


def poll2(items, tmp, between=None, m0=72, depth=0):
    uid[0] += 1
    u = uid[0]
    if depth:
        for _, regs, _ in items:
            A(f"v_not_b32 v{regs[0]}, v{vT}")
    for ld, _, _ in items:
        A(ld)
    if between:
        between()
    A(f"s_mov_b32 s{sCNT}, {opt['spin'] * (4 if depth else 1)}")
    A(f"L_poll{u}:")
    A(f"s_waitcnt vmcnt({depth})")
    for k, (_, regs, _) in enumerate(items):
        t = tmp + k
        if len(regs) == 1:
            A(f"v_bitop3_b32 v{t}, v{regs[0]}, v{vT}, s{sMASK} bitop3:0x28")
        else:
            A(f"v_xor_b32 v{t}, v{regs[0]}, v{vT}")
            for r in regs[1:]:
                A(f"v_bitop3_b32 v{t}, v{t}, v{r}, v{vT} bitop3:0xf6")
            A(f"v_and_b32 v{t}, s{sMASK}, v{t}")
    for k in range(len(items)):
        A(f"v_cmp_ne_u32 s[{m0+2*k}:{m0+2*k+1}], 0, v{tmp+k}")
    for k, (_, _, lanes) in enumerate(items):
        if lanes:
            A(f"s_and_b64 s[{m0+2*k}:{m0+2*k+1}], s[{m0+2*k}:{m0+2*k+1}], {hex(lanes)}")
    acc = f"s[{m0}:{m0+1}]"
    for k in range(1, len(items)):
        A(f"s_or_b64 vcc, {acc}, s[{m0+2*k}:{m0+2*k+1}]")
        acc = "vcc"
    A(f"s_cbranch_scc0 L_ok{u}")
    A(f"s_sub_u32 s{sCNT}, s{sCNT}, 1\ns_cbranch_scc1 L_ok{u}")
    for k, (ld, _, _) in enumerate(items):
        A(f"s_mov_b64 exec, s[{m0+2*k}:{m0+2*k+1}]\ns_cbranch_execz L_skip{u}_{k}")
        A(ld)
        A(f"L_skip{u}_{k}:")
    A("s_mov_b64 exec, -1")
    A(f"s_branch L_poll{u}")
    A(f"L_ok{u}:")
    if depth:
        A("s_waitcnt vmcnt(0)")


def poll3(items, tmp, between=None):
    uid[0] += 1
    u = uid[0]
    for ld, _ in items:
        A(ld)
    if between:
        between()
    A(f"s_mov_b32 s{sCNT}, {opt['spin']}")
    A(f"L_poll{u}:")
    A("s_waitcnt vmcnt(0)")
    for k, (_, regs) in enumerate(items):
        A(f"v_xor_b32 v{tmp+1+k}, v{regs[0]}, v{vT}")
        for r in regs[1:]:
            A(f"v_bitop3_b32 v{tmp+1+k}, v{tmp+1+k}, v{r}, v{vT} bitop3:0xf6")
    A(f"v_or3_b32 v{tmp}, v{tmp+1}, v{tmp+2}, v{tmp+3}\nv_bitop3_b32 v{tmp}, v{tmp}, v{tmp+4}, s{sMASK} bitop3:0xa8")
    A(f"v_cmp_ne_u32 vcc, 0, v{tmp}\ns_cbranch_vccz L_ok{u}")
    A(f"s_sub_u32 s{sCNT}, s{sCNT}, 1\ns_cbranch_scc1 L_ok{u}")
    for k, (ld, _) in enumerate(items):
        A(f"v_and_b32 v{tmp}, s{sMASK}, v{tmp+1+k}\nv_cmp_ne_u32 vcc, 0, v{tmp}\ns_cbranch_vccz L_skip{u}_{k}")
        A(ld)
        A(f"L_skip{u}_{k}:")
    A(f"s_branch L_poll{u}")
    A(f"L_ok{u}:")
    for _, regs in items:
        for r in regs:
            A(f"v_xor_b32 v{r}, v{r}, v{vT}")


def spin(off, n, tmp, extra=None, sleep=1):
    uid[0] += 1
    u = uid[0]
    A(f"L_spin{u}:")
    A(f"ds_read_b32 v{tmp}, v{vL} offset:{off-MX}")
    if extra:
        A(extra)
    A("s_waitcnt lgkmcnt(0)")
    A(f"v_readfirstlane_b32 s{sT0}, v{tmp}")
    A(f"s_cmp_ge_u32 s{sT0}, {n}\ns_cbranch_scc1 L_spun{u}")
    if sleep:
        A(f"s_sleep {sleep}")
    A(f"s_branch L_spin{u}")
    A(f"L_spun{u}:")


def store_fs(instr):
    uid[0] += 1
    u = uid[0]
    if not opt["fast"]:
        A(instr + " sc1")
        return
    A(f"s_cmp_eq_u32 s{sFAST}, 0\ns_cbranch_scc1 L_slow{u}")
    A(instr)
    A(f"s_branch L_sdone{u}")
    A(f"L_slow{u}:")
    A(instr + " sc1")
    A(f"L_sdone{u}:")


import os
hdr = open(os.path.join(os.path.dirname(os.path.abspath(__file__)), "hdr.txt")).read().split("\n")
out = [l for l in hdr if l.startswith(";") and "@launch" not in l and "Override" not in l and "grid=ceil" not in l]
lst = opt.get("list", "")
if lst:
    for ch in lst:
        if ch == "m":
            out.append(f"; @launch kernel={NAME}_kernel grid=(256,1,1) block=(768,1,1) lds={LDS_BYTES}")
        elif ch == "n":
            out.append("; @launch kernel=noop_kernel grid=(1,1,1) block=(64,1,1) lds=0")
        else:
            out.append("; @launch kernel=noop_kernel grid=(256,1,1) block=(64,1,1) lds=0")
else:
    out.append(f"; @launch grid=(256,1,1) block=(768,1,1) lds={LDS_BYTES}")
out.append(""";
; Stores are write-through (sc1) unless every reader was seen to run on this XCD (HW_REG_XCC_ID); reads bypass L1.""")
out.append('.amdgcn_target "amdgcn-amd-amdhsa--gfx950"')
out.append(".text")
out.append(f".globl {NAME}_kernel")
out.append(".p2align 8")
out.append(f".type {NAME}_kernel,@function")
out.append(f"{NAME}_kernel:")

FX = opt["fx"]
W1 = 12 - FX
GB = 6 if FX == 5 else 7
SP = {"f": {4: [2, 2, 2, 1, 1, 0, 4, 4], 3: [int(c) for c in str(opt["sp3"])[1:]], 2: [int(c) for c in str(opt["sp2"])[1:]], 1: [int(c) for c in str(opt["sp1"])[1:]], 0: [1, 0, 3, 3, 3, 2, 2, 2]},
      }[str(opt["bal"])]
SPL = {4: [2, 1, 2, 2, 1, 0, 4, 4], 3: [2, 0, 1, 1, 0, 4, 4, 4], 2: [int(c) for c in str(opt["spl"])[1:]], 1: [int(c) for c in str(opt["spl1"])[1:]], 0: [1, 0, 3, 3, 3, 2, 2, 2]}
NMX = [int(c, 36) for c in str(opt["nmx"])]
assert sum(NMX) == NMLP
TABLE, TAB = [], []
fg = 0
for xg in range(8):
    fr = 0
    for hl in range(4):
        nm = NMX[xg] // 4 + (1 if hl < NMX[xg] % 4 else 0)
        ne = (SPL if hl == 3 else SP)[nm]
        if "don" in opt:
            d = opt["don"]
            par = (xg & 1) ^ (1 if d < 0 else 0)
            tabs = {(1, 0): {3: [2, 2, 1, 0, 0, 4, 4, 4], 2: [1, 1, 1, 0, 4, 4, 3, 3]}, (1, 1): {3: [1, 1, 1, 0, 0, 4, 4, 4], 2: [1, 0, 0, 0, 4, 4, 3, 3]},
                    (2, 0): {3: [2, 2, 1, 1, 0, 4, 4, 4], 2: [1, 1, 1, 0, 4, 4, 4, 3]}, (2, 1): {3: [1, 1, 0, 0, 0, 4, 4, 4], 2: [1, 0, 0, 0, 4, 3, 3, 3]},
                    (3, 0): {3: [2, 2, 1, 1, 1, 4, 4, 4], 2: [1, 1, 1, 0, 4, 4, 4, 4]}, (3, 1): {3: [1, 1, 0, 0, 0, 4, 4, 3], 2: [1, 0, 0, 0, 3, 3, 3, 3]}}
            ne = tabs[(abs(d), par)][nm]
        else:
            if FX == 5:
                ne = [int(c) for c in str(opt[("tl%d" if hl == 3 else "t%d") % nm])[1:]]
            assert sum(ne) == 64 - 8 * FX
        TAB.append(ne)
        for sp in range(8):
            if sp < 2:
                role, grp = 0, hl * 2 + sp
                grp ^= 4 if grp & 3 == 3 else 0
            elif sp < 2 + nm:
                role, grp = 1, fg
                fg += 1
            else:
                role, grp = 2, fr
                fr += 1
            assert role == 2 or ne[sp] <= 8 - FX
            TABLE.append(role | grp << 2 | ne[sp] << (2 + GB) | sum(ne[:sp]) % (1 << (11 - GB)) << (5 + GB))

KR, VR = 40, 104
NE = opt["early"]
A("L_start:")
A("s_load_dwordx16 s[4:19], s[0:1], 0\ns_load_dwordx8 s[20:27], s[0:1], 64")
A(f"s_lshr_b32 s{sT0}, s2, 8\ns_cbranch_scc1 L_exit")
if opt["pf"] == 2:
    A(f"s_getpc_b64 s[{rA}:{rA+1}]")
    A("L_pc:")
    A("v_lshlrev_b32 v2, 4, v0\nv_min_u32 v2, (L_last-L_pc-16)&0xfffffff0, v2")
    A(f"global_load_dwordx4 v[164:167], v2, s[{rA}:{rA+1}]")
if opt.get("hx"):
    A(f"s_xor_b32 s2, s2, {opt['hx']}")
A(f"s_and_b32 s{sXG}, s2, 7\ns_lshl_b32 s{sT0}, s{sXG}, 8\ns_andn2_b32 s{sT1}, s2, 7\ns_add_u32 s{sSLOT}, s{sT0}, s{sT1}")
if NE <= 4:
    A(f"s_sub_u32 s{sT0}, s{sSLOT}, {W1}\ns_lshl_b32 s{sT0}, s{sT0}, 14")
else:
    A(f"s_lshl_b32 s{sT0}, s{sSLOT}, 14\ns_sub_u32 s{sT0}, s{sT0}, {W1*16384-4096}")
A(f"v_lshrrev_b32 v1, 6, v0\nv_and_b32 v0, 63, v0\nv_readfirstlane_b32 s3, v1\nv_lshl_add_u32 v1, v1, 14, s{sT0}\nv_lshl_add_u32 v1, v0, 4, v1")
if NE:
    A(f"s_cmp_lt_u32 s3, {W1}\ns_cbranch_scc1 L_late\ns_waitcnt lgkmcnt(0)")
    for i in range(NE):
        A(f"global_load_dwordx4 {V(KR+4*i,4)}, v1, s[{pK}:{pK+1}] offset:{1024*i-(4096 if NE > 4 else 0)}{fl('kvfl')}")
    A("L_late:")
if STAMPS:
    for k in range(8):
        A(f"s_mov_b32 s{sST+2*k}, 0")
st(0)
if STAMPS or opt.get("diag"):
    A("s_memrealtime s[100:101]")
A(f"s_lshr_b32 s{sI}, s2, 3\ns_lshr_b32 s{sSLOT}, s{sSLOT}, 3")
A("v_lshlrev_b32 v8, 4, v0")
A(f"s_mov_b32 s{sQB}, -1\ns_cmp_lg_u32 s3, 0\ns_cbranch_scc1 L_not0\ns_and_b32 s{sQB}, s{sI}, 7")
A(f"s_lshl_b32 s{sT0}, s{sQB}, 6")
A(f"v_lshrrev_b32 v2, 4, v0\nv_lshl_add_u32 v2, v2, 4, s{sT0}\nv_lshlrev_b32 v3, 1, v2")
A(f"s_lshr_b32 s{sT0}, s{sSLOT}, 3\ns_lshl_b32 s{sT0}, s{sT0}, 8")
A(f"v_lshlrev_b32 v2, 13, v2\nv_and_b32 v9, 15, v0\nv_lshl_add_u32 v2, v9, 4, v2\nv_add_u32 v2, s{sT0}, v2")
A(f"s_movk_i32 s{sT0}, 0x2000\ns_waitcnt lgkmcnt(0)")
A(f"global_load_dwordx4 v[104:107], v8, s[{pX}:{pX+1}]")
A(f"global_load_dwordx4 v[12:15], v3, s[{pX}:{pX+1}]")
A(f"global_load_dwordx4 v[16:19], v3, s[{pX}:{pX+1}] offset:16")
for t in range(16):
    A(f"global_load_dwordx4 {V(40+4*t,4)}, v2, s[{pWQ}:{pWQ+1}]{fl('wqfl')}")
    if t < 15:
        A(f"v_add_u32 v2, s{sT0}, v2")
A("L_not0:")
A(f"s_and_b32 s{sT0}, s{sSLOT}, 0xfe\ns_lshl_b32 s{sT0}, s{sT0}, 1\ns_add_u32 s{sT0}, s{sT0}, L_table-L_pc\ns_load_dword s{sTAB}, s[{rA}:{rA+1}], s{sT0}")
A(f"s_lshl_b32 s{sT0}, s2, 4\ns_add_u32 s{sT0}, s{sT0}, s3\ns_cmp_eq_u32 s{sT0}, 2\ns_cbranch_scc0 L_notlead")
A(f"s_waitcnt lgkmcnt(0)\ns_load_dword s{sT0}, s[{pWS}:{pWS+1}], {hex(EPOCH)}")
A(f"v_mov_b32 v3, {EPOCH}\nv_lshlrev_b32 v4, 6, v0\ns_waitcnt lgkmcnt(0)")
A(f"s_add_u32 s{sT0}, s{sT0}, 0x0e3779b1\ns_and_b32 s{sT0}, s{sT0}, 0x0fffffff\ns_or_b32 s{sT1}, s{sT0}, 0x80000000")
A(f"v_mov_b32 v5, s{sT1}\nv_mov_b32 v6, s{sT0}\ns_mov_b64 exec, 15")
A(f"global_store_dword v4, v5, s[{pDBG}:{pDBG+1}] sc1")
A("s_mov_b64 exec, 1")
A(f"global_store_dword v3, v6, s[{pWS}:{pWS+1}] sc1")
A("s_mov_b64 exec, -1")
A("L_notlead:")
if NE > 4:
    A("v_subrev_u32 v1, 0x1000, v1")
if opt["pf"] == 1:
    A("s_cmp_eq_u32 s3, 1\ns_cbranch_scc0 L_pf_done")
    A(f"s_getpc_b64 s[{rA}:{rA+1}]")
    A("L_pc:")
    A(f"s_sub_u32 s{rA}, s{rA}, L_pc-L_start\ns_subb_u32 s{rA+1}, s{rA+1}, 0")
    A(f"s_and_b32 s{sT0}, s{sI}, 15\ns_lshl_b32 s{sT0}, s{sT0}, 10\nv_add_u32 v2, s{sT0}, v8")
    A("v_min_u32 v2, (L_last-L_start-16)&0xfffffff0, v2")
    A(f"global_load_dwordx4 v[160:163], v2, s[{rA}:{rA+1}]")
    A("L_pf_done:")
A("v_mov_b32 v4, 0\nv_mov_b32 v5, 0\nv_mov_b32 v6, 0\nv_mov_b32 v7, 0")
A(f"s_mov_b32 s{sT0}, 0xff800000\nv_writelane_b32 v4, s{sT0}, 0")
A(f"ds_write_b128 v8, v[4:7] offset:{MX}")
A(f"s_lshl_b32 s{sT0}, s3, 9\nv_lshl_add_u32 v9, v0, 3, s{sT0}\nds_write_b64 v9, v[6:7] offset:{OSL}")
A(f"""s_waitcnt lgkmcnt(0)
s_bitcmp1_b32 s{sI}, 0
s_cselect_b32 s77, 16, 0
s_lshr_b32 s77, s{sTAB}, s77
s_and_b32 s{sROLE}, s77, 3
s_bfe_u32 s{sR}, s77, {hex(GB << 16 | 2)}
s_bfe_u32 s79, s77, {hex(3 << 16 | 2 + GB)}
s_bfe_u32 s78, s77, {hex(11 - GB << 16 | 5 + GB)}
s_add_u32 s{sNKV}, s79, {FX}
s_add_u32 s{sU}, s3, s79
s_sub_u32 s{sU}, s{sU}, {W1}""")
DIV = ("s_lshr_b32 s77, s78, 1\ns_mul_i32 s77, s77, 6" if FX == 6 else "s_mul_i32 s77, s78, 43\ns_lshr_b32 s77, s77, 7\ns_mul_i32 s77, s77, 5")
A(f"""s_cmp_ge_u32 s3, {W1}
s_cbranch_scc1 L_own_unit
s_add_u32 s78, s78, {W1-1}
s_sub_u32 s78, s78, s3
{DIV}
s_add_u32 s77, s77, s78
s_and_b32 s78, s{sSLOT}, 0xf8
s_lshl_b32 s78, s78, 3
s_add_u32 s77, s77, s78
s_add_u32 s77, s77, {FX}
s_lshl_b32 s77, s77, 14
v_add_u32 v1, s77, v8
L_own_unit:""")
for i in range(4):
    A(f"s_mov_b32 s{sOFF+i}, {i*4096}")
koff = lambda i: (f"s{sOFF+i//4}", (i % 4) * 1024)
A(f"s_mov_b32 s{sHI}, 0xffff0000\ns_mov_b32 s{sMASK}, {TAGMASK}")
A(f"v_mov_b32 v{vL}, {MX}\nv_mov_b32 v{vONE}, 1")
A("s_waitcnt lgkmcnt(0)")
srd(rD, pX, 1024)
srd(rA, pK, 0x2000000)
srd(rB, pV, 0x2000000)
srd(rWS, pWS, 0x10000000)
st(6)
A("s_barrier")
A(f"s_cmp_lt_i32 s{sU}, 0\ns_cbranch_scc1 L_helper")


def kvload(base, i, r):
    A(f"buffer_load_dwordx4 {V(base+4*i,4)}, v1, {R(r)}, s{sCUR} offen{fl('kvfl')}")
    A(f"s_addk_i32 s{sCUR}, 0x400" if i < 15 else f"s_mov_b32 s{sCUR}, 0")


A(f"s_mov_b32 s{sCUR}, {NE*1024}")
if NE:
    A(f"s_cmp_ge_u32 s3, {W1}\ns_cbranch_scc1 L_k_rest\ns_mov_b32 s{sCUR}, 0")
    for i in range(NE):
        kvload(KR, i, rA)
    A("L_k_rest:")
for i in range(NE, 16):
    kvload(KR, i, rA)
for i in range(NV1):
    kvload(VR, i, rB)
st(1)
A("""v_bfe_u32 v10, v0, 3, 1
v_mul_u32_u24 v10, 0x202, v10
v_add_u32 v10, 0x100, v10
v_and_b32 v11, 1, v0
v_lshlrev_b32 v11, 4, v11
v_lshlrev_b32 v10, v11, v10
v_mov_b32 v12, 0x0c0c0000
v_lshrrev_b32 v12, v11, v12
v_or_b32 v10, v10, v12
v_bfe_u32 v11, v0, 1, 2
v_mov_b32 v12, 0x0c0c0c0c""")
for i in range(4):
    A(f"v_cmp_eq_u32 vcc, {i}, v11\nv_cndmask_b32 v{6+i}, v12, v10, vcc")
A(f"s_mov_b32 s{sM1}, 0xcccccccc\ns_mov_b32 s{sM1+1}, 0xcccccccc\ns_mov_b32 s{sM0}, 0xaaaaaaaa\ns_mov_b32 s{sM0+1}, 0xaaaaaaaa")
A(f"s_mov_b32 s{sC2}, {f32(128 ** -0.5 * 1.4426950408889634)}")
A("v_and_b32 v32, 15, v0\nv_lshlrev_b32 v32, 4, v32")
A(f"v_lshrrev_b32 v34, 4, v0\nv_and_b32 v35, 7, v0\nv_lshl_add_u32 v34, v34, 3, v35\ns_lshl_b32 s{sT0}, s3, 9\nv_lshl_add_u32 v34, v34, 4, s{sT0}")
A("v_lshlrev_b32 v35, 3, v0")
A(f"s_lshl_b32 s{sT0}, s{sSLOT}, 9\ns_add_u32 s{sT0}, s{sT0}, {OS}\nv_lshl_add_u32 v36, v0, 3, s{sT0}")
A(f"s_lshl_b32 s{sT0}, s{sSLOT}, 4\ns_add_u32 s{sT0}, s{sT0}, {ST}\nv_mov_b32 v37, s{sT0}")
A(f"s_sub_u32 s{sN}, s{sNKV}, 1")
A(f"v_lshrrev_b32 v26, 1, v32\nv_add_u32 v26, {ML}, v26\ns_lshl_b32 s{sT0}, s3, 3\ns_add_u32 s{sT0}, s{sT0}, {ML}\nv_mov_b32 v27, s{sT0}")
spin(CQ, 1, 10, f"ds_read_b128 v[2:5], v32 offset:{QL}\nds_read_b64 v[28:29], v{vL} offset:{FAST-MX}", sleep=2)
st(2)
A(f"v_readfirstlane_b32 s{sFAST}, v28\nv_mov_b32 v{vT}, v29")
A(f"s_waitcnt vmcnt({NV1})")
for j in range(4):
    for i in range(16):
        c = "0" if j == 0 else f"v{10+i}"
        A(f"v_dot2_f32_bf16 v{10+i}, v{KR+4*i+j}, v{2+j}, {c}")
for i in range(8):
    A(f"v_add_f32_dpp v{10+i}, v{10+i}, v{10+i} row_ror:8 row_mask:0xf bank_mask:0x3")
    A(f"v_add_f32_dpp v{10+i}, v{18+i}, v{18+i} row_ror:8 row_mask:0xf bank_mask:0xc")
for i in range(4):
    A(f"v_add_f32_dpp v{10+i}, v{10+i}, v{10+i} row_ror:12 row_mask:0xf bank_mask:0x5")
    A(f"v_add_f32_dpp v{10+i}, v{14+i}, v{14+i} row_ror:4 row_mask:0xf bank_mask:0xa")
for i in range(4):
    A(f"v_add_f32_dpp v{10+i}, v{10+i}, v{10+i} quad_perm:[2,3,0,1] {DPP}")
for i in range(2):
    A(f"v_cndmask_b32 v{10+i}, v{10+i}, v{12+i}, s[{sM1}:{sM1+1}]")
for i in range(2):
    A(f"v_add_f32_dpp v{10+i}, v{10+i}, v{10+i} quad_perm:[1,0,3,2] {DPP}")
A(f"v_cndmask_b32 v10, v10, v11, s[{sM0}:{sM0+1}]")
A(f"v_mul_f32 v10, s{sC2}, v10")
A(f"v_max_f32_dpp v11, v10, v10 row_ror:8 {DPP}")
for n in (4, 2, 1):
    A(f"v_max_f32_dpp v11, v11, v11 row_ror:{n} {DPP}")
for sw in ("v_permlane16_swap_b32", "v_permlane32_swap_b32"):
    A(f"v_mov_b32 v12, v11\n{sw} v11, v12\nv_max_f32 v11, v11, v12")
A("v_sub_f32 v10, v10, v11\nv_exp_f32 v10, v10")
A("v_cvt_pk_bf16_f32 v13, v10, v10\nv_lshlrev_b32 v13, 16, v13\nv_sub_f32 v13, v10, v13\nv_cvt_pk_bf16_f32 v13, v10, v13")
wave_allreduce_add(10, 12)
A("v_mov_b32 v20, v11\nv_mov_b32 v21, v10\ns_mov_b64 exec, 1")
A(f"ds_write_b64 v27, v[20:21]\nds_max_f32 v{vL}, v11\nds_add_rtn_u32 v12, v{vL}, v{vONE} offset:{C1-MX}")
A("s_mov_b64 exec, -1")
A(f"ds_read_b64 v[22:23], v26\nds_read_b32 v20, v{vL}\ns_waitcnt lgkmcnt(0)")
A(f"v_readfirstlane_b32 s{sT0}, v12")
A(f"s_cmp_lg_u32 s{sT0}, s{sN}\ns_cbranch_scc1 L_kv_nost")
A(f"v_bfi_b32 v20, s{sMASK}, 0, v20")
A("v_sub_f32 v22, v22, v20\nv_min_f32 v22, 0x42800000, v22\nv_exp_f32 v22, v22\nv_mul_f32 v21, v22, v23")
row_allreduce("v_add_f32", 21)
tag([20, 21])
A(f"v_mov_b32 v22, v{vT}\nv_mov_b32 v23, v{vT}\ns_mov_b64 exec, 1\ns_setprio 3")
store_fs(f"buffer_store_dwordx4 v[20:23], v37, {R(rWS)}, 0 offen")
A("s_setprio 0\ns_mov_b64 exec, -1")
st(7)
A("L_kv_nost:")
st(3)
for i in range(NV1, 16):
    kvload(VR, i, rB)
for t in range(16):
    A(f"v_mov_b32_dpp v{14+t%4}, v13 row_newbcast:{t} {DPP}")
    if t >= 1:
        for i in range(4):
            A(f"v_perm_b32 v{KR+4*(t-1)+i}, v{14+(t-1)%4}, v{14+(t-1)%4}, v{6+i}")
for i in range(4):
    A(f"v_perm_b32 v{KR+60+i}, v{14+15%4}, v{14+15%4}, v{6+i}")
spin(C1, f"s{sNKV}", 12, f"ds_read_b32 v19, v{vL}", sleep=2)
A(f"v_bfi_b32 v19, s{sMASK}, 0, v19")
A("v_sub_f32 v11, v11, v19\nv_exp_f32 v11, v11")
st(4)
for t in range(16):
    A(f"s_waitcnt vmcnt({15-t})")
    c = "0" if t == 0 else "v[28:31]"
    A(f"v_mfma_f32_16x16x32_bf16 v[28:31], {V(VR+4*t,4)}, {V(KR+4*t,4)}, {c}")
st(5)
for i in range(4):
    A(f"v_add_f32_dpp v{28+i}, v{28+i}, v{28+i} row_ror:8 {DPP}")
for i in range(4):
    A(f"v_mul_f32 v{28+i}, v{28+i}, v11")
A("s_mov_b32 exec_lo, 0x00ff00ff\ns_mov_b32 exec_hi, 0x00ff00ff")
A(f"ds_write_b128 v34, v[28:31] offset:{OSL}")
A("s_mov_b64 exec, 1")
A(f"ds_add_rtn_u32 v12, v{vL}, v{vONE} offset:{C3-MX}")
A("s_mov_b64 exec, -1")
W0 = W1 - max(max(t) for t in TAB)
P = lambda k: V(KR + 2 * k, 2)
nsl = 12 - W0
for k in range(nsl):
    A(f"ds_read_b64 {P(k)}, v35 offset:{OSL+512*(W0+k)}")
A(f"s_waitcnt lgkmcnt({nsl-4})")
A(f"v_readfirstlane_b32 s{sT0}, v12")
A(f"v_pk_add_f32 {P(0)}, {P(0)}, {P(1)}\nv_pk_add_f32 {P(2)}, {P(2)}, {P(3)}\ns_waitcnt lgkmcnt({nsl-8})")
A(f"v_pk_add_f32 {P(4)}, {P(4)}, {P(5)}\nv_pk_add_f32 {P(6)}, {P(6)}, {P(7)}\nv_pk_add_f32 {P(0)}, {P(0)}, {P(2)}\ns_waitcnt lgkmcnt(0)")
if nsl >= 10:
    A(f"v_pk_add_f32 {P(8)}, {P(8)}, {P(9)}")
A(f"v_pk_add_f32 {P(4)}, {P(4)}, {P(6)}")
if nsl >= 9:
    A(f"v_pk_add_f32 {P(0)}, {P(0)}, {P(8)}")
if nsl >= 11:
    A(f"v_pk_add_f32 {P(4)}, {P(4)}, {P(10)}")
A(f"v_pk_add_f32 v[18:19], {P(0)}, {P(4)}")
tag([18])
A(f"s_cmp_lg_u32 s{sT0}, s{sN}\ns_cbranch_scc1 L_kv_notlast")
store_fs(f"buffer_store_dwordx2 v[18:19], v36, {R(rWS)}, 0 offen")
A(f"ds_write_b32 v{vL}, v{vONE} offset:{C5-MX}")
st(6)
A("L_kv_notlast:")
A("L_kv_end:")
end_wave()

A("L_helper:")
A(f"s_cmp_ge_i32 s{sQB}, 0\ns_cbranch_scc1 L_q")
A("s_cmp_ge_u32 s3, 4\ns_cbranch_scc1 L_idle")
A("s_branch L_roles")
A("L_idle:")
end_wave()

A("L_q:")
A("""v_and_b32 v28, 1, v0
v_lshlrev_b32 v28, 4, v28
v_mov_b32 v29, 0x100
v_lshlrev_b32 v29, v28, v29
v_mov_b32 v30, 0x0c0c0000
v_lshrrev_b32 v30, v28, v30
v_or_b32 v29, v29, v30
v_bfe_u32 v28, v0, 1, 3
v_mov_b32 v30, 0x0c0c0c0c""")
for i in range(4):
    A(f"v_cmp_eq_u32 vcc, {i}, v28\nv_cndmask_b32 v{20+i}, v30, v29, vcc")
A("s_waitcnt vmcnt(16)")
for j in range(4):
    A(f"v_lshlrev_b32 v{112+2*j}, 16, v{104+j}\nv_and_b32 v{113+2*j}, s{sHI}, v{104+j}")
A("v_add_f32 v36, v112, v113\nv_add_f32 v37, v114, v115\nv_add_f32 v34, v116, v117\nv_add_f32 v35, v118, v119")
A("v_add_f32 v36, v36, v37\nv_add_f32 v34, v34, v35\nv_add_f32 v36, v36, v34")
wave_allreduce_add(36, 37)
A(f"v_mul_f32 v36, {f32(1/512)}, v36")
for j in range(8):
    A(f"v_sub_f32 v{112+j}, v{112+j}, v36")
A("v_mul_f32 v37, v112, v112")
for j in range(1, 8):
    A(f"v_fmac_f32 v37, v{112+j}, v{112+j}")
wave_allreduce_add(37, 34)
A(f"v_mul_f32 v37, {f32(1/512)}, v37")
A(f"""v_cvt_pk_bf16_f32 v34, v36, v37
v_lshlrev_b32 v36, 16, v34
v_and_b32 v37, s{sHI}, v34
v_add_f32 v37, {f32(1e-5)}, v37
v_cvt_pk_bf16_f32 v37, v37, v37
v_and_b32 v37, s{sHI}, v37
v_sqrt_f32 v37, v37
v_cvt_pk_bf16_f32 v37, v37, v37
v_and_b32 v37, s{sHI}, v37
v_rcp_f32 v37, v37""")
for j in range(8):
    r = 12 + j
    A(f"""v_lshlrev_b32 v28, 16, v{r}
v_and_b32 v29, s{sHI}, v{r}
v_sub_f32 v28, v28, v36
v_sub_f32 v29, v29, v36
v_cvt_pk_bf16_f32 v30, v28, v29
v_lshlrev_b32 v28, 16, v30
v_and_b32 v29, s{sHI}, v30
v_mul_f32 v28, v28, v37
v_mul_f32 v29, v29, v37
v_cvt_pk_bf16_f32 v{r}, v28, v29""")
A(f"s_load_dword s{sN}, s[{pDBG}:{pDBG+1}], 0")
A("s_waitcnt vmcnt(0)")
st(1)
for t in range(16):
    src = 12 + t // 2
    if t % 2:
        A(f"v_lshrrev_b32 v{src}, 16, v{src}")
    b = 104 + 4 * (t % 2)
    for i in range(4):
        A(f"v_perm_b32 v{b+i}, v{src}, v{src}, v{20+i}")
    c = "0" if t == 0 else "v[24:27]"
    A(f"v_mfma_f32_16x16x32_bf16 v[24:27], {V(40+4*t,4)}, {V(b,4)}, {c}")
A("L_qnum:")
for k in range(1, 4):
    A(f"s_waitcnt lgkmcnt(0)\ns_cmp_lg_u32 s{sN}, 0\ns_cbranch_scc1 L_num_ok")
    if k > 1:
        A(f"s_sleep {opt['nsl']}")
    A(f"s_load_dword s{sN}, s[{pDBG}:{pDBG+1}], {64*k}")
srd(rA, pDBG, 256)
A(f"s_mov_b32 s{sCNT}, {opt['spin']}\nv_mov_b32 v3, 0\ns_waitcnt lgkmcnt(0)")
A(f"""L_num:
s_cmp_lg_u32 s{sN}, 0
s_cbranch_scc1 L_num_ok
s_sub_u32 s{sCNT}, s{sCNT}, 1
s_cbranch_scc1 L_num_ok
buffer_load_dword v4, v3, {R(rA)}, 0 offen sc1
s_waitcnt vmcnt(0)
v_readfirstlane_b32 s{sN}, v4
s_branch L_num
L_num_ok:""")
st(2)
A(f"s_and_b32 s{sT0}, s{sN}, s{sMASK}\nv_mov_b32 v{vT}, s{sT0}")
A(f"s_getreg_b32 s{sT1}, hwreg(HW_REG_XCC_ID)\ns_and_b32 s{sT1}, s{sT1}, 15\ns_lshl_b32 s{sN}, s{sN}, 4\ns_or_b32 s{sN}, s{sN}, s{sT1}")
A(f"v_and_b32 v3, 7, v0\ns_cmp_lt_i32 s{sQB}, 0\ns_cbranch_scc1 L_nopub")
A(f"s_and_b32 s{sT0}, s{sSLOT}, 0xf8\ns_add_u32 s{sT0}, s{sT0}, s{sQB}\ns_lshl_b32 s{sT0}, s{sT0}, 9\ns_add_u32 s{sT0}, s{sT0}, {QS}")
A(f"v_lshrrev_b32 v2, 4, v0\nv_lshl_add_u32 v2, v2, 3, v3\nv_lshl_add_u32 v2, v2, 4, s{sT0}")
tag([24])
A("s_mov_b32 exec_lo, 0x00ff00ff\ns_mov_b32 exec_hi, 0x00ff00ff")
A(f"buffer_store_dwordx4 v[24:27], v2, {R(rWS)}, 0 offen{fl('qst')}")
A("s_mov_b64 exec, -1")
A("s_cmp_lg_u32 s3, 0\ns_cbranch_scc1 L_idle")
A("L_nopub:")
A(f"s_lshl_b32 s{sT1}, s{sXG}, 7\ns_add_u32 s{sT1}, s{sT1}, {XC}\nv_lshl_add_u32 v5, v3, 2, s{sT1}")
A(f"s_cmp_eq_u32 s{sROLE}, 0\ns_cbranch_scc0 L_noxc")
A(f"s_lshl_b32 s{sT0}, s{sR}, 2\ns_add_u32 s{sT0}, s{sT0}, s{sT1}\nv_mov_b32 v3, s{sT0}\nv_mov_b32 v4, s{sN}\ns_mov_b64 exec, 1")
A(f"buffer_store_dword v4, v3, {R(rWS)}, 0 offen{fl('xst')}")
A("s_mov_b64 exec, -1")
A("L_noxc:")
A(f"s_and_b32 s{sT0}, s{sSLOT}, 0xf8\ns_lshl_b32 s{sT0}, s{sT0}, 9\ns_add_u32 s{sT0}, s{sT0}, {QS}")
A(f"v_lshl_add_u32 v7, v0, 4, s{sT0}")
A("v_bfe_u32 v2, v0, 3, 2\nv_lshlrev_b32 v2, 2, v2\nv_lshrrev_b32 v3, 5, v0\nv_add_u32 v2, v2, v3\nv_and_b32 v3, 7, v0\nv_lshl_add_u32 v2, v2, 3, v3\nv_lshlrev_b32 v2, 1, v2")
if opt["otouch"]:
    A(f"s_lshl_b32 s{sT0}, s{sSLOT}, 9\ns_add_u32 s{sT0}, s{sT0}, {OS}\nv_lshl_add_u32 v9, v0, 3, s{sT0}")
    A(f"buffer_load_dword v28, v9, {R(rWS)}, 0 offen")
    A(f"s_lshl_b32 s{sT0}, s{sSLOT}, 4\ns_add_u32 s{sT0}, s{sT0}, {ST}\nv_mov_b32 v9, s{sT0}")
    A(f"buffer_load_dword v29, v9, {R(rWS)}, 0 offen")
if opt["qsl"]:
    A(f"s_sleep {opt['qsl']}")
else:
    A("s_waitcnt vmcnt(0)")
st(3)


def q_poll():
    for t in range(4):
        A(f"buffer_load_dwordx4 {V(112+4*t,4)}, v7, {R(rWS)}, 0 offen offset:{1024*t} sc1")
    A(f"buffer_load_dword v6, v5, {R(rWS)}, 0 offen sc1")


if not opt.get("noq"):
    poll(q_poll, [112, 116, 120, 124], 10)
A(f"v_cmp_ne_u32 vcc, s{sN}, v6\ns_cmp_eq_u64 vcc, 0\ns_cselect_b32 s{sFAST}, 1, 0")
if opt.get("noq"):
    A(f"s_mov_b32 s{sFAST}, 1\nv_mov_b32 v112, 0\nv_mov_b32 v113, 0\nv_mov_b32 v114, 0\nv_mov_b32 v115, 0")
    for r in range(116, 128):
        A(f"v_mov_b32 v{r}, 0")
A(f"v_mov_b32 v4, s{sFAST}\nv_mov_b32 v5, v{vT}\nds_write_b64 v{vL}, v[4:5] offset:{FAST-MX}")
for i in range(4):
    A(f"v_add_f32 v{112+i}, v{112+i}, v{116+i}\nv_add_f32 v{120+i}, v{120+i}, v{124+i}")
for i in range(4):
    A(f"v_add_f32 v{112+i}, v{112+i}, v{120+i}")
A("v_permlane32_swap_b32 v112, v113\nv_permlane32_swap_b32 v114, v115")
A("v_add_f32 v112, v112, v113\nv_add_f32 v114, v114, v115")
A("v_cvt_pk_bf16_f32 v112, v112, v114")
A(f"ds_write_b16 v2, v112 offset:{QL}\nds_write_b16_d16_hi v2, v112 offset:{QL+32}")
A(f"ds_write_b32 v{vL}, v{vONE} offset:{CQ-MX}")
if opt.get("dirty"):
    A(f"s_lshl_b32 s{sT0}, s{sSLOT}, 14\ns_add_u32 s{sT0}, s{sT0}, 0x400000\nv_add_u32 v2, s{sT0}, v8")
    for k in range(opt["dirty"]):
        A(f"buffer_store_dwordx4 v[112:115], v2, {R(rWS)}, s{sOFF+k//4} offen offset:{1024*(k%4)}")
st(4)

if opt["wpf"]:
    srd(rA, pWO, 0x400000)
    if opt["wpf"] == 1:
        A(f"v_and_b32 v1, 15, v0\nv_lshlrev_b32 v1, 10, v1\ns_lshl_b32 s{sT0}, s{sSLOT}, 14\ns_add_u32 s{sT0}, s{sT0}, 384")
        A(f"buffer_load_dword v162, v1, {R(rA)}, s{sT0} offen")
    elif opt["wpf"] >= 3:
        res = [int(c) for c in str(opt["wres"])[1:]]
        packed = sum(r << (8 * k) for k, r in enumerate((res * 4)[:4]))
        A(f"v_and_b32 v1, 15, v0\nv_lshlrev_b32 v1, 10, v1\nv_lshrrev_b32 v2, 4, v0\nv_lshlrev_b32 v2, 3, v2\nv_mov_b32 v3, {hex(packed)}\nv_bfe_u32 v2, v3, v2, 8\nv_lshl_add_u32 v1, v2, 7, v1")
        A(f"s_lshl_b32 s{sT0}, s{sSLOT}, 14")
        A(f"buffer_load_dword v162, v1, {R(rA)}, s{sT0} offen")
    else:
        A(f"v_lshlrev_b32 v1, 7, v0\ns_lshl_b32 s{sT0}, s{sSLOT}, 14")
        A(f"buffer_load_dword v162, v1, {R(rA)}, s{sT0} offen\ns_add_u32 s{sT0}, s{sT0}, 8192\nbuffer_load_dword v163, v1, {R(rA)}, s{sT0} offen")
def f_setup(par):
    odd = f"s_and_b32 s{sT1}, s3, 1\ns_add_u32 s{sT0}, s{sT0}, s{sT1}\n" if par is None else (f"s_add_u32 s{sT0}, s{sT0}, 1\n" if par else "")
    A(f"s_lshl_b32 s{sT0}, s{sXG}, 3\ns_add_u32 s{sT0}, s{sT0}, s{sR}\ns_lshl_b32 s{sT0}, s{sT0}, 1\n{odd}s_lshl_b32 s{sT0}, s{sT0}, 2")
    A(f"v_lshrrev_b32 v20, 4, v0\nv_add_u32 v20, s{sT0}, v20\nv_lshlrev_b32 v21, 1, v20\nv_lshlrev_b32 v20, 2, v20\nv_add_u32 v20, {ZS}, v20")
    A(f"s_lshl_b32 s{sT0}, s{sT0}, 2\ns_and_b32 s{sT1}, s{sT0}, 0x780\ns_add_u32 s{sT1}, s{sT1}, {ZS}\nv_lshrrev_b32 v27, 3, v0\nv_lshlrev_b32 v27, 11, v27\nv_lshl_add_u32 v27, v2, 4, v27\nv_add_u32 v27, s{sT1}, v27")
    A(f"v_lshlrev_b32 v22, 11, v0\nv_add_u32 v22, s{sT0}, v22\nv_add_u32 v23, {64*2048}, v22")
    srd(rC, pWS, NMLP * 2048, PS)
    srd(rB, pOUT, 1024)


A("L_roles:")
A(f"s_cmp_eq_u32 s{sROLE}, 1\ns_cbranch_scc1 L_mlp")
A(f"s_cmp_eq_u32 s{sROLE}, 0\ns_cbranch_scc1 L_z")
if opt["fsplit"]:
    A("; wave 0 of the group's first 8 role-free workgroups takes the other half of the F stage")
    A(f"s_cmp_eq_u32 s3, 0\ns_cbranch_scc0 L_idle\ns_cmp_lt_u32 s{sR}, 8\ns_cbranch_scc0 L_idle\nv_and_b32 v2, 7, v0")
    f_setup(1)
    A(f"buffer_load_ushort v26, v21, {R(rD)}, 0 offen")
    spin(C5, 1, 10, sleep=4)
    if opt["f0delay"]:
        A("; z cannot be there before the group's o has been merged: stay off the memory pipeline until then")
        A(f"s_sleep {opt['f0delay']}")
    A("s_branch L_fin")


def share_setup():
    A(f"""s_lshr_b32 s{sT0}, s{sI}, 3
s_mul_i32 s{sT0}, s{sT0}, 6
s_and_b32 s{sT1}, s{sI}, 7
s_add_u32 s77, s{sT0}, s{sT1}
s_sub_u32 s77, s77, 2
s_mul_i32 s78, s{sXG}, 11
s_cmp_eq_u32 s{sXG}, 7
s_subb_u32 s78, s78, 0
s_mul_i32 s{sT0}, s77, 22
s_lshl_b32 s{sT1}, s78, 5
v_lshrrev_b32 v152, 2, v0
v_add_u32 v152, s{sT0}, v152
v_mul_u32_u24 v152, 2752, v152
v_and_b32 v153, 3, v0
v_lshlrev_b32 v153, 7, v153
v_min_u32 v153, 348, v153
v_add3_u32 v152, v152, v153, s{sT1}
s_mul_i32 s{sT0}, s77, {59*128}
s_lshl_b32 s{sT1}, s78, 14
s_add_u32 s{sT0}, s{sT0}, s{sT1}
v_min_u32 v153, 58, v0
v_lshl_add_u32 v153, v153, 7, s{sT0}
s_lshl_b32 s{sT0}, s{sXG}, 7
s_add_u32 s{sT0}, s{sT0}, {PFL}
s_lshl_b32 s{sT1}, s77, 2
s_add_u32 s{sT1}, s{sT1}, s{sT0}
v_mov_b32 v154, s{sT1}""")


def share_loads():
    A(f"buffer_load_dword v156, v152, {R(rA)}, 0 offen\nbuffer_load_dword v157, v152, {R(rB)}, 0 offen")
    A(f"buffer_load_dword v158, v153, {R(rC)}, 0 offen")
    A(f"s_mov_b32 s{sT1}, {16*2752}\ns_mov_b64 exec, 0xffffff")
    A(f"buffer_load_dword v159, v152, {R(rA)}, s{sT1} offen\nbuffer_load_dword v160, v152, {R(rB)}, s{sT1} offen")
    A("s_mov_b64 exec, 1\ns_waitcnt vmcnt(0)")
    A(f"buffer_store_dword v{vT}, v154, {R(rWS)}, 0 offen")
    A("s_mov_b64 exec, -1")


if opt["gpf"] == 2:
    A("s_cmp_eq_u32 s3, 0\ns_cbranch_scc0 L_idle")
    srd(rA, pWG, 512 * 2752)
    srd(rB, pWU, 512 * 2752)
    srd(rC, pWD, 1376 * 1024)
    share_setup()
    spin({"c5": C5, "c1": C1}[opt["gtrig"]], {"c5": 1, "c1": f"s{sNKV}"}[opt["gtrig"]], 10, sleep=2)
    share_loads()
if opt["gpf"] == 1:
    A("s_cmp_eq_u32 s3, 0\ns_cbranch_scc0 L_idle")
    srd(rA, pWG, 512 * 2752)
    srd(rB, pWU, 512 * 2752)
    A(f"""s_mul_i32 s{sT0}, s{sR}, 40
s_mul_i32 s{sT1}, s{sXG}, 11
s_cmp_eq_u32 s{sXG}, 7
s_subb_u32 s{sT1}, s{sT1}, 0
s_lshl_b32 s{sT1}, s{sT1}, 5
v_lshrrev_b32 v1, 2, v0
v_add_u32 v1, s{sT0}, v1
v_mul_u32_u24 v1, 2752, v1
v_and_b32 v2, 3, v0
v_lshlrev_b32 v2, 7, v2
v_min_u32 v2, 348, v2
v_add3_u32 v1, v1, v2, s{sT1}""")
    spin({"c5": C5, "c1": C1, "c1h": C1}[opt["gtrig"]], {"c5": 1, "c1": f"s{sNKV}", "c1h": 6}[opt["gtrig"]], 10, sleep=4)
    for k in range(3):
        if k == 2:
            A("s_mov_b32 exec_hi, 0")
        A(f"s_mov_b32 s{sT1}, {k*16*2752}")
        A(f"buffer_load_dword v4, v1, {R(rA)}, s{sT1} offen\nbuffer_load_dword v5, v1, {R(rB)}, s{sT1} offen")
    A("s_mov_b64 exec, -1")
end_wave()


def trigger(trig, loads):
    if opt.get("now"):
        return
    if trig != "start":
        off, n = {"q": (CQ, 1), "c1": (C1, f"s{sNKV}"), "c1h": (C1, 4), "c1a": (C1, 1), "c1b": (C1, 2), "c1c": (C1, 5), "c5": (C5, 1)}[trig]
        spin(off, n, 10, sleep=4)
    loads()


A("L_z:")
if opt.get("cgx"):
    A(f"s_xor_b32 s{sR}, s{sR}, {opt['cgx']}")
ZB, ZO, ZST, ZA, ZD = 40, 104, 120, 124, 140
srd(rA, pWO, 0x400000)
A(f"s_lshl_b32 s{sT0}, s{sXG}, 2\ns_add_u32 s{sT0}, s{sT0}, s3\ns_lshl_b32 s{sT0}, s{sT0}, 17\ns_lshl_b32 s{sT1}, s{sR}, 7\ns_add_u32 s{sT0}, s{sT0}, s{sT1}")
A(f"v_bfe_u32 v1, v0, 3, 2\nv_lshrrev_b32 v2, 5, v0\nv_lshl_add_u32 v1, v1, 3, v2\nv_lshlrev_b32 v1, 10, v1\nv_and_b32 v2, 7, v0\nv_lshl_add_u32 v1, v2, 4, v1\nv_add_u32 v1, s{sT0}, v1")
A(f"s_lshl_b32 s{sIMG}, s3, 14\ns_add_u32 s{sIMG}, s{sIMG}, {WIMG}")
A(f"v_lshrrev_b32 v3, 4, v0\nv_lshlrev_b32 v3, 3, v3\nv_bfe_u32 v4, v0, 2, 2\nv_add_u32 v3, v3, v4\nv_lshlrev_b32 v3, 7, v3\nv_and_b32 v4, 3, v0\nv_lshl_add_u32 v3, v4, 3, v3")
if opt["z4"]:
    A(f"s_lshl_b32 s{sT0}, s3, 5\ns_add_u32 s{sT0}, s{sT0}, {WIMG}\nv_add_u32 v3, s{sT0}, v3")
else:
    A(f"v_add_u32 v3, s{sIMG}, v3")
A(f"s_lshl_b32 s{sT0}, s{sXG}, 5\ns_lshl_b32 s{sT1}, s3, 3\ns_add_u32 s{sT0}, s{sT0}, s{sT1}")
A(f"s_lshl_b32 s{sT1}, s{sT0}, 9\ns_add_u32 s{sT1}, s{sT1}, {OS}\nv_add_u32 v4, s{sT1}, v8")
A(f"s_lshl_b32 s{sT1}, s{sT0}, 4\ns_add_u32 s{sT1}, s{sT1}, {ST}\nv_lshl_add_u32 v5, v2, 4, s{sT1}")
A(f"s_lshl_b32 s{sT0}, s3, 8\ns_add_u32 s{sT0}, s{sT0}, {SCR}\nv_lshl_add_u32 v6, v0, 2, s{sT0}")
if opt["z4"]:
    A(f"v_lshrrev_b32 v7, 4, v0\nv_lshlrev_b32 v7, 4, v7\nv_add_u32 v7, {SCR}, v7")
else:
    A(f"v_lshrrev_b32 v7, 4, v0\nv_lshl_add_u32 v7, v7, 4, s{sT0}")
A(f"v_subrev_u32 v25, {SCR-ZP}, v6")
A(f"v_and_b32 v9, 31, v0\nv_lshlrev_b32 v9, 3, v9\nv_lshrrev_b32 v10, 5, v0\nv_lshl_add_u32 v9, v10, 2, v9\nv_add_u32 v9, s{sT0}, v9")
f_setup(None if not opt["fsplit"] else 0)
A(f"s_lshl_b32 s{sT0}, s{sXG}, 11\ns_lshl_b32 s{sT1}, s{sR}, 8\ns_add_u32 s{sT0}, s{sT0}, s{sT1}\ns_add_u32 s{sT0}, s{sT0}, {ZS}\nv_add_u32 v24, s{sT0}, v8")
if opt["z4"]:
    A(f"s_lshl_b32 s{sT1}, s3, 6\ns_add_u32 s{sT0}, s{sT0}, s{sT1}\nv_lshl_add_u32 v30, v0, 2, s{sT0}")


def z_loads():
    if opt["ptouch"]:
        A(f"s_mov_b64 exec, 0xffff\nbuffer_load_dword v28, v24, {R(rWS)}, 0 offen\ns_mov_b64 exec, -1")
    A(f"buffer_load_ushort v26, v21, {R(rD)}, 0 offen")
    if opt["outtouch"]:
        A(f"buffer_load_ushort v29, v21, {R(rB)}, 0 offen")
    for t in range(16 if not opt.get("nowo") else 0):
        A(f"s_add_u32 m0, s{sIMG}, {t*1024}\ns_mov_b32 s{sT1}, {((t>>2)*32+(t&3)*2)*1024}")
        A(f"buffer_load_dwordx4 v1, {R(rA)}, s{sT1} offen{fl('wofl')} lds")
        if opt["zwin"] and t >= opt["zwin"] - 1:
            A(f"s_waitcnt vmcnt({opt['zwin']-1})")


def z_prep():
    if opt["z4"]:
        A(f"s_mov_b64 exec, 1\nds_add_u32 v{vL}, v{vONE} offset:{C4-MX}\ns_mov_b64 exec, -1")
        spin(C4, 4, 10, sleep=2)
        for h in range(4):
            for kb in range(4):
                for hf in range(2):
                    A(f"ds_read_b64_tr_b16 {V(ZB+(h*4+kb)*4+2*hf,2)}, v3 offset:{h*16384+kb*4096+hf*512}")
        return
    for kb in range(4):
        for nt in range(4):
            for hf in range(2):
                A(f"ds_read_b64_tr_b16 {V(ZB+(kb*4+nt)*4+2*hf,2)}, v3 offset:{kb*4096+hf*512+nt*32}")


def zs_poll():
    A(f"buffer_load_dwordx4 {V(ZST,4)}, v5, {R(rWS)}, 0 offen sc1")


def z_poll():
    for t in range(4):
        A(f"buffer_load_dwordx4 {V(ZO+4*t,4)}, v4, {R(rWS)}, 0 offen offset:{1024*t} sc1")


trigger(opt["trigz"], z_loads)
A("s_waitcnt vmcnt(0)")
z_prep()
st(5)
spin(C1, f"s{sNKV}", 10, f"ds_read_b32 v{vT}, v{vL} offset:{TAG-MX}")
poll(zs_poll, list(range(ZST, ZST + 4)), 10, sleep=opt["ssl"])
A(f"""v_max_f32_dpp v16, v{ZST}, v{ZST} quad_perm:[1,0,3,2] {DPP}
v_max_f32_dpp v16, v16, v16 quad_perm:[2,3,0,1] {DPP}
v_max_f32_dpp v16, v16, v16 row_half_mirror {DPP}
v_sub_f32 v16, v{ZST}, v16
v_exp_f32 v16, v16
v_mul_f32 v11, v16, v{ZST+1}
v_add_f32_dpp v11, v11, v11 quad_perm:[1,0,3,2] {DPP}
v_add_f32_dpp v11, v11, v11 quad_perm:[2,3,0,1] {DPP}
v_add_f32_dpp v11, v11, v11 row_half_mirror {DPP}
v_rcp_f32 v11, v11
v_mul_f32 v16, v16, v11
v_mov_b32_dpp v16, v16 row_ror:15 row_mask:0xc bank_mask:0xf""")
spin(C3, f"s{sNKV}", 10, sleep=opt["c3sl"])
st(2)
if opt["p3"] & 1:
    poll3([(f"buffer_load_dwordx4 {V(ZO+4*t,4)}, v4, {R(rWS)}, 0 offen offset:{1024*t} sc1", [ZO + 4 * t, ZO + 4 * t + 2]) for t in range(4)], 10)
elif opt["p2"] & 1:
    poll2([(f"buffer_load_dwordx4 {V(ZO+4*t,4)}, v4, {R(rWS)}, 0 offen offset:{1024*t} sc1", [ZO + 4 * t, ZO + 4 * t + 2], None) for t in range(4)], 10, depth=opt["dz"])
else:
    poll(z_poll, [ZO + 2 * k for k in range(8)], 10, sleep=opt["zsl"])
if STAMPS:
    A(f"s_sub_u32 s{sFAST}, {opt['spin']*4}, s{sCNT}")
if opt.get("diag"):
    A("s_memrealtime s[98:99]")
st(6)
for t in range(4):
    for i in range(4):
        op = "v_mul_f32_dpp" if t == 0 else "v_fmac_f32_dpp"
        A(f"{op} v{12+i}, v16, v{ZO+4*t+i} row_newbcast:{2*t} {DPP}")
A("v_permlane32_swap_b32 v12, v14\nv_permlane32_swap_b32 v13, v15")
A("v_add_f32 v12, v12, v14\nv_add_f32 v13, v13, v15")
A("v_cvt_pk_bf16_f32 v12, v12, v13\nds_write_b32 v9, v12")
if opt["z4"]:
    A("s_waitcnt lgkmcnt(0)\ns_barrier")
    ZA4 = [104, 108, 112, 116, 120, 124, 128, 132, 136, 144, 148, 152, 156, 160, 164, 12]
    LA = opt["zla"]
    for j in range(LA):
        A(f"ds_read_b128 {V(ZA4[j],4)}, v7 offset:{64*j}")
    for j in range(16):
        A(f"s_waitcnt lgkmcnt({min(LA-1, 15-j)})")
        c = "0" if j == 0 else V(ZD, 4)
        A(f"v_mfma_f32_16x16x32_bf16 {V(ZD,4)}, {V(ZA4[j],4)}, {V(ZB+4*j,4)}, {c}")
        if j + LA < 16:
            A(f"ds_read_b128 {V(ZA4[j+LA],4)}, v7 offset:{64*(j+LA)}")
    for i in range(4):
        A(f"v_mov_b32_dpp v{16+i}, v{ZD+i} quad_perm:[{i},{i},{i},{i}] {DPP}")
    tag([16])
    A("s_mov_b64 exec, 0x1111")
    A(f"buffer_store_dwordx4 v[16:19], v30, {R(rWS)}, 0 offen sc1")
else:
    for kb in range(4):
        A(f"ds_read_b128 {V(ZA+4*kb,4)}, v7 offset:{64*kb}")
    for kb in range(4):
        A(f"s_waitcnt lgkmcnt({3-kb})")
        for nt in range(4):
            c = "0" if kb == 0 else V(ZD + 4 * nt, 4)
            A(f"v_mfma_f32_16x16x32_bf16 {V(ZD+4*nt,4)}, {V(ZA+4*kb,4)}, {V(ZB+(kb*4+nt)*4,4)}, {c}")
    for nt in range(1, 4):
        A(f"v_mov_b32_dpp v{ZD}, v{ZD+4*nt} quad_perm:[0,1,2,3] row_mask:{hex(1<<nt)} bank_mask:0xf")
    A(f"ds_write_b32 v6, v{ZD} offset:{ZP-SCR+65536-65536}" if ZP >= SCR else f"ds_write_b32 v25, v{ZD}")
    A("s_mov_b64 exec, 1")
    A(f"ds_add_rtn_u32 v10, v{vL}, v{vONE} offset:{C4-MX}")
    A("s_mov_b64 exec, 0xffff")
    for w in range(4):
        A(f"ds_read_b128 {V(12 if w == 0 else ZA+4*w,4)}, v8 offset:{ZP+256*w}")
    A("s_waitcnt lgkmcnt(2)")
    A(f"v_readfirstlane_b32 s{sT0}, v10")
    A(f"v_pk_add_f32 v[12:13], v[12:13], {V(ZA+4,2)}\nv_pk_add_f32 v[14:15], v[14:15], {V(ZA+6,2)}\ns_waitcnt lgkmcnt(0)")
    A(f"v_pk_add_f32 {V(ZA+8,2)}, {V(ZA+8,2)}, {V(ZA+12,2)}\nv_pk_add_f32 {V(ZA+10,2)}, {V(ZA+10,2)}, {V(ZA+14,2)}")
    A(f"v_pk_add_f32 v[12:13], v[12:13], {V(ZA+8,2)}\nv_pk_add_f32 v[14:15], v[14:15], {V(ZA+10,2)}")
    tag([12])
    A(f"s_cmp_lg_u32 s{sT0}, 3\ns_cbranch_scc1 L_z_notlast")
    A(f"buffer_store_dwordx4 v[12:15], v24, {R(rWS)}, 0 offen sc1")
st(7)
A("L_z_notlast:")
A("s_mov_b64 exec, -1")
if opt["fsplit"]:
    A("s_cmp_eq_u32 s3, 1\ns_cbranch_scc1 L_fin")
else:
    A(f"s_sub_u32 s{sT0}, s3, 1\ns_cmp_lt_u32 s{sT0}, 2\ns_cbranch_scc1 L_fin")
end_wave()
A("L_fin:")


def f_poll1():
    A(f"buffer_load_dword v28, v27, {R(rWS)}, 0 offen sc1")


poll(f_poll1, [28], 10, sleep=opt["fsl"])
for x in range(8):
    A(f"buffer_load_dword v{104+x}, v20, {R(rWS)}, s{sOFF+x//2} offen offset:{2048*(x%2)} sc1")
A("s_waitcnt vmcnt(0)\ns_mov_b64 exec, 0xffff")
for x in range(8):
    A(f"v_xor_b32 v{104+x}, v{104+x}, v{vT}")
A("s_mov_b64 exec, -1")
st(1)


def f_poll2():
    A(f"buffer_load_dwordx4 v[112:115], v22, {R(rC)}, 0 offen sc1")
    A(f"buffer_load_dwordx4 v[116:119], v23, {R(rC)}, 0 offen sc1")


def f_h():
    A("""v_add_f32 v104, v104, v106
v_add_f32 v105, v105, v107
v_add_f32 v104, v104, v108
v_add_f32 v105, v105, v109
v_add_f32 v104, v104, v110
v_add_f32 v105, v105, v111
v_add_f32 v104, v104, v105
v_lshlrev_b32 v26, 16, v26
v_add_f32 v104, v104, v26
v_cvt_pk_bf16_f32 v104, v104, v104
v_lshlrev_b32 v104, 16, v104""")


f_h()
A('; back off until the MLP stage is about done: a line read before it is written costs its writer an invalidation')
if opt["fdelay"]:
    A(f"s_sleep {opt['fdelay']}")
if opt["p2"] & 4:
    poll2([(f"buffer_load_dwordx4 v[112:115], v22, {R(rC)}, 0 offen sc1", [112, 113, 114, 115], None),
           (f"buffer_load_dwordx4 v[116:119], v23, {R(rC)}, 0 offen sc1", [116, 117, 118, 119], (1 << (NMLP - 64)) - 1)], 10, depth=opt["df"])
else:
    if opt.get("m43"):
        A("s_mov_b32 exec_hi, 0x7ff")
        poll(lambda: A(f"buffer_load_dwordx4 v[112:115], v22, {R(rC)}, 0 offen sc1"), list(range(112, 116)), 10)
        A("s_mov_b64 exec, -1")
    else:
        poll(f_poll2, list(range(112, 116)), 10, None, masked=((1 << (NMLP - 64)) - 1, list(range(116, 120))))
st(2)
for i in range(4):
    A(f"v_add_f32 v{112+i}, v{112+i}, v{116+i}")
A("v_permlane32_swap_b32 v112, v114\nv_permlane32_swap_b32 v113, v115")
A("v_add_f32 v112, v112, v114\nv_add_f32 v113, v113, v115")
A("v_permlane16_swap_b32 v112, v113\nv_add_f32 v112, v112, v113")
row_allreduce("v_add_f32", 112)
if "eps" in opt:
    A(f"v_mul_f32 v112, {f32(1 + opt['eps'] / 1000)}, v112")
A("v_add_f32 v112, v112, v104\nv_cvt_pk_bf16_f32 v112, v112, v112")
A("s_mov_b32 exec_lo, 0x00010001\ns_mov_b32 exec_hi, 0x00010001")
A(f"buffer_store_short v112, v21, {R(rB)}, 0 offen{fl('outfl')}")
if opt.get("diag"):
    A(f"s_cmp_eq_u32 s{sI}, 0\ns_cbranch_scc0 L_exit\ns_cmp_eq_u32 s3, 1\ns_cbranch_scc0 L_exit")
    A("s_memrealtime s[96:97]\ns_waitcnt lgkmcnt(0)")
    if "amp" in opt:
        if opt["amp"] != 8:
            A(f"s_cmp_eq_u32 s{sXG}, {opt['amp']}\ns_cbranch_scc0 L_exit")
        if opt.get("ampsrc") == "o":
            A("s_sub_u32 s94, s98, s100")
        else:
            A("s_sub_u32 s94, s96, s100")
        A("s_lshl_b32 s94, s94, 2\nL_amp:\ns_memrealtime s[92:93]\ns_waitcnt lgkmcnt(0)\ns_sub_u32 s92, s92, s96\ns_cmp_lt_u32 s92, s94\ns_cbranch_scc1 L_amp")
    srd(rA, pDBG, 64)
    A(f"s_sub_u32 s96, s96, s100\ns_sub_u32 s98, s98, s100\ns_lshl_b32 s100, s100, 16\ns_or_b32 s96, s96, s100")
    A(f"s_lshl_b32 s{sT0}, s{sXG}, 2\nv_mov_b32 v1, s{sT0}\nv_mov_b32 v2, s96\nv_mov_b32 v3, s98\ns_mov_b64 exec, 1")
    A(f"buffer_store_dword v2, v1, {R(rA)}, 0 offen offset:4 sc1\nbuffer_store_dword v3, v1, {R(rA)}, 0 offen offset:36 sc1")
st(3)
end_wave()

A("L_mlp:")
srd(rA, pWG, 512 * 2752)
srd(rB, pWU, 512 * 2752)
srd(rC, pWD, 1376 * 1024)
A(f"s_lshl_b32 s{sT0}, s3, 7\nv_lshrrev_b32 v1, 1, v0\nv_add_u32 v1, s{sT0}, v1\nv_mul_u32_u24 v1, 2752, v1")
A(f"v_and_b32 v2, 1, v0\nv_lshl_add_u32 v1, v2, 4, v1\ns_lshl_b32 s{sT0}, s{sR}, {6 if opt.get('m43') else 5}\nv_add_u32 v1, s{sT0}, v1")
A(f"s_lshl_b32 s{sIMG}, s3, 14\ns_add_u32 s{sIMG}, s{sIMG}, {WIMG}")
A(f"v_lshrrev_b32 v3, 4, v0\nv_lshlrev_b32 v3, 3, v3\nv_bfe_u32 v4, v0, 2, 2\nv_add_u32 v3, v3, v4\nv_lshlrev_b32 v3, 5, v3\nv_and_b32 v2, 3, v0\nv_lshl_add_u32 v3, v2, 3, v3\nv_add_u32 v3, s{sIMG}, v3")
A(f"s_lshl_b32 s{sT0}, s3, 9\ns_add_u32 s{sT0}, s{sT0}, {ZS}\nv_lshrrev_b32 v2, 5, v0\nv_and_b32 v5, 31, v0\nv_lshlrev_b32 v4, 11, v2\nv_lshl_add_u32 v4, v5, 4, v4\nv_add_u32 v4, s{sT0}, v4")
A(f"v_lshlrev_b32 v5, 3, v5\nv_lshl_add_u32 v5, v2, 2, v5\ns_lshl_b32 s{sT0}, s3, 8\nv_add_u32 v5, s{sT0}, v5\nv_add_u32 v6, {SCR}, v5")
A(f"s_add_u32 s{sT0}, s{sT0}, {SCR}\nv_lshrrev_b32 v7, 4, v0\nv_lshl_add_u32 v7, v7, 4, s{sT0}")
A("v_lshlrev_b32 v9, 2, v0")
A(f"s_lshl_b32 s{sT0}, s{sR}, {15 if opt.get('m43') else 14}\ns_lshl_b32 s{sT1}, s3, 8\ns_add_u32 s{sT0}, s{sT0}, s{sT1}")
A(f"v_lshrrev_b32 v20, 4, v0\nv_lshlrev_b32 v20, 10, v20\nv_and_b32 v19, 15, v0\nv_lshl_add_u32 v20, v19, 4, v20\nv_add_u32 v20, s{sT0}, v20")
A(f"s_add_u32 s{sT0}, s{sIMG}, 8192\nv_add_u32 v19, s{sT0}, v9")
A(f"s_lshl_b32 s{sT0}, s{sR}, 11\ns_lshl_b32 s{sT1}, s3, 9\ns_add_u32 s{sT0}, s{sT0}, s{sT1}\ns_add_u32 s{sT0}, s{sT0}, {PS}\nv_lshl_add_u32 v21, v0, 3, s{sT0}")
A(f"v_and_b32 v22, 15, v0\nv_lshlrev_b32 v22, 3, v22\ns_lshl_b32 s{sT0}, s3, 7\ns_add_u32 s{sT0}, s{sT0}, {ZP}\nv_add_u32 v25, s{sT0}, v22")
A(f"v_lshrrev_b32 v23, 5, v0\nv_lshlrev_b32 v23, 2, v23\nv_add_u32 v23, {SQ}, v23\nv_mov_b32 v24, {SQ}")
for i in range(4):
    A(f"v_mov_b32 v{116+i}, 0x3f803f80")
A(f"s_mov_b32 s{sM1}, 0x05040100\ns_mov_b32 s{sM1+1}, 0x07060302")


NPRE = 4 - opt["npost"]


def gu_loads(ts):
    for t in ts:
        A(f"s_add_u32 m0, s{sIMG}, {t*1024}\ns_mov_b32 s{sT1}, {t*32*2752}")
        A(f"buffer_load_dwordx4 v1, {R(rA)}, s{sT1} offen{fl('gufl')} lds")
        A(f"s_add_u32 m0, s{sIMG}, {4096+t*1024}")
        A(f"buffer_load_dwordx4 v1, {R(rB)}, s{sT1} offen{fl('gufl')} lds")


def wd_loads():
    for t in range(4):
        A(f"s_add_u32 m0, s{sIMG}, {8192+t*1024}\ns_nop 0")
        A(f"buffer_load_dwordx4 v20, {R(rC)}, s{sOFF+t} offen{fl('wdfl')} lds")
        if opt.get("m43"):
            A(f"s_add_u32 s{sT1}, s{sOFF+t}, 16384\nbuffer_load_dwordx4 v20, {R(rC)}, s{sT1} offen{fl('wdfl')} lds")


def wd_prep():
    for r in range(0, 16, 2):
        A(f"ds_read2st64_b32 {V(120+r,2)}, v19 offset0:{r} offset1:{r+1}")
    A("s_waitcnt lgkmcnt(0)")
    for i in range(8):
        A(f"v_perm_b32 v{136+i}, v{121+2*i}, v{120+2*i}, s{sM1}\nv_perm_b32 v{144+i}, v{121+2*i}, v{120+2*i}, s{sM1+1}")


def gu_prep(kbs, mid=None):
    if not len(kbs):
        return
    for kb in kbs:
        for tl in range(2):
            for hf in range(2):
                A(f"ds_read_b64_tr_b16 {V(40+(kb*2+tl)*4+2*hf,2)}, v3 offset:{kb*1024+hf*128+tl*4096}")
    if mid:
        mid()
    A("s_waitcnt lgkmcnt(0)")
    for kb in kbs:
        for tl in range(2):
            c = "0" if kb == 0 else V(108 + 4 * tl, 4)
            A(f"v_mfma_f32_16x16x32_bf16 {V(108+4*tl,4)}, v[116:119], {V(40+(kb*2+tl)*4,4)}, {c}")


def colsum_out():
    A("s_mov_b64 exec, 0xffff")
    A(f"ds_add_f32 v22, v108 offset:{CS}\nds_add_f32 v22, v112 offset:{CS+4}")
    A("s_mov_b64 exec, -1")


def m_loads():
    if opt["ptouch"]:
        A(f"buffer_load_dword v28, v21, {R(rWS)}, 0 offen")
    A(f"buffer_load_dword v26, v5, {R(rD)}, 0 offen")
    gu_loads(range(NPRE))
    if not opt["wdpost"]:
        wd_loads()


if opt["gpf"] == 2:
    share_setup()
    A(f"v_min_u32 v155, {opt['gneed']-1}, v0\nv_lshl_add_u32 v155, v155, 2, s{sT0}")
trigger(opt["trigm"], m_loads)
st(5)
A("s_waitcnt vmcnt(0)")
gu_prep(range(NPRE), None if opt["wdpost"] else wd_prep)
if NPRE == 4:
    colsum_out()
A(f"v_lshlrev_b32 v27, 16, v26\nv_and_b32 v26, s{sHI}, v26")
A(f"v_mov_b32 v30, 0\nv_mov_b32 v31, 0\nv_mov_b32 v29, {f32(1/512)}")
spin(C5, 1, 10, f"ds_read_b32 v{vT}, v{vL} offset:{TAG-MX}")
st(2)
if opt["gpf"] == 2:
    A("s_cmp_eq_u32 s3, 0\ns_cbranch_scc0 L_m_noshare")
    share_loads()
    A("L_m_noshare:")
    A(f"""s_mov_b32 s{sCNT}, {opt['gtry']}
L_m_wait:
buffer_load_dword v156, v155, {R(rWS)}, 0 offen sc1
s_waitcnt vmcnt(0)
v_bitop3_b32 v156, v156, v{vT}, s{sMASK} bitop3:0x28
v_cmp_ne_u32 vcc, 0, v156
s_cbranch_vccz L_m_go
s_sub_u32 s{sCNT}, s{sCNT}, 1
s_cbranch_scc1 L_m_go
s_sleep 2
s_branch L_m_wait
L_m_go:""")
if opt["wdelay"]:
    A(f"s_sleep {opt['wdelay']}")
gu_loads(range(NPRE, 4))
if opt["wdpost"]:
    wd_loads()
if opt["mwait"]:
    A("s_waitcnt vmcnt(0)")
    gu_prep(range(NPRE, 4), wd_prep if opt["wdpost"] else None)
    colsum_out()
    st(1)


def m_poll():
    for t in range(4):
        A(f"buffer_load_dwordx4 {V(72+4*t,4)}, v4, {R(rWS)}, s{sOFF+t} offen sc1")


def m_post():
    if opt["mwait"]:
        return
    if NPRE < 4 or opt["wdpost"]:
        A("s_waitcnt vmcnt(4)")
    if NPRE < 4:
        gu_prep(range(NPRE, 4), wd_prep if opt["wdpost"] else None)
        colsum_out()
    elif opt["wdpost"]:
        wd_prep()
    st(1)


if opt["p3"] & 2:
    poll3([(f"buffer_load_dwordx4 {V(72+4*t,4)}, v4, {R(rWS)}, s{sOFF+t} offen sc1", [72 + 4 * t]) for t in range(4)], 10, m_post)
elif opt["p2"] & 2:
    poll2([(f"buffer_load_dwordx4 {V(72+4*t,4)}, v4, {R(rWS)}, s{sOFF+t} offen sc1", [72 + 4 * t], None) for t in range(4)], 10, m_post, depth=opt["dm"])
else:
    poll(m_poll, [72, 76, 80, 84], 10, m_post, sleep=opt["msl"])
if STAMPS:
    A(f"s_sub_u32 s{sFAST}, {opt['spin']*4}, s{sCNT}")
st(6)
for t in range(1, 4):
    for i in (0, 2):
        A(f"v_pk_add_f32 {V(72+i,2)}, {V(72+i,2)}, {V(72+4*t+i,2)}")
A("v_permlane32_swap_b32 v72, v74\nv_permlane32_swap_b32 v73, v75")
A("""v_add_f32 v72, v72, v74
v_add_f32 v73, v73, v75
v_add_f32 v72, v72, v27
v_add_f32 v73, v73, v26
v_cvt_pk_bf16_f32 v72, v72, v73
ds_write_b32 v6, v72""")
for kb in range(4):
    A(f"ds_read_b128 {V(92+4*kb,4)}, v7 offset:{64*kb}")
A(f"""v_lshlrev_b32 v73, 16, v72
v_and_b32 v72, s{sHI}, v72
v_add_f32 v74, v72, v73
v_mul_f32 v75, v72, v72
v_fmac_f32 v75, v73, v73""")
A("v_permlane32_swap_b32 v74, v75\nv_add_f32 v74, v74, v75")
rr = [8, 4, 2, 1]
for kb in range(4):
    A(f"s_waitcnt lgkmcnt({3-kb})")
    for tl in range(2):
        c = "0" if kb == 0 else V(108 + 4 * tl, 4)
        A(f"v_mfma_f32_16x16x32_bf16 {V(108+4*tl,4)}, {V(92+4*kb,4)}, {V(40+(kb*2+tl)*4,4)}, {c}")
    A(f"v_add_f32_dpp v74, v74, v74 row_ror:{rr[kb]} {DPP}")
A("s_mov_b32 exec_lo, 0x00010001\ns_mov_b32 exec_hi, 0x00010001")
A("ds_add_f32 v23, v74")
A("s_mov_b64 exec, 0xffff")
A("ds_write2_b32 v25, v108, v112 offset0:0 offset1:1")
A("s_mov_b64 exec, -1")
A("s_waitcnt lgkmcnt(0)\ns_barrier")
A(f"ds_read_b64 v[16:17], v24\nds_read_b64 v[14:15], v22 offset:{CS}")
for w in range(4):
    A(f"ds_read_b64 {V(12 if w == 0 else 92+2*w,2)}, v22 offset:{ZP+128*w}")
A(f"""s_waitcnt lgkmcnt(5)
v_mul_f32 v16, v16, v29
v_fmaak_f32 v17, v17, v29, {f32(1e-5)}
v_fma_f32 v17, -v16, v16, v17
v_max_f32 v17, {f32(1e-5)}, v17
v_rsq_f32 v17, v17
s_waitcnt lgkmcnt(0)
v_pk_add_f32 v[12:13], v[12:13], v[94:95]
v_pk_add_f32 v[96:97], v[96:97], v[98:99]
v_pk_add_f32 v[12:13], v[12:13], v[96:97]
v_mul_f32 v18, {f32(-1.4426950408889634)}, v17
v_fma_f32 v12, -v16, v14, v12
v_fma_f32 v13, -v16, v15, v13
v_mul_f32 v12, v12, v18
v_exp_f32 v12, v12
v_mul_f32 v13, v13, v17
v_add_f32 v12, 1.0, v12
v_rcp_f32 v12, v12
s_nop 0
v_mul_f32 v12, v12, v13
v_mov_b32_dpp v13, v12 quad_perm:[1,0,3,2] {DPP}
v_cvt_pk_bf16_f32 v12, v12, v13""")
for i in range(8):
    A(f"v_dot2c_f32_bf16_dpp v30, v12, v{136+i} row_newbcast:{2*i} {DPP}")
    A(f"v_dot2c_f32_bf16_dpp v31, v12, v{144+i} row_newbcast:{2*i} {DPP}")
tag([30, 31])
A(f"buffer_store_dwordx2 v[30:31], v21, {R(rWS)}, 0 offen sc1")
st(7)
end_wave()

if STAMPS:
    A("L_stamps:")
    A("s_mov_b64 exec, 1")
    A("s_waitcnt lgkmcnt(0)\ns_memrealtime s[4:5]\ns_waitcnt lgkmcnt(0)\ns_memtime s[6:7]")
    A(f"s_mul_i32 s{sT0}, s2, 12\ns_add_u32 s{sT0}, s{sT0}, s3\ns_lshl_b32 s{sT0}, s{sT0}, 6\ns_add_u32 s{sT0}, s{sT0}, {STAMP}")
    A(f"v_mov_b32 v1, s{sT0}\ns_waitcnt lgkmcnt(0)")
    for k in range(8):
        A(f"v_mov_b32 v{4+k}, s{sST+2*k}")
    A("v_mov_b32 v12, s100\nv_mov_b32 v13, s4\nv_mov_b32 v14, s6\nv_mov_b32 v15, s{0}".format(sFAST))
    A(f"v_mov_b32 v16, s{sROLE}\nv_mov_b32 v17, s{sNKV}\nbuffer_store_dwordx2 v[16:17], v1, {R(rWS)}, 0 offen offset:48")
    A(f"buffer_store_dwordx4 v[4:7], v1, {R(rWS)}, 0 offen\nbuffer_store_dwordx4 v[8:11], v1, {R(rWS)}, 0 offen offset:16\nbuffer_store_dwordx4 v[12:15], v1, {R(rWS)}, 0 offen offset:32")
A("L_exit:")
A("s_endpgm")

body, problems = fix_hazards(L)
for p in problems:
    print("HAZARD:", p, file=sys.stderr)
for line in body:
    out.append(line if line.endswith(":") else "    " + line)
if lst:
    out.append(""".globl noop_kernel
.p2align 8
.type noop_kernel,@function
noop_kernel:
    s_endpgm
.section .rodata,"a"
.p2align 6
.amdhsa_kernel noop_kernel
  .amdhsa_next_free_vgpr 8
  .amdhsa_next_free_sgpr 16
  .amdhsa_accum_offset 8
  .amdhsa_group_segment_fixed_size 0
  .amdhsa_kernarg_size 96
  .amdhsa_user_sgpr_count 2
  .amdhsa_user_sgpr_kernarg_segment_ptr 1
  .amdhsa_system_sgpr_workgroup_id_x 1
.end_amdhsa_kernel""")
out.append(".p2align 2\n.type L_table,@object\nL_table:")
for k in range(0, 256, 8):
    out.append("    .short " + ", ".join(hex(v) for v in TABLE[k:k+8]))
out.append(".size L_table, 512\nL_last:")
out.append(f""".section .rodata,"a"
.p2align 6
.amdhsa_kernel {NAME}_kernel
  .amdhsa_next_free_vgpr 168
  .amdhsa_next_free_sgpr 102
  .amdhsa_accum_offset 168
  .amdhsa_group_segment_fixed_size 0
  .amdhsa_kernarg_size 96
  .amdhsa_user_sgpr_count 2
  .amdhsa_user_sgpr_kernarg_segment_ptr 1
  .amdhsa_system_sgpr_workgroup_id_x 1
  .amdhsa_float_denorm_mode_32 3
.end_amdhsa_kernel""")
open(sys.argv[1], "w").write("\n".join(out) + "\n")
```

```python
import os, sys, struct
from asmlib import fix_hazards

NAME = "sequential_preLN__mha_block_cached__glu_gated_glu__decode"
opt = dict(stamps=0, nv1=4, fdelay=25, f0delay=20, spin=200000, loc="probe", sp3="x21100444", sp2="x11004433",
           spl="x10104433", nsl=12)
for a in sys.argv[2:]:
    k, v = a.split("=")
    opt[k] = v if not v.lstrip("-").isdigit() else int(v)
STAMPS = opt["stamps"]
NV1 = opt["nv1"]
NE = 4
NT = " nt"


def f32(x):
    return "0x%08x" % struct.unpack("<I", struct.pack("<f", x))[0]


QS, OS, ST, XC, EPOCH, PROBE, ZS, PS, STAMP = 0x0, 0x20000, 0x40000, 0x41000, 0x42000, 0x44000, 0x48000, 0x50000, 0x80000
NMLP = 86
TAGMASK = 0x3ff
QL, MX, SQ, CS, ZP, SCR, OSL, WIMG = 0, 256, 272, 1024, 1536, 3072, 4096, 10240
CQ, C1, C5, C3, C4, FAST, TAG, LOC, ML = 280, 284, 288, 292, 296, 304, 308, 312, 384
LDS_BYTES = WIMG + 4 * 16384
pX, pK, pV, pWQ, pWO, pWG, pWU, pWD, pOUT, pDBG, pWS = 4, 6, 8, 10, 12, 16, 18, 20, 22, 24, 26
rA, rB, rWS, rC, rD = 28, 32, 36, 44, 48
sNKV, sROLE, sMASK, sN = 40, 41, 42, 43
sXG, sI, sSLOT, sR, sT0, sT1, sCNT, sFAST = 52, 53, 54, 55, 56, 57, 58, 59
sM1, sM0, sU, sIMG, sC2, sHI = 60, 62, 64, 65, 66, 67
sOFF = 68
sZO2, sZO3, sCUR, sTAB, sLOC, sT2, sT3, sT4 = 72, 73, 74, 75, 76, 77, 78, 79
sST = 84
vT, vONE, vL = 38, 39, 33
KR, VR = 40, 104
DPP = "row_mask:0xf bank_mask:0xf"

L = []
uid = [0]


def A(s):
    for line in s.split("\n"):
        line = line.strip()
        if line:
            L.append(line)


def C(s):
    for line in s.strip().split("\n"):
        L.append("; " + line.strip())


def srd(r, p, size):
    A(f"s_mov_b32 s{r}, s{p}\ns_mov_b32 s{r+1}, s{p+1}\ns_mov_b32 s{r+2}, {hex(size)}\ns_mov_b32 s{r+3}, 0x20000")


def R(r):
    return f"s[{r}:{r+3}]"


def V(a, n):
    return f"v[{a}:{a+n-1}]"


def st(k):
    if STAMPS:
        A(f"s_memtime s[{sST+2*k}:{sST+2*k+1}]")


def end_wave():
    A("s_branch L_stamps" if STAMPS else "s_endpgm")


def row_allreduce(op, a):
    for n in (8, 4, 2, 1):
        A(f"{op}_dpp v{a}, v{a}, v{a} row_ror:{n} {DPP}")


def wave_allreduce(op, a, t, first=None):
    if first is None:
        row_allreduce(op, a)
    else:
        A(f"{op}_dpp v{a}, v{first}, v{first} row_ror:8 {DPP}")
        for n in (4, 2, 1):
            A(f"{op}_dpp v{a}, v{a}, v{a} row_ror:{n} {DPP}")
    for sw in ("v_permlane16_swap_b32", "v_permlane32_swap_b32"):
        A(f"v_mov_b32 v{t}, v{a}\n{sw} v{a}, v{t}\n{op} v{a}, v{a}, v{t}")


def tag(regs):
    for r in regs:
        A(f"v_bfi_b32 v{r}, s{sMASK}, v{vT}, v{r}")


def poll(loads, regs, tmp, masked=None):
    uid[0] += 1
    u = uid[0]
    loads()
    A(f"s_mov_b32 s{sCNT}, {opt['spin']}")
    A(f"L_poll{u}:")
    A("s_waitcnt vmcnt(0)")
    rs = list(regs)
    for r in rs:
        A(f"v_xor_b32 v{r}, v{r}, v{vT}")
    if masked:
        A(f"s_mov_b64 exec, {hex(masked[0])}")
        for r in masked[1]:
            A(f"v_xor_b32 v{r}, v{r}, v{vT}")
        A("s_mov_b64 exec, -1")
        rs += masked[1]
    acc, rs = rs[0], rs[1:]
    while len(rs) >= 2:
        A(f"v_or3_b32 v{tmp}, v{acc}, v{rs[0]}, v{rs[1]}")
        acc, rs = tmp, rs[2:]
    if rs:
        A(f"v_bitop3_b32 v{tmp}, v{acc}, v{rs[0]}, s{sMASK} bitop3:0xa8")
    else:
        A(f"v_and_b32 v{tmp}, s{sMASK}, v{acc}")
    A(f"v_cmp_ne_u32 vcc, 0, v{tmp}\ns_cbranch_vccz L_ok{u}")
    A(f"s_sub_u32 s{sCNT}, s{sCNT}, 1\ns_cbranch_scc1 L_ok{u}")
    loads()
    A(f"s_branch L_poll{u}")
    A(f"L_ok{u}:")


def poll4(items, tmp):
    uid[0] += 1
    u = uid[0]
    for ld, _ in items:
        A(ld)
    A(f"s_mov_b32 s{sCNT}, {opt['spin']}")
    A(f"L_poll{u}:")
    A("s_waitcnt vmcnt(0)")
    for k, (_, regs) in enumerate(items):
        A(f"v_xor_b32 v{tmp+1+k}, v{regs[0]}, v{vT}")
        for r in regs[1:]:
            A(f"v_bitop3_b32 v{tmp+1+k}, v{tmp+1+k}, v{r}, v{vT} bitop3:0xf6")
    A(f"v_or3_b32 v{tmp}, v{tmp+1}, v{tmp+2}, v{tmp+3}\nv_bitop3_b32 v{tmp}, v{tmp}, v{tmp+4}, s{sMASK} bitop3:0xa8")
    A(f"v_cmp_ne_u32 vcc, 0, v{tmp}\ns_cbranch_vccz L_ok{u}")
    A(f"s_sub_u32 s{sCNT}, s{sCNT}, 1\ns_cbranch_scc1 L_ok{u}")
    for k, (ld, _) in enumerate(items):
        A(f"v_and_b32 v{tmp}, s{sMASK}, v{tmp+1+k}\nv_cmp_ne_u32 vcc, 0, v{tmp}\ns_cbranch_vccz L_skip{u}_{k}")
        A(ld)
        A(f"L_skip{u}_{k}:")
    A(f"s_branch L_poll{u}")
    A(f"L_ok{u}:")
    for _, regs in items:
        for r in regs:
            A(f"v_xor_b32 v{r}, v{r}, v{vT}")


def spin(off, n, tmp, extra=None, sleep=1):
    uid[0] += 1
    u = uid[0]
    A(f"L_spin{u}:")
    A(f"ds_read_b32 v{tmp}, v{vL} offset:{off-MX}")
    if extra:
        A(extra)
    A("s_waitcnt lgkmcnt(0)")
    A(f"v_readfirstlane_b32 s{sT0}, v{tmp}")
    A(f"s_cmp_ge_u32 s{sT0}, {n}\ns_cbranch_scc1 L_spun{u}")
    A(f"s_sleep {sleep}\ns_branch L_spin{u}")
    A(f"L_spun{u}:")


def store_fs(instr):
    uid[0] += 1
    u = uid[0]
    A(f"s_cmp_eq_u32 s{sFAST}, 0\ns_cbranch_scc1 L_slow{u}")
    A(instr)
    A(f"s_branch L_sdone{u}\nL_slow{u}:")
    A(instr + " sc1")
    A(f"L_sdone{u}:")


digits = lambda s: [int(c) for c in str(s)[1:]]
TABLE, TAB = [], []
fg = 0
for xg in range(8):
    fr = 0
    for hl in range(4):
        nm = 3 if hl < (3 if xg < 6 else 2) else 2
        ne = digits(opt["spl"] if hl == 3 else opt["sp3"] if nm == 3 else opt["sp2"])
        assert sum(ne) == 16
        TAB.append(ne)
        for sp in range(8):
            if sp < 2:
                role, grp = 0, hl * 2 + sp
                grp ^= 4 if grp & 3 == 3 else 0
            elif sp < 2 + nm:
                role, grp = 1, fg
                fg += 1
            else:
                role, grp = 2, fr
                fr += 1
            assert role == 2 or ne[sp] <= 2
            TABLE.append(role | grp << 2 | ne[sp] << 9 | sum(ne[:sp]) % 16 << 12)
assert fg == NMLP

hdr = open(os.path.join(os.path.dirname(os.path.abspath(__file__)), "hdr.txt")).read().split("\n")
out = [l for l in hdr if l.startswith(";") and "@launch" not in l and "Override" not in l and "grid=ceil" not in l]
out.append(f"; @launch grid=(256,1,1) block=(768,1,1) lds={LDS_BYTES}")
out.append(""";
;   wave 0      LayerNorm(x), one 64-row block of q = LN(x).wq, exchange of the 8 blocks of the head
; Stores are write-through (sc1) unless every reader was seen to run on this XCD (HW_REG_XCC_ID); reads bypass L1.""")
out.append('.amdgcn_target "amdgcn-amd-amdhsa--gfx950"')
out.append(".text")
out.append(f".globl {NAME}_kernel")
out.append(".p2align 8")
out.append(f".type {NAME}_kernel,@function")
out.append(f"{NAME}_kernel:")

C("---- prologue: arguments, code prefetch into L2, first K loads of waves 6..11")
A("L_start:")
A("s_load_dwordx16 s[4:19], s[0:1], 0\ns_load_dwordx8 s[20:27], s[0:1], 64")
A(f"s_lshr_b32 s{sT0}, s2, 8\ns_cbranch_scc1 L_exit")
A(f"s_getpc_b64 s[{rA}:{rA+1}]")
A("L_pc:")
A("v_lshlrev_b32 v2, 4, v0\nv_min_u32 v2, (L_last-L_pc-16)&0xfffffff0, v2")
A(f"global_load_dwordx4 v[164:167], v2, s[{rA}:{rA+1}]")
C("K/V are cut into units of 64 keys; waves 6..11 own the first six of the eight units at slot*8")
A(f"s_and_b32 s{sXG}, s2, 7\ns_lshl_b32 s{sT0}, s{sXG}, 8\ns_andn2_b32 s{sT1}, s2, 7\ns_add_u32 s{sSLOT}, s{sT0}, s{sT1}")
A(f"s_sub_u32 s{sT0}, s{sSLOT}, 6\ns_lshl_b32 s{sT0}, s{sT0}, 14")
A(f"v_lshrrev_b32 v1, 6, v0\nv_and_b32 v0, 63, v0\nv_readfirstlane_b32 s3, v1\nv_lshl_add_u32 v1, v1, 14, s{sT0}\nv_lshl_add_u32 v1, v0, 4, v1")
A("s_cmp_lt_u32 s3, 6\ns_cbranch_scc1 L_late\ns_waitcnt lgkmcnt(0)")
for i in range(NE):
    A(f"global_load_dwordx4 {V(KR+4*i,4)}, v1, s[{pK}:{pK+1}] offset:{1024*i}{NT}")
A("L_late:")
if STAMPS:
    for k in range(8):
        A(f"s_mov_b32 s{sST+2*k}, 0")
st(0)
if STAMPS or opt.get("diag"):
    A("s_memrealtime s[100:101]")
A(f"s_lshr_b32 s{sI}, s2, 3\ns_lshr_b32 s{sSLOT}, s{sSLOT}, 3")
A("v_lshlrev_b32 v8, 4, v0")
C("wave 0: x and its 64 rows of wq (lane group g takes rows 16g + t)")
A("s_cmp_lg_u32 s3, 0\ns_cbranch_scc1 L_not0")
A(f"s_and_b32 s{sT0}, s{sI}, 7\ns_lshl_b32 s{sT0}, s{sT0}, 6")
A(f"v_lshrrev_b32 v2, 4, v0\nv_lshl_add_u32 v2, v2, 4, s{sT0}\nv_lshlrev_b32 v3, 1, v2")
A(f"s_lshr_b32 s{sT0}, s{sSLOT}, 3\ns_lshl_b32 s{sT0}, s{sT0}, 8")
A(f"v_lshlrev_b32 v2, 13, v2\nv_and_b32 v9, 15, v0\nv_lshl_add_u32 v2, v9, 4, v2\nv_add_u32 v2, s{sT0}, v2")
A(f"s_movk_i32 s{sT0}, 0x2000\ns_waitcnt lgkmcnt(0)")
A(f"global_load_dwordx4 v[104:107], v8, s[{pX}:{pX+1}]")
A(f"global_load_dwordx4 v[12:15], v3, s[{pX}:{pX+1}]")
A(f"global_load_dwordx4 v[16:19], v3, s[{pX}:{pX+1}] offset:16")
for t in range(16):
    A(f"global_load_dwordx4 {V(40+4*t,4)}, v2, s[{pWQ}:{pWQ+1}]{NT}")
    if t < 15:
        A(f"v_add_u32 v2, s{sT0}, v2")
A("L_not0:")
A(f"s_and_b32 s{sT0}, s{sSLOT}, 0xfe\ns_lshl_b32 s{sT0}, s{sT0}, 1\ns_add_u32 s{sT0}, s{sT0}, L_table-L_pc\ns_load_dword s{sTAB}, s[{rA}:{rA+1}], s{sT0}")
C("workgroup 0, wave 2: this launch's number -> d_debug (4 copies) and back to d_ws")
A(f"s_lshl_b32 s{sT0}, s2, 4\ns_add_u32 s{sT0}, s{sT0}, s3\ns_cmp_eq_u32 s{sT0}, 2\ns_cbranch_scc0 L_notlead")
A(f"s_waitcnt lgkmcnt(0)\ns_load_dword s{sT0}, s[{pWS}:{pWS+1}], {hex(EPOCH)}")
A(f"v_mov_b32 v3, {EPOCH}\nv_lshlrev_b32 v4, 6, v0\ns_waitcnt lgkmcnt(0)")
A(f"s_add_u32 s{sT0}, s{sT0}, 0x0e3779b1\ns_and_b32 s{sT0}, s{sT0}, 0x0fffffff\ns_or_b32 s{sT1}, s{sT0}, 0x80000000")
A(f"v_mov_b32 v5, s{sT1}\nv_mov_b32 v6, s{sT0}\ns_mov_b64 exec, 15")
A(f"global_store_dword v4, v5, s[{pDBG}:{pDBG+1}] sc1")
A("s_mov_b64 exec, 1")
A(f"global_store_dword v3, v6, s[{pWS}:{pWS+1}] sc1")
A("s_mov_b64 exec, -1")
A("L_notlead:")
C("LDS: counters and accumulators = 0, running max = -inf; decode the work-table entry\n(role | group << 2 | spare units << 9 | first spare unit << 12); spare units go to waves 5, 4, 3, 2")
A("v_mov_b32 v4, 0\nv_mov_b32 v5, 0\nv_mov_b32 v6, 0\nv_mov_b32 v7, 0")
A(f"s_mov_b32 s{sT0}, 0xff800000\nv_writelane_b32 v4, s{sT0}, 0")
A(f"ds_write_b128 v8, v[4:7] offset:{MX}")
A(f"s_lshl_b32 s{sT0}, s3, 9\nv_lshl_add_u32 v9, v0, 3, s{sT0}\nds_write_b64 v9, v[6:7] offset:{OSL}")
A(f"""s_waitcnt lgkmcnt(0)
s_bitcmp1_b32 s{sI}, 0
s_cselect_b32 s{sT2}, 16, 0
s_lshr_b32 s{sT2}, s{sTAB}, s{sT2}
s_and_b32 s{sROLE}, s{sT2}, 3
s_bfe_u32 s{sR}, s{sT2}, 0x70002
s_bfe_u32 s{sT4}, s{sT2}, 0x30009
s_bfe_u32 s{sT3}, s{sT2}, 0x4000c
s_add_u32 s{sNKV}, s{sT4}, 6
s_add_u32 s{sU}, s3, s{sT4}
s_sub_u32 s{sU}, s{sU}, 6
s_cmp_ge_u32 s3, 6
s_cbranch_scc1 L_own_unit
s_add_u32 s{sT3}, s{sT3}, 5
s_sub_u32 s{sT3}, s{sT3}, s3
s_lshr_b32 s{sT2}, s{sT3}, 1
s_mul_i32 s{sT2}, s{sT2}, 6
s_add_u32 s{sT2}, s{sT2}, s{sT3}
s_and_b32 s{sT3}, s{sSLOT}, 0xf8
s_lshl_b32 s{sT3}, s{sT3}, 3
s_add_u32 s{sT2}, s{sT2}, s{sT3}
s_add_u32 s{sT2}, s{sT2}, 6
s_lshl_b32 s{sT2}, s{sT2}, 14
v_add_u32 v1, s{sT2}, v8
L_own_unit:""")
A(f"s_mov_b32 s{sHI}, 0xffff0000\ns_mov_b32 s{sMASK}, {TAGMASK}")
A(f"v_mov_b32 v{vL}, {MX}\nv_mov_b32 v{vONE}, 1")
srd(rA, pK, 0x2000000)
srd(rB, pV, 0x2000000)
srd(rWS, pWS, 0x10000000)
st(6)
A("s_barrier")
A(f"s_cmp_lt_i32 s{sU}, 0\ns_cbranch_scc1 L_helper")


def kvload(base, i, r):
    A(f"buffer_load_dwordx4 {V(base+4*i,4)}, v1, {R(r)}, s{sCUR} offen{NT}")
    A(f"s_addk_i32 s{sCUR}, 0x400" if i < 15 else f"s_mov_b32 s{sCUR}, 0")


C(f"---- K/V waves: 16 K loads, {NV1} V loads, then (once q is in LDS) scores, softmax, the other V loads, p.V")
A(f"s_mov_b32 s{sCUR}, {NE*1024}")
A(f"s_cmp_ge_u32 s3, 6\ns_cbranch_scc1 L_k_rest\ns_mov_b32 s{sCUR}, 0")
for i in range(NE):
    kvload(KR, i, rA)
A("L_k_rest:")
for i in range(NE, 16):
    kvload(KR, i, rA)
for i in range(NV1):
    kvload(VR, i, rB)
st(1)
C("byte selectors that turn a (hi, lo) bf16 pair into the p (x) I operand; LDS and hand-off addresses")
A("""v_bfe_u32 v10, v0, 3, 1
v_mul_u32_u24 v10, 0x202, v10
v_add_u32 v10, 0x100, v10
v_and_b32 v11, 1, v0
v_lshlrev_b32 v11, 4, v11
v_lshlrev_b32 v10, v11, v10
v_mov_b32 v12, 0x0c0c0000
v_lshrrev_b32 v12, v11, v12
v_or_b32 v10, v10, v12
v_bfe_u32 v11, v0, 1, 2
v_mov_b32 v12, 0x0c0c0c0c""")
for i in range(4):
    A(f"v_cmp_eq_u32 vcc, {i}, v11\nv_cndmask_b32 v{6+i}, v12, v10, vcc")
A(f"s_mov_b32 s{sM1}, 0xcccccccc\ns_mov_b32 s{sM1+1}, 0xcccccccc\ns_mov_b32 s{sM0}, 0xaaaaaaaa\ns_mov_b32 s{sM0+1}, 0xaaaaaaaa")
A(f"s_mov_b32 s{sC2}, {f32(128 ** -0.5 * 1.4426950408889634)}")
A("v_and_b32 v32, 15, v0\nv_lshlrev_b32 v32, 4, v32")
A(f"v_lshrrev_b32 v34, 4, v0\nv_and_b32 v35, 7, v0\nv_lshl_add_u32 v34, v34, 3, v35\ns_lshl_b32 s{sT0}, s3, 9\nv_lshl_add_u32 v34, v34, 4, s{sT0}")
A("v_lshlrev_b32 v35, 3, v0")
A(f"s_lshl_b32 s{sT0}, s{sSLOT}, 9\ns_add_u32 s{sT0}, s{sT0}, {OS}\nv_lshl_add_u32 v36, v0, 3, s{sT0}")
A(f"s_lshl_b32 s{sT0}, s{sSLOT}, 4\ns_add_u32 s{sT0}, s{sT0}, {ST}\nv_mov_b32 v37, s{sT0}")
A(f"s_sub_u32 s{sN}, s{sNKV}, 1")
A(f"v_lshrrev_b32 v26, 1, v32\nv_add_u32 v26, {ML}, v26\ns_lshl_b32 s{sT0}, s3, 3\ns_add_u32 s{sT0}, s{sT0}, {ML}\nv_mov_b32 v27, s{sT0}")
spin(CQ, 1, 10, f"ds_read_b128 v[2:5], v32 offset:{QL}\nds_read_b64 v[28:29], v{vL} offset:{FAST-MX}", sleep=2)
st(2)
A(f"v_readfirstlane_b32 s{sFAST}, v28\nv_mov_b32 v{vT}, v29")
A(f"s_waitcnt vmcnt({NV1})")
C("scores: lane (g, c) holds 8 dims of key 4i + g of load i; reduce-scatter leaves key (load c, row g) in lane (g, c)")
for j in range(4):
    for i in range(16):
        c = "0" if j == 0 else f"v{10+i}"
        A(f"v_dot2_f32_bf16 v{10+i}, v{KR+4*i+j}, v{2+j}, {c}")
for i in range(8):
    A(f"v_add_f32_dpp v{10+i}, v{10+i}, v{10+i} row_ror:8 row_mask:0xf bank_mask:0x3")
    A(f"v_add_f32_dpp v{10+i}, v{18+i}, v{18+i} row_ror:8 row_mask:0xf bank_mask:0xc")
for i in range(4):
    A(f"v_add_f32_dpp v{10+i}, v{10+i}, v{10+i} row_ror:12 row_mask:0xf bank_mask:0x5")
    A(f"v_add_f32_dpp v{10+i}, v{14+i}, v{14+i} row_ror:4 row_mask:0xf bank_mask:0xa")
for i in range(4):
    A(f"v_add_f32_dpp v{10+i}, v{10+i}, v{10+i} quad_perm:[2,3,0,1] {DPP}")
for i in range(2):
    A(f"v_cndmask_b32 v{10+i}, v{10+i}, v{12+i}, s[{sM1}:{sM1+1}]")
for i in range(2):
    A(f"v_add_f32_dpp v{10+i}, v{10+i}, v{10+i} quad_perm:[1,0,3,2] {DPP}")
A(f"v_cndmask_b32 v10, v10, v11, s[{sM0}:{sM0+1}]")
C("p = 2^(score - wave max), scores in log2 units; bf16 hi and lo parts; wave sum")
A(f"v_mul_f32 v10, s{sC2}, v10")
wave_allreduce("v_max_f32", 11, 12, first=10)
A("v_sub_f32 v10, v10, v11\nv_exp_f32 v10, v10")
A("v_cvt_pk_bf16_f32 v13, v10, v10\nv_lshlrev_b32 v13, 16, v13\nv_sub_f32 v13, v10, v13\nv_cvt_pk_bf16_f32 v13, v10, v13")
wave_allreduce("v_add_f32", 10, 12)
C("(max, sum) of this wave -> LDS; the wave that arrives last publishes the workgroup's pair")
A("v_mov_b32 v20, v11\nv_mov_b32 v21, v10\ns_mov_b64 exec, 1")
A(f"ds_write_b64 v27, v[20:21]\nds_max_f32 v{vL}, v11\nds_add_rtn_u32 v12, v{vL}, v{vONE} offset:{C1-MX}")
A("s_mov_b64 exec, -1")
A(f"ds_read_b64 v[22:23], v26\nds_read_b32 v20, v{vL}\ns_waitcnt lgkmcnt(0)")
A(f"v_readfirstlane_b32 s{sT0}, v12")
A(f"s_cmp_lg_u32 s{sT0}, s{sN}\ns_cbranch_scc1 L_kv_nost")
A(f"v_bfi_b32 v20, s{sMASK}, 0, v20")
A("v_sub_f32 v22, v22, v20\nv_min_f32 v22, 0x42800000, v22\nv_exp_f32 v22, v22\nv_mul_f32 v21, v22, v23")
row_allreduce("v_add_f32", 21)
tag([20, 21])
A(f"v_mov_b32 v22, v{vT}\nv_mov_b32 v23, v{vT}\ns_mov_b64 exec, 1\ns_setprio 3")
store_fs(f"buffer_store_dwordx4 v[20:23], v37, {R(rWS)}, 0 offen")
A("s_setprio 0\ns_mov_b64 exec, -1")
st(7)
A("L_kv_nost:")
st(3)
for i in range(NV1, 16):
    kvload(VR, i, rB)
C("B operands: p (hi in columns 0-7, lo in 8-15) times identity, written over the dead K registers")
for t in range(16):
    A(f"v_mov_b32_dpp v{14+t%4}, v13 row_newbcast:{t} {DPP}")
    if t >= 1:
        for i in range(4):
            A(f"v_perm_b32 v{KR+4*(t-1)+i}, v{14+(t-1)%4}, v{14+(t-1)%4}, v{6+i}")
for i in range(4):
    A(f"v_perm_b32 v{KR+60+i}, v{14+15%4}, v{14+15%4}, v{6+i}")
spin(C1, f"s{sNKV}", 12, f"ds_read_b32 v19, v{vL}", sleep=2)
A(f"v_bfi_b32 v19, s{sMASK}, 0, v19\nv_sub_f32 v18, v11, v19\nv_exp_f32 v18, v18")
st(4)
for t in range(16):
    A(f"s_waitcnt vmcnt({15-t})")
    c = "0" if t == 0 else "v[28:31]"
    A(f"v_mfma_f32_16x16x32_bf16 v[28:31], {V(VR+4*t,4)}, {V(KR+4*t,4)}, {c}")
st(5)
C("hi + lo, scale to the workgroup max, own slot in LDS; the last wave sums the slots and publishes o")
for i in range(4):
    A(f"v_add_f32_dpp v{28+i}, v{28+i}, v{28+i} row_ror:8 {DPP}")
A("v_pk_mul_f32 v[28:29], v[28:29], v[18:19] op_sel_hi:[1,0]\nv_pk_mul_f32 v[30:31], v[30:31], v[18:19] op_sel_hi:[1,0]")
A("s_mov_b32 exec_lo, 0x00ff00ff\ns_mov_b32 exec_hi, 0x00ff00ff")
A(f"ds_write_b128 v34, v[28:31] offset:{OSL}")
A("s_mov_b64 exec, 1")
A(f"ds_add_rtn_u32 v12, v{vL}, v{vONE} offset:{C3-MX}")
A("s_mov_b64 exec, -1")
assert max(max(t) for t in TAB) == 4
P = lambda k: V(KR + 2 * k, 2)
for k in range(10):
    A(f"ds_read_b64 {P(k)}, v35 offset:{OSL+512*(2+k)}")
A("s_waitcnt lgkmcnt(6)")
A(f"v_readfirstlane_b32 s{sT0}, v12")
A(f"v_pk_add_f32 {P(0)}, {P(0)}, {P(1)}\nv_pk_add_f32 {P(2)}, {P(2)}, {P(3)}\ns_waitcnt lgkmcnt(2)")
A(f"v_pk_add_f32 {P(4)}, {P(4)}, {P(5)}\nv_pk_add_f32 {P(6)}, {P(6)}, {P(7)}\nv_pk_add_f32 {P(0)}, {P(0)}, {P(2)}\ns_waitcnt lgkmcnt(0)")
A(f"v_pk_add_f32 {P(8)}, {P(8)}, {P(9)}\nv_pk_add_f32 {P(4)}, {P(4)}, {P(6)}\nv_pk_add_f32 {P(0)}, {P(0)}, {P(8)}\nv_pk_add_f32 v[18:19], {P(0)}, {P(4)}")
tag([18])
A(f"s_cmp_lg_u32 s{sT0}, s{sN}\ns_cbranch_scc1 L_kv_end")
store_fs(f"buffer_store_dwordx2 v[18:19], v36, {R(rWS)}, 0 offen")
A(f"ds_write_b32 v{vL}, v{vONE} offset:{C5-MX}")
st(6)
A("L_kv_end:")
end_wave()

A("L_helper:")
for i in range(4):
    A(f"s_mov_b32 s{sOFF+i}, {i*4096}")
A(f"s_mov_b32 s{sZO2}, 16384\ns_mov_b32 s{sZO3}, 20480")
srd(rD, pX, 1024)
A("s_cmp_eq_u32 s3, 0\ns_cbranch_scc1 L_q")
A("s_cmp_ge_u32 s3, 4\ns_cbranch_scc1 L_idle")
A(f"s_lshl_b32 s{sT0}, s2, 4\ns_add_u32 s{sT0}, s{sT0}, s3\ns_cmp_eq_u32 s{sT0}, 2\ns_cbranch_scc0 L_roles")
C("workgroup 0, wave 2: which 8 KiB half is the near one?  Two uncached reads race; a wrong answer costs only time.\nd_debug[1] = 0x100 | near half << 3 | XCC id")
A(f"s_getreg_b32 s{sT2}, hwreg(HW_REG_XCC_ID)\ns_and_b32 s{sT2}, s{sT2}, 7\ns_or_b32 s{sT2}, s{sT2}, 0x100")
if opt["loc"] == "probe":
    A(f"""s_load_dword s{sT0}, s[{pWS}:{pWS+1}], {hex(PROBE)} glc
s_load_dword s{sT1}, s[{pWS}:{pWS+1}], {hex(PROBE+0x2000)} glc
s_waitcnt lgkmcnt(0)
s_mov_b32 s{sT3}, s{sT0}
s_not_b32 s{sT0}, s{sT0}
s_load_dword s{sT0}, s[{pWS}:{pWS+1}], {hex(PROBE)} glc
s_load_dword s{sT1}, s[{pWS}:{pWS+1}], {hex(PROBE+0x2000)} glc
s_waitcnt lgkmcnt(1)
s_cmp_eq_u32 s{sT0}, s{sT3}
s_cselect_b32 s{sT3}, 0, 8
s_waitcnt lgkmcnt(0)""")
else:
    A(f"s_bfe_u32 s{sT3}, s{sT2}, 0x10002\ns_xor_b32 s{sT3}, s{sT3}, {opt['loc']}\ns_lshl_b32 s{sT3}, s{sT3}, 3")
A(f"s_or_b32 s{sT2}, s{sT2}, s{sT3}\nv_mov_b32 v4, s{sT2}\nv_mov_b32 v3, 4\ns_mov_b64 exec, 1")
A(f"global_store_dword v3, v4, s[{pDBG}:{pDBG+1}] sc1")
A("s_mov_b64 exec, -1\ns_branch L_roles")
A("L_idle:")
end_wave()

C("---- wave 0: LayerNorm(x) with the reference's bf16 roundings, q block by MFMA (xn (x) I operand)")
A("L_q:")
A("""v_and_b32 v28, 1, v0
v_lshlrev_b32 v28, 4, v28
v_mov_b32 v29, 0x100
v_lshlrev_b32 v29, v28, v29
v_mov_b32 v30, 0x0c0c0000
v_lshrrev_b32 v30, v28, v30
v_or_b32 v29, v29, v30
v_bfe_u32 v28, v0, 1, 3
v_mov_b32 v30, 0x0c0c0c0c""")
for i in range(4):
    A(f"v_cmp_eq_u32 vcc, {i}, v28\nv_cndmask_b32 v{20+i}, v30, v29, vcc")
A("s_waitcnt vmcnt(16)")
for j in range(4):
    A(f"v_lshlrev_b32 v{112+2*j}, 16, v{104+j}\nv_and_b32 v{113+2*j}, s{sHI}, v{104+j}")
A("v_add_f32 v36, v112, v113\nv_add_f32 v37, v114, v115\nv_add_f32 v34, v116, v117\nv_add_f32 v35, v118, v119")
A("v_add_f32 v36, v36, v37\nv_add_f32 v34, v34, v35\nv_add_f32 v36, v36, v34")
wave_allreduce("v_add_f32", 36, 37)
A(f"v_mul_f32 v36, {f32(1/512)}, v36")
for j in range(8):
    A(f"v_sub_f32 v{112+j}, v{112+j}, v36")
A("v_mul_f32 v37, v112, v112")
for j in range(1, 8):
    A(f"v_fmac_f32 v37, v{112+j}, v{112+j}")
wave_allreduce("v_add_f32", 37, 34)
A(f"v_mul_f32 v37, {f32(1/512)}, v37")
A(f"""v_cvt_pk_bf16_f32 v34, v36, v37
v_lshlrev_b32 v36, 16, v34
v_and_b32 v37, s{sHI}, v34
v_add_f32 v37, {f32(1e-5)}, v37
v_cvt_pk_bf16_f32 v37, v37, v37
v_and_b32 v37, s{sHI}, v37
v_sqrt_f32 v37, v37
v_cvt_pk_bf16_f32 v37, v37, v37
v_and_b32 v37, s{sHI}, v37
v_rcp_f32 v37, v37""")
for j in range(8):
    r = 12 + j
    A(f"""v_lshlrev_b32 v28, 16, v{r}
v_and_b32 v29, s{sHI}, v{r}
v_sub_f32 v28, v28, v36
v_sub_f32 v29, v29, v36
v_cvt_pk_bf16_f32 v30, v28, v29
v_lshlrev_b32 v28, 16, v30
v_and_b32 v29, s{sHI}, v30
v_mul_f32 v28, v28, v37
v_mul_f32 v29, v29, v37
v_cvt_pk_bf16_f32 v{r}, v28, v29""")
A(f"s_load_dword s{sN}, s[{pDBG}:{pDBG+1}], 0")
A("s_waitcnt vmcnt(0)")
st(1)
for t in range(16):
    src = 12 + t // 2
    if t % 2:
        A(f"v_lshrrev_b32 v{src}, 16, v{src}")
    b = 104 + 4 * (t % 2)
    for i in range(4):
        A(f"v_perm_b32 v{b+i}, v{src}, v{src}, v{20+i}")
    c = "0" if t == 0 else "v[24:27]"
    A(f"v_mfma_f32_16x16x32_bf16 v[24:27], {V(40+4*t,4)}, {V(b,4)}, {c}")
C("launch number: one try per scalar-cache line, then vector loads (bounded)")
srd(rA, pDBG, 256)
for k in range(1, 4):
    A(f"s_waitcnt lgkmcnt(0)\ns_cmp_lg_u32 s{sN}, 0\ns_cbranch_scc1 L_num_ok")
    if k > 1:
        A(f"s_sleep {opt['nsl']}")
    A(f"s_load_dword s{sN}, s[{pDBG}:{pDBG+1}], {64*k}")
A(f"s_mov_b32 s{sCNT}, {opt['spin']}\nv_mov_b32 v3, 0\ns_waitcnt lgkmcnt(0)")
A(f"""L_num:
s_cmp_lg_u32 s{sN}, 0
s_cbranch_scc1 L_num_ok
s_sub_u32 s{sCNT}, s{sCNT}, 1
s_cbranch_scc1 L_num_ok
buffer_load_dword v4, v3, {R(rA)}, 0 offen sc1
s_waitcnt vmcnt(0)
v_readfirstlane_b32 s{sN}, v4
s_branch L_num
L_num_ok:""")
st(2)
A(f"s_and_b32 s{sT0}, s{sN}, s{sMASK}\nv_mov_b32 v{vT}, s{sT0}")
A(f"s_getreg_b32 s{sT2}, hwreg(HW_REG_XCC_ID)\ns_and_b32 s{sT2}, s{sT2}, 15\ns_lshl_b32 s{sN}, s{sN}, 4\ns_or_b32 s{sN}, s{sN}, s{sT2}")
C("publish the block (lane-native layout); Z workgroups also say which XCD they run on")
A(f"s_lshl_b32 s{sT0}, s{sSLOT}, 9")
A(f"v_lshrrev_b32 v2, 4, v0\nv_and_b32 v3, 7, v0\nv_lshl_add_u32 v2, v2, 3, v3\nv_lshl_add_u32 v2, v2, 4, s{sT0}")
assert QS == 0
tag([24])
A("s_mov_b32 exec_lo, 0x00ff00ff\ns_mov_b32 exec_hi, 0x00ff00ff")
A(f"buffer_store_dwordx4 v[24:27], v2, {R(rWS)}, 0 offen sc1")
A("s_mov_b64 exec, -1")
A(f"s_lshl_b32 s{sT1}, s{sXG}, 7\ns_add_u32 s{sT1}, s{sT1}, {XC}\nv_lshl_add_u32 v5, v3, 2, s{sT1}")
A(f"s_cmp_eq_u32 s{sROLE}, 0\ns_cbranch_scc0 L_noxc")
A(f"s_lshl_b32 s{sT0}, s{sR}, 2\ns_add_u32 s{sT0}, s{sT0}, s{sT1}\nv_mov_b32 v3, s{sT0}\nv_mov_b32 v4, s{sN}\ns_mov_b64 exec, 1")
A(f"buffer_store_dword v4, v3, {R(rWS)}, 0 offen sc1")
A("s_mov_b64 exec, -1")
A("L_noxc:")
A(f"s_and_b32 s{sT0}, s{sSLOT}, 0xf8\ns_lshl_b32 s{sT0}, s{sT0}, 9\nv_add_u32 v7, s{sT0}, v8")
A("v_bfe_u32 v2, v0, 3, 2\nv_lshlrev_b32 v2, 2, v2\nv_lshrrev_b32 v3, 5, v0\nv_add_u32 v2, v2, v3\nv_and_b32 v3, 7, v0\nv_lshl_add_u32 v2, v2, 3, v3\nv_lshlrev_b32 v2, 1, v2")
C("bring the lines this workgroup will publish o and (max, sum) in into L2 now: a store to an absent line\nmakes its first reader wait for a fill from memory")
A(f"s_lshl_b32 s{sT0}, s{sSLOT}, 9\ns_add_u32 s{sT0}, s{sT0}, {OS}\nv_lshl_add_u32 v9, v0, 3, s{sT0}")
A(f"buffer_load_dword v28, v9, {R(rWS)}, 0 offen")
A(f"s_lshl_b32 s{sT0}, s{sSLOT}, 4\ns_add_u32 s{sT0}, s{sT0}, {ST}\nv_mov_b32 v9, s{sT0}")
A(f"buffer_load_dword v29, v9, {R(rWS)}, 0 offen")
A("v_mov_b32 v3, 4\ns_waitcnt vmcnt(0)")
st(3)


def q_poll():
    for t in range(4):
        A(f"buffer_load_dwordx4 {V(112+4*t,4)}, v7, {R(rWS)}, 0 offen offset:{1024*t} sc1")
    A(f"buffer_load_dword v6, v5, {R(rWS)}, 0 offen sc1")
    A(f"buffer_load_dword v9, v3, {R(rA)}, 0 offen sc1")


poll(q_poll, [112, 116, 120, 124], 10)
A(f"""s_mov_b32 s{sCNT}, {opt['spin']}
L_loc:
v_readfirstlane_b32 s{sLOC}, v9
s_cmp_lg_u32 s{sLOC}, 0
s_cbranch_scc1 L_loc_ok
s_sub_u32 s{sCNT}, s{sCNT}, 1
s_cbranch_scc1 L_loc_ok
buffer_load_dword v9, v3, {R(rA)}, 0 offen sc1
s_waitcnt vmcnt(0)
s_branch L_loc
L_loc_ok:""")
C("bit 13 of the word = the half next to this XCD (the leader's, flipped if this XCD sits on the other die)")
A(f"s_xor_b32 s{sT0}, s{sT2}, s{sLOC}\ns_lshl_b32 s{sT0}, s{sT0}, 1\ns_xor_b32 s{sT0}, s{sT0}, s{sLOC}\ns_and_b32 s{sT0}, s{sT0}, 8\ns_lshl_b32 s{sT0}, s{sT0}, 10")
A(f"s_and_b32 s{sLOC}, s{sLOC}, 15\ns_or_b32 s{sLOC}, s{sLOC}, s{sT0}")
A(f"v_cmp_ne_u32 vcc, s{sN}, v6\ns_cmp_eq_u64 vcc, 0\ns_cselect_b32 s{sFAST}, 1, 0")
A(f"v_mov_b32 v4, s{sFAST}\nv_mov_b32 v5, v{vT}\nv_mov_b32 v6, s{sLOC}\nds_write_b64 v{vL}, v[4:5] offset:{FAST-MX}\nds_write_b32 v{vL}, v6 offset:{LOC-MX}")
for i in range(4):
    A(f"v_add_f32 v{112+i}, v{112+i}, v{116+i}\nv_add_f32 v{120+i}, v{120+i}, v{124+i}")
for i in range(4):
    A(f"v_add_f32 v{112+i}, v{112+i}, v{120+i}")
A("v_permlane32_swap_b32 v112, v113\nv_permlane32_swap_b32 v114, v115")
A("v_add_f32 v112, v112, v113\nv_add_f32 v114, v114, v115")
A("v_cvt_pk_bf16_f32 v112, v112, v114")
A(f"ds_write_b16 v2, v112 offset:{QL}\nds_write_b16_d16_hi v2, v112 offset:{QL+32}")
A(f"ds_write_b32 v{vL}, v{vONE} offset:{CQ-MX}")
st(4)
C("one CU fetches lines at 384 mod 1024 bytes markedly slower than any other stride-1024 set: every\nworkgroup pulls 16 of the group's 512 such wo lines into L2 for the Z workgroup that owns them")
srd(rA, pWO, 0x400000)
A(f"v_and_b32 v1, 15, v0\nv_lshlrev_b32 v1, 10, v1\ns_lshl_b32 s{sT0}, s{sSLOT}, 14\ns_add_u32 s{sT0}, s{sT0}, 384")
A(f"buffer_load_dword v162, v1, {R(rA)}, s{sT0} offen")


def chunk(dst, grp):
    A(f"s_and_b32 s{sT3}, s{sLOC}, 7\ns_add_u32 s{dst}, {grp}, s{sT3}\ns_xor_b32 s{sT3}, s{dst}, s{sT3}\ns_lshl_b32 s{sT3}, s{sT3}, 1\ns_xor_b32 s{sT3}, s{sT3}, s{sLOC}")
    A(f"s_and_b32 s{sT3}, s{sT3}, 8\ns_lshl_b32 s{sT3}, s{sT3}, 10\ns_and_b32 s{dst}, s{dst}, 3\ns_lshl_b32 s{dst}, s{dst}, 8\ns_or_b32 s{dst}, s{dst}, s{sT3}")


def f_setup(par):
    A(f"s_lshl_b32 s{sT0}, s{sXG}, 3\ns_add_u32 s{sT0}, s{sT0}, s{sR}\ns_lshl_b32 s{sT0}, s{sT0}, 3")
    if par:
        A(f"s_add_u32 s{sT0}, s{sT0}, 4")
    A(f"s_and_b32 s{sT2}, s{sLOC}, 0x2000\ns_add_u32 s{sT2}, s{sT2}, {ZS}")
    A(f"v_lshrrev_b32 v20, 4, v0\nv_add_u32 v20, s{sT0}, v20\nv_lshlrev_b32 v21, 1, v20\nv_lshl_add_u32 v20, v20, 2, s{sT2}")
    A(f"s_lshl_b32 s{sT0}, s{sT0}, 2\ns_and_b32 s{sT1}, s{sT0}, 0x780\ns_add_u32 s{sT1}, s{sT1}, s{sT2}")
    A(f"v_bfe_u32 v27, v0, 3, 2\nv_lshlrev_b32 v27, 11, v27\nv_lshrrev_b32 v22, 5, v0\nv_lshl_add_u32 v27, v22, 14, v27\nv_and_b32 v23, 7, v0\nv_lshl_add_u32 v27, v23, 4, v27\nv_add_u32 v27, s{sT1}, v27")
    chunk(sT1, f"s{sXG}")
    A(f"s_and_b32 s{sT0}, s{sT0}, 0xff\ns_add_u32 s{sT0}, s{sT0}, s{sT1}\ns_add_u32 s{sT0}, s{sT0}, {PS}")
    A(f"v_lshrrev_b32 v22, 3, v0\nv_lshlrev_b32 v22, 14, v22\nv_lshl_add_u32 v22, v23, 10, v22\nv_add_u32 v22, s{sT0}, v22\nv_add_u32 v23, {8*16384}, v22")
    srd(rB, pOUT, 1024)
    A(f"buffer_load_ushort v26, v21, {R(rD)}, 0 offen")


A("L_roles:")
A(f"s_cmp_eq_u32 s{sROLE}, 1\ns_cbranch_scc1 L_mlp")
A(f"s_cmp_eq_u32 s{sROLE}, 0\ns_cbranch_scc1 L_z")
C("wave 0 of the group's first 8 role-free workgroups takes the other half of the F stage")
A(f"s_cmp_eq_u32 s3, 0\ns_cbranch_scc0 L_idle\ns_cmp_lt_u32 s{sR}, 8\ns_cbranch_scc0 L_idle")
f_setup(1)
spin(C5, 1, 10, sleep=4)
C("z cannot be there before the group's o has been merged: stay off the memory pipeline until then")
A(f"s_sleep {opt['f0delay']}\ns_branch L_fin")

C("---- Z role: wave w owns head w of the group; wo tile -> LDS (DMA) -> transposed MFMA operands")
A("L_z:")
ZB, ZO, ZST, ZA, ZD = 40, 104, 120, 124, 140
srd(rA, pWO, 0x400000)
A(f"s_lshl_b32 s{sT0}, s{sXG}, 2\ns_add_u32 s{sT0}, s{sT0}, s3\ns_lshl_b32 s{sT0}, s{sT0}, 17\ns_lshl_b32 s{sT1}, s{sR}, 7\ns_add_u32 s{sT0}, s{sT0}, s{sT1}")
C("image row k holds wo row d(k): o is handed on in the order k = gq*32 + n*4 + i for d = gq*32 + i*8 + n")
A(f"v_bfe_u32 v1, v0, 3, 2\nv_lshrrev_b32 v2, 5, v0\nv_lshl_add_u32 v1, v1, 3, v2\nv_lshlrev_b32 v1, 10, v1\nv_and_b32 v2, 7, v0\nv_lshl_add_u32 v1, v2, 4, v1\nv_add_u32 v1, s{sT0}, v1")
A(f"s_lshl_b32 s{sIMG}, s3, 14\ns_add_u32 s{sIMG}, s{sIMG}, {WIMG}")
A(f"v_lshrrev_b32 v3, 4, v0\nv_lshlrev_b32 v3, 3, v3\nv_bfe_u32 v4, v0, 2, 2\nv_add_u32 v3, v3, v4\nv_lshlrev_b32 v3, 7, v3\nv_and_b32 v4, 3, v0\nv_lshl_add_u32 v3, v4, 3, v3\nv_add_u32 v3, s{sIMG}, v3")
A(f"s_lshl_b32 s{sT0}, s{sXG}, 5\ns_lshl_b32 s{sT1}, s3, 3\ns_add_u32 s{sT0}, s{sT0}, s{sT1}")
A(f"s_lshl_b32 s{sT1}, s{sT0}, 9\ns_add_u32 s{sT1}, s{sT1}, {OS}\nv_add_u32 v4, s{sT1}, v8")
A(f"s_lshl_b32 s{sT1}, s{sT0}, 4\ns_add_u32 s{sT1}, s{sT1}, {ST}\nv_lshl_add_u32 v5, v2, 4, s{sT1}")
A(f"s_lshl_b32 s{sT0}, s3, 8\ns_add_u32 s{sT1}, s{sT0}, {ZP}\nv_lshl_add_u32 v25, v0, 2, s{sT1}\ns_add_u32 s{sT0}, s{sT0}, {SCR}")
A(f"v_lshrrev_b32 v7, 4, v0\nv_lshl_add_u32 v7, v7, 4, s{sT0}")
A(f"v_and_b32 v9, 31, v0\nv_lshlrev_b32 v9, 3, v9\nv_lshrrev_b32 v10, 5, v0\nv_lshl_add_u32 v9, v10, 2, v9\nv_add_u32 v9, s{sT0}, v9")
A(f"s_lshr_b32 s{sT0}, s{sXG}, 2\ns_lshl_b32 s{sT0}, s{sT0}, 14\ns_and_b32 s{sT1}, s{sXG}, 3\ns_lshl_b32 s{sT1}, s{sT1}, 11\ns_add_u32 s{sT0}, s{sT0}, s{sT1}")
A(f"s_lshl_b32 s{sT1}, s{sR}, 8\ns_add_u32 s{sT0}, s{sT0}, s{sT1}\ns_add_u32 s{sT0}, s{sT0}, {ZS}")
A(f"v_and_b32 v6, 15, v0\nv_lshlrev_b32 v6, 4, v6\nv_bfe_u32 v10, v0, 4, 1\nv_lshl_add_u32 v24, v10, 13, v6\nv_add_u32 v24, s{sT0}, v24")
spin(C1, f"s{sNKV}", 10, f"ds_read_b32 v{vT}, v{vL} offset:{TAG-MX}\nds_read_b32 v11, v{vL} offset:{LOC-MX}", sleep=4)
A(f"v_readfirstlane_b32 s{sLOC}, v11")
A(f"buffer_load_dword v28, v24, {R(rWS)}, 0 offen")
for t in range(16):
    A(f"s_add_u32 m0, s{sIMG}, {t*1024}\ns_mov_b32 s{sT1}, {((t>>2)*32+(t&3)*2)*1024}")
    A(f"buffer_load_dwordx4 v1, {R(rA)}, s{sT1} offen{NT} lds")
f_setup(0)
A("s_waitcnt vmcnt(0)")
for kb in range(4):
    for nt in range(4):
        for hf in range(2):
            A(f"ds_read_b64_tr_b16 {V(ZB+(kb*4+nt)*4+2*hf,2)}, v3 offset:{kb*4096+hf*512+nt*32}")
st(5)
C("softmax weights of the head's 8 workgroups; the upper half-wave keeps those of the odd ones")
poll(lambda: A(f"buffer_load_dwordx4 {V(ZST,4)}, v5, {R(rWS)}, 0 offen sc1"), list(range(ZST, ZST + 4)), 10)
A(f"""v_max_f32_dpp v16, v{ZST}, v{ZST} quad_perm:[1,0,3,2] {DPP}
v_max_f32_dpp v16, v16, v16 quad_perm:[2,3,0,1] {DPP}
v_max_f32_dpp v16, v16, v16 row_half_mirror {DPP}
v_sub_f32 v16, v{ZST}, v16
v_exp_f32 v16, v16
v_mul_f32 v11, v16, v{ZST+1}
v_add_f32_dpp v11, v11, v11 quad_perm:[1,0,3,2] {DPP}
v_add_f32_dpp v11, v11, v11 quad_perm:[2,3,0,1] {DPP}
v_add_f32_dpp v11, v11, v11 row_half_mirror {DPP}
v_rcp_f32 v11, v11
v_mul_f32 v16, v16, v11
v_mov_b32_dpp v16, v16 row_ror:15 row_mask:0xc bank_mask:0xf""")
spin(C3, f"s{sNKV}", 10)
st(2)
poll4([(f"buffer_load_dwordx4 {V(ZO+4*t,4)}, v4, {R(rWS)}, 0 offen offset:{1024*t} sc1", [ZO + 4 * t, ZO + 4 * t + 2]) for t in range(4)], 10)
if opt.get("diag"):
    A("s_memrealtime s[98:99]")
st(6)
for t in range(4):
    for i in range(4):
        op = "v_mul_f32_dpp" if t == 0 else "v_fmac_f32_dpp"
        A(f"{op} v{12+i}, v16, v{ZO+4*t+i} row_newbcast:{2*t} {DPP}")
A("v_permlane32_swap_b32 v12, v14\nv_permlane32_swap_b32 v13, v15")
A("v_add_f32 v12, v12, v14\nv_add_f32 v13, v13, v15")
A("v_cvt_pk_bf16_f32 v12, v12, v13\nds_write_b32 v9, v12")
for kb in range(4):
    A(f"ds_read_b128 {V(ZA+4*kb,4)}, v7 offset:{64*kb}")
for kb in range(4):
    A(f"s_waitcnt lgkmcnt({3-kb})")
    for nt in range(4):
        c = "0" if kb == 0 else V(ZD + 4 * nt, 4)
        A(f"v_mfma_f32_16x16x32_bf16 {V(ZD+4*nt,4)}, {V(ZA+4*kb,4)}, {V(ZB+(kb*4+nt)*4,4)}, {c}")
for nt in range(1, 4):
    A(f"v_mov_b32_dpp v{ZD}, v{ZD+4*nt} quad_perm:[0,1,2,3] row_mask:{hex(1<<nt)} bank_mask:0xf")
C("the wave that arrives last sums the four heads and publishes")
A(f"ds_write_b32 v25, v{ZD}")
A("s_mov_b64 exec, 1")
A(f"ds_add_rtn_u32 v10, v{vL}, v{vONE} offset:{C4-MX}")
A("s_mov_b32 exec_lo, -1")
for w in range(4):
    A(f"ds_read_b128 {V(12 if w == 0 else ZA+4*w,4)}, v6 offset:{ZP+256*w}")
A("s_waitcnt lgkmcnt(2)")
A(f"v_readfirstlane_b32 s{sT0}, v10")
A(f"v_pk_add_f32 v[12:13], v[12:13], {V(ZA+4,2)}\nv_pk_add_f32 v[14:15], v[14:15], {V(ZA+6,2)}\ns_waitcnt lgkmcnt(0)")
A(f"v_pk_add_f32 {V(ZA+8,2)}, {V(ZA+8,2)}, {V(ZA+12,2)}\nv_pk_add_f32 {V(ZA+10,2)}, {V(ZA+10,2)}, {V(ZA+14,2)}")
A(f"v_pk_add_f32 v[12:13], v[12:13], {V(ZA+8,2)}\nv_pk_add_f32 v[14:15], v[14:15], {V(ZA+10,2)}")
tag([12])
A(f"s_cmp_lg_u32 s{sT0}, 3\ns_cbranch_scc1 L_z_notlast")
A(f"buffer_store_dwordx4 v[12:15], v24, {R(rWS)}, 0 offen sc1")
st(7)
A("L_z_notlast:")
A("s_mov_b64 exec, -1")
A("s_cmp_eq_u32 s3, 1\ns_cbranch_scc1 L_fin")
end_wave()

C("---- F stage: h for 4 columns (the first words of the line's 8 granules vouch for it), then the 86 MLP partial sums")
A("L_fin:")
poll(lambda: A(f"buffer_load_dword v28, v27, {R(rWS)}, 0 offen sc1"), [28], 10)
ZOFF = [f"s{sOFF}", f"s{sOFF+1}", f"s{sZO2}", f"s{sZO3}"]
for x in range(8):
    A(f"buffer_load_dword v{104+x}, v20, {R(rWS)}, {ZOFF[x//2]} offen offset:{2048*(x%2)} sc1")
A("v_mov_b32 v116, 0\nv_mov_b32 v117, 0\nv_mov_b32 v118, 0\nv_mov_b32 v119, 0")
A("s_waitcnt vmcnt(0)\ns_mov_b64 exec, 0xffff")
for x in range(8):
    A(f"v_xor_b32 v{104+x}, v{104+x}, v{vT}")
A("s_mov_b64 exec, -1")
st(1)
A("""v_add_f32 v104, v104, v106
v_add_f32 v105, v105, v107
v_add_f32 v104, v104, v108
v_add_f32 v105, v105, v109
v_add_f32 v104, v104, v110
v_add_f32 v105, v105, v111
v_add_f32 v104, v104, v105
v_lshlrev_b32 v26, 16, v26
v_add_f32 v104, v104, v26
v_cvt_pk_bf16_f32 v104, v104, v104
v_lshlrev_b32 v104, 16, v104""")
C("back off until the MLP stage is about done: a line read before it is written costs its writer an invalidation")
A(f"s_sleep {opt['fdelay']}")
TAILMASK = (1 << (NMLP - 64)) - 1


def f_poll2():
    A(f"buffer_load_dwordx4 v[112:115], v22, {R(rWS)}, 0 offen sc1")
    A(f"s_mov_b64 exec, {hex(TAILMASK)}\nbuffer_load_dwordx4 v[116:119], v23, {R(rWS)}, 0 offen sc1\ns_mov_b64 exec, -1")


poll(f_poll2, list(range(112, 116)), 10, masked=(TAILMASK, list(range(116, 120))))
st(2)
A("v_pk_add_f32 v[112:113], v[112:113], v[116:117]\nv_pk_add_f32 v[114:115], v[114:115], v[118:119]")
A("v_permlane32_swap_b32 v112, v114\nv_permlane32_swap_b32 v113, v115")
A("v_add_f32 v112, v112, v114\nv_add_f32 v113, v113, v115")
A("v_permlane16_swap_b32 v112, v113\nv_add_f32 v112, v112, v113")
row_allreduce("v_add_f32", 112)
A("v_add_f32 v112, v112, v104\nv_cvt_pk_bf16_f32 v112, v112, v112")
A("s_mov_b32 exec_lo, 0x00010001\ns_mov_b32 exec_hi, 0x00010001")
A(f"buffer_store_short v112, v21, {R(rB)}, 0 offen")
if opt.get("diag"):
    A(f"s_cmp_eq_u32 s{sI}, 0\ns_cbranch_scc0 L_exit\ns_cmp_eq_u32 s3, 1\ns_cbranch_scc0 L_exit")
    A("s_memrealtime s[96:97]\ns_waitcnt lgkmcnt(0)\ns_sub_u32 s94, s96, s98\ns_min_u32 s94, s94, 1000")
    A("s_mov_b32 s90, s94\ns_lshl_b32 s94, s94, 3\nL_amp:\ns_memrealtime s[92:93]\ns_waitcnt lgkmcnt(0)\ns_sub_u32 s92, s92, s96\ns_cmp_lt_u32 s92, s94\ns_cbranch_scc1 L_amp")
    A(f"s_lshl_b32 s{sT0}, s{sXG}, 2\nv_mov_b32 v1, s{sT0}\ns_lshl_b32 s91, s{sLOC}, 16\ns_or_b32 s90, s90, s91\nv_mov_b32 v2, s90\ns_mov_b64 exec, 1")
    A(f"global_store_dword v1, v2, s[{pDBG}:{pDBG+1}] offset:8 sc1")
st(3)
end_wave()

C("---- MLP role: wave w owns rows 128w.. of w_gate / w_up and columns 128w.. of w_down; weights load after this\nworkgroup's own K/V stream; g = ((h - mean).W) * rstd is evaluated as (h.W - mean * colsum(W)) * rstd")
A("L_mlp:")
srd(rA, pWG, 512 * 2752)
srd(rB, pWU, 512 * 2752)
srd(rC, pWD, 1376 * 1024)
A(f"s_lshl_b32 s{sT0}, s3, 7\nv_lshrrev_b32 v1, 1, v0\nv_add_u32 v1, s{sT0}, v1\nv_mul_u32_u24 v1, 2752, v1")
A(f"v_and_b32 v2, 1, v0\nv_lshl_add_u32 v1, v2, 4, v1\ns_lshl_b32 s{sT0}, s{sR}, 5\nv_add_u32 v1, s{sT0}, v1")
A(f"s_lshl_b32 s{sIMG}, s3, 14\ns_add_u32 s{sIMG}, s{sIMG}, {WIMG}")
A(f"v_lshrrev_b32 v3, 4, v0\nv_lshlrev_b32 v3, 3, v3\nv_bfe_u32 v4, v0, 2, 2\nv_add_u32 v3, v3, v4\nv_lshlrev_b32 v3, 5, v3\nv_and_b32 v2, 3, v0\nv_lshl_add_u32 v3, v2, 3, v3\nv_add_u32 v3, s{sIMG}, v3")
A(f"s_lshl_b32 s{sT0}, s3, 9\ns_add_u32 s{sT0}, s{sT0}, {ZS}\nv_lshrrev_b32 v2, 5, v0\nv_and_b32 v21, 31, v0\nv_lshlrev_b32 v4, 11, v2\nv_lshl_add_u32 v4, v21, 4, v4\nv_add_u32 v4, s{sT0}, v4")
A(f"v_lshlrev_b32 v21, 3, v21\nv_lshl_add_u32 v5, v2, 2, v21\ns_lshl_b32 s{sT0}, s3, 8\nv_add_u32 v5, s{sT0}, v5\nv_add_u32 v6, {SCR}, v5")
A(f"s_add_u32 s{sT0}, s{sT0}, {SCR}\nv_lshrrev_b32 v7, 4, v0\nv_lshl_add_u32 v7, v7, 4, s{sT0}")
A(f"s_lshl_b32 s{sT0}, s{sR}, 14\ns_lshl_b32 s{sT1}, s3, 8\ns_add_u32 s{sT0}, s{sT0}, s{sT1}")
A(f"v_lshrrev_b32 v20, 4, v0\nv_lshlrev_b32 v20, 10, v20\nv_and_b32 v22, 15, v0\nv_lshl_add_u32 v20, v22, 4, v20\nv_add_u32 v20, s{sT0}, v20")
A(f"s_add_u32 s{sT0}, s{sIMG}, 8192\nv_lshl_add_u32 v19, v0, 2, s{sT0}")
A(f"v_lshlrev_b32 v22, 3, v22\ns_lshl_b32 s{sT0}, s3, 7\ns_add_u32 s{sT0}, s{sT0}, {ZP}\nv_add_u32 v25, s{sT0}, v22")
A(f"v_lshlrev_b32 v23, 2, v2\nv_add_u32 v23, {SQ}, v23\nv_mov_b32 v24, {SQ}")
for i in range(4):
    A(f"v_mov_b32 v{116+i}, 0x3f803f80")
A(f"s_mov_b32 s{sM1}, 0x05040100\ns_mov_b32 s{sM1+1}, 0x07060302")
A(f"v_mov_b32 v30, 0\nv_mov_b32 v31, 0\nv_mov_b32 v29, {f32(1/512)}")
spin(C1, 4, 10, f"ds_read_b32 v{vT}, v{vL} offset:{TAG-MX}\nds_read_b32 v11, v{vL} offset:{LOC-MX}", sleep=4)
A(f"v_readfirstlane_b32 s{sLOC}, v11")
C("p chunk addresses: the lower / upper half-wave serves group 2w / 2w + 1; z is read from the near half")
A(f"s_lshl_b32 s{sT2}, s3, 1")
chunk(sT0, f"s{sT2}")
A(f"s_add_u32 s{sT2}, s{sT2}, 1")
chunk(sT1, f"s{sT2}")
A(f"s_lshr_b32 s{sT2}, s{sR}, 3\ns_lshl_b32 s{sT2}, s{sT2}, 14\ns_and_b32 s{sT3}, s{sR}, 7\ns_lshl_b32 s{sT3}, s{sT3}, 10\ns_add_u32 s{sT2}, s{sT2}, s{sT3}\ns_add_u32 s{sT2}, s{sT2}, {PS}")
A(f"s_add_u32 s{sT0}, s{sT0}, s{sT2}\ns_add_u32 s{sT1}, s{sT1}, s{sT2}\nv_add_u32 v10, s{sT1}, v21\nv_add_u32 v21, s{sT0}, v21")
A("s_mov_b32 exec_lo, 0\nv_mov_b32 v21, v10\ns_mov_b32 exec_lo, -1")
A(f"s_and_b32 s{sT0}, s{sLOC}, 0x2000\nv_add_u32 v4, s{sT0}, v4")
A(f"buffer_load_dword v28, v21, {R(rWS)}, 0 offen")
A(f"buffer_load_dword v26, v5, {R(rD)}, 0 offen")
st(5)
A("s_waitcnt vmcnt(0)")
A(f"v_lshlrev_b32 v27, 16, v26\nv_and_b32 v26, s{sHI}, v26")
spin(C5, 1, 10)
st(2)
for t in range(4):
    A(f"s_add_u32 m0, s{sIMG}, {t*1024}\ns_mov_b32 s{sT1}, {t*32*2752}")
    A(f"buffer_load_dwordx4 v1, {R(rA)}, s{sT1} offen lds")
    A(f"s_add_u32 m0, s{sIMG}, {4096+t*1024}")
    A(f"buffer_load_dwordx4 v1, {R(rB)}, s{sT1} offen lds")
for t in range(4):
    A(f"s_add_u32 m0, s{sIMG}, {8192+t*1024}")
    A(f"buffer_load_dwordx4 v20, {R(rC)}, s{sOFF+t} offen{NT} lds")
A("s_waitcnt vmcnt(0)")
for kb in range(4):
    for tl in range(2):
        for hf in range(2):
            A(f"ds_read_b64_tr_b16 {V(40+(kb*2+tl)*4+2*hf,2)}, v3 offset:{kb*1024+hf*128+tl*4096}")
for r in range(0, 16, 2):
    A(f"ds_read2st64_b32 {V(120+r,2)}, v19 offset0:{r} offset1:{r+1}")
A("s_waitcnt lgkmcnt(0)")
for kb in range(4):
    for tl in range(2):
        c = "0" if kb == 0 else V(108 + 4 * tl, 4)
        A(f"v_mfma_f32_16x16x32_bf16 {V(108+4*tl,4)}, v[116:119], {V(40+(kb*2+tl)*4,4)}, {c}")
for i in range(8):
    A(f"v_perm_b32 v{136+i}, v{121+2*i}, v{120+2*i}, s{sM1}\nv_perm_b32 v{144+i}, v{121+2*i}, v{120+2*i}, s{sM1+1}")
A("s_mov_b64 exec, 0xffff")
A(f"ds_add_f32 v22, v108 offset:{CS}\nds_add_f32 v22, v112 offset:{CS+4}")
A("s_mov_b64 exec, -1")
st(1)
poll4([(f"buffer_load_dwordx4 {V(72+4*t,4)}, v4, {R(rWS)}, {ZOFF[t]} offen sc1", [72 + 4 * t]) for t in range(4)], 10)
st(6)
for t in range(1, 4):
    for i in (0, 2):
        A(f"v_pk_add_f32 {V(72+i,2)}, {V(72+i,2)}, {V(72+4*t+i,2)}")
A("v_permlane32_swap_b32 v72, v74\nv_permlane32_swap_b32 v73, v75")
A("""v_add_f32 v72, v72, v74
v_add_f32 v73, v73, v75
v_add_f32 v72, v72, v27
v_add_f32 v73, v73, v26
v_cvt_pk_bf16_f32 v72, v72, v73
ds_write_b32 v6, v72""")
for kb in range(4):
    A(f"ds_read_b128 {V(92+4*kb,4)}, v7 offset:{64*kb}")
A(f"""v_lshlrev_b32 v73, 16, v72
v_and_b32 v72, s{sHI}, v72
v_add_f32 v74, v72, v73
v_mul_f32 v75, v72, v72
v_fmac_f32 v75, v73, v73""")
A("v_permlane32_swap_b32 v74, v75\nv_add_f32 v74, v74, v75")
for kb in range(4):
    A(f"s_waitcnt lgkmcnt({3-kb})")
    for tl in range(2):
        c = "0" if kb == 0 else V(108 + 4 * tl, 4)
        A(f"v_mfma_f32_16x16x32_bf16 {V(108+4*tl,4)}, {V(92+4*kb,4)}, {V(40+(kb*2+tl)*4,4)}, {c}")
    A(f"v_add_f32_dpp v74, v74, v74 row_ror:{(8, 4, 2, 1)[kb]} {DPP}")
A("s_mov_b32 exec_lo, 0x00010001\ns_mov_b32 exec_hi, 0x00010001")
A("ds_add_f32 v23, v74")
A("s_mov_b64 exec, 0xffff")
A("ds_write2_b32 v25, v108, v112 offset0:0 offset1:1")
A("s_mov_b64 exec, -1")
A("s_waitcnt lgkmcnt(0)\ns_barrier")
A(f"ds_read_b64 v[16:17], v24\nds_read_b64 v[14:15], v22 offset:{CS}")
for w in range(4):
    A(f"ds_read_b64 {V(12 if w == 0 else 92+2*w,2)}, v22 offset:{ZP+128*w}")
C("mean, rstd; sigmoid(g) * u for feature lane & 15; its share of w_down")
A(f"""s_waitcnt lgkmcnt(5)
v_mul_f32 v16, v16, v29
v_fmaak_f32 v17, v17, v29, {f32(1e-5)}
v_fma_f32 v17, -v16, v16, v17
v_max_f32 v17, {f32(1e-5)}, v17
v_rsq_f32 v17, v17
s_waitcnt lgkmcnt(0)
v_pk_add_f32 v[12:13], v[12:13], v[94:95]
v_pk_add_f32 v[96:97], v[96:97], v[98:99]
v_pk_add_f32 v[12:13], v[12:13], v[96:97]
v_mul_f32 v18, {f32(-1.4426950408889634)}, v17
v_fma_f32 v12, -v16, v14, v12
v_fma_f32 v13, -v16, v15, v13
v_mul_f32 v12, v12, v18
v_exp_f32 v12, v12
v_mul_f32 v13, v13, v17
v_add_f32 v12, 1.0, v12
v_rcp_f32 v12, v12
s_nop 0
v_mul_f32 v12, v12, v13
v_mov_b32_dpp v13, v12 quad_perm:[1,0,3,2] {DPP}
v_cvt_pk_bf16_f32 v12, v12, v13""")
for i in range(8):
    A(f"v_dot2c_f32_bf16_dpp v30, v12, v{136+i} row_newbcast:{2*i} {DPP}")
    A(f"v_dot2c_f32_bf16_dpp v31, v12, v{144+i} row_newbcast:{2*i} {DPP}")
tag([30, 31])
A(f"buffer_store_dwordx2 v[30:31], v21, {R(rWS)}, 0 offen sc1")
st(7)
end_wave()

if STAMPS:
    A("L_stamps:")
    A("s_mov_b64 exec, 1")
    A("s_waitcnt lgkmcnt(0)\ns_memrealtime s[4:5]\ns_waitcnt lgkmcnt(0)\ns_memtime s[6:7]")
    A(f"s_mul_i32 s{sT0}, s2, 12\ns_add_u32 s{sT0}, s{sT0}, s3\ns_lshl_b32 s{sT0}, s{sT0}, 6\ns_add_u32 s{sT0}, s{sT0}, {STAMP}")
    A(f"v_mov_b32 v1, s{sT0}\ns_waitcnt lgkmcnt(0)")
    for k in range(8):
        A(f"v_mov_b32 v{4+k}, s{sST+2*k}")
    A(f"v_mov_b32 v12, s100\nv_mov_b32 v13, s4\nv_mov_b32 v14, s6\nv_mov_b32 v15, s{sLOC}")
    A(f"v_mov_b32 v16, s{sROLE}\nv_mov_b32 v17, s{sNKV}\nbuffer_store_dwordx2 v[16:17], v1, {R(rWS)}, 0 offen offset:48")
    A(f"buffer_store_dwordx4 v[4:7], v1, {R(rWS)}, 0 offen\nbuffer_store_dwordx4 v[8:11], v1, {R(rWS)}, 0 offen offset:16\nbuffer_store_dwordx4 v[12:15], v1, {R(rWS)}, 0 offen offset:32")
A("L_exit:")
A("s_endpgm")

body, problems = fix_hazards(L)
for p in problems:
    print("HAZARD:", p, file=sys.stderr)
for line in body:
    out.append(line if line.endswith(":") and not line.startswith(";") else "    " + line)
out.append(".p2align 2\n.type L_table,@object\nL_table:")
for k in range(0, 256, 8):
    out.append("    .short " + ", ".join(hex(v) for v in TABLE[k:k+8]))
out.append(".size L_table, 512\nL_last:")
out.append(f""".section .rodata,"a"
.p2align 6
.amdhsa_kernel {NAME}_kernel
  .amdhsa_next_free_vgpr 168
  .amdhsa_next_free_sgpr 102
  .amdhsa_accum_offset 168
  .amdhsa_group_segment_fixed_size 0
  .amdhsa_kernarg_size 96
  .amdhsa_user_sgpr_count 2
  .amdhsa_user_sgpr_kernarg_segment_ptr 1
  .amdhsa_system_sgpr_workgroup_id_x 1
  .amdhsa_float_denorm_mode_32 3
.end_amdhsa_kernel""")
open(sys.argv[1], "w").write("\n".join(out) + "\n")
```

```python
import os, sys, struct
from asmlib import fix_hazards

NAME = "sequential_preLN__mha_block_cached__glu_gated_glu__decode"
opt = dict(stamps=0, nv1=4, fdelay=24, f0delay=18, spin=60000, loc="probe", nprobe=5, pfs=5, sp3="x21100444", sp2="x11004433",
           spl="x10104433", nsl=12)
for a in sys.argv[2:]:
    k, v = a.split("=")
    opt[k] = v if not v.lstrip("-").isdigit() else int(v)
STAMPS = opt["stamps"]
NV1 = opt["nv1"]
NE = 4
NT = " nt"


def f32(x):
    return "0x%08x" % struct.unpack("<I", struct.pack("<f", x))[0]


QS, OS, ST, XC, EPOCH, PROBE, ZS, PS, STAMP = 0x0, 0x20000, 0x40000, 0x41000, 0x42000, 0x44000, 0x48000, 0x50000, 0x80000
NMLP = 86
TAGMASK = 0x3ff
QL, MX, SQ, CS, ZP, SCR, OSL, WIMG = 0, 256, 272, 1024, 1536, 3072, 4096, 10240
CQ, C1, C5, C3, C4, FAST, TAG, LOC, ML = 280, 284, 288, 292, 296, 304, 308, 312, 384
LDS_BYTES = WIMG + 4 * 16384
pX, pK, pV, pWQ, pWO, pWG, pWU, pWD, pOUT, pDBG, pWS = 4, 6, 8, 10, 12, 16, 18, 20, 22, 24, 26
rA, rB, rWS, rC, rD = 28, 32, 36, 44, 48
sNKV, sROLE, sMASK, sN = 40, 41, 42, 43
sXG, sI, sSLOT, sR, sT0, sT1, sCNT, sFAST = 52, 53, 54, 55, 56, 57, 58, 59
sM1, sM0, sU, sIMG, sC2, sHI = 60, 62, 64, 65, 66, 67
sOFF = 68
sZO2, sZO3, sCUR, sTAB, sLOC, sT2, sT3, sT4 = 72, 73, 74, 75, 76, 77, 78, 79
sST = 84
vT, vONE, vL = 38, 39, 33
KR, VR = 40, 104
DPP = "row_mask:0xf bank_mask:0xf"

L = []
uid = [0]


def A(s):
    for line in s.split("\n"):
        line = line.strip()
        if line:
            L.append(line)


def C(s):
    for line in s.strip().split("\n"):
        L.append("; " + line.strip())


def srd(r, p, size):
    A(f"s_mov_b32 s{r}, s{p}\ns_mov_b32 s{r+1}, s{p+1}\ns_mov_b32 s{r+2}, {hex(size)}\ns_mov_b32 s{r+3}, 0x20000")


def R(r):
    return f"s[{r}:{r+3}]"


def V(a, n):
    return f"v[{a}:{a+n-1}]"


def st(k):
    if STAMPS:
        A(f"s_memtime s[{sST+2*k}:{sST+2*k+1}]")


def end_wave():
    A("s_branch L_stamps" if STAMPS else "s_endpgm")


def row_allreduce(op, a):
    for n in (8, 4, 2, 1):
        A(f"{op}_dpp v{a}, v{a}, v{a} row_ror:{n} {DPP}")


def wave_allreduce(op, a, t, first=None):
    if first is None:
        row_allreduce(op, a)
    else:
        A(f"{op}_dpp v{a}, v{first}, v{first} row_ror:8 {DPP}")
        for n in (4, 2, 1):
            A(f"{op}_dpp v{a}, v{a}, v{a} row_ror:{n} {DPP}")
    for sw in ("v_permlane16_swap_b32", "v_permlane32_swap_b32"):
        A(f"v_mov_b32 v{t}, v{a}\n{sw} v{a}, v{t}\n{op} v{a}, v{a}, v{t}")


def tag(regs):
    for r in regs:
        A(f"v_bfi_b32 v{r}, s{sMASK}, v{vT}, v{r}")


def tmo(u):
    if opt.get("tmo"):
        A(f"s_cmp_eq_u32 s{sCNT}, -1\ns_cbranch_scc0 L_notmo{u}\ns_lshl_b32 s{sCNT}, s2, 8\ns_or_b32 s{sCNT}, s{sCNT}, {u}\nv_mov_b32 v161, s{sCNT}\nv_mov_b32 v160, 0x7f000\nbuffer_store_dword v161, v160, {R(rWS)}, 0 offen sc1\nL_notmo{u}:")


def poll(loads, regs, tmp, masked=None):
    uid[0] += 1
    u = uid[0]
    loads()
    A(f"s_mov_b32 s{sCNT}, {opt['spin']}")
    A(f"L_poll{u}:")
    A("s_waitcnt vmcnt(0)")
    rs = list(regs)
    for r in rs:
        A(f"v_xor_b32 v{r}, v{r}, v{vT}")
    if masked:
        A(f"s_mov_b64 exec, {hex(masked[0])}")
        for r in masked[1]:
            A(f"v_xor_b32 v{r}, v{r}, v{vT}")
        A("s_mov_b64 exec, -1")
        rs += masked[1]
    acc, rs = rs[0], rs[1:]
    while len(rs) >= 2:
        A(f"v_or3_b32 v{tmp}, v{acc}, v{rs[0]}, v{rs[1]}")
        acc, rs = tmp, rs[2:]
    if rs:
        A(f"v_bitop3_b32 v{tmp}, v{acc}, v{rs[0]}, s{sMASK} bitop3:0xa8")
    else:
        A(f"v_and_b32 v{tmp}, s{sMASK}, v{acc}")
    A(f"v_cmp_ne_u32 vcc, 0, v{tmp}\ns_cbranch_vccz L_ok{u}")
    A(f"s_sub_u32 s{sCNT}, s{sCNT}, 1\ns_cbranch_scc1 L_ok{u}")
    loads()
    A(f"s_branch L_poll{u}")
    A(f"L_ok{u}:")
    tmo(u)


def poll4(items, tmp):
    uid[0] += 1
    u = uid[0]
    for ld, _ in items:
        A(ld)
    A(f"s_mov_b32 s{sCNT}, {opt['spin']}")
    A(f"L_poll{u}:")
    A("s_waitcnt vmcnt(0)")
    for k, (_, regs) in enumerate(items):
        A(f"v_xor_b32 v{tmp+1+k}, v{regs[0]}, v{vT}")
        for r in regs[1:]:
            A(f"v_bitop3_b32 v{tmp+1+k}, v{tmp+1+k}, v{r}, v{vT} bitop3:0xf6")
    A(f"v_or3_b32 v{tmp}, v{tmp+1}, v{tmp+2}, v{tmp+3}\nv_bitop3_b32 v{tmp}, v{tmp}, v{tmp+4}, s{sMASK} bitop3:0xa8")
    A(f"v_cmp_ne_u32 vcc, 0, v{tmp}\ns_cbranch_vccz L_ok{u}")
    A(f"s_sub_u32 s{sCNT}, s{sCNT}, 1\ns_cbranch_scc1 L_ok{u}")
    for k, (ld, _) in enumerate(items):
        A(f"v_and_b32 v{tmp}, s{sMASK}, v{tmp+1+k}\nv_cmp_ne_u32 vcc, 0, v{tmp}\ns_cbranch_vccz L_skip{u}_{k}")
        A(ld)
        A(f"L_skip{u}_{k}:")
    A(f"s_branch L_poll{u}")
    A(f"L_ok{u}:")
    tmo(u)
    for _, regs in items:
        for r in regs:
            A(f"v_xor_b32 v{r}, v{r}, v{vT}")


def spin(off, n, tmp, extra=None, sleep=1):
    uid[0] += 1
    u = uid[0]
    A(f"L_spin{u}:")
    A(f"ds_read_b32 v{tmp}, v{vL} offset:{off-MX}")
    if extra:
        A(extra)
    A("s_waitcnt lgkmcnt(0)")
    A(f"v_readfirstlane_b32 s{sT0}, v{tmp}")
    A(f"s_cmp_ge_u32 s{sT0}, {n}\ns_cbranch_scc1 L_spun{u}")
    A(f"s_sleep {sleep}\ns_branch L_spin{u}")
    A(f"L_spun{u}:")


def store_fs(instr):
    uid[0] += 1
    u = uid[0]
    A(f"s_cmp_eq_u32 s{sFAST}, 0\ns_cbranch_scc1 L_slow{u}")
    A(instr)
    A(f"s_branch L_sdone{u}\nL_slow{u}:")
    A(instr + " sc1")
    A(f"L_sdone{u}:")


digits = lambda s: [int(c) for c in str(s)[1:]]
TABLE, TAB = [], []
fg = 0
for xg in range(8):
    fr = 0
    for hl in range(4):
        nm = 3 if hl < (3 if xg < 6 else 2) else 2
        ne = digits(opt["spl"] if hl == 3 else opt["sp3"] if nm == 3 else opt["sp2"])
        assert sum(ne) == 16
        TAB.append(ne)
        for sp in range(8):
            if sp < 2:
                role, grp = 0, hl * 2 + sp
                grp ^= 4 if grp & 3 == 3 else 0
            elif sp < 2 + nm:
                role, grp = 1, fg
                fg += 1
            else:
                role, grp = 2, fr
                fr += 1
            assert role == 2 or ne[sp] <= 2
            TABLE.append(role | grp << 2 | ne[sp] << 9 | sum(ne[:sp]) % 16 << 12)
assert fg == NMLP

hdr = open(os.path.join(os.path.dirname(os.path.abspath(__file__)), "hdr.txt")).read().split("\n")
out = [l for l in hdr if l.startswith(";") and "@launch" not in l and "Override" not in l and "grid=ceil" not in l]
out.append(f"; @launch grid=(256,1,1) block=(768,1,1) lds={LDS_BYTES}")
out.append(""";
;   wave 0      LayerNorm(x), one 64-row block of q = LN(x).wq, exchange of the 8 blocks of the head
; Stores are write-through (sc1) unless every reader was seen to run on this XCD (HW_REG_XCC_ID); reads bypass L1.""")
out.append('.amdgcn_target "amdgcn-amd-amdhsa--gfx950"')
out.append(".text")
out.append(f".globl {NAME}_kernel")
out.append(".p2align 8")
out.append(f".type {NAME}_kernel,@function")
out.append(f"{NAME}_kernel:")

C("---- prologue: arguments, code prefetch into L2, first K loads of waves 6..11")
A("L_start:")
A("s_load_dwordx16 s[4:19], s[0:1], 0\ns_load_dwordx8 s[20:27], s[0:1], 64")
A(f"s_lshr_b32 s{sT0}, s2, 8\ns_cbranch_scc1 L_exit")
A(f"s_getpc_b64 s[{rA}:{rA+1}]")
A("L_pc:")
A(f"v_lshlrev_b32 v2, {opt['pfs']}, v0\nv_min_u32 v2, L_last-L_pc-4, v2")
A(f"global_load_dword v167, v2, s[{rA}:{rA+1}]")
C("K/V are cut into units of 64 keys; waves 6..11 own the first six of the eight units at slot*8")
A(f"s_and_b32 s{sXG}, s2, 7\ns_lshl_b32 s{sT0}, s{sXG}, 8\ns_andn2_b32 s{sT1}, s2, 7\ns_add_u32 s{sSLOT}, s{sT0}, s{sT1}")
A(f"s_sub_u32 s{sT0}, s{sSLOT}, 6\ns_lshl_b32 s{sT0}, s{sT0}, 14")
A(f"v_lshrrev_b32 v1, 6, v0\nv_and_b32 v0, 63, v0\nv_readfirstlane_b32 s3, v1\nv_lshl_add_u32 v1, v1, 14, s{sT0}\nv_lshl_add_u32 v1, v0, 4, v1")
A("s_cmp_lt_u32 s3, 6\ns_cbranch_scc1 L_late\ns_waitcnt lgkmcnt(0)")
for i in range(NE):
    A(f"global_load_dwordx4 {V(KR+4*i,4)}, v1, s[{pK}:{pK+1}] offset:{1024*i}{NT}")
A("L_late:")
if STAMPS:
    for k in range(8):
        A(f"s_mov_b32 s{sST+2*k}, 0")
st(0)
if STAMPS or opt.get("diag"):
    A("s_memrealtime s[100:101]")
A(f"s_lshr_b32 s{sI}, s2, 3\ns_lshr_b32 s{sSLOT}, s{sSLOT}, 3")
A("v_lshlrev_b32 v8, 4, v0")
C("wave 0: x and its 64 rows of wq (lane group g takes rows 16g + t)")
A("s_cmp_lg_u32 s3, 0\ns_cbranch_scc1 L_not0")
A(f"s_and_b32 s{sT0}, s{sI}, 7\ns_lshl_b32 s{sT0}, s{sT0}, 6")
A(f"v_lshrrev_b32 v2, 4, v0\nv_lshl_add_u32 v2, v2, 4, s{sT0}\nv_lshlrev_b32 v3, 1, v2")
A(f"s_lshr_b32 s{sT0}, s{sSLOT}, 3\ns_lshl_b32 s{sT0}, s{sT0}, 8")
A(f"v_lshlrev_b32 v2, 13, v2\nv_and_b32 v9, 15, v0\nv_lshl_add_u32 v2, v9, 4, v2\nv_add_u32 v2, s{sT0}, v2")
A(f"s_movk_i32 s{sT0}, 0x2000\ns_waitcnt lgkmcnt(0)")
A(f"global_load_dwordx4 v[104:107], v8, s[{pX}:{pX+1}]")
A(f"global_load_dwordx4 v[12:15], v3, s[{pX}:{pX+1}]")
A(f"global_load_dwordx4 v[16:19], v3, s[{pX}:{pX+1}] offset:16")
for t in range(16):
    A(f"global_load_dwordx4 {V(40+4*t,4)}, v2, s[{pWQ}:{pWQ+1}]{NT}")
    if t < 15:
        A(f"v_add_u32 v2, s{sT0}, v2")
A("L_not0:")
A(f"s_and_b32 s{sT0}, s{sSLOT}, 0xfe\ns_lshl_b32 s{sT0}, s{sT0}, 1\ns_add_u32 s{sT0}, s{sT0}, L_table-L_pc\ns_load_dword s{sTAB}, s[{rA}:{rA+1}], s{sT0}")
C("workgroup 0, wave 2: this launch's number -> d_ws, and with 1 << 31 | XCC id << 28 -> d_debug (4 copies)")
A(f"s_lshl_b32 s{sT0}, s2, 4\ns_add_u32 s{sT0}, s{sT0}, s3\ns_cmp_eq_u32 s{sT0}, 2\ns_cbranch_scc0 L_notlead")
A(f"s_waitcnt lgkmcnt(0)\ns_load_dword s{sT0}, s[{pWS}:{pWS+1}], {hex(EPOCH)}")
A(f"s_getreg_b32 s{sT1}, hwreg(HW_REG_XCC_ID)\ns_or_b32 s{sT1}, s{sT1}, 8\ns_lshl_b32 s{sT1}, s{sT1}, 28")
A(f"v_mov_b32 v3, {EPOCH}\nv_lshlrev_b32 v4, 6, v0\ns_waitcnt lgkmcnt(0)")
A(f"s_add_u32 s{sT0}, s{sT0}, 0x0e3779b1\ns_and_b32 s{sT0}, s{sT0}, 0x0fffffff\ns_or_b32 s{sT1}, s{sT1}, s{sT0}")
A(f"v_mov_b32 v5, s{sT1}\nv_mov_b32 v6, s{sT0}\ns_mov_b64 exec, 15")
A(f"global_store_dword v4, v5, s[{pDBG}:{pDBG+1}] sc1")
A("s_mov_b64 exec, 1")
A(f"global_store_dword v3, v6, s[{pWS}:{pWS+1}] sc1")
A("s_mov_b64 exec, -1")
A("L_notlead:")
C("LDS: counters and accumulators = 0, running max = -inf; decode the work-table entry\n(role | group << 2 | spare units << 9 | first spare unit << 12); spare units go to waves 5, 4, 3, 2")
A("v_mov_b32 v4, 0\nv_mov_b32 v5, 0\nv_mov_b32 v6, 0\nv_mov_b32 v7, 0")
A(f"s_mov_b32 s{sT0}, 0xff800000\nv_writelane_b32 v4, s{sT0}, 0")
A(f"ds_write_b128 v8, v[4:7] offset:{MX}")
A(f"s_lshl_b32 s{sT0}, s3, 9\nv_lshl_add_u32 v9, v0, 3, s{sT0}\nds_write_b64 v9, v[6:7] offset:{OSL}")
A(f"""s_waitcnt lgkmcnt(0)
s_bitcmp1_b32 s{sI}, 0
s_cselect_b32 s{sT2}, 16, 0
s_lshr_b32 s{sT2}, s{sTAB}, s{sT2}
s_and_b32 s{sROLE}, s{sT2}, 3
s_bfe_u32 s{sR}, s{sT2}, 0x70002
s_bfe_u32 s{sT4}, s{sT2}, 0x30009
s_bfe_u32 s{sT3}, s{sT2}, 0x4000c
s_add_u32 s{sNKV}, s{sT4}, 6
s_add_u32 s{sU}, s3, s{sT4}
s_sub_u32 s{sU}, s{sU}, 6
s_cmp_ge_u32 s3, 6
s_cbranch_scc1 L_own_unit
s_add_u32 s{sT3}, s{sT3}, 5
s_sub_u32 s{sT3}, s{sT3}, s3
s_lshr_b32 s{sT2}, s{sT3}, 1
s_mul_i32 s{sT2}, s{sT2}, 6
s_add_u32 s{sT2}, s{sT2}, s{sT3}
s_and_b32 s{sT3}, s{sSLOT}, 0xf8
s_lshl_b32 s{sT3}, s{sT3}, 3
s_add_u32 s{sT2}, s{sT2}, s{sT3}
s_add_u32 s{sT2}, s{sT2}, 6
s_lshl_b32 s{sT2}, s{sT2}, 14
v_add_u32 v1, s{sT2}, v8
L_own_unit:""")
A(f"s_mov_b32 s{sHI}, 0xffff0000\ns_mov_b32 s{sMASK}, {TAGMASK}")
A(f"v_mov_b32 v{vL}, {MX}\nv_mov_b32 v{vONE}, 1")
srd(rA, pK, 0x2000000)
srd(rB, pV, 0x2000000)
srd(rWS, pWS, 0x10000000)
st(6)
A("s_barrier")
A(f"s_cmp_lt_i32 s{sU}, 0\ns_cbranch_scc1 L_helper")


def kvload(base, i, r):
    A(f"buffer_load_dwordx4 {V(base+4*i,4)}, v1, {R(r)}, s{sCUR} offen{NT}")
    A(f"s_addk_i32 s{sCUR}, 0x400" if i < 15 else f"s_mov_b32 s{sCUR}, 0")


C(f"---- K/V waves: 16 K loads, {NV1} V loads, then (once q is in LDS) scores, softmax, the other V loads, p.V")
A(f"s_mov_b32 s{sCUR}, {NE*1024}")
A(f"s_cmp_ge_u32 s3, 6\ns_cbranch_scc1 L_k_rest\ns_mov_b32 s{sCUR}, 0")
for i in range(NE):
    kvload(KR, i, rA)
A("L_k_rest:")
for i in range(NE, 16):
    kvload(KR, i, rA)
for i in range(NV1):
    kvload(VR, i, rB)
st(1)
C("byte selectors that turn a (hi, lo) bf16 pair into the p (x) I operand; LDS and hand-off addresses")
A("""v_bfe_u32 v10, v0, 3, 1
v_mul_u32_u24 v10, 0x202, v10
v_add_u32 v10, 0x100, v10
v_and_b32 v11, 1, v0
v_lshlrev_b32 v11, 4, v11
v_lshlrev_b32 v10, v11, v10
v_mov_b32 v12, 0x0c0c0000
v_lshrrev_b32 v12, v11, v12
v_or_b32 v10, v10, v12
v_bfe_u32 v11, v0, 1, 2
v_mov_b32 v12, 0x0c0c0c0c""")
for i in range(4):
    A(f"v_cmp_eq_u32 vcc, {i}, v11\nv_cndmask_b32 v{6+i}, v12, v10, vcc")
A(f"s_mov_b32 s{sM1}, 0xcccccccc\ns_mov_b32 s{sM1+1}, 0xcccccccc\ns_mov_b32 s{sM0}, 0xaaaaaaaa\ns_mov_b32 s{sM0+1}, 0xaaaaaaaa")
A(f"s_mov_b32 s{sC2}, {f32(128 ** -0.5 * 1.4426950408889634)}")
A("v_and_b32 v32, 15, v0\nv_lshlrev_b32 v32, 4, v32")
A(f"v_lshrrev_b32 v34, 4, v0\nv_and_b32 v35, 7, v0\nv_lshl_add_u32 v34, v34, 3, v35\ns_lshl_b32 s{sT0}, s3, 9\nv_lshl_add_u32 v34, v34, 4, s{sT0}")
A("v_lshlrev_b32 v35, 3, v0")
A(f"s_lshl_b32 s{sT0}, s{sSLOT}, 9\ns_add_u32 s{sT0}, s{sT0}, {OS}\nv_lshl_add_u32 v36, v0, 3, s{sT0}")
A(f"s_lshl_b32 s{sT0}, s{sSLOT}, 4\ns_add_u32 s{sT0}, s{sT0}, {ST}\nv_mov_b32 v37, s{sT0}")
A(f"s_sub_u32 s{sN}, s{sNKV}, 1")
A(f"v_lshrrev_b32 v26, 1, v32\nv_add_u32 v26, {ML}, v26\ns_lshl_b32 s{sT0}, s3, 3\ns_add_u32 s{sT0}, s{sT0}, {ML}\nv_mov_b32 v27, s{sT0}")
spin(CQ, 1, 10, f"ds_read_b128 v[2:5], v32 offset:{QL}\nds_read_b64 v[28:29], v{vL} offset:{FAST-MX}", sleep=2)
st(2)
A(f"v_readfirstlane_b32 s{sFAST}, v28\nv_mov_b32 v{vT}, v29")
A(f"s_waitcnt vmcnt({NV1})")
C("scores: lane (g, c) holds 8 dims of key 4i + g of load i; reduce-scatter leaves key (load c, row g) in lane (g, c)")
for j in range(4):
    for i in range(16):
        c = "0" if j == 0 else f"v{10+i}"
        A(f"v_dot2_f32_bf16 v{10+i}, v{KR+4*i+j}, v{2+j}, {c}")
for i in range(8):
    A(f"v_add_f32_dpp v{10+i}, v{10+i}, v{10+i} row_ror:8 row_mask:0xf bank_mask:0x3")
    A(f"v_add_f32_dpp v{10+i}, v{18+i}, v{18+i} row_ror:8 row_mask:0xf bank_mask:0xc")
for i in range(4):
    A(f"v_add_f32_dpp v{10+i}, v{10+i}, v{10+i} row_ror:12 row_mask:0xf bank_mask:0x5")
    A(f"v_add_f32_dpp v{10+i}, v{14+i}, v{14+i} row_ror:4 row_mask:0xf bank_mask:0xa")
for i in range(4):
    A(f"v_add_f32_dpp v{10+i}, v{10+i}, v{10+i} quad_perm:[2,3,0,1] {DPP}")
for i in range(2):
    A(f"v_cndmask_b32 v{10+i}, v{10+i}, v{12+i}, s[{sM1}:{sM1+1}]")
for i in range(2):
    A(f"v_add_f32_dpp v{10+i}, v{10+i}, v{10+i} quad_perm:[1,0,3,2] {DPP}")
A(f"v_cndmask_b32 v10, v10, v11, s[{sM0}:{sM0+1}]")
C("p = 2^(score - wave max), scores in log2 units; bf16 hi and lo parts; wave sum")
A(f"v_mul_f32 v10, s{sC2}, v10")
wave_allreduce("v_max_f32", 11, 12, first=10)
A("v_sub_f32 v10, v10, v11\nv_exp_f32 v10, v10")
A("v_cvt_pk_bf16_f32 v13, v10, v10\nv_lshlrev_b32 v13, 16, v13\nv_sub_f32 v13, v10, v13\nv_cvt_pk_bf16_f32 v13, v10, v13")
wave_allreduce("v_add_f32", 10, 12)
C("(max, sum) of this wave -> LDS; the wave that arrives last publishes the workgroup's pair")
A("v_mov_b32 v20, v11\nv_mov_b32 v21, v10\ns_mov_b64 exec, 1")
A(f"ds_write_b64 v27, v[20:21]\nds_max_f32 v{vL}, v11\nds_add_rtn_u32 v12, v{vL}, v{vONE} offset:{C1-MX}")
A("s_mov_b64 exec, -1")
A(f"ds_read_b64 v[22:23], v26\nds_read_b32 v20, v{vL}\ns_waitcnt lgkmcnt(0)")
A(f"v_readfirstlane_b32 s{sT0}, v12")
A(f"s_cmp_lg_u32 s{sT0}, s{sN}\ns_cbranch_scc1 L_kv_nost")
A(f"v_bfi_b32 v20, s{sMASK}, 0, v20")
A("v_sub_f32 v22, v22, v20\nv_min_f32 v22, 0x42800000, v22\nv_exp_f32 v22, v22\nv_mul_f32 v21, v22, v23")
row_allreduce("v_add_f32", 21)
tag([20, 21])
A(f"v_mov_b32 v22, v{vT}\nv_mov_b32 v23, v{vT}\ns_mov_b64 exec, 1\ns_setprio 3")
store_fs(f"buffer_store_dwordx4 v[20:23], v37, {R(rWS)}, 0 offen")
A("s_setprio 0\ns_mov_b64 exec, -1")
st(7)
A("L_kv_nost:")
st(3)
for i in range(NV1, 16):
    kvload(VR, i, rB)
C("B operands: p (hi in columns 0-7, lo in 8-15) times identity, written over the dead K registers")
for t in range(16):
    A(f"v_mov_b32_dpp v{14+t%4}, v13 row_newbcast:{t} {DPP}")
    if t >= 1:
        for i in range(4):
            A(f"v_perm_b32 v{KR+4*(t-1)+i}, v{14+(t-1)%4}, v{14+(t-1)%4}, v{6+i}")
for i in range(4):
    A(f"v_perm_b32 v{KR+60+i}, v{14+15%4}, v{14+15%4}, v{6+i}")
spin(C1, f"s{sNKV}", 12, f"ds_read_b32 v19, v{vL}", sleep=2)
A(f"v_bfi_b32 v19, s{sMASK}, 0, v19\nv_sub_f32 v18, v11, v19\nv_exp_f32 v18, v18")
st(4)
for t in range(16):
    A(f"s_waitcnt vmcnt({15-t})")
    c = "0" if t == 0 else "v[28:31]"
    A(f"v_mfma_f32_16x16x32_bf16 v[28:31], {V(VR+4*t,4)}, {V(KR+4*t,4)}, {c}")
st(5)
C("hi + lo, scale to the workgroup max, own slot in LDS; the last wave sums the slots and publishes o")
for i in range(4):
    A(f"v_add_f32_dpp v{28+i}, v{28+i}, v{28+i} row_ror:8 {DPP}")
A("v_pk_mul_f32 v[28:29], v[28:29], v[18:19] op_sel_hi:[1,0]\nv_pk_mul_f32 v[30:31], v[30:31], v[18:19] op_sel_hi:[1,0]")
A("s_mov_b32 exec_lo, 0x00ff00ff\ns_mov_b32 exec_hi, 0x00ff00ff")
A(f"ds_write_b128 v34, v[28:31] offset:{OSL}")
A("s_mov_b64 exec, 1")
A(f"ds_add_rtn_u32 v12, v{vL}, v{vONE} offset:{C3-MX}")
A("s_mov_b64 exec, -1")
assert max(max(t) for t in TAB) == 4
P = lambda k: V(KR + 2 * k, 2)
for k in range(10):
    A(f"ds_read_b64 {P(k)}, v35 offset:{OSL+512*(2+k)}")
A("s_waitcnt lgkmcnt(6)")
A(f"v_readfirstlane_b32 s{sT0}, v12")
A(f"v_pk_add_f32 {P(0)}, {P(0)}, {P(1)}\nv_pk_add_f32 {P(2)}, {P(2)}, {P(3)}\ns_waitcnt lgkmcnt(2)")
A(f"v_pk_add_f32 {P(4)}, {P(4)}, {P(5)}\nv_pk_add_f32 {P(6)}, {P(6)}, {P(7)}\nv_pk_add_f32 {P(0)}, {P(0)}, {P(2)}\ns_waitcnt lgkmcnt(0)")
A(f"v_pk_add_f32 {P(8)}, {P(8)}, {P(9)}\nv_pk_add_f32 {P(4)}, {P(4)}, {P(6)}\nv_pk_add_f32 {P(0)}, {P(0)}, {P(8)}\nv_pk_add_f32 v[18:19], {P(0)}, {P(4)}")
tag([18])
A(f"s_cmp_lg_u32 s{sT0}, s{sN}\ns_cbranch_scc1 L_kv_end")
store_fs(f"buffer_store_dwordx2 v[18:19], v36, {R(rWS)}, 0 offen")
A(f"ds_write_b32 v{vL}, v{vONE} offset:{C5-MX}")
st(6)
A("L_kv_end:")
end_wave()

A("L_helper:")
for i in range(4):
    A(f"s_mov_b32 s{sOFF+i}, {i*4096}")
A(f"s_mov_b32 s{sZO2}, 16384\ns_mov_b32 s{sZO3}, 20480")
srd(rD, pX, 1024)
A("s_cmp_eq_u32 s3, 0\ns_cbranch_scc1 L_q")
A("s_cmp_ge_u32 s3, 4\ns_cbranch_scc1 L_idle")
A(f"s_lshl_b32 s{sT0}, s2, 4\ns_add_u32 s{sT0}, s{sT0}, s3\ns_cmp_eq_u32 s{sT0}, 2\ns_cbranch_scc0 L_roles")
C("""workgroup 0, wave 2: which 8 KiB half of d_ws lies next to this XCD?  Count loop turns until an uncached read of
either half lands (best of a few); d_debug[1] = 2 | (near half of XCDs 0-3).  A wrong answer costs only time.""")
A(f"""s_load_dword s80, s[{pWS}:{pWS+1}], {hex(PROBE)} glc
s_load_dword s81, s[{pWS}:{pWS+1}], {hex(PROBE+0x2000)} glc
s_mov_b32 s82, -1
s_mov_b32 s83, -1
s_mov_b32 s{sT2}, {opt['nprobe']}
s_waitcnt lgkmcnt(0)
L_probe:""")
for h in range(2):
    A(f"""s_not_b32 s{sT0}, s{80+h}
s_mov_b32 s{sT1}, 0
s_load_dword s{sT0}, s[{pWS}:{pWS+1}], {hex(PROBE+0x2000*h)} glc
L_probe{h}:
s_add_u32 s{sT1}, s{sT1}, 1
s_cmp_eq_u32 s{sT0}, s{80+h}
s_cbranch_scc1 L_probed{h}
s_cmp_lt_u32 s{sT1}, 0x1000
s_cbranch_scc1 L_probe{h}
L_probed{h}:
s_waitcnt lgkmcnt(0)
s_min_u32 s{82+h}, s{82+h}, s{sT1}""")
A(f"""s_sub_u32 s{sT2}, s{sT2}, 1
s_cmp_lg_u32 s{sT2}, 0
s_cbranch_scc1 L_probe
s_getreg_b32 s{sT0}, hwreg(HW_REG_XCC_ID)
s_bfe_u32 s{sT0}, s{sT0}, 0x10002
s_cmp_lt_u32 s83, s82
s_cselect_b32 s{sT1}, 3, 2
s_xor_b32 s{sT1}, s{sT1}, s{sT0}""")
if opt["loc"] != "probe":
    A(f"s_mov_b32 s{sT1}, {2 | opt['loc']}")
if STAMPS or opt.get("diag"):
    A(f"s_lshl_b32 s82, s82, 8\ns_lshl_b32 s83, s83, 20\ns_or_b32 s{sT1}, s{sT1}, s82\ns_or_b32 s{sT1}, s{sT1}, s83")
A(f"v_mov_b32 v4, s{sT1}\nv_mov_b32 v3, 4\ns_mov_b64 exec, 1")
A(f"global_store_dword v3, v4, s[{pDBG}:{pDBG+1}] sc1")
A("s_mov_b64 exec, -1\ns_branch L_roles")
A("L_idle:")
end_wave()

C("---- wave 0: LayerNorm(x) with the reference's bf16 roundings, q block by MFMA (xn (x) I operand)")
A("L_q:")
A("""v_and_b32 v28, 1, v0
v_lshlrev_b32 v28, 4, v28
v_mov_b32 v29, 0x100
v_lshlrev_b32 v29, v28, v29
v_mov_b32 v30, 0x0c0c0000
v_lshrrev_b32 v30, v28, v30
v_or_b32 v29, v29, v30
v_bfe_u32 v28, v0, 1, 3
v_mov_b32 v30, 0x0c0c0c0c""")
for i in range(4):
    A(f"v_cmp_eq_u32 vcc, {i}, v28\nv_cndmask_b32 v{20+i}, v30, v29, vcc")
A("s_waitcnt vmcnt(16)")
for j in range(4):
    A(f"v_lshlrev_b32 v{112+2*j}, 16, v{104+j}\nv_and_b32 v{113+2*j}, s{sHI}, v{104+j}")
A("v_add_f32 v36, v112, v113\nv_add_f32 v37, v114, v115\nv_add_f32 v34, v116, v117\nv_add_f32 v35, v118, v119")
A("v_add_f32 v36, v36, v37\nv_add_f32 v34, v34, v35\nv_add_f32 v36, v36, v34")
wave_allreduce("v_add_f32", 36, 37)
A(f"v_mul_f32 v36, {f32(1/512)}, v36")
for j in range(8):
    A(f"v_sub_f32 v{112+j}, v{112+j}, v36")
A("v_mul_f32 v37, v112, v112")
for j in range(1, 8):
    A(f"v_fmac_f32 v37, v{112+j}, v{112+j}")
wave_allreduce("v_add_f32", 37, 34)
A(f"v_mul_f32 v37, {f32(1/512)}, v37")
A(f"""v_cvt_pk_bf16_f32 v34, v36, v37
v_lshlrev_b32 v36, 16, v34
v_and_b32 v37, s{sHI}, v34
v_add_f32 v37, {f32(1e-5)}, v37
v_cvt_pk_bf16_f32 v37, v37, v37
v_and_b32 v37, s{sHI}, v37
v_sqrt_f32 v37, v37
v_cvt_pk_bf16_f32 v37, v37, v37
v_and_b32 v37, s{sHI}, v37
v_rcp_f32 v37, v37""")
for j in range(8):
    r = 12 + j
    A(f"""v_lshlrev_b32 v28, 16, v{r}
v_and_b32 v29, s{sHI}, v{r}
v_sub_f32 v28, v28, v36
v_sub_f32 v29, v29, v36
v_cvt_pk_bf16_f32 v30, v28, v29
v_lshlrev_b32 v28, 16, v30
v_and_b32 v29, s{sHI}, v30
v_mul_f32 v28, v28, v37
v_mul_f32 v29, v29, v37
v_cvt_pk_bf16_f32 v{r}, v28, v29""")
A(f"s_load_dword s{sN}, s[{pDBG}:{pDBG+1}], 0")
A("s_waitcnt vmcnt(0)")
st(1)
for t in range(16):
    src = 12 + t // 2
    if t % 2:
        A(f"v_lshrrev_b32 v{src}, 16, v{src}")
    b = 104 + 4 * (t % 2)
    for i in range(4):
        A(f"v_perm_b32 v{b+i}, v{src}, v{src}, v{20+i}")
    c = "0" if t == 0 else "v[24:27]"
    A(f"v_mfma_f32_16x16x32_bf16 v[24:27], {V(40+4*t,4)}, {V(b,4)}, {c}")
C("launch number: one try per scalar-cache line, then vector loads (bounded)")
srd(rA, pDBG, 256)
A(f"s_mov_b32 s{sCNT}, {opt['spin']}")
for k in range(1, 4):
    A(f"s_waitcnt lgkmcnt(0)\ns_cmp_lg_u32 s{sN}, 0\ns_cbranch_scc1 L_num_ok")
    if k > 1:
        A(f"s_sleep {opt['nsl']}")
    A(f"s_load_dword s{sN}, s[{pDBG}:{pDBG+1}], {64*k}")
A("v_mov_b32 v3, 0\ns_waitcnt lgkmcnt(0)")
A(f"""L_num:
s_cmp_lg_u32 s{sN}, 0
s_cbranch_scc1 L_num_ok
s_sub_u32 s{sCNT}, s{sCNT}, 1
s_cbranch_scc1 L_num_ok
buffer_load_dword v4, v3, {R(rA)}, 0 offen sc1
s_waitcnt vmcnt(0)
v_readfirstlane_b32 s{sN}, v4
s_branch L_num
L_num_ok:""")
tmo(99)
st(2)
A(f"s_and_b32 s{sT0}, s{sN}, s{sMASK}\nv_mov_b32 v{vT}, s{sT0}")
A(f"s_getreg_b32 s{sT2}, hwreg(HW_REG_XCC_ID)\ns_and_b32 s{sT2}, s{sT2}, 15")
A(f"s_bfe_u32 s{sLOC}, s{sN}, 0x3001c")
A(f"s_lshl_b32 s{sN}, s{sN}, 4\ns_or_b32 s{sN}, s{sN}, s{sT2}")
C("publish the block (lane-native layout); Z workgroups also say which XCD they run on")
A(f"s_lshl_b32 s{sT0}, s{sSLOT}, 9")
A(f"v_lshrrev_b32 v2, 4, v0\nv_and_b32 v3, 7, v0\nv_lshl_add_u32 v2, v2, 3, v3\nv_lshl_add_u32 v2, v2, 4, s{sT0}")
assert QS == 0
tag([24])
A("s_mov_b32 exec_lo, 0x00ff00ff\ns_mov_b32 exec_hi, 0x00ff00ff")
A(f"buffer_store_dwordx4 v[24:27], v2, {R(rWS)}, 0 offen sc1")
A("s_mov_b64 exec, -1")
A(f"s_lshl_b32 s{sT1}, s{sXG}, 7\ns_add_u32 s{sT1}, s{sT1}, {XC}\nv_lshl_add_u32 v5, v3, 2, s{sT1}")
A(f"s_cmp_eq_u32 s{sROLE}, 0\ns_cbranch_scc0 L_noxc")
A(f"s_lshl_b32 s{sT0}, s{sR}, 2\ns_add_u32 s{sT0}, s{sT0}, s{sT1}\nv_mov_b32 v3, s{sT0}\nv_mov_b32 v4, s{sN}\ns_mov_b64 exec, 1")
A(f"buffer_store_dword v4, v3, {R(rWS)}, 0 offen sc1")
A("s_mov_b64 exec, -1")
A("L_noxc:")
A(f"s_and_b32 s{sT0}, s{sSLOT}, 0xf8\ns_lshl_b32 s{sT0}, s{sT0}, 9\nv_add_u32 v7, s{sT0}, v8")
A("v_bfe_u32 v2, v0, 3, 2\nv_lshlrev_b32 v2, 2, v2\nv_lshrrev_b32 v3, 5, v0\nv_add_u32 v2, v2, v3\nv_and_b32 v3, 7, v0\nv_lshl_add_u32 v2, v2, 3, v3\nv_lshlrev_b32 v2, 1, v2")
C("bring the lines this workgroup will publish o and (max, sum) in into L2 now: a store to an absent line\nmakes its first reader wait for a fill from memory")
A(f"s_lshl_b32 s{sT0}, s{sSLOT}, 9\ns_add_u32 s{sT0}, s{sT0}, {OS}\nv_lshl_add_u32 v9, v0, 3, s{sT0}")
A(f"buffer_load_dword v28, v9, {R(rWS)}, 0 offen")
A(f"s_lshl_b32 s{sT0}, s{sSLOT}, 4\ns_add_u32 s{sT0}, s{sT0}, {ST}\nv_mov_b32 v9, s{sT0}")
A(f"buffer_load_dword v29, v9, {R(rWS)}, 0 offen")
A("s_waitcnt vmcnt(0)")
st(3)


def q_poll():
    for t in range(4):
        A(f"buffer_load_dwordx4 {V(112+4*t,4)}, v7, {R(rWS)}, 0 offen offset:{1024*t} sc1")
    A(f"buffer_load_dword v6, v5, {R(rWS)}, 0 offen sc1")


poll(q_poll, [112, 116, 120, 124], 10)
A(f"v_cmp_ne_u32 vcc, s{sN}, v6\ns_cmp_eq_u64 vcc, 0\ns_cselect_b32 s{sFAST}, 1, 0")
A(f"v_mov_b32 v4, s{sFAST}\nv_mov_b32 v5, v{vT}\nv_mov_b32 v6, s{sLOC}\nds_write_b64 v{vL}, v[4:5] offset:{FAST-MX}\nds_write_b32 v{vL}, v6 offset:{LOC-MX}")
for i in range(4):
    A(f"v_add_f32 v{112+i}, v{112+i}, v{116+i}\nv_add_f32 v{120+i}, v{120+i}, v{124+i}")
for i in range(4):
    A(f"v_add_f32 v{112+i}, v{112+i}, v{120+i}")
A("v_permlane32_swap_b32 v112, v113\nv_permlane32_swap_b32 v114, v115")
A("v_add_f32 v112, v112, v113\nv_add_f32 v114, v114, v115")
A("v_cvt_pk_bf16_f32 v112, v112, v114")
A(f"ds_write_b16 v2, v112 offset:{QL}\nds_write_b16_d16_hi v2, v112 offset:{QL+32}")
A(f"ds_write_b32 v{vL}, v{vONE} offset:{CQ-MX}")
st(4)
C("one CU fetches lines at 384 mod 1024 bytes markedly slower than any other stride-1024 set: every\nworkgroup pulls 16 of the group's 512 such wo lines into L2 for the Z workgroup that owns them")
srd(rA, pWO, 0x400000)
A(f"v_and_b32 v1, 15, v0\nv_lshlrev_b32 v1, 10, v1\ns_lshl_b32 s{sT0}, s{sSLOT}, 14\ns_add_u32 s{sT0}, s{sT0}, 384")
A(f"buffer_load_dword v162, v1, {R(rA)}, s{sT0} offen")


def loc_issue():
    A(f"v_mov_b32 v17, 4\nglobal_load_dword v18, v17, s[{pDBG}:{pDBG+1}] sc1")


def loc_finish():
    uid[0] += 1
    u = uid[0]
    A(f"""s_mov_b32 s{sCNT}, {opt['spin']}
L_loc{u}:
v_readfirstlane_b32 s{sT0}, v18
s_cmp_lg_u32 s{sT0}, 0
s_cbranch_scc1 L_locok{u}
s_sub_u32 s{sCNT}, s{sCNT}, 1
s_cbranch_scc1 L_locok{u}
global_load_dword v18, v17, s[{pDBG}:{pDBG+1}] sc1
s_waitcnt vmcnt(0)
s_branch L_loc{u}
L_locok{u}:""")
    tmo(u)
    A(f"""s_getreg_b32 s{sT1}, hwreg(HW_REG_XCC_ID)
s_lshl_b32 s{sT0}, s{sT0}, 2
s_xor_b32 s{sLOC}, s{sLOC}, s{sT0}
s_and_b32 s{sLOC}, s{sLOC}, 7
s_xor_b32 s{sT0}, s{sT0}, s{sT1}
s_lshl_b32 s{sT0}, s{sT0}, 11
s_and_b32 s{sT0}, s{sT0}, 0x2000
s_or_b32 s{sLOC}, s{sLOC}, s{sT0}""")


def chunk(dst, grp):
    A(f"s_add_u32 s{dst}, {grp}, s{sLOC}\ns_lshl_b32 s{sT3}, s{dst}, 11")
    A(f"s_and_b32 s{sT3}, s{sT3}, 0x2000\ns_and_b32 s{dst}, s{dst}, 3\ns_lshl_b32 s{dst}, s{dst}, 8\ns_or_b32 s{dst}, s{dst}, s{sT3}")


def f_setup(par):
    A(f"s_lshl_b32 s{sT0}, s{sXG}, 3\ns_add_u32 s{sT0}, s{sT0}, s{sR}\ns_lshl_b32 s{sT0}, s{sT0}, 3")
    if par:
        A(f"s_add_u32 s{sT0}, s{sT0}, 4")
    A(f"s_and_b32 s{sT2}, s{sLOC}, 0x2000\ns_add_u32 s{sT2}, s{sT2}, {ZS}")
    A(f"v_lshrrev_b32 v20, 4, v0\nv_add_u32 v20, s{sT0}, v20\nv_lshlrev_b32 v21, 1, v20\nv_lshl_add_u32 v20, v20, 2, s{sT2}")
    A(f"s_lshl_b32 s{sT0}, s{sT0}, 2\ns_and_b32 s{sT1}, s{sT0}, 0x780\ns_add_u32 s{sT1}, s{sT1}, s{sT2}")
    A(f"v_bfe_u32 v27, v0, 3, 2\nv_lshlrev_b32 v27, 11, v27\nv_lshrrev_b32 v22, 5, v0\nv_lshl_add_u32 v27, v22, 14, v27\nv_and_b32 v23, 7, v0\nv_lshl_add_u32 v27, v23, 4, v27\nv_add_u32 v27, s{sT1}, v27")
    chunk(sT1, f"s{sXG}")
    A(f"s_and_b32 s{sT0}, s{sT0}, 0xff\ns_add_u32 s{sT0}, s{sT0}, s{sT1}\ns_add_u32 s{sT0}, s{sT0}, {PS}")
    A(f"v_lshrrev_b32 v22, 3, v0\nv_lshlrev_b32 v22, 14, v22\nv_lshl_add_u32 v22, v23, 10, v22\nv_add_u32 v22, s{sT0}, v22\nv_add_u32 v23, {8*16384}, v22")
    srd(rB, pOUT, 1024)
    A(f"buffer_load_ushort v26, v21, {R(rD)}, 0 offen")


A("L_roles:")
A(f"s_cmp_eq_u32 s{sROLE}, 1\ns_cbranch_scc1 L_mlp")
A(f"s_cmp_eq_u32 s{sROLE}, 0\ns_cbranch_scc1 L_z")
C("wave 0 of the group's first 8 role-free workgroups takes the other half of the F stage")
A(f"s_cmp_eq_u32 s3, 0\ns_cbranch_scc0 L_idle\ns_cmp_lt_u32 s{sR}, 8\ns_cbranch_scc0 L_idle")
spin(C5, 1, 10, sleep=4)
loc_issue()
A("s_waitcnt vmcnt(0)")
loc_finish()
f_setup(1)
C("z cannot be there before the group's o has been merged: stay off the memory pipeline until then")
A(f"s_sleep {opt['f0delay']}\ns_branch L_fin")

C("---- Z role: wave w owns head w of the group; wo tile -> LDS (DMA) -> transposed MFMA operands")
A("L_z:")
ZB, ZO, ZST, ZA, ZD = 40, 104, 120, 124, 140
srd(rA, pWO, 0x400000)
A(f"s_lshl_b32 s{sT0}, s{sXG}, 2\ns_add_u32 s{sT0}, s{sT0}, s3\ns_lshl_b32 s{sT0}, s{sT0}, 17\ns_lshl_b32 s{sT1}, s{sR}, 7\ns_add_u32 s{sT0}, s{sT0}, s{sT1}")
C("image row k holds wo row d(k): o is handed on in the order k = gq*32 + n*4 + i for d = gq*32 + i*8 + n")
A(f"v_bfe_u32 v1, v0, 3, 2\nv_lshrrev_b32 v2, 5, v0\nv_lshl_add_u32 v1, v1, 3, v2\nv_lshlrev_b32 v1, 10, v1\nv_and_b32 v2, 7, v0\nv_lshl_add_u32 v1, v2, 4, v1\nv_add_u32 v1, s{sT0}, v1")
A(f"s_lshl_b32 s{sIMG}, s3, 14\ns_add_u32 s{sIMG}, s{sIMG}, {WIMG}")
A(f"v_lshrrev_b32 v3, 4, v0\nv_lshlrev_b32 v3, 3, v3\nv_bfe_u32 v4, v0, 2, 2\nv_add_u32 v3, v3, v4\nv_lshlrev_b32 v3, 7, v3\nv_and_b32 v4, 3, v0\nv_lshl_add_u32 v3, v4, 3, v3\nv_add_u32 v3, s{sIMG}, v3")
A(f"s_lshl_b32 s{sT0}, s{sXG}, 5\ns_lshl_b32 s{sT1}, s3, 3\ns_add_u32 s{sT0}, s{sT0}, s{sT1}")
A(f"s_lshl_b32 s{sT1}, s{sT0}, 9\ns_add_u32 s{sT1}, s{sT1}, {OS}\nv_add_u32 v4, s{sT1}, v8")
A(f"s_lshl_b32 s{sT1}, s{sT0}, 4\ns_add_u32 s{sT1}, s{sT1}, {ST}\nv_lshl_add_u32 v5, v2, 4, s{sT1}")
A(f"s_lshl_b32 s{sT0}, s3, 8\ns_add_u32 s{sT1}, s{sT0}, {ZP}\nv_lshl_add_u32 v25, v0, 2, s{sT1}\ns_add_u32 s{sT0}, s{sT0}, {SCR}")
A(f"v_lshrrev_b32 v7, 4, v0\nv_lshl_add_u32 v7, v7, 4, s{sT0}")
A(f"v_and_b32 v9, 31, v0\nv_lshlrev_b32 v9, 3, v9\nv_lshrrev_b32 v10, 5, v0\nv_lshl_add_u32 v9, v10, 2, v9\nv_add_u32 v9, s{sT0}, v9")
A(f"s_lshr_b32 s{sT0}, s{sXG}, 2\ns_lshl_b32 s{sT0}, s{sT0}, 14\ns_and_b32 s{sT1}, s{sXG}, 3\ns_lshl_b32 s{sT1}, s{sT1}, 11\ns_add_u32 s{sT0}, s{sT0}, s{sT1}")
A(f"s_lshl_b32 s{sT1}, s{sR}, 8\ns_add_u32 s{sT0}, s{sT0}, s{sT1}\ns_add_u32 s{sT0}, s{sT0}, {ZS}")
A(f"v_and_b32 v6, 15, v0\nv_lshlrev_b32 v6, 4, v6\nv_bfe_u32 v10, v0, 4, 1\nv_lshl_add_u32 v24, v10, 13, v6\nv_add_u32 v24, s{sT0}, v24")
spin(C1, f"s{sNKV}", 10, f"ds_read_b32 v{vT}, v{vL} offset:{TAG-MX}\nds_read_b32 v11, v{vL} offset:{LOC-MX}", sleep=4)
A(f"v_readfirstlane_b32 s{sLOC}, v11")
A(f"buffer_load_dword v28, v24, {R(rWS)}, 0 offen")
for t in range(16):
    A(f"s_add_u32 m0, s{sIMG}, {t*1024}\ns_mov_b32 s{sT1}, {((t>>2)*32+(t&3)*2)*1024}")
    A(f"buffer_load_dwordx4 v1, {R(rA)}, s{sT1} offen{NT} lds")
loc_issue()
A("s_waitcnt vmcnt(0)")
for kb in range(4):
    for nt in range(4):
        for hf in range(2):
            A(f"ds_read_b64_tr_b16 {V(ZB+(kb*4+nt)*4+2*hf,2)}, v3 offset:{kb*4096+hf*512+nt*32}")
loc_finish()
f_setup(0)
st(5)
C("softmax weights of the head's 8 workgroups; the upper half-wave keeps those of the odd ones")
poll(lambda: A(f"buffer_load_dwordx4 {V(ZST,4)}, v5, {R(rWS)}, 0 offen sc1"), list(range(ZST, ZST + 4)), 10)
A(f"""v_max_f32_dpp v16, v{ZST}, v{ZST} quad_perm:[1,0,3,2] {DPP}
v_max_f32_dpp v16, v16, v16 quad_perm:[2,3,0,1] {DPP}
v_max_f32_dpp v16, v16, v16 row_half_mirror {DPP}
v_sub_f32 v16, v{ZST}, v16
v_exp_f32 v16, v16
v_mul_f32 v11, v16, v{ZST+1}
v_add_f32_dpp v11, v11, v11 quad_perm:[1,0,3,2] {DPP}
v_add_f32_dpp v11, v11, v11 quad_perm:[2,3,0,1] {DPP}
v_add_f32_dpp v11, v11, v11 row_half_mirror {DPP}
v_rcp_f32 v11, v11
v_mul_f32 v16, v16, v11
v_mov_b32_dpp v16, v16 row_ror:15 row_mask:0xc bank_mask:0xf""")
spin(C3, f"s{sNKV}", 10)
st(2)
poll4([(f"buffer_load_dwordx4 {V(ZO+4*t,4)}, v4, {R(rWS)}, 0 offen offset:{1024*t} sc1", [ZO + 4 * t, ZO + 4 * t + 2]) for t in range(4)], 10)
if opt.get("diag"):
    A("s_memrealtime s[98:99]")
st(6)
for t in range(4):
    for i in range(4):
        op = "v_mul_f32_dpp" if t == 0 else "v_fmac_f32_dpp"
        A(f"{op} v{12+i}, v16, v{ZO+4*t+i} row_newbcast:{2*t} {DPP}")
A("v_permlane32_swap_b32 v12, v14\nv_permlane32_swap_b32 v13, v15")
A("v_add_f32 v12, v12, v14\nv_add_f32 v13, v13, v15")
A("v_cvt_pk_bf16_f32 v12, v12, v13\nds_write_b32 v9, v12")
for kb in range(4):
    A(f"ds_read_b128 {V(ZA+4*kb,4)}, v7 offset:{64*kb}")
for kb in range(4):
    A(f"s_waitcnt lgkmcnt({3-kb})")
    for nt in range(4):
        c = "0" if kb == 0 else V(ZD + 4 * nt, 4)
        A(f"v_mfma_f32_16x16x32_bf16 {V(ZD+4*nt,4)}, {V(ZA+4*kb,4)}, {V(ZB+(kb*4+nt)*4,4)}, {c}")
for nt in range(1, 4):
    A(f"v_mov_b32_dpp v{ZD}, v{ZD+4*nt} quad_perm:[0,1,2,3] row_mask:{hex(1<<nt)} bank_mask:0xf")
C("the wave that arrives last sums the four heads and publishes")
A(f"ds_write_b32 v25, v{ZD}")
A("s_mov_b64 exec, 1")
A(f"ds_add_rtn_u32 v10, v{vL}, v{vONE} offset:{C4-MX}")
A("s_mov_b32 exec_lo, -1")
for w in range(4):
    A(f"ds_read_b128 {V(12 if w == 0 else ZA+4*w,4)}, v6 offset:{ZP+256*w}")
A("s_waitcnt lgkmcnt(2)")
A(f"v_readfirstlane_b32 s{sT0}, v10")
A(f"v_pk_add_f32 v[12:13], v[12:13], {V(ZA+4,2)}\nv_pk_add_f32 v[14:15], v[14:15], {V(ZA+6,2)}\ns_waitcnt lgkmcnt(0)")
A(f"v_pk_add_f32 {V(ZA+8,2)}, {V(ZA+8,2)}, {V(ZA+12,2)}\nv_pk_add_f32 {V(ZA+10,2)}, {V(ZA+10,2)}, {V(ZA+14,2)}")
A(f"v_pk_add_f32 v[12:13], v[12:13], {V(ZA+8,2)}\nv_pk_add_f32 v[14:15], v[14:15], {V(ZA+10,2)}")
tag([12])
A(f"s_cmp_lg_u32 s{sT0}, 3\ns_cbranch_scc1 L_z_notlast")
A(f"buffer_store_dwordx4 v[12:15], v24, {R(rWS)}, 0 offen sc1")
st(7)
A("L_z_notlast:")
A("s_mov_b64 exec, -1")
A("s_cmp_eq_u32 s3, 1\ns_cbranch_scc1 L_fin")
end_wave()

C("---- F stage: h for 4 columns (the first words of the line's 8 granules vouch for it), then the 86 MLP partial sums")
A("L_fin:")
poll(lambda: A(f"buffer_load_dword v28, v27, {R(rWS)}, 0 offen sc1"), [28], 10)
ZOFF = [f"s{sOFF}", f"s{sOFF+1}", f"s{sZO2}", f"s{sZO3}"]
for x in range(8):
    A(f"buffer_load_dword v{104+x}, v20, {R(rWS)}, {ZOFF[x//2]} offen offset:{2048*(x%2)} sc1")
A("v_mov_b32 v116, 0\nv_mov_b32 v117, 0\nv_mov_b32 v118, 0\nv_mov_b32 v119, 0")
A("s_waitcnt vmcnt(0)\ns_mov_b64 exec, 0xffff")
for x in range(8):
    A(f"v_xor_b32 v{104+x}, v{104+x}, v{vT}")
A("s_mov_b64 exec, -1")
st(1)
A("""v_add_f32 v104, v104, v106
v_add_f32 v105, v105, v107
v_add_f32 v104, v104, v108
v_add_f32 v105, v105, v109
v_add_f32 v104, v104, v110
v_add_f32 v105, v105, v111
v_add_f32 v104, v104, v105
v_lshlrev_b32 v26, 16, v26
v_add_f32 v104, v104, v26
v_cvt_pk_bf16_f32 v104, v104, v104
v_lshlrev_b32 v104, 16, v104""")
C("back off until the MLP stage is about done: a line read before it is written costs its writer an invalidation")
A(f"s_sleep {opt['fdelay']}")
TAILMASK = (1 << (NMLP - 64)) - 1


def f_poll2():
    A(f"buffer_load_dwordx4 v[112:115], v22, {R(rWS)}, 0 offen sc1")
    A(f"s_mov_b64 exec, {hex(TAILMASK)}\nbuffer_load_dwordx4 v[116:119], v23, {R(rWS)}, 0 offen sc1\ns_mov_b64 exec, -1")


poll(f_poll2, list(range(112, 116)), 10, masked=(TAILMASK, list(range(116, 120))))
st(2)
A("v_pk_add_f32 v[112:113], v[112:113], v[116:117]\nv_pk_add_f32 v[114:115], v[114:115], v[118:119]")
A("v_permlane32_swap_b32 v112, v114\nv_permlane32_swap_b32 v113, v115")
A("v_add_f32 v112, v112, v114\nv_add_f32 v113, v113, v115")
A("v_permlane16_swap_b32 v112, v113\nv_add_f32 v112, v112, v113")
row_allreduce("v_add_f32", 112)
A("v_add_f32 v112, v112, v104\nv_cvt_pk_bf16_f32 v112, v112, v112")
A("s_mov_b32 exec_lo, 0x00010001\ns_mov_b32 exec_hi, 0x00010001")
A(f"buffer_store_short v112, v21, {R(rB)}, 0 offen")
if opt.get("diag"):
    A(f"s_cmp_eq_u32 s{sI}, 0\ns_cbranch_scc0 L_exit\ns_cmp_eq_u32 s3, 1\ns_cbranch_scc0 L_exit")
    A("s_memrealtime s[96:97]\ns_waitcnt lgkmcnt(0)\ns_sub_u32 s94, s96, s98\ns_min_u32 s94, s94, 1000")
    A("s_mov_b32 s90, s94\ns_lshl_b32 s94, s94, 3\nL_amp:\ns_memrealtime s[92:93]\ns_waitcnt lgkmcnt(0)\ns_sub_u32 s92, s92, s96\ns_cmp_lt_u32 s92, s94\ns_cbranch_scc1 L_amp")
    A(f"s_lshl_b32 s{sT0}, s{sXG}, 2\nv_mov_b32 v1, s{sT0}\ns_lshl_b32 s91, s{sLOC}, 16\ns_or_b32 s90, s90, s91\nv_mov_b32 v2, s90\ns_mov_b64 exec, 1")
    A(f"global_store_dword v1, v2, s[{pDBG}:{pDBG+1}] offset:8 sc1")
st(3)
end_wave()

C("---- MLP role: wave w owns rows 128w.. of w_gate / w_up and columns 128w.. of w_down; weights load after this\nworkgroup's own K/V stream; g = ((h - mean).W) * rstd is evaluated as (h.W - mean * colsum(W)) * rstd")
A("L_mlp:")
srd(rA, pWG, 512 * 2752)
srd(rB, pWU, 512 * 2752)
srd(rC, pWD, 1376 * 1024)
A(f"s_lshl_b32 s{sT0}, s3, 7\nv_lshrrev_b32 v1, 1, v0\nv_add_u32 v1, s{sT0}, v1\nv_mul_u32_u24 v1, 2752, v1")
A(f"v_and_b32 v2, 1, v0\nv_lshl_add_u32 v1, v2, 4, v1\ns_lshl_b32 s{sT0}, s{sR}, 5\nv_add_u32 v1, s{sT0}, v1")
A(f"s_lshl_b32 s{sIMG}, s3, 14\ns_add_u32 s{sIMG}, s{sIMG}, {WIMG}")
A(f"v_lshrrev_b32 v3, 4, v0\nv_lshlrev_b32 v3, 3, v3\nv_bfe_u32 v4, v0, 2, 2\nv_add_u32 v3, v3, v4\nv_lshlrev_b32 v3, 5, v3\nv_and_b32 v2, 3, v0\nv_lshl_add_u32 v3, v2, 3, v3\nv_add_u32 v3, s{sIMG}, v3")
A(f"s_lshl_b32 s{sT0}, s3, 9\ns_add_u32 s{sT0}, s{sT0}, {ZS}\nv_lshrrev_b32 v2, 5, v0\nv_and_b32 v21, 31, v0\nv_lshlrev_b32 v4, 11, v2\nv_lshl_add_u32 v4, v21, 4, v4\nv_add_u32 v4, s{sT0}, v4")
A(f"v_lshlrev_b32 v21, 3, v21\nv_lshl_add_u32 v5, v2, 2, v21\ns_lshl_b32 s{sT0}, s3, 8\nv_add_u32 v5, s{sT0}, v5\nv_add_u32 v6, {SCR}, v5")
A(f"s_add_u32 s{sT0}, s{sT0}, {SCR}\nv_lshrrev_b32 v7, 4, v0\nv_lshl_add_u32 v7, v7, 4, s{sT0}")
A(f"s_lshl_b32 s{sT0}, s{sR}, 14\ns_lshl_b32 s{sT1}, s3, 8\ns_add_u32 s{sT0}, s{sT0}, s{sT1}")
A(f"v_lshrrev_b32 v20, 4, v0\nv_lshlrev_b32 v20, 10, v20\nv_and_b32 v22, 15, v0\nv_lshl_add_u32 v20, v22, 4, v20\nv_add_u32 v20, s{sT0}, v20")
A(f"s_add_u32 s{sT0}, s{sIMG}, 8192\nv_lshl_add_u32 v19, v0, 2, s{sT0}")
A(f"v_lshlrev_b32 v22, 3, v22\ns_lshl_b32 s{sT0}, s3, 7\ns_add_u32 s{sT0}, s{sT0}, {ZP}\nv_add_u32 v25, s{sT0}, v22")
A(f"v_lshlrev_b32 v23, 2, v2\nv_add_u32 v23, {SQ}, v23\nv_mov_b32 v24, {SQ}")
for i in range(4):
    A(f"v_mov_b32 v{116+i}, 0x3f803f80")
A(f"s_mov_b32 s{sM1}, 0x05040100\ns_mov_b32 s{sM1+1}, 0x07060302")
A(f"v_mov_b32 v30, 0\nv_mov_b32 v31, 0\nv_mov_b32 v29, {f32(1/512)}")
A(f"s_lshr_b32 s{sT4}, s{sR}, 3\ns_lshl_b32 s{sT4}, s{sT4}, 14\ns_and_b32 s{sT3}, s{sR}, 7\ns_lshl_b32 s{sT3}, s{sT3}, 10\ns_add_u32 s{sT4}, s{sT4}, s{sT3}\ns_add_u32 s{sT4}, s{sT4}, {PS}")
A(f"v_bfe_u32 v9, v0, 3, 1\nv_lshlrev_b32 v9, 13, v9\nv_and_b32 v10, 7, v0\nv_lshl_add_u32 v9, v10, 7, v9\nv_add_u32 v9, s{sT4}, v9")
spin(C5, 1, 10, f"ds_read_b32 v{vT}, v{vL} offset:{TAG-MX}\nds_read_b32 v11, v{vL} offset:{LOC-MX}")
A(f"v_readfirstlane_b32 s{sLOC}, v11")
st(2)
for t in range(4):
    A(f"s_add_u32 m0, s{sIMG}, {t*1024}\ns_mov_b32 s{sT1}, {t*32*2752}")
    A(f"buffer_load_dwordx4 v1, {R(rA)}, s{sT1} offen lds")
    A(f"s_add_u32 m0, s{sIMG}, {4096+t*1024}")
    A(f"buffer_load_dwordx4 v1, {R(rB)}, s{sT1} offen lds")
for t in range(4):
    A(f"s_add_u32 m0, s{sIMG}, {8192+t*1024}")
    A(f"buffer_load_dwordx4 v20, {R(rC)}, s{sOFF+t} offen{NT} lds")
A(f"buffer_load_dword v26, v5, {R(rD)}, 0 offen")
A(f"buffer_load_dword v28, v9, {R(rWS)}, 0 offen")
loc_issue()
st(5)
A("s_waitcnt vmcnt(0)")
for kb in range(4):
    for tl in range(2):
        for hf in range(2):
            A(f"ds_read_b64_tr_b16 {V(40+(kb*2+tl)*4+2*hf,2)}, v3 offset:{kb*1024+hf*128+tl*4096}")
for r in range(0, 16, 2):
    A(f"ds_read2st64_b32 {V(120+r,2)}, v19 offset0:{r} offset1:{r+1}")
loc_finish()
C("p chunk addresses: the lower / upper half-wave serves group 2w / 2w + 1; z is read from the near half")
A(f"s_lshl_b32 s{sT2}, s3, 1")
chunk(sT0, f"s{sT2}")
A(f"s_add_u32 s{sT2}, s{sT2}, 1")
chunk(sT1, f"s{sT2}")
A(f"s_add_u32 s{sT0}, s{sT0}, s{sT4}\ns_add_u32 s{sT1}, s{sT1}, s{sT4}\nv_add_u32 v10, s{sT1}, v21\nv_add_u32 v21, s{sT0}, v21")
A("s_mov_b32 exec_lo, 0\nv_mov_b32 v21, v10\ns_mov_b32 exec_lo, -1")
A(f"s_and_b32 s{sT0}, s{sLOC}, 0x2000\nv_add_u32 v4, s{sT0}, v4")
A(f"v_lshlrev_b32 v27, 16, v26\nv_and_b32 v26, s{sHI}, v26")
A("s_waitcnt lgkmcnt(0)")
for kb in range(4):
    for tl in range(2):
        c = "0" if kb == 0 else V(108 + 4 * tl, 4)
        A(f"v_mfma_f32_16x16x32_bf16 {V(108+4*tl,4)}, v[116:119], {V(40+(kb*2+tl)*4,4)}, {c}")
for i in range(8):
    A(f"v_perm_b32 v{136+i}, v{121+2*i}, v{120+2*i}, s{sM1}\nv_perm_b32 v{144+i}, v{121+2*i}, v{120+2*i}, s{sM1+1}")
A("s_mov_b64 exec, 0xffff")
A(f"ds_add_f32 v22, v108 offset:{CS}\nds_add_f32 v22, v112 offset:{CS+4}")
A("s_mov_b64 exec, -1")
st(1)
poll4([(f"buffer_load_dwordx4 {V(72+4*t,4)}, v4, {R(rWS)}, {ZOFF[t]} offen sc1", [72 + 4 * t]) for t in range(4)], 10)
st(6)
for t in range(1, 4):
    for i in (0, 2):
        A(f"v_pk_add_f32 {V(72+i,2)}, {V(72+i,2)}, {V(72+4*t+i,2)}")
A("v_permlane32_swap_b32 v72, v74\nv_permlane32_swap_b32 v73, v75")
A("""v_add_f32 v72, v72, v74
v_add_f32 v73, v73, v75
v_add_f32 v72, v72, v27
v_add_f32 v73, v73, v26
v_cvt_pk_bf16_f32 v72, v72, v73
ds_write_b32 v6, v72""")
for kb in range(4):
    A(f"ds_read_b128 {V(92+4*kb,4)}, v7 offset:{64*kb}")
A(f"""v_lshlrev_b32 v73, 16, v72
v_and_b32 v72, s{sHI}, v72
v_add_f32 v74, v72, v73
v_mul_f32 v75, v72, v72
v_fmac_f32 v75, v73, v73""")
A("v_permlane32_swap_b32 v74, v75\nv_add_f32 v74, v74, v75")
for kb in range(4):
    A(f"s_waitcnt lgkmcnt({3-kb})")
    for tl in range(2):
        c = "0" if kb == 0 else V(108 + 4 * tl, 4)
        A(f"v_mfma_f32_16x16x32_bf16 {V(108+4*tl,4)}, {V(92+4*kb,4)}, {V(40+(kb*2+tl)*4,4)}, {c}")
    A(f"v_add_f32_dpp v74, v74, v74 row_ror:{(8, 4, 2, 1)[kb]} {DPP}")
A("s_mov_b32 exec_lo, 0x00010001\ns_mov_b32 exec_hi, 0x00010001")
A("ds_add_f32 v23, v74")
A("s_mov_b64 exec, 0xffff")
A("ds_write2_b32 v25, v108, v112 offset0:0 offset1:1")
A("s_mov_b64 exec, -1")
A("s_waitcnt lgkmcnt(0)\ns_barrier")
A(f"ds_read_b64 v[16:17], v24\nds_read_b64 v[14:15], v22 offset:{CS}")
for w in range(4):
    A(f"ds_read_b64 {V(12 if w == 0 else 92+2*w,2)}, v22 offset:{ZP+128*w}")
C("mean, rstd; sigmoid(g) * u for feature lane & 15; its share of w_down")
A(f"""s_waitcnt lgkmcnt(5)
v_mul_f32 v16, v16, v29
v_fmaak_f32 v17, v17, v29, {f32(1e-5)}
v_fma_f32 v17, -v16, v16, v17
v_max_f32 v17, {f32(1e-5)}, v17
v_rsq_f32 v17, v17
s_waitcnt lgkmcnt(0)
v_pk_add_f32 v[12:13], v[12:13], v[94:95]
v_pk_add_f32 v[96:97], v[96:97], v[98:99]
v_pk_add_f32 v[12:13], v[12:13], v[96:97]
v_mul_f32 v18, {f32(-1.4426950408889634)}, v17
v_fma_f32 v12, -v16, v14, v12
v_fma_f32 v13, -v16, v15, v13
v_mul_f32 v12, v12, v18
v_exp_f32 v12, v12
v_mul_f32 v13, v13, v17
v_add_f32 v12, 1.0, v12
v_rcp_f32 v12, v12
s_nop 0
v_mul_f32 v12, v12, v13
v_mov_b32_dpp v13, v12 quad_perm:[1,0,3,2] {DPP}
v_cvt_pk_bf16_f32 v12, v12, v13""")
for i in range(8):
    A(f"v_dot2c_f32_bf16_dpp v30, v12, v{136+i} row_newbcast:{2*i} {DPP}")
    A(f"v_dot2c_f32_bf16_dpp v31, v12, v{144+i} row_newbcast:{2*i} {DPP}")
tag([30, 31])
A(f"buffer_store_dwordx2 v[30:31], v21, {R(rWS)}, 0 offen sc1")
st(7)
end_wave()

if STAMPS:
    A("L_stamps:")
    A("s_mov_b64 exec, 1")
    A("s_waitcnt lgkmcnt(0)\ns_memrealtime s[4:5]\ns_waitcnt lgkmcnt(0)\ns_memtime s[6:7]")
    A(f"s_mul_i32 s{sT0}, s2, 12\ns_add_u32 s{sT0}, s{sT0}, s3\ns_lshl_b32 s{sT0}, s{sT0}, 6\ns_add_u32 s{sT0}, s{sT0}, {STAMP}")
    A(f"v_mov_b32 v1, s{sT0}\ns_waitcnt lgkmcnt(0)")
    for k in range(8):
        A(f"v_mov_b32 v{4+k}, s{sST+2*k}")
    A(f"v_mov_b32 v12, s100\nv_mov_b32 v13, s4\nv_mov_b32 v14, s6\nv_mov_b32 v15, s{sLOC}")
    A(f"v_mov_b32 v16, s{sROLE}\nv_mov_b32 v17, s{sNKV}\nbuffer_store_dwordx2 v[16:17], v1, {R(rWS)}, 0 offen offset:48")
    A(f"buffer_store_dwordx4 v[4:7], v1, {R(rWS)}, 0 offen\nbuffer_store_dwordx4 v[8:11], v1, {R(rWS)}, 0 offen offset:16\nbuffer_store_dwordx4 v[12:15], v1, {R(rWS)}, 0 offen offset:32")
A("L_exit:")
A("s_endpgm")

body, problems = fix_hazards(L)
for p in problems:
    print("HAZARD:", p, file=sys.stderr)
for line in body:
    out.append(line if line.endswith(":") and not line.startswith(";") else "    " + line)
out.append(".p2align 2\n.type L_table,@object\nL_table:")
for k in range(0, 256, 8):
    out.append("    .short " + ", ".join(hex(v) for v in TABLE[k:k+8]))
out.append(".size L_table, 512\nL_last:")
out.append(f""".section .rodata,"a"
.p2align 6
.amdhsa_kernel {NAME}_kernel
  .amdhsa_next_free_vgpr 168
  .amdhsa_next_free_sgpr 102
  .amdhsa_accum_offset 168
  .amdhsa_group_segment_fixed_size 0
  .amdhsa_kernarg_size 96
  .amdhsa_user_sgpr_count 2
  .amdhsa_user_sgpr_kernarg_segment_ptr 1
  .amdhsa_system_sgpr_workgroup_id_x 1
  .amdhsa_float_denorm_mode_32 3
.end_amdhsa_kernel""")
open(sys.argv[1], "w").write("\n".join(out) + "\n")
```

```python
import os, sys, struct
from asmlib import fix_hazards

NAME = "sequential_preLN__mha_block_cached__glu_gated_glu__decode"
opt = dict(stamps=0, nv1=4, fdelay=24, f0delay=18, spin=60000, loc="probe", nprobe=5, mov=0, pfs=5, sp3="x21100444", sp2="x11004433",
           spl="x10104433", nsl=12)
for a in sys.argv[2:]:
    k, v = a.split("=")
    opt[k] = v if not v.lstrip("-").isdigit() else int(v)
STAMPS = opt["stamps"]
NV1 = opt["nv1"]
NE = 4
NT = " nt"


def f32(x):
    return "0x%08x" % struct.unpack("<I", struct.pack("<f", x))[0]


QS, OS, ST, XC, EPOCH, PROBE, ZS, PS, STAMP = 0x0, 0x20000, 0x40000, 0x41000, 0x42000, 0x44000, 0x48000, 0x50000, 0x80000
NMLP = 86
TAGMASK = 0x3ff
QL, MX, SQ, CS, ZP, SCR, OSL, WIMG = 0, 256, 272, 1024, 1536, 3072, 4096, 10240
CQ, C1, C5, C3, C4, FAST, TAG, LOC, ML = 280, 284, 288, 292, 296, 304, 308, 312, 384
LDS_BYTES = WIMG + 4 * 16384
pX, pK, pV, pWQ, pWO, pWG, pWU, pWD, pOUT, pDBG, pWS = 4, 6, 8, 10, 12, 16, 18, 20, 22, 24, 26
rA, rB, rWS, rC, rD = 28, 32, 36, 44, 48
sNKV, sROLE, sMASK, sN = 40, 41, 42, 43
sXG, sI, sSLOT, sR, sT0, sT1, sCNT, sFAST = 52, 53, 54, 55, 56, 57, 58, 59
sM1, sM0, sU, sIMG, sC2, sHI = 60, 62, 64, 65, 66, 67
sOFF = 68
sZO2, sZO3, sCUR, sTAB, sLOC, sT2, sT3, sT4 = 72, 73, 74, 75, 76, 77, 78, 79
sST = 84
vT, vONE, vL = 38, 39, 33
KR, VR = 40, 104
DPP = "row_mask:0xf bank_mask:0xf"

L = []
uid = [0]


def A(s):
    for line in s.split("\n"):
        line = line.strip()
        if line:
            L.append(line)


def C(s):
    for line in s.strip().split("\n"):
        L.append("; " + line.strip())


def srd(r, p, size):
    A(f"s_mov_b32 s{r}, s{p}\ns_mov_b32 s{r+1}, s{p+1}\ns_mov_b32 s{r+2}, {hex(size)}\ns_mov_b32 s{r+3}, 0x20000")


def R(r):
    return f"s[{r}:{r+3}]"


def V(a, n):
    return f"v[{a}:{a+n-1}]"


def st(k):
    if STAMPS:
        A(f"s_memtime s[{sST+2*k}:{sST+2*k+1}]")


def end_wave():
    A("s_branch L_stamps" if STAMPS else "s_endpgm")


def row_allreduce(op, a):
    for n in (8, 4, 2, 1):
        A(f"{op}_dpp v{a}, v{a}, v{a} row_ror:{n} {DPP}")


def wave_allreduce(op, a, t, first=None):
    if first is None:
        row_allreduce(op, a)
    else:
        A(f"{op}_dpp v{a}, v{first}, v{first} row_ror:8 {DPP}")
        for n in (4, 2, 1):
            A(f"{op}_dpp v{a}, v{a}, v{a} row_ror:{n} {DPP}")
    for sw in ("v_permlane16_swap_b32", "v_permlane32_swap_b32"):
        A(f"v_mov_b32 v{t}, v{a}\n{sw} v{a}, v{t}\n{op} v{a}, v{a}, v{t}")


def tag(regs):
    for r in regs:
        A(f"v_bfi_b32 v{r}, s{sMASK}, v{vT}, v{r}")


def tmo(u):
    if opt.get("tmo"):
        A(f"s_cmp_eq_u32 s{sCNT}, -1\ns_cbranch_scc0 L_notmo{u}\ns_lshl_b32 s{sCNT}, s2, 8\ns_or_b32 s{sCNT}, s{sCNT}, {u}\nv_mov_b32 v161, s{sCNT}\nv_mov_b32 v160, 0x7f000\nbuffer_store_dword v161, v160, {R(rWS)}, 0 offen sc1\nL_notmo{u}:")


def poll(loads, regs, tmp, masked=None):
    uid[0] += 1
    u = uid[0]
    loads()
    A(f"s_mov_b32 s{sCNT}, {opt['spin']}")
    A(f"L_poll{u}:")
    A("s_waitcnt vmcnt(0)")
    rs = list(regs)
    for r in rs:
        A(f"v_xor_b32 v{r}, v{r}, v{vT}")
    if masked:
        A(f"s_mov_b64 exec, {hex(masked[0])}")
        for r in masked[1]:
            A(f"v_xor_b32 v{r}, v{r}, v{vT}")
        A("s_mov_b64 exec, -1")
        rs += masked[1]
    acc, rs = rs[0], rs[1:]
    while len(rs) >= 2:
        A(f"v_or3_b32 v{tmp}, v{acc}, v{rs[0]}, v{rs[1]}")
        acc, rs = tmp, rs[2:]
    if rs:
        A(f"v_bitop3_b32 v{tmp}, v{acc}, v{rs[0]}, s{sMASK} bitop3:0xa8")
    else:
        A(f"v_and_b32 v{tmp}, s{sMASK}, v{acc}")
    A(f"v_cmp_ne_u32 vcc, 0, v{tmp}\ns_cbranch_vccz L_ok{u}")
    A(f"s_sub_u32 s{sCNT}, s{sCNT}, 1\ns_cbranch_scc1 L_ok{u}")
    loads()
    A(f"s_branch L_poll{u}")
    A(f"L_ok{u}:")
    tmo(u)


def poll4(items, tmp, issued=False):
    uid[0] += 1
    u = uid[0]
    for ld, _ in ([] if issued else items):
        A(ld)
    A(f"s_mov_b32 s{sCNT}, {opt['spin']}")
    A(f"L_poll{u}:")
    A("s_waitcnt vmcnt(0)")
    for k, (_, regs) in enumerate(items):
        A(f"v_xor_b32 v{tmp+1+k}, v{regs[0]}, v{vT}")
        for r in regs[1:]:
            A(f"v_bitop3_b32 v{tmp+1+k}, v{tmp+1+k}, v{r}, v{vT} bitop3:0xf6")
    A(f"v_or3_b32 v{tmp}, v{tmp+1}, v{tmp+2}, v{tmp+3}\nv_bitop3_b32 v{tmp}, v{tmp}, v{tmp+4}, s{sMASK} bitop3:0xa8")
    A(f"v_cmp_ne_u32 vcc, 0, v{tmp}\ns_cbranch_vccz L_ok{u}")
    A(f"s_sub_u32 s{sCNT}, s{sCNT}, 1\ns_cbranch_scc1 L_ok{u}")
    for k, (ld, _) in enumerate(items):
        A(f"v_and_b32 v{tmp}, s{sMASK}, v{tmp+1+k}\nv_cmp_ne_u32 vcc, 0, v{tmp}\ns_cbranch_vccz L_skip{u}_{k}")
        A(ld)
        A(f"L_skip{u}_{k}:")
    A(f"s_branch L_poll{u}")
    A(f"L_ok{u}:")
    tmo(u)
    for _, regs in items:
        for r in regs:
            A(f"v_xor_b32 v{r}, v{r}, v{vT}")


def spin(off, n, tmp, extra=None, sleep=1):
    uid[0] += 1
    u = uid[0]
    A(f"L_spin{u}:")
    A(f"ds_read_b32 v{tmp}, v{vL} offset:{off-MX}")
    if extra:
        A(extra)
    A("s_waitcnt lgkmcnt(0)")
    A(f"v_readfirstlane_b32 s{sT0}, v{tmp}")
    A(f"s_cmp_ge_u32 s{sT0}, {n}\ns_cbranch_scc1 L_spun{u}")
    A(f"s_sleep {sleep}\ns_branch L_spin{u}")
    A(f"L_spun{u}:")


def store_fs(instr):
    uid[0] += 1
    u = uid[0]
    A(f"s_cmp_eq_u32 s{sFAST}, 0\ns_cbranch_scc1 L_slow{u}")
    A(instr)
    A(f"s_branch L_sdone{u}\nL_slow{u}:")
    A(instr + " sc1")
    A(f"L_sdone{u}:")


digits = lambda s: [int(c) for c in str(s)[1:]]
TABLE, TAB = [], []
fg = 0
for xg in range(8):
    fr = 0
    for hl in range(4):
        nm = 3 if hl < (3 if xg < 6 else 2) else 2
        ne = digits(opt["spl"] if hl == 3 else opt["sp3"] if nm == 3 else opt["sp2"])
        assert sum(ne) == 16
        TAB.append(ne)
        for sp in range(8):
            if sp < 2:
                role, grp = 0, hl * 2 + sp
                grp ^= 4 if grp & 3 == 3 else 0
            elif sp < 2 + nm:
                role, grp = 1, fg
                fg += 1
            else:
                role, grp = 2, fr
                fr += 1
            assert role == 2 or ne[sp] <= 2
            TABLE.append(role | grp << 2 | ne[sp] << 9 | sum(ne[:sp]) % 16 << 12)
assert fg == NMLP

hdr = open(os.path.join(os.path.dirname(os.path.abspath(__file__)), "hdr.txt")).read().split("\n")
out = [l for l in hdr if l.startswith(";") and "@launch" not in l and "Override" not in l and "grid=ceil" not in l]
out.append(f"; @launch grid=(256,1,1) block=(768,1,1) lds={LDS_BYTES}")
out.append(""";
;   wave 0      LayerNorm(x), one 64-row block of q = LN(x).wq, exchange of the 8 blocks of the head
; Stores are write-through (sc1) unless every reader was seen to run on this XCD (HW_REG_XCC_ID); reads bypass L1.""")
out.append('.amdgcn_target "amdgcn-amd-amdhsa--gfx950"')
out.append(".text")
out.append(f".globl {NAME}_kernel")
out.append(".p2align 8")
out.append(f".type {NAME}_kernel,@function")
out.append(f"{NAME}_kernel:")

C("---- prologue: arguments, code prefetch into L2, first K loads of waves 6..11")
A("L_start:")
A("s_load_dwordx16 s[4:19], s[0:1], 0\ns_load_dwordx8 s[20:27], s[0:1], 64")
A(f"s_lshr_b32 s{sT0}, s2, 8\ns_cbranch_scc1 L_exit")
A(f"s_getpc_b64 s[{rA}:{rA+1}]")
A("L_pc:")
A(f"v_lshlrev_b32 v2, {opt['pfs']}, v0\nv_min_u32 v2, L_last-L_pc-4, v2")
A(f"global_load_dword v167, v2, s[{rA}:{rA+1}]")
C("K/V are cut into units of 64 keys; waves 6..11 own the first six of the eight units at slot*8")
A(f"s_and_b32 s{sXG}, s2, 7\ns_lshl_b32 s{sT0}, s{sXG}, 8\ns_andn2_b32 s{sT1}, s2, 7\ns_add_u32 s{sSLOT}, s{sT0}, s{sT1}")
A(f"s_sub_u32 s{sT0}, s{sSLOT}, 6\ns_lshl_b32 s{sT0}, s{sT0}, 14")
A(f"v_lshrrev_b32 v1, 6, v0\nv_and_b32 v0, 63, v0\nv_readfirstlane_b32 s3, v1\nv_lshl_add_u32 v1, v1, 14, s{sT0}\nv_lshl_add_u32 v1, v0, 4, v1")
A("s_cmp_lt_u32 s3, 6\ns_cbranch_scc1 L_late\ns_waitcnt lgkmcnt(0)")
for i in range(NE):
    A(f"global_load_dwordx4 {V(KR+4*i,4)}, v1, s[{pK}:{pK+1}] offset:{1024*i}{NT}")
A("L_late:")
if STAMPS:
    for k in range(8):
        A(f"s_mov_b32 s{sST+2*k}, 0")
st(0)
if STAMPS or opt.get("diag"):
    A("s_memrealtime s[100:101]")
A(f"s_lshr_b32 s{sI}, s2, 3\ns_lshr_b32 s{sSLOT}, s{sSLOT}, 3")
A("v_lshlrev_b32 v8, 4, v0")
C("wave 0: x and its 64 rows of wq (lane group g takes rows 16g + t)")
A("s_cmp_lg_u32 s3, 0\ns_cbranch_scc1 L_not0")
A(f"s_and_b32 s{sT0}, s{sI}, 7\ns_lshl_b32 s{sT0}, s{sT0}, 6")
A(f"v_lshrrev_b32 v2, 4, v0\nv_lshl_add_u32 v2, v2, 4, s{sT0}\nv_lshlrev_b32 v3, 1, v2")
A(f"s_lshr_b32 s{sT0}, s{sSLOT}, 3\ns_lshl_b32 s{sT0}, s{sT0}, 8")
A(f"v_lshlrev_b32 v2, 13, v2\nv_and_b32 v9, 15, v0\nv_lshl_add_u32 v2, v9, 4, v2\nv_add_u32 v2, s{sT0}, v2")
A(f"s_movk_i32 s{sT0}, 0x2000\ns_waitcnt lgkmcnt(0)")
A(f"global_load_dwordx4 v[104:107], v8, s[{pX}:{pX+1}]")
A(f"global_load_dwordx4 v[12:15], v3, s[{pX}:{pX+1}]")
A(f"global_load_dwordx4 v[16:19], v3, s[{pX}:{pX+1}] offset:16")
for t in range(16):
    A(f"global_load_dwordx4 {V(40+4*t,4)}, v2, s[{pWQ}:{pWQ+1}]{NT}")
    if t < 15:
        A(f"v_add_u32 v2, s{sT0}, v2")
A("L_not0:")
A(f"s_and_b32 s{sT0}, s{sSLOT}, 0xfe\ns_lshl_b32 s{sT0}, s{sT0}, 1\ns_add_u32 s{sT0}, s{sT0}, L_table-L_pc\ns_load_dword s{sTAB}, s[{rA}:{rA+1}], s{sT0}")
C("workgroup 0, wave 2: this launch's number -> d_ws, and with 1 << 31 | XCC id << 28 -> d_debug (4 copies)")
A(f"s_lshl_b32 s{sT0}, s2, 4\ns_add_u32 s{sT0}, s{sT0}, s3\ns_cmp_eq_u32 s{sT0}, 2\ns_cbranch_scc0 L_notlead")
A(f"s_waitcnt lgkmcnt(0)\ns_load_dword s{sT0}, s[{pWS}:{pWS+1}], {hex(EPOCH)}")
A(f"s_getreg_b32 s{sT1}, hwreg(HW_REG_XCC_ID)\ns_or_b32 s{sT1}, s{sT1}, 8\ns_lshl_b32 s{sT1}, s{sT1}, 28")
A(f"v_mov_b32 v3, {EPOCH}\nv_lshlrev_b32 v4, 6, v0\ns_waitcnt lgkmcnt(0)")
A(f"s_add_u32 s{sT0}, s{sT0}, 0x0e3779b1\ns_and_b32 s{sT0}, s{sT0}, 0x0fffffff\ns_or_b32 s{sT1}, s{sT1}, s{sT0}")
A(f"v_mov_b32 v5, s{sT1}\nv_mov_b32 v6, s{sT0}\ns_mov_b64 exec, 15")
A(f"global_store_dword v4, v5, s[{pDBG}:{pDBG+1}] sc1")
A("s_mov_b64 exec, 1")
A(f"global_store_dword v3, v6, s[{pWS}:{pWS+1}] sc1")
A("s_mov_b64 exec, -1")
A("L_notlead:")
C("LDS: counters and accumulators = 0, running max = -inf; decode the work-table entry\n(role | group << 2 | spare units << 9 | first spare unit << 12); spare units go to waves 5, 4, 3, 2")
A("v_mov_b32 v4, 0\nv_mov_b32 v5, 0\nv_mov_b32 v6, 0\nv_mov_b32 v7, 0")
A(f"s_mov_b32 s{sT0}, 0xff800000\nv_writelane_b32 v4, s{sT0}, 0")
A(f"ds_write_b128 v8, v[4:7] offset:{MX}")
A(f"s_lshl_b32 s{sT0}, s3, 9\nv_lshl_add_u32 v9, v0, 3, s{sT0}\nds_write_b64 v9, v[6:7] offset:{OSL}")
A(f"""s_waitcnt lgkmcnt(0)
s_bitcmp1_b32 s{sI}, 0
s_cselect_b32 s{sT2}, 16, 0
s_lshr_b32 s{sT2}, s{sTAB}, s{sT2}
s_and_b32 s{sROLE}, s{sT2}, 3
s_bfe_u32 s{sR}, s{sT2}, 0x70002
s_bfe_u32 s{sT4}, s{sT2}, 0x30009
s_bfe_u32 s{sT3}, s{sT2}, 0x4000c
s_add_u32 s{sNKV}, s{sT4}, 6
s_add_u32 s{sU}, s3, s{sT4}
s_sub_u32 s{sU}, s{sU}, 6
s_cmp_ge_u32 s3, 6
s_cbranch_scc1 L_own_unit
s_add_u32 s{sT3}, s{sT3}, 5
s_sub_u32 s{sT3}, s{sT3}, s3
s_lshr_b32 s{sT2}, s{sT3}, 1
s_mul_i32 s{sT2}, s{sT2}, 6
s_add_u32 s{sT2}, s{sT2}, s{sT3}
s_and_b32 s{sT3}, s{sSLOT}, 0xf8
s_lshl_b32 s{sT3}, s{sT3}, 3
s_add_u32 s{sT2}, s{sT2}, s{sT3}
s_add_u32 s{sT2}, s{sT2}, 6
s_lshl_b32 s{sT2}, s{sT2}, 14
v_add_u32 v1, s{sT2}, v8
L_own_unit:""")
A(f"s_mov_b32 s{sHI}, 0xffff0000\ns_mov_b32 s{sMASK}, {TAGMASK}")
A(f"v_mov_b32 v{vL}, {MX}\nv_mov_b32 v{vONE}, 1")
srd(rA, pK, 0x2000000)
srd(rB, pV, 0x2000000)
srd(rWS, pWS, 0x10000000)
st(6)
A("s_barrier")
A(f"s_cmp_lt_i32 s{sU}, 0\ns_cbranch_scc1 L_helper")


def kvload(base, i, r):
    A(f"buffer_load_dwordx4 {V(base+4*i,4)}, v1, {R(r)}, s{sCUR} offen{NT}")
    A(f"s_addk_i32 s{sCUR}, 0x400" if i < 15 else f"s_mov_b32 s{sCUR}, 0")


C(f"---- K/V waves: 16 K loads, {NV1} V loads, then (once q is in LDS) scores, softmax, the other V loads, p.V")
A(f"s_mov_b32 s{sCUR}, {NE*1024}")
A(f"s_cmp_ge_u32 s3, 6\ns_cbranch_scc1 L_k_rest\ns_mov_b32 s{sCUR}, 0")
for i in range(NE):
    kvload(KR, i, rA)
A("L_k_rest:")
for i in range(NE, 16):
    kvload(KR, i, rA)
for i in range(NV1):
    kvload(VR, i, rB)
st(1)
C("byte selectors that turn a (hi, lo) bf16 pair into the p (x) I operand; LDS and hand-off addresses")
A("""v_bfe_u32 v10, v0, 3, 1
v_mul_u32_u24 v10, 0x202, v10
v_add_u32 v10, 0x100, v10
v_and_b32 v11, 1, v0
v_lshlrev_b32 v11, 4, v11
v_lshlrev_b32 v10, v11, v10
v_mov_b32 v12, 0x0c0c0000
v_lshrrev_b32 v12, v11, v12
v_or_b32 v10, v10, v12
v_bfe_u32 v11, v0, 1, 2
v_mov_b32 v12, 0x0c0c0c0c""")
for i in range(4):
    A(f"v_cmp_eq_u32 vcc, {i}, v11\nv_cndmask_b32 v{6+i}, v12, v10, vcc")
A(f"s_mov_b32 s{sM1}, 0xcccccccc\ns_mov_b32 s{sM1+1}, 0xcccccccc\ns_mov_b32 s{sM0}, 0xaaaaaaaa\ns_mov_b32 s{sM0+1}, 0xaaaaaaaa")
A(f"s_mov_b32 s{sC2}, {f32(128 ** -0.5 * 1.4426950408889634)}")
A("v_and_b32 v32, 15, v0\nv_lshlrev_b32 v32, 4, v32")
A(f"v_lshrrev_b32 v34, 4, v0\nv_and_b32 v35, 7, v0\nv_lshl_add_u32 v34, v34, 3, v35\ns_lshl_b32 s{sT0}, s3, 9\nv_lshl_add_u32 v34, v34, 4, s{sT0}")
A("v_lshlrev_b32 v35, 3, v0")
A(f"s_lshl_b32 s{sT0}, s{sSLOT}, 9\ns_add_u32 s{sT0}, s{sT0}, {OS}\nv_lshl_add_u32 v36, v0, 3, s{sT0}")
A(f"s_lshl_b32 s{sT0}, s{sSLOT}, 4\ns_add_u32 s{sT0}, s{sT0}, {ST}\nv_mov_b32 v37, s{sT0}")
A(f"s_sub_u32 s{sN}, s{sNKV}, 1")
A(f"v_lshrrev_b32 v26, 1, v32\nv_add_u32 v26, {ML}, v26\ns_lshl_b32 s{sT0}, s3, 3\ns_add_u32 s{sT0}, s{sT0}, {ML}\nv_mov_b32 v27, s{sT0}")
spin(CQ, 1, 10, f"ds_read_b128 v[2:5], v32 offset:{QL}\nds_read_b64 v[28:29], v{vL} offset:{FAST-MX}", sleep=2)
st(2)
A(f"v_readfirstlane_b32 s{sFAST}, v28\nv_mov_b32 v{vT}, v29")
A(f"s_waitcnt vmcnt({NV1})")
C("scores: lane (g, c) holds 8 dims of key 4i + g of load i; reduce-scatter leaves key (load c, row g) in lane (g, c)")
for j in range(4):
    for i in range(16):
        c = "0" if j == 0 else f"v{10+i}"
        A(f"v_dot2_f32_bf16 v{10+i}, v{KR+4*i+j}, v{2+j}, {c}")
for i in range(8):
    A(f"v_add_f32_dpp v{10+i}, v{10+i}, v{10+i} row_ror:8 row_mask:0xf bank_mask:0x3")
    A(f"v_add_f32_dpp v{10+i}, v{18+i}, v{18+i} row_ror:8 row_mask:0xf bank_mask:0xc")
for i in range(4):
    A(f"v_add_f32_dpp v{10+i}, v{10+i}, v{10+i} row_ror:12 row_mask:0xf bank_mask:0x5")
    A(f"v_add_f32_dpp v{10+i}, v{14+i}, v{14+i} row_ror:4 row_mask:0xf bank_mask:0xa")
for i in range(4):
    A(f"v_add_f32_dpp v{10+i}, v{10+i}, v{10+i} quad_perm:[2,3,0,1] {DPP}")
for i in range(2):
    A(f"v_cndmask_b32 v{10+i}, v{10+i}, v{12+i}, s[{sM1}:{sM1+1}]")
for i in range(2):
    A(f"v_add_f32_dpp v{10+i}, v{10+i}, v{10+i} quad_perm:[1,0,3,2] {DPP}")
A(f"v_cndmask_b32 v10, v10, v11, s[{sM0}:{sM0+1}]")
C("p = 2^(score - wave max), scores in log2 units; bf16 hi and lo parts; wave sum")
A(f"v_mul_f32 v10, s{sC2}, v10")
wave_allreduce("v_max_f32", 11, 12, first=10)
A("v_sub_f32 v10, v10, v11\nv_exp_f32 v10, v10")
A("v_cvt_pk_bf16_f32 v13, v10, v10\nv_lshlrev_b32 v13, 16, v13\nv_sub_f32 v13, v10, v13\nv_cvt_pk_bf16_f32 v13, v10, v13")
wave_allreduce("v_add_f32", 10, 12)
C("(max, sum) of this wave -> LDS; the wave that arrives last publishes the workgroup's pair")
A("v_mov_b32 v20, v11\nv_mov_b32 v21, v10\ns_mov_b64 exec, 1")
A(f"ds_write_b64 v27, v[20:21]\nds_max_f32 v{vL}, v11\nds_add_rtn_u32 v12, v{vL}, v{vONE} offset:{C1-MX}")
A("s_mov_b64 exec, -1")
A(f"ds_read_b64 v[22:23], v26\nds_read_b32 v20, v{vL}\ns_waitcnt lgkmcnt(0)")
A(f"v_readfirstlane_b32 s{sT0}, v12")
A(f"s_cmp_lg_u32 s{sT0}, s{sN}\ns_cbranch_scc1 L_kv_nost")
A(f"v_bfi_b32 v20, s{sMASK}, 0, v20")
A("v_sub_f32 v22, v22, v20\nv_min_f32 v22, 0x42800000, v22\nv_exp_f32 v22, v22\nv_mul_f32 v21, v22, v23")
row_allreduce("v_add_f32", 21)
tag([20, 21])
A(f"v_mov_b32 v22, v{vT}\nv_mov_b32 v23, v{vT}\ns_mov_b64 exec, 1\ns_setprio 3")
store_fs(f"buffer_store_dwordx4 v[20:23], v37, {R(rWS)}, 0 offen")
A("s_setprio 0\ns_mov_b64 exec, -1")
st(7)
A("L_kv_nost:")
st(3)
for i in range(NV1, 16):
    kvload(VR, i, rB)
C("B operands: p (hi in columns 0-7, lo in 8-15) times identity, written over the dead K registers")
for t in range(16):
    A(f"v_mov_b32_dpp v{14+t%4}, v13 row_newbcast:{t} {DPP}")
    if t >= 1:
        for i in range(4):
            A(f"v_perm_b32 v{KR+4*(t-1)+i}, v{14+(t-1)%4}, v{14+(t-1)%4}, v{6+i}")
for i in range(4):
    A(f"v_perm_b32 v{KR+60+i}, v{14+15%4}, v{14+15%4}, v{6+i}")
spin(C1, f"s{sNKV}", 12, f"ds_read_b32 v19, v{vL}", sleep=2)
A(f"v_bfi_b32 v19, s{sMASK}, 0, v19\nv_sub_f32 v18, v11, v19\nv_exp_f32 v18, v18")
st(4)
for t in range(16):
    A(f"s_waitcnt vmcnt({15-t})")
    c = "0" if t == 0 else "v[28:31]"
    A(f"v_mfma_f32_16x16x32_bf16 v[28:31], {V(VR+4*t,4)}, {V(KR+4*t,4)}, {c}")
st(5)
C("hi + lo, scale to the workgroup max, own slot in LDS; the last wave sums the slots and publishes o")
for i in range(4):
    A(f"v_add_f32_dpp v{28+i}, v{28+i}, v{28+i} row_ror:8 {DPP}")
A("v_pk_mul_f32 v[28:29], v[28:29], v[18:19] op_sel_hi:[1,0]\nv_pk_mul_f32 v[30:31], v[30:31], v[18:19] op_sel_hi:[1,0]")
A("s_mov_b32 exec_lo, 0x00ff00ff\ns_mov_b32 exec_hi, 0x00ff00ff")
A(f"ds_write_b128 v34, v[28:31] offset:{OSL}")
A("s_mov_b64 exec, 1")
A(f"ds_add_rtn_u32 v12, v{vL}, v{vONE} offset:{C3-MX}")
A("s_mov_b64 exec, -1")
assert max(max(t) for t in TAB) == 4
P = lambda k: V(KR + 2 * k, 2)
for k in range(10):
    A(f"ds_read_b64 {P(k)}, v35 offset:{OSL+512*(2+k)}")
A("s_waitcnt lgkmcnt(6)")
A(f"v_readfirstlane_b32 s{sT0}, v12")
A(f"v_pk_add_f32 {P(0)}, {P(0)}, {P(1)}\nv_pk_add_f32 {P(2)}, {P(2)}, {P(3)}\ns_waitcnt lgkmcnt(2)")
A(f"v_pk_add_f32 {P(4)}, {P(4)}, {P(5)}\nv_pk_add_f32 {P(6)}, {P(6)}, {P(7)}\nv_pk_add_f32 {P(0)}, {P(0)}, {P(2)}\ns_waitcnt lgkmcnt(0)")
A(f"v_pk_add_f32 {P(8)}, {P(8)}, {P(9)}\nv_pk_add_f32 {P(4)}, {P(4)}, {P(6)}\nv_pk_add_f32 {P(0)}, {P(0)}, {P(8)}\nv_pk_add_f32 v[18:19], {P(0)}, {P(4)}")
tag([18])
A(f"s_cmp_lg_u32 s{sT0}, s{sN}\ns_cbranch_scc1 L_kv_end")
store_fs(f"buffer_store_dwordx2 v[18:19], v36, {R(rWS)}, 0 offen")
A(f"ds_write_b32 v{vL}, v{vONE} offset:{C5-MX}")
st(6)
A("L_kv_end:")
end_wave()

A("L_helper:")
for i in range(4):
    A(f"s_mov_b32 s{sOFF+i}, {i*4096}")
A(f"s_mov_b32 s{sZO2}, 16384\ns_mov_b32 s{sZO3}, 20480")
srd(rD, pX, 1024)
A("s_cmp_eq_u32 s3, 0\ns_cbranch_scc1 L_q")
A("s_cmp_ge_u32 s3, 4\ns_cbranch_scc1 L_idle")
A(f"s_lshl_b32 s{sT0}, s2, 4\ns_add_u32 s{sT0}, s{sT0}, s3\ns_cmp_eq_u32 s{sT0}, 2\ns_cbranch_scc0 L_roles")
C("""workgroup 0, wave 2: which 8 KiB half of d_ws lies next to this XCD?  Count loop turns until an uncached read of
either half lands (best of a few); d_debug[1] = 2 | (near half of XCDs 0-3).  A wrong answer costs only time.""")
A(f"""s_load_dword s80, s[{pWS}:{pWS+1}], {hex(PROBE)} glc
s_load_dword s81, s[{pWS}:{pWS+1}], {hex(PROBE+0x2000)} glc
s_mov_b32 s82, -1
s_mov_b32 s83, -1
s_mov_b32 s{sT2}, {opt['nprobe']}
s_waitcnt lgkmcnt(0)
L_probe:""")
for h in range(2):
    A(f"""s_not_b32 s{sT0}, s{80+h}
s_mov_b32 s{sT1}, 0
s_load_dword s{sT0}, s[{pWS}:{pWS+1}], {hex(PROBE+0x2000*h)} glc
L_probe{h}:
s_add_u32 s{sT1}, s{sT1}, 1
s_cmp_eq_u32 s{sT0}, s{80+h}
s_cbranch_scc1 L_probed{h}
s_cmp_lt_u32 s{sT1}, 0x1000
s_cbranch_scc1 L_probe{h}
L_probed{h}:
s_waitcnt lgkmcnt(0)
s_min_u32 s{82+h}, s{82+h}, s{sT1}""")
A(f"""s_sub_u32 s{sT2}, s{sT2}, 1
s_cmp_lg_u32 s{sT2}, 0
s_cbranch_scc1 L_probe
s_getreg_b32 s{sT0}, hwreg(HW_REG_XCC_ID)
s_bfe_u32 s{sT0}, s{sT0}, 0x10002
s_cmp_lt_u32 s83, s82
s_cselect_b32 s{sT1}, 3, 2
s_xor_b32 s{sT1}, s{sT1}, s{sT0}""")
if opt["loc"] != "probe":
    A(f"s_mov_b32 s{sT1}, {2 | opt['loc']}")
if STAMPS or opt.get("diag"):
    A(f"s_lshl_b32 s82, s82, 8\ns_lshl_b32 s83, s83, 20\ns_or_b32 s{sT1}, s{sT1}, s82\ns_or_b32 s{sT1}, s{sT1}, s83")
A(f"v_mov_b32 v4, s{sT1}\nv_mov_b32 v3, 4\ns_mov_b64 exec, 1")
A(f"global_store_dword v3, v4, s[{pDBG}:{pDBG+1}] sc1")
A("s_mov_b64 exec, -1\ns_branch L_roles")
A("L_idle:")
end_wave()

C("---- wave 0: LayerNorm(x) with the reference's bf16 roundings, q block by MFMA (xn (x) I operand)")
A("L_q:")
A("""v_and_b32 v28, 1, v0
v_lshlrev_b32 v28, 4, v28
v_mov_b32 v29, 0x100
v_lshlrev_b32 v29, v28, v29
v_mov_b32 v30, 0x0c0c0000
v_lshrrev_b32 v30, v28, v30
v_or_b32 v29, v29, v30
v_bfe_u32 v28, v0, 1, 3
v_mov_b32 v30, 0x0c0c0c0c""")
for i in range(4):
    A(f"v_cmp_eq_u32 vcc, {i}, v28\nv_cndmask_b32 v{20+i}, v30, v29, vcc")
A("s_waitcnt vmcnt(16)")
for j in range(4):
    A(f"v_lshlrev_b32 v{112+2*j}, 16, v{104+j}\nv_and_b32 v{113+2*j}, s{sHI}, v{104+j}")
A("v_add_f32 v36, v112, v113\nv_add_f32 v37, v114, v115\nv_add_f32 v34, v116, v117\nv_add_f32 v35, v118, v119")
A("v_add_f32 v36, v36, v37\nv_add_f32 v34, v34, v35\nv_add_f32 v36, v36, v34")
wave_allreduce("v_add_f32", 36, 37)
A(f"v_mul_f32 v36, {f32(1/512)}, v36")
for j in range(8):
    A(f"v_sub_f32 v{112+j}, v{112+j}, v36")
A("v_mul_f32 v37, v112, v112")
for j in range(1, 8):
    A(f"v_fmac_f32 v37, v{112+j}, v{112+j}")
wave_allreduce("v_add_f32", 37, 34)
A(f"v_mul_f32 v37, {f32(1/512)}, v37")
A(f"""v_cvt_pk_bf16_f32 v34, v36, v37
v_lshlrev_b32 v36, 16, v34
v_and_b32 v37, s{sHI}, v34
v_add_f32 v37, {f32(1e-5)}, v37
v_cvt_pk_bf16_f32 v37, v37, v37
v_and_b32 v37, s{sHI}, v37
v_sqrt_f32 v37, v37
v_cvt_pk_bf16_f32 v37, v37, v37
v_and_b32 v37, s{sHI}, v37
v_rcp_f32 v37, v37""")
for j in range(8):
    r = 12 + j
    A(f"""v_lshlrev_b32 v28, 16, v{r}
v_and_b32 v29, s{sHI}, v{r}
v_sub_f32 v28, v28, v36
v_sub_f32 v29, v29, v36
v_cvt_pk_bf16_f32 v30, v28, v29
v_lshlrev_b32 v28, 16, v30
v_and_b32 v29, s{sHI}, v30
v_mul_f32 v28, v28, v37
v_mul_f32 v29, v29, v37
v_cvt_pk_bf16_f32 v{r}, v28, v29""")
A(f"s_load_dword s{sN}, s[{pDBG}:{pDBG+1}], 0")
A("s_waitcnt vmcnt(0)")
st(1)
for t in range(16):
    src = 12 + t // 2
    if t % 2:
        A(f"v_lshrrev_b32 v{src}, 16, v{src}")
    b = 104 + 4 * (t % 2)
    for i in range(4):
        A(f"v_perm_b32 v{b+i}, v{src}, v{src}, v{20+i}")
    c = "0" if t == 0 else "v[24:27]"
    A(f"v_mfma_f32_16x16x32_bf16 v[24:27], {V(40+4*t,4)}, {V(b,4)}, {c}")
C("launch number: one try per scalar-cache line, then vector loads (bounded)")
srd(rA, pDBG, 256)
A(f"s_mov_b32 s{sCNT}, {opt['spin']}")
for k in range(1, 4):
    A(f"s_waitcnt lgkmcnt(0)\ns_cmp_lg_u32 s{sN}, 0\ns_cbranch_scc1 L_num_ok")
    if k > 1:
        A(f"s_sleep {opt['nsl']}")
    A(f"s_load_dword s{sN}, s[{pDBG}:{pDBG+1}], {64*k}")
A("v_mov_b32 v3, 0\ns_waitcnt lgkmcnt(0)")
A(f"""L_num:
s_cmp_lg_u32 s{sN}, 0
s_cbranch_scc1 L_num_ok
s_sub_u32 s{sCNT}, s{sCNT}, 1
s_cbranch_scc1 L_num_ok
buffer_load_dword v4, v3, {R(rA)}, 0 offen sc1
s_waitcnt vmcnt(0)
v_readfirstlane_b32 s{sN}, v4
s_branch L_num
L_num_ok:""")
tmo(99)
st(2)
A(f"s_and_b32 s{sT0}, s{sN}, s{sMASK}\nv_mov_b32 v{vT}, s{sT0}")
A(f"s_getreg_b32 s{sT2}, hwreg(HW_REG_XCC_ID)\ns_and_b32 s{sT2}, s{sT2}, 15")
A(f"s_bfe_u32 s{sLOC}, s{sN}, 0x3001c")
A(f"s_lshl_b32 s{sN}, s{sN}, 4\ns_or_b32 s{sN}, s{sN}, s{sT2}")
C("publish the block (lane-native layout); Z workgroups also say which XCD they run on")
A(f"s_lshl_b32 s{sT0}, s{sSLOT}, 9")
A(f"v_lshrrev_b32 v2, 4, v0\nv_and_b32 v3, 7, v0\nv_lshl_add_u32 v2, v2, 3, v3\nv_lshl_add_u32 v2, v2, 4, s{sT0}")
assert QS == 0
tag([24])
A("s_mov_b32 exec_lo, 0x00ff00ff\ns_mov_b32 exec_hi, 0x00ff00ff")
A(f"buffer_store_dwordx4 v[24:27], v2, {R(rWS)}, 0 offen sc1")
A("s_mov_b64 exec, -1")
A(f"s_lshl_b32 s{sT1}, s{sXG}, 7\ns_add_u32 s{sT1}, s{sT1}, {XC}\nv_lshl_add_u32 v5, v3, 2, s{sT1}")
A(f"s_cmp_eq_u32 s{sROLE}, 0\ns_cbranch_scc0 L_noxc")
A(f"s_lshl_b32 s{sT0}, s{sR}, 2\ns_add_u32 s{sT0}, s{sT0}, s{sT1}\nv_mov_b32 v3, s{sT0}\nv_mov_b32 v4, s{sN}\ns_mov_b64 exec, 1")
A(f"buffer_store_dword v4, v3, {R(rWS)}, 0 offen sc1")
A("s_mov_b64 exec, -1")
A("L_noxc:")
A(f"s_and_b32 s{sT0}, s{sSLOT}, 0xf8\ns_lshl_b32 s{sT0}, s{sT0}, 9\nv_add_u32 v7, s{sT0}, v8")
A("v_bfe_u32 v2, v0, 3, 2\nv_lshlrev_b32 v2, 2, v2\nv_lshrrev_b32 v3, 5, v0\nv_add_u32 v2, v2, v3\nv_and_b32 v3, 7, v0\nv_lshl_add_u32 v2, v2, 3, v3\nv_lshlrev_b32 v2, 1, v2")
C("bring the lines this workgroup will publish o and (max, sum) in into L2 now: a store to an absent line\nmakes its first reader wait for a fill from memory")
A(f"s_lshl_b32 s{sT0}, s{sSLOT}, 9\ns_add_u32 s{sT0}, s{sT0}, {OS}\nv_lshl_add_u32 v9, v0, 3, s{sT0}")
A(f"buffer_load_dword v28, v9, {R(rWS)}, 0 offen")
A(f"s_lshl_b32 s{sT0}, s{sSLOT}, 4\ns_add_u32 s{sT0}, s{sT0}, {ST}\nv_mov_b32 v9, s{sT0}")
A(f"buffer_load_dword v29, v9, {R(rWS)}, 0 offen")
A("s_waitcnt vmcnt(0)")
st(3)


def q_poll():
    for t in range(4):
        A(f"buffer_load_dwordx4 {V(112+4*t,4)}, v7, {R(rWS)}, 0 offen offset:{1024*t} sc1")
    A(f"buffer_load_dword v6, v5, {R(rWS)}, 0 offen sc1")


poll(q_poll, [112, 116, 120, 124], 10)
A(f"v_cmp_ne_u32 vcc, s{sN}, v6\ns_cmp_eq_u64 vcc, 0\ns_cselect_b32 s{sFAST}, 1, 0")
A(f"v_mov_b32 v4, s{sFAST}\nv_mov_b32 v5, v{vT}\nv_mov_b32 v6, s{sLOC}\nds_write_b64 v{vL}, v[4:5] offset:{FAST-MX}\nds_write_b32 v{vL}, v6 offset:{LOC-MX}")
for i in range(4):
    A(f"v_add_f32 v{112+i}, v{112+i}, v{116+i}\nv_add_f32 v{120+i}, v{120+i}, v{124+i}")
for i in range(4):
    A(f"v_add_f32 v{112+i}, v{112+i}, v{120+i}")
A("v_permlane32_swap_b32 v112, v113\nv_permlane32_swap_b32 v114, v115")
A("v_add_f32 v112, v112, v113\nv_add_f32 v114, v114, v115")
A("v_cvt_pk_bf16_f32 v112, v112, v114")
A(f"ds_write_b16 v2, v112 offset:{QL}\nds_write_b16_d16_hi v2, v112 offset:{QL+32}")
A(f"ds_write_b32 v{vL}, v{vONE} offset:{CQ-MX}")
st(4)
C("one CU fetches lines at 384 mod 1024 bytes markedly slower than any other stride-1024 set: every\nworkgroup pulls 16 of the group's 512 such wo lines into L2 for the Z workgroup that owns them")
srd(rA, pWO, 0x400000)
A(f"v_and_b32 v1, 15, v0\nv_lshlrev_b32 v1, 10, v1\ns_lshl_b32 s{sT0}, s{sSLOT}, 14\ns_add_u32 s{sT0}, s{sT0}, 384")
A(f"buffer_load_dword v162, v1, {R(rA)}, s{sT0} offen")


def loc_issue():
    A(f"v_mov_b32 v17, 4\nglobal_load_dword v18, v17, s[{pDBG}:{pDBG+1}] sc1")


def loc_finish():
    uid[0] += 1
    u = uid[0]
    A(f"""s_mov_b32 s{sCNT}, {opt['spin']}
L_loc{u}:
v_readfirstlane_b32 s{sT0}, v18
s_cmp_lg_u32 s{sT0}, 0
s_cbranch_scc1 L_locok{u}
s_sub_u32 s{sCNT}, s{sCNT}, 1
s_cbranch_scc1 L_locok{u}
global_load_dword v18, v17, s[{pDBG}:{pDBG+1}] sc1
s_waitcnt vmcnt(0)
s_branch L_loc{u}
L_locok{u}:""")
    tmo(u)
    A(f"""s_getreg_b32 s{sT1}, hwreg(HW_REG_XCC_ID)
s_lshl_b32 s{sT0}, s{sT0}, 2
s_xor_b32 s{sLOC}, s{sLOC}, s{sT0}
s_and_b32 s{sLOC}, s{sLOC}, 7
s_xor_b32 s{sT0}, s{sT0}, s{sT1}
s_lshl_b32 s{sT0}, s{sT0}, 11
s_and_b32 s{sT0}, s{sT0}, 0x2000
s_or_b32 s{sLOC}, s{sLOC}, s{sT0}""")


def chunk(dst, grp):
    A(f"s_add_u32 s{dst}, {grp}, s{sLOC}\ns_lshl_b32 s{sT3}, s{dst}, 11")
    A(f"s_and_b32 s{sT3}, s{sT3}, 0x2000\ns_and_b32 s{dst}, s{dst}, 3\ns_lshl_b32 s{dst}, s{dst}, 8\ns_or_b32 s{dst}, s{dst}, s{sT3}")


def f_setup(par):
    A(f"s_lshl_b32 s{sT0}, s{sXG}, 3\ns_add_u32 s{sT0}, s{sT0}, s{sR}\ns_lshl_b32 s{sT0}, s{sT0}, 3")
    if par:
        A(f"s_add_u32 s{sT0}, s{sT0}, 4")
    A(f"s_and_b32 s{sT2}, s{sLOC}, 0x2000\ns_add_u32 s{sT2}, s{sT2}, {ZS}")
    A(f"v_lshrrev_b32 v20, 4, v0\nv_add_u32 v20, s{sT0}, v20\nv_lshlrev_b32 v21, 1, v20\nv_lshl_add_u32 v20, v20, 2, s{sT2}")
    A(f"s_lshl_b32 s{sT0}, s{sT0}, 2\ns_and_b32 s{sT1}, s{sT0}, 0x780\ns_add_u32 s{sT1}, s{sT1}, s{sT2}")
    A(f"v_bfe_u32 v27, v0, 3, 2\nv_lshlrev_b32 v27, 11, v27\nv_lshrrev_b32 v22, 5, v0\nv_lshl_add_u32 v27, v22, 14, v27\nv_and_b32 v23, 7, v0\nv_lshl_add_u32 v27, v23, 4, v27\nv_add_u32 v27, s{sT1}, v27")
    chunk(sT1, f"s{sXG}")
    A(f"s_and_b32 s{sT0}, s{sT0}, 0xff\ns_add_u32 s{sT0}, s{sT0}, s{sT1}\ns_add_u32 s{sT0}, s{sT0}, {PS}")
    A(f"v_lshrrev_b32 v22, 3, v0\nv_lshlrev_b32 v22, 14, v22\nv_lshl_add_u32 v22, v23, 10, v22\nv_add_u32 v22, s{sT0}, v22\nv_add_u32 v23, {8*16384}, v22")
    srd(rB, pOUT, 1024)
    A(f"buffer_load_ushort v26, v21, {R(rD)}, 0 offen")


A("L_roles:")
A(f"s_cmp_eq_u32 s{sROLE}, 1\ns_cbranch_scc1 L_mlp")
A(f"s_cmp_eq_u32 s{sROLE}, 0\ns_cbranch_scc1 L_z")
C("wave 0 of the group's first 8 role-free workgroups takes the other half of the F stage")
A(f"s_cmp_eq_u32 s3, 0\ns_cbranch_scc0 L_idle\ns_cmp_lt_u32 s{sR}, 8\ns_cbranch_scc0 L_idle")
spin(C5, 1, 10, sleep=4)
loc_issue()
A("s_waitcnt vmcnt(0)")
loc_finish()
f_setup(1)
C("z cannot be there before the group's o has been merged: stay off the memory pipeline until then")
A(f"s_sleep {opt['f0delay']}\ns_branch L_fin")

C("---- Z role: wave w owns head w of the group; wo tile -> LDS (DMA) -> transposed MFMA operands")
A("L_z:")
ZB, ZO, ZST, ZA, ZD = 40, 104, 120, 124, 140
srd(rA, pWO, 0x400000)
A(f"s_lshl_b32 s{sT0}, s{sXG}, 2\ns_add_u32 s{sT0}, s{sT0}, s3\ns_lshl_b32 s{sT0}, s{sT0}, 17\ns_lshl_b32 s{sT1}, s{sR}, 7\ns_add_u32 s{sT0}, s{sT0}, s{sT1}")
C("image row k holds wo row d(k): o is handed on in the order k = gq*32 + n*4 + i for d = gq*32 + i*8 + n")
A(f"v_bfe_u32 v1, v0, 3, 2\nv_lshrrev_b32 v2, 5, v0\nv_lshl_add_u32 v1, v1, 3, v2\nv_lshlrev_b32 v1, 10, v1\nv_and_b32 v2, 7, v0\nv_lshl_add_u32 v1, v2, 4, v1\nv_add_u32 v1, s{sT0}, v1")
A(f"s_lshl_b32 s{sIMG}, s3, 14\ns_add_u32 s{sIMG}, s{sIMG}, {WIMG}")
A(f"v_lshrrev_b32 v3, 4, v0\nv_lshlrev_b32 v3, 3, v3\nv_bfe_u32 v4, v0, 2, 2\nv_add_u32 v3, v3, v4\nv_lshlrev_b32 v3, 7, v3\nv_and_b32 v4, 3, v0\nv_lshl_add_u32 v3, v4, 3, v3\nv_add_u32 v3, s{sIMG}, v3")
A(f"s_lshl_b32 s{sT0}, s{sXG}, 5\ns_lshl_b32 s{sT1}, s3, 3\ns_add_u32 s{sT0}, s{sT0}, s{sT1}")
A(f"s_lshl_b32 s{sT1}, s{sT0}, 9\ns_add_u32 s{sT1}, s{sT1}, {OS}\nv_add_u32 v4, s{sT1}, v8")
A(f"s_lshl_b32 s{sT1}, s{sT0}, 4\ns_add_u32 s{sT1}, s{sT1}, {ST}\nv_lshl_add_u32 v5, v2, 4, s{sT1}")
A(f"s_lshl_b32 s{sT0}, s3, 8\ns_add_u32 s{sT1}, s{sT0}, {ZP}\nv_lshl_add_u32 v25, v0, 2, s{sT1}\ns_add_u32 s{sT0}, s{sT0}, {SCR}")
A(f"v_lshrrev_b32 v7, 4, v0\nv_lshl_add_u32 v7, v7, 4, s{sT0}")
A(f"v_and_b32 v9, 31, v0\nv_lshlrev_b32 v9, 3, v9\nv_lshrrev_b32 v10, 5, v0\nv_lshl_add_u32 v9, v10, 2, v9\nv_add_u32 v9, s{sT0}, v9")
A(f"s_lshr_b32 s{sT0}, s{sXG}, 2\ns_lshl_b32 s{sT0}, s{sT0}, 14\ns_and_b32 s{sT1}, s{sXG}, 3\ns_lshl_b32 s{sT1}, s{sT1}, 11\ns_add_u32 s{sT0}, s{sT0}, s{sT1}")
A(f"s_lshl_b32 s{sT1}, s{sR}, 8\ns_add_u32 s{sT0}, s{sT0}, s{sT1}\ns_add_u32 s{sT0}, s{sT0}, {ZS}")
A(f"v_and_b32 v6, 15, v0\nv_lshlrev_b32 v6, 4, v6\nv_bfe_u32 v10, v0, 4, 1\nv_lshl_add_u32 v24, v10, 13, v6\nv_add_u32 v24, s{sT0}, v24")
spin(C1, f"s{sNKV}", 10, f"ds_read_b32 v{vT}, v{vL} offset:{TAG-MX}\nds_read_b32 v11, v{vL} offset:{LOC-MX}", sleep=4)
A(f"v_readfirstlane_b32 s{sLOC}, v11")
A(f"buffer_load_dword v28, v24, {R(rWS)}, 0 offen")
for t in range(16):
    A(f"s_add_u32 m0, s{sIMG}, {t*1024}\ns_mov_b32 s{sT1}, {((t>>2)*32+(t&3)*2)*1024}")
    A(f"buffer_load_dwordx4 v1, {R(rA)}, s{sT1} offen{NT} lds")
loc_issue()
A("s_waitcnt vmcnt(0)")
for kb in range(4):
    for nt in range(4):
        for hf in range(2):
            A(f"ds_read_b64_tr_b16 {V(ZB+(kb*4+nt)*4+2*hf,2)}, v3 offset:{kb*4096+hf*512+nt*32}")
loc_finish()
f_setup(0)
st(5)
C("softmax weights of the head's 8 workgroups; the upper half-wave keeps those of the odd ones")
poll(lambda: A(f"buffer_load_dwordx4 {V(ZST,4)}, v5, {R(rWS)}, 0 offen sc1"), list(range(ZST, ZST + 4)), 10)
A(f"""v_max_f32_dpp v16, v{ZST}, v{ZST} quad_perm:[1,0,3,2] {DPP}
v_max_f32_dpp v16, v16, v16 quad_perm:[2,3,0,1] {DPP}
v_max_f32_dpp v16, v16, v16 row_half_mirror {DPP}
v_sub_f32 v16, v{ZST}, v16
v_exp_f32 v16, v16
v_mul_f32 v11, v16, v{ZST+1}
v_add_f32_dpp v11, v11, v11 quad_perm:[1,0,3,2] {DPP}
v_add_f32_dpp v11, v11, v11 quad_perm:[2,3,0,1] {DPP}
v_add_f32_dpp v11, v11, v11 row_half_mirror {DPP}
v_rcp_f32 v11, v11
v_mul_f32 v16, v16, v11
v_mov_b32_dpp v16, v16 row_ror:15 row_mask:0xc bank_mask:0xf""")
spin(C3, f"s{sNKV}", 10)
st(2)
poll4([(f"buffer_load_dwordx4 {V(ZO+4*t,4)}, v4, {R(rWS)}, 0 offen offset:{1024*t} sc1", [ZO + 4 * t, ZO + 4 * t + 2]) for t in range(4)], 10)
if opt.get("diag"):
    A("s_memrealtime s[98:99]")
st(6)
for t in range(4):
    for i in range(4):
        op = "v_mul_f32_dpp" if t == 0 else "v_fmac_f32_dpp"
        A(f"{op} v{12+i}, v16, v{ZO+4*t+i} row_newbcast:{2*t} {DPP}")
A("v_permlane32_swap_b32 v12, v14\nv_permlane32_swap_b32 v13, v15")
A("v_add_f32 v12, v12, v14\nv_add_f32 v13, v13, v15")
A("v_cvt_pk_bf16_f32 v12, v12, v13\nds_write_b32 v9, v12")
for kb in range(4):
    A(f"ds_read_b128 {V(ZA+4*kb,4)}, v7 offset:{64*kb}")
for kb in range(4):
    A(f"s_waitcnt lgkmcnt({3-kb})")
    for nt in range(4):
        c = "0" if kb == 0 else V(ZD + 4 * nt, 4)
        A(f"v_mfma_f32_16x16x32_bf16 {V(ZD+4*nt,4)}, {V(ZA+4*kb,4)}, {V(ZB+(kb*4+nt)*4,4)}, {c}")
for nt in range(1, 4):
    A(f"v_mov_b32_dpp v{ZD}, v{ZD+4*nt} quad_perm:[0,1,2,3] row_mask:{hex(1<<nt)} bank_mask:0xf")
C("the wave that arrives last sums the four heads and publishes")
A(f"ds_write_b32 v25, v{ZD}")
A("s_mov_b64 exec, 1")
A(f"ds_add_rtn_u32 v10, v{vL}, v{vONE} offset:{C4-MX}")
A("s_mov_b32 exec_lo, -1")
for w in range(4):
    A(f"ds_read_b128 {V(12 if w == 0 else ZA+4*w,4)}, v6 offset:{ZP+256*w}")
A("s_waitcnt lgkmcnt(2)")
A(f"v_readfirstlane_b32 s{sT0}, v10")
A(f"v_pk_add_f32 v[12:13], v[12:13], {V(ZA+4,2)}\nv_pk_add_f32 v[14:15], v[14:15], {V(ZA+6,2)}\ns_waitcnt lgkmcnt(0)")
A(f"v_pk_add_f32 {V(ZA+8,2)}, {V(ZA+8,2)}, {V(ZA+12,2)}\nv_pk_add_f32 {V(ZA+10,2)}, {V(ZA+10,2)}, {V(ZA+14,2)}")
A(f"v_pk_add_f32 v[12:13], v[12:13], {V(ZA+8,2)}\nv_pk_add_f32 v[14:15], v[14:15], {V(ZA+10,2)}")
tag([12])
A(f"s_cmp_lg_u32 s{sT0}, 3\ns_cbranch_scc1 L_z_notlast")
A(f"buffer_store_dwordx4 v[12:15], v24, {R(rWS)}, 0 offen sc1")
st(7)
A("L_z_notlast:")
A("s_mov_b64 exec, -1")
A("s_cmp_eq_u32 s3, 1\ns_cbranch_scc1 L_fin")
end_wave()

C("---- F stage: h for 4 columns (the first words of the line's 8 granules vouch for it), then the 86 MLP partial sums")
A("L_fin:")
poll(lambda: A(f"buffer_load_dword v28, v27, {R(rWS)}, 0 offen sc1"), [28], 10)
ZOFF = [f"s{sOFF}", f"s{sOFF+1}", f"s{sZO2}", f"s{sZO3}"]
for x in range(8):
    A(f"buffer_load_dword v{104+x}, v20, {R(rWS)}, {ZOFF[x//2]} offen offset:{2048*(x%2)} sc1")
A("v_mov_b32 v116, 0\nv_mov_b32 v117, 0\nv_mov_b32 v118, 0\nv_mov_b32 v119, 0")
A("s_waitcnt vmcnt(0)\ns_mov_b64 exec, 0xffff")
for x in range(8):
    A(f"v_xor_b32 v{104+x}, v{104+x}, v{vT}")
A("s_mov_b64 exec, -1")
st(1)
A("""v_add_f32 v104, v104, v106
v_add_f32 v105, v105, v107
v_add_f32 v104, v104, v108
v_add_f32 v105, v105, v109
v_add_f32 v104, v104, v110
v_add_f32 v105, v105, v111
v_add_f32 v104, v104, v105
v_lshlrev_b32 v26, 16, v26
v_add_f32 v104, v104, v26
v_cvt_pk_bf16_f32 v104, v104, v104
v_lshlrev_b32 v104, 16, v104""")
C("back off until the MLP stage is about done: a line read before it is written costs its writer an invalidation")
A(f"s_sleep {opt['fdelay']}")
TAILMASK = (1 << (NMLP - 64)) - 1


def f_poll2():
    A(f"buffer_load_dwordx4 v[112:115], v22, {R(rWS)}, 0 offen sc1")
    A(f"s_mov_b64 exec, {hex(TAILMASK)}\nbuffer_load_dwordx4 v[116:119], v23, {R(rWS)}, 0 offen sc1\ns_mov_b64 exec, -1")


poll(f_poll2, list(range(112, 116)), 10, masked=(TAILMASK, list(range(116, 120))))
st(2)
A("v_pk_add_f32 v[112:113], v[112:113], v[116:117]\nv_pk_add_f32 v[114:115], v[114:115], v[118:119]")
A("v_permlane32_swap_b32 v112, v114\nv_permlane32_swap_b32 v113, v115")
A("v_add_f32 v112, v112, v114\nv_add_f32 v113, v113, v115")
A("v_permlane16_swap_b32 v112, v113\nv_add_f32 v112, v112, v113")
row_allreduce("v_add_f32", 112)
A("v_add_f32 v112, v112, v104\nv_cvt_pk_bf16_f32 v112, v112, v112")
A("s_mov_b32 exec_lo, 0x00010001\ns_mov_b32 exec_hi, 0x00010001")
A(f"buffer_store_short v112, v21, {R(rB)}, 0 offen")
if opt.get("diag"):
    A(f"s_cmp_eq_u32 s{sI}, 0\ns_cbranch_scc0 L_exit\ns_cmp_eq_u32 s3, 1\ns_cbranch_scc0 L_exit")
    A("s_memrealtime s[96:97]\ns_waitcnt lgkmcnt(0)\ns_sub_u32 s94, s96, s98\ns_min_u32 s94, s94, 1000")
    A("s_mov_b32 s90, s94\ns_lshl_b32 s94, s94, 3\nL_amp:\ns_memrealtime s[92:93]\ns_waitcnt lgkmcnt(0)\ns_sub_u32 s92, s92, s96\ns_cmp_lt_u32 s92, s94\ns_cbranch_scc1 L_amp")
    A(f"s_lshl_b32 s{sT0}, s{sXG}, 2\nv_mov_b32 v1, s{sT0}\ns_lshl_b32 s91, s{sLOC}, 16\ns_or_b32 s90, s90, s91\nv_mov_b32 v2, s90\ns_mov_b64 exec, 1")
    A(f"global_store_dword v1, v2, s[{pDBG}:{pDBG+1}] offset:8 sc1")
st(3)
end_wave()

C("---- MLP role: wave w owns rows 128w.. of w_gate / w_up and columns 128w.. of w_down; weights load after this\nworkgroup's own K/V stream; g = ((h - mean).W) * rstd is evaluated as (h.W - mean * colsum(W)) * rstd")
A("L_mlp:")
srd(rA, pWG, 512 * 2752)
srd(rB, pWU, 512 * 2752)
srd(rC, pWD, 1376 * 1024)
A(f"s_lshl_b32 s{sT0}, s3, 7\nv_lshrrev_b32 v1, 1, v0\nv_add_u32 v1, s{sT0}, v1\nv_mul_u32_u24 v1, 2752, v1")
A(f"v_and_b32 v2, 1, v0\nv_lshl_add_u32 v1, v2, 4, v1\ns_lshl_b32 s{sT0}, s{sR}, 5\nv_add_u32 v1, s{sT0}, v1")
A(f"s_lshl_b32 s{sIMG}, s3, 14\ns_add_u32 s{sIMG}, s{sIMG}, {WIMG}")
A(f"v_lshrrev_b32 v3, 4, v0\nv_lshlrev_b32 v3, 3, v3\nv_bfe_u32 v4, v0, 2, 2\nv_add_u32 v3, v3, v4\nv_lshlrev_b32 v3, 5, v3\nv_and_b32 v2, 3, v0\nv_lshl_add_u32 v3, v2, 3, v3\nv_add_u32 v3, s{sIMG}, v3")
A(f"s_lshl_b32 s{sT0}, s3, 9\ns_add_u32 s{sT0}, s{sT0}, {ZS}\nv_lshrrev_b32 v2, 5, v0\nv_and_b32 v21, 31, v0\nv_lshlrev_b32 v4, 11, v2\nv_lshl_add_u32 v4, v21, 4, v4\nv_add_u32 v4, s{sT0}, v4")
A(f"v_lshlrev_b32 v21, 3, v21\nv_lshl_add_u32 v5, v2, 2, v21\ns_lshl_b32 s{sT0}, s3, 8\nv_add_u32 v5, s{sT0}, v5\nv_add_u32 v6, {SCR}, v5")
A(f"s_add_u32 s{sT0}, s{sT0}, {SCR}\nv_lshrrev_b32 v7, 4, v0\nv_lshl_add_u32 v7, v7, 4, s{sT0}")
A(f"s_lshl_b32 s{sT0}, s{sR}, 14\ns_lshl_b32 s{sT1}, s3, 8\ns_add_u32 s{sT0}, s{sT0}, s{sT1}")
A(f"v_lshrrev_b32 v20, 4, v0\nv_lshlrev_b32 v20, 10, v20\nv_and_b32 v22, 15, v0\nv_lshl_add_u32 v20, v22, 4, v20\nv_add_u32 v20, s{sT0}, v20")
A(f"s_add_u32 s{sT0}, s{sIMG}, 8192\nv_lshl_add_u32 v19, v0, 2, s{sT0}")
A(f"v_lshlrev_b32 v22, 3, v22\ns_lshl_b32 s{sT0}, s3, 7\ns_add_u32 s{sT0}, s{sT0}, {ZP}\nv_add_u32 v25, s{sT0}, v22")
A(f"v_lshlrev_b32 v23, 2, v2\nv_add_u32 v23, {SQ}, v23\nv_mov_b32 v24, {SQ}")
for i in range(4):
    A(f"v_mov_b32 v{116+i}, 0x3f803f80")
A(f"s_mov_b32 s{sM1}, 0x05040100\ns_mov_b32 s{sM1+1}, 0x07060302")
A(f"v_mov_b32 v30, 0\nv_mov_b32 v31, 0\nv_mov_b32 v29, {f32(1/512)}")
A(f"s_lshr_b32 s{sT4}, s{sR}, 3\ns_lshl_b32 s{sT4}, s{sT4}, 14\ns_and_b32 s{sT3}, s{sR}, 7\ns_lshl_b32 s{sT3}, s{sT3}, 10\ns_add_u32 s{sT4}, s{sT4}, s{sT3}\ns_add_u32 s{sT4}, s{sT4}, {PS}")
A(f"v_bfe_u32 v9, v0, 3, 1\nv_lshlrev_b32 v9, 13, v9\nv_and_b32 v10, 7, v0\nv_lshl_add_u32 v9, v10, 7, v9\nv_add_u32 v9, s{sT4}, v9")
spin(C1, f"s{sNKV}", 10, f"ds_read_b32 v{vT}, v{vL} offset:{TAG-MX}\nds_read_b32 v11, v{vL} offset:{LOC-MX}", sleep=4)
A(f"v_readfirstlane_b32 s{sLOC}, v11")
A(f"buffer_load_dword v26, v5, {R(rD)}, 0 offen")
A(f"buffer_load_dword v28, v9, {R(rWS)}, 0 offen")
loc_issue()
A("s_waitcnt vmcnt(0)")
loc_finish()
C("p chunk addresses: the lower / upper half-wave serves group 2w / 2w + 1; z is read from the near half")
A(f"s_lshl_b32 s{sT2}, s3, 1")
chunk(sT0, f"s{sT2}")
A(f"s_add_u32 s{sT2}, s{sT2}, 1")
chunk(sT1, f"s{sT2}")
A(f"s_add_u32 s{sT0}, s{sT0}, s{sT4}\ns_add_u32 s{sT1}, s{sT1}, s{sT4}\nv_add_u32 v10, s{sT1}, v21\nv_add_u32 v21, s{sT0}, v21")
A("s_mov_b32 exec_lo, 0\nv_mov_b32 v21, v10\ns_mov_b32 exec_lo, -1")
A(f"s_and_b32 s{sT0}, s{sLOC}, 0x2000\nv_add_u32 v4, s{sT0}, v4")
A(f"v_lshlrev_b32 v27, 16, v26\nv_and_b32 v26, s{sHI}, v26")
spin(C5, 1, 10)
st(2)
for t in range(4):
    A(f"s_add_u32 m0, s{sIMG}, {t*1024}\ns_mov_b32 s{sT1}, {t*32*2752}")
    A(f"buffer_load_dwordx4 v1, {R(rA)}, s{sT1} offen lds")
    A(f"s_add_u32 m0, s{sIMG}, {4096+t*1024}")
    A(f"buffer_load_dwordx4 v1, {R(rB)}, s{sT1} offen lds")
for t in range(4):
    A(f"s_add_u32 m0, s{sIMG}, {8192+t*1024}")
    A(f"buffer_load_dwordx4 v20, {R(rC)}, s{sOFF+t} offen{NT} lds")
st(5)
MZ = [(f"buffer_load_dwordx4 {V(72+4*t,4)}, v4, {R(rWS)}, {ZOFF[t]} offen sc1", [72 + 4 * t]) for t in range(4)]
if opt["mov"]:
    for ld, _ in MZ:
        A(ld)
A(f"s_waitcnt vmcnt({4 if opt['mov'] else 0})")
for kb in range(4):
    for tl in range(2):
        for hf in range(2):
            A(f"ds_read_b64_tr_b16 {V(40+(kb*2+tl)*4+2*hf,2)}, v3 offset:{kb*1024+hf*128+tl*4096}")
for r in range(0, 16, 2):
    A(f"ds_read2st64_b32 {V(120+r,2)}, v19 offset0:{r} offset1:{r+1}")
A("s_waitcnt lgkmcnt(0)")
for kb in range(4):
    for tl in range(2):
        c = "0" if kb == 0 else V(108 + 4 * tl, 4)
        A(f"v_mfma_f32_16x16x32_bf16 {V(108+4*tl,4)}, v[116:119], {V(40+(kb*2+tl)*4,4)}, {c}")
for i in range(8):
    A(f"v_perm_b32 v{136+i}, v{121+2*i}, v{120+2*i}, s{sM1}\nv_perm_b32 v{144+i}, v{121+2*i}, v{120+2*i}, s{sM1+1}")
A("s_mov_b64 exec, 0xffff")
A(f"ds_add_f32 v22, v108 offset:{CS}\nds_add_f32 v22, v112 offset:{CS+4}")
A("s_mov_b64 exec, -1")
st(1)
poll4(MZ, 10, issued=opt["mov"])
st(6)
for t in range(1, 4):
    for i in (0, 2):
        A(f"v_pk_add_f32 {V(72+i,2)}, {V(72+i,2)}, {V(72+4*t+i,2)}")
A("v_permlane32_swap_b32 v72, v74\nv_permlane32_swap_b32 v73, v75")
A("""v_add_f32 v72, v72, v74
v_add_f32 v73, v73, v75
v_add_f32 v72, v72, v27
v_add_f32 v73, v73, v26
v_cvt_pk_bf16_f32 v72, v72, v73
ds_write_b32 v6, v72""")
for kb in range(4):
    A(f"ds_read_b128 {V(92+4*kb,4)}, v7 offset:{64*kb}")
A(f"""v_lshlrev_b32 v73, 16, v72
v_and_b32 v72, s{sHI}, v72
v_add_f32 v74, v72, v73
v_mul_f32 v75, v72, v72
v_fmac_f32 v75, v73, v73""")
A("v_permlane32_swap_b32 v74, v75\nv_add_f32 v74, v74, v75")
for kb in range(4):
    A(f"s_waitcnt lgkmcnt({3-kb})")
    for tl in range(2):
        c = "0" if kb == 0 else V(108 + 4 * tl, 4)
        A(f"v_mfma_f32_16x16x32_bf16 {V(108+4*tl,4)}, {V(92+4*kb,4)}, {V(40+(kb*2+tl)*4,4)}, {c}")
    A(f"v_add_f32_dpp v74, v74, v74 row_ror:{(8, 4, 2, 1)[kb]} {DPP}")
A("s_mov_b32 exec_lo, 0x00010001\ns_mov_b32 exec_hi, 0x00010001")
A("ds_add_f32 v23, v74")
A("s_mov_b64 exec, 0xffff")
A("ds_write2_b32 v25, v108, v112 offset0:0 offset1:1")
A("s_mov_b64 exec, -1")
A("s_waitcnt lgkmcnt(0)\ns_barrier")
A(f"ds_read_b64 v[16:17], v24\nds_read_b64 v[14:15], v22 offset:{CS}")
for w in range(4):
    A(f"ds_read_b64 {V(12 if w == 0 else 92+2*w,2)}, v22 offset:{ZP+128*w}")
C("mean, rstd; sigmoid(g) * u for feature lane & 15; its share of w_down")
A(f"""s_waitcnt lgkmcnt(5)
v_mul_f32 v16, v16, v29
v_fmaak_f32 v17, v17, v29, {f32(1e-5)}
v_fma_f32 v17, -v16, v16, v17
v_max_f32 v17, {f32(1e-5)}, v17
v_rsq_f32 v17, v17
s_waitcnt lgkmcnt(0)
v_pk_add_f32 v[12:13], v[12:13], v[94:95]
v_pk_add_f32 v[96:97], v[96:97], v[98:99]
v_pk_add_f32 v[12:13], v[12:13], v[96:97]
v_mul_f32 v18, {f32(-1.4426950408889634)}, v17
v_fma_f32 v12, -v16, v14, v12
v_fma_f32 v13, -v16, v15, v13
v_mul_f32 v12, v12, v18
v_exp_f32 v12, v12
v_mul_f32 v13, v13, v17
v_add_f32 v12, 1.0, v12
v_rcp_f32 v12, v12
s_nop 0
v_mul_f32 v12, v12, v13
v_mov_b32_dpp v13, v12 quad_perm:[1,0,3,2] {DPP}
v_cvt_pk_bf16_f32 v12, v12, v13""")
for i in range(8):
    A(f"v_dot2c_f32_bf16_dpp v30, v12, v{136+i} row_newbcast:{2*i} {DPP}")
    A(f"v_dot2c_f32_bf16_dpp v31, v12, v{144+i} row_newbcast:{2*i} {DPP}")
tag([30, 31])
A(f"buffer_store_dwordx2 v[30:31], v21, {R(rWS)}, 0 offen sc1")
st(7)
end_wave()

if STAMPS:
    A("L_stamps:")
    A("s_mov_b64 exec, 1")
    A("s_waitcnt lgkmcnt(0)\ns_memrealtime s[4:5]\ns_waitcnt lgkmcnt(0)\ns_memtime s[6:7]")
    A(f"s_mul_i32 s{sT0}, s2, 12\ns_add_u32 s{sT0}, s{sT0}, s3\ns_lshl_b32 s{sT0}, s{sT0}, 6\ns_add_u32 s{sT0}, s{sT0}, {STAMP}")
    A(f"v_mov_b32 v1, s{sT0}\ns_waitcnt lgkmcnt(0)")
    for k in range(8):
        A(f"v_mov_b32 v{4+k}, s{sST+2*k}")
    A(f"v_mov_b32 v12, s100\nv_mov_b32 v13, s4\nv_mov_b32 v14, s6\nv_mov_b32 v15, s{sLOC}")
    A(f"v_mov_b32 v16, s{sROLE}\nv_mov_b32 v17, s{sNKV}\nbuffer_store_dwordx2 v[16:17], v1, {R(rWS)}, 0 offen offset:48")
    A(f"buffer_store_dwordx4 v[4:7], v1, {R(rWS)}, 0 offen\nbuffer_store_dwordx4 v[8:11], v1, {R(rWS)}, 0 offen offset:16\nbuffer_store_dwordx4 v[12:15], v1, {R(rWS)}, 0 offen offset:32")
A("L_exit:")
A("s_endpgm")

body, problems = fix_hazards(L)
for p in problems:
    print("HAZARD:", p, file=sys.stderr)
for line in body:
    out.append(line if line.endswith(":") and not line.startswith(";") else "    " + line)
out.append(".p2align 2\n.type L_table,@object\nL_table:")
for k in range(0, 256, 8):
    out.append("    .short " + ", ".join(hex(v) for v in TABLE[k:k+8]))
out.append(".size L_table, 512\nL_last:")
out.append(f""".section .rodata,"a"
.p2align 6
.amdhsa_kernel {NAME}_kernel
  .amdhsa_next_free_vgpr 168
  .amdhsa_next_free_sgpr 102
  .amdhsa_accum_offset 168
  .amdhsa_group_segment_fixed_size 0
  .amdhsa_kernarg_size 96
  .amdhsa_user_sgpr_count 2
  .amdhsa_user_sgpr_kernarg_segment_ptr 1
  .amdhsa_system_sgpr_workgroup_id_x 1
  .amdhsa_float_denorm_mode_32 3
.end_amdhsa_kernel""")
open(sys.argv[1], "w").write("\n".join(out) + "\n")
```

```python
import os, sys, struct
from asmlib import fix_hazards

NAME = "sequential_preLN__mha_block_cached__glu_gated_glu__decode"
opt = dict(stamps=0, nv1=4, fdelay=23, f0delay=18, spin=60000, loc="probe", nprobe=5, pbudget=200, mov=2, gpf=0, pfs=5, sp3="x21100444", sp2="x11004433",
           spl="x10104433", nsl=12)
for a in sys.argv[2:]:
    k, v = a.split("=")
    opt[k] = v if not v.lstrip("-").isdigit() else int(v)
STAMPS = opt["stamps"]
NV1 = opt["nv1"]
NE = 4
NT = " nt"


def f32(x):
    return "0x%08x" % struct.unpack("<I", struct.pack("<f", x))[0]


QS, OS, ST, XC, EPOCH, PROBE, ZS, PS, STAMP = 0x0, 0x20000, 0x40000, 0x41000, 0x42000, 0x44000, 0x48000, 0x50000, 0x80000
NMLP = 86
TAGMASK = 0x3ff
QL, MX, SQ, CS, ZP, SCR, OSL, WIMG = 0, 256, 272, 1024, 1536, 3072, 4096, 10240
CQ, C1, C5, C3, C4, FAST, TAG, LOC, ML = 280, 284, 288, 292, 296, 304, 308, 312, 384
LDS_BYTES = WIMG + 4 * 16384
pX, pK, pV, pWQ, pWO, pWG, pWU, pWD, pOUT, pDBG, pWS = 4, 6, 8, 10, 12, 16, 18, 20, 22, 24, 26
rA, rB, rWS, rC, rD = 28, 32, 36, 44, 48
sNKV, sROLE, sMASK, sN = 40, 41, 42, 43
sXG, sI, sSLOT, sR, sT0, sT1, sCNT, sFAST = 52, 53, 54, 55, 56, 57, 58, 59
sM1, sM0, sU, sIMG, sC2, sHI = 60, 62, 64, 65, 66, 67
sOFF = 68
sZO2, sZO3, sCUR, sTAB, sLOC, sT2, sT3, sT4 = 72, 73, 74, 75, 76, 77, 78, 79
sST = 84
vT, vONE, vL = 38, 39, 33
KR, VR = 40, 104
DPP = "row_mask:0xf bank_mask:0xf"

L = []
uid = [0]


def A(s):
    for line in s.split("\n"):
        line = line.strip()
        if line:
            L.append(line)


def C(s):
    for line in s.strip().split("\n"):
        L.append("; " + line.strip())


def srd(r, p, size):
    A(f"s_mov_b32 s{r}, s{p}\ns_mov_b32 s{r+1}, s{p+1}\ns_mov_b32 s{r+2}, {hex(size)}\ns_mov_b32 s{r+3}, 0x20000")


def R(r):
    return f"s[{r}:{r+3}]"


def V(a, n):
    return f"v[{a}:{a+n-1}]"


def st(k):
    if STAMPS:
        A(f"s_memtime s[{sST+2*k}:{sST+2*k+1}]")


def end_wave():
    A("s_branch L_stamps" if STAMPS else "s_endpgm")


def row_allreduce(op, a):
    for n in (8, 4, 2, 1):
        A(f"{op}_dpp v{a}, v{a}, v{a} row_ror:{n} {DPP}")


def wave_allreduce(op, a, t, first=None):
    if first is None:
        row_allreduce(op, a)
    else:
        A(f"{op}_dpp v{a}, v{first}, v{first} row_ror:8 {DPP}")
        for n in (4, 2, 1):
            A(f"{op}_dpp v{a}, v{a}, v{a} row_ror:{n} {DPP}")
    for sw in ("v_permlane16_swap_b32", "v_permlane32_swap_b32"):
        A(f"v_mov_b32 v{t}, v{a}\n{sw} v{a}, v{t}\n{op} v{a}, v{a}, v{t}")


def tag(regs):
    for r in regs:
        A(f"v_bfi_b32 v{r}, s{sMASK}, v{vT}, v{r}")


def tmo(u):
    if opt.get("tmo"):
        A(f"s_cmp_eq_u32 s{sCNT}, -1\ns_cbranch_scc0 L_notmo{u}\ns_lshl_b32 s{sCNT}, s2, 8\ns_or_b32 s{sCNT}, s{sCNT}, {u}\nv_mov_b32 v161, s{sCNT}\nv_mov_b32 v160, 0x7f000\nbuffer_store_dword v161, v160, {R(rWS)}, 0 offen sc1\nL_notmo{u}:")


def poll(loads, regs, tmp, masked=None):
    uid[0] += 1
    u = uid[0]
    loads()
    A(f"s_mov_b32 s{sCNT}, {opt['spin']}")
    A(f"L_poll{u}:")
    A("s_waitcnt vmcnt(0)")
    rs = list(regs)
    for r in rs:
        A(f"v_xor_b32 v{r}, v{r}, v{vT}")
    if masked:
        A(f"s_mov_b64 exec, {hex(masked[0])}")
        for r in masked[1]:
            A(f"v_xor_b32 v{r}, v{r}, v{vT}")
        A("s_mov_b64 exec, -1")
        rs += masked[1]
    acc, rs = rs[0], rs[1:]
    while len(rs) >= 2:
        A(f"v_or3_b32 v{tmp}, v{acc}, v{rs[0]}, v{rs[1]}")
        acc, rs = tmp, rs[2:]
    if rs:
        A(f"v_bitop3_b32 v{tmp}, v{acc}, v{rs[0]}, s{sMASK} bitop3:0xa8")
    else:
        A(f"v_and_b32 v{tmp}, s{sMASK}, v{acc}")
    A(f"v_cmp_ne_u32 vcc, 0, v{tmp}\ns_cbranch_vccz L_ok{u}")
    A(f"s_sub_u32 s{sCNT}, s{sCNT}, 1\ns_cbranch_scc1 L_ok{u}")
    loads()
    A(f"s_branch L_poll{u}")
    A(f"L_ok{u}:")
    tmo(u)


def poll4(items, tmp, issued=False):
    uid[0] += 1
    u = uid[0]
    for ld, _ in ([] if issued else items):
        A(ld)
    A(f"s_mov_b32 s{sCNT}, {opt['spin']}")
    A(f"L_poll{u}:")
    A("s_waitcnt vmcnt(0)")
    for k, (_, regs) in enumerate(items):
        A(f"v_xor_b32 v{tmp+1+k}, v{regs[0]}, v{vT}")
        for r in regs[1:]:
            A(f"v_bitop3_b32 v{tmp+1+k}, v{tmp+1+k}, v{r}, v{vT} bitop3:0xf6")
    A(f"v_or3_b32 v{tmp}, v{tmp+1}, v{tmp+2}, v{tmp+3}\nv_bitop3_b32 v{tmp}, v{tmp}, v{tmp+4}, s{sMASK} bitop3:0xa8")
    A(f"v_cmp_ne_u32 vcc, 0, v{tmp}\ns_cbranch_vccz L_ok{u}")
    A(f"s_sub_u32 s{sCNT}, s{sCNT}, 1\ns_cbranch_scc1 L_ok{u}")
    for k, (ld, _) in enumerate(items):
        A(f"v_and_b32 v{tmp}, s{sMASK}, v{tmp+1+k}\nv_cmp_ne_u32 vcc, 0, v{tmp}\ns_cbranch_vccz L_skip{u}_{k}")
        A(ld)
        A(f"L_skip{u}_{k}:")
    A(f"s_branch L_poll{u}")
    A(f"L_ok{u}:")
    tmo(u)
    for _, regs in items:
        for r in regs:
            A(f"v_xor_b32 v{r}, v{r}, v{vT}")


def spin(off, n, tmp, extra=None, sleep=1):
    uid[0] += 1
    u = uid[0]
    A(f"L_spin{u}:")
    A(f"ds_read_b32 v{tmp}, v{vL} offset:{off-MX}")
    if extra:
        A(extra)
    A("s_waitcnt lgkmcnt(0)")
    A(f"v_readfirstlane_b32 s{sT0}, v{tmp}")
    A(f"s_cmp_ge_u32 s{sT0}, {n}\ns_cbranch_scc1 L_spun{u}")
    A(f"s_sleep {sleep}\ns_branch L_spin{u}")
    A(f"L_spun{u}:")


def store_fs(instr):
    uid[0] += 1
    u = uid[0]
    A(f"s_cmp_eq_u32 s{sFAST}, 0\ns_cbranch_scc1 L_slow{u}")
    A(instr)
    A(f"s_branch L_sdone{u}\nL_slow{u}:")
    A(instr + " sc1")
    A(f"L_sdone{u}:")


digits = lambda s: [int(c) for c in str(s)[1:]]
TABLE, TAB = [], []
fg = 0
for xg in range(8):
    fr = 0
    for hl in range(4):
        nm = 3 if hl < (3 if xg < 6 else 2) else 2
        ne = digits(opt["spl"] if hl == 3 else opt["sp3"] if nm == 3 else opt["sp2"])
        assert sum(ne) == 16
        TAB.append(ne)
        for sp in range(8):
            if sp < 2:
                role, grp = 0, hl * 2 + sp
                grp ^= 4 if grp & 3 == 3 else 0
            elif sp < 2 + nm:
                role, grp = 1, fg
                fg += 1
            else:
                role, grp = 2, fr
                fr += 1
            assert role == 2 or ne[sp] <= 2
            TABLE.append(role | grp << 2 | ne[sp] << 9 | sum(ne[:sp]) % 16 << 12)
assert fg == NMLP

hdr = open(os.path.join(os.path.dirname(os.path.abspath(__file__)), "hdr.txt")).read().split("\n")
out = [l for l in hdr if l.startswith(";") and "@launch" not in l and "Override" not in l and "grid=ceil" not in l]
out.append(f"; @launch grid=(256,1,1) block=(768,1,1) lds={LDS_BYTES}")
out.append(""";
;   wave 0      LayerNorm(x), one 64-row block of q = LN(x).wq, exchange of the 8 blocks of the head
; The two cross-XCD hand-offs (z, p) sit in the 8 KiB halves of d_ws whose memory is next to their readers (speed only).""")
out.append('.amdgcn_target "amdgcn-amd-amdhsa--gfx950"')
out.append(".text")
out.append(f".globl {NAME}_kernel")
out.append(".p2align 8")
out.append(f".type {NAME}_kernel,@function")
out.append(f"{NAME}_kernel:")

C("---- prologue: arguments, code prefetch into L2, first K loads of waves 6..11")
A("L_start:")
A("s_load_dwordx16 s[4:19], s[0:1], 0\ns_load_dwordx8 s[20:27], s[0:1], 64")
A(f"s_lshr_b32 s{sT0}, s2, 8\ns_cbranch_scc1 L_exit")
A(f"s_getpc_b64 s[{rA}:{rA+1}]")
A("L_pc:")
A(f"v_lshlrev_b32 v2, {opt['pfs']}, v0\nv_min_u32 v2, L_last-L_pc-4, v2")
A(f"global_load_dword v167, v2, s[{rA}:{rA+1}]")
C("K/V are cut into units of 64 keys; waves 6..11 own the first six of the eight units at slot*8")
A(f"s_and_b32 s{sXG}, s2, 7\ns_lshl_b32 s{sT0}, s{sXG}, 8\ns_andn2_b32 s{sT1}, s2, 7\ns_add_u32 s{sSLOT}, s{sT0}, s{sT1}")
A(f"s_sub_u32 s{sT0}, s{sSLOT}, 6\ns_lshl_b32 s{sT0}, s{sT0}, 14")
A(f"v_lshrrev_b32 v1, 6, v0\nv_and_b32 v0, 63, v0\nv_readfirstlane_b32 s3, v1\nv_lshl_add_u32 v1, v1, 14, s{sT0}\nv_lshl_add_u32 v1, v0, 4, v1")
A("s_cmp_lt_u32 s3, 6\ns_cbranch_scc1 L_late\ns_waitcnt lgkmcnt(0)")
for i in range(NE):
    A(f"global_load_dwordx4 {V(KR+4*i,4)}, v1, s[{pK}:{pK+1}] offset:{1024*i}{NT}")
A("L_late:")
if STAMPS:
    for k in range(8):
        A(f"s_mov_b32 s{sST+2*k}, 0")
st(0)
if STAMPS or opt.get("diag"):
    A("s_memrealtime s[100:101]")
A(f"s_lshr_b32 s{sI}, s2, 3\ns_lshr_b32 s{sSLOT}, s{sSLOT}, 3")
A("v_lshlrev_b32 v8, 4, v0")
C("wave 0: x and its 64 rows of wq (lane group g takes rows 16g + t)")
A("s_cmp_lg_u32 s3, 0\ns_cbranch_scc1 L_not0")
A(f"s_and_b32 s{sT0}, s{sI}, 7\ns_lshl_b32 s{sT0}, s{sT0}, 6")
A(f"v_lshrrev_b32 v2, 4, v0\nv_lshl_add_u32 v2, v2, 4, s{sT0}\nv_lshlrev_b32 v3, 1, v2")
A(f"s_lshr_b32 s{sT0}, s{sSLOT}, 3\ns_lshl_b32 s{sT0}, s{sT0}, 8")
A(f"v_lshlrev_b32 v2, 13, v2\nv_and_b32 v9, 15, v0\nv_lshl_add_u32 v2, v9, 4, v2\nv_add_u32 v2, s{sT0}, v2")
A(f"s_movk_i32 s{sT0}, 0x2000\ns_waitcnt lgkmcnt(0)")
A(f"global_load_dwordx4 v[104:107], v8, s[{pX}:{pX+1}]")
A(f"global_load_dwordx4 v[12:15], v3, s[{pX}:{pX+1}]")
A(f"global_load_dwordx4 v[16:19], v3, s[{pX}:{pX+1}] offset:16")
for t in range(16):
    A(f"global_load_dwordx4 {V(40+4*t,4)}, v2, s[{pWQ}:{pWQ+1}]{NT}")
    if t < 15:
        A(f"v_add_u32 v2, s{sT0}, v2")
A("L_not0:")
A(f"s_and_b32 s{sT0}, s{sSLOT}, 0xfe\ns_lshl_b32 s{sT0}, s{sT0}, 1\ns_add_u32 s{sT0}, s{sT0}, L_table-L_pc\ns_load_dword s{sTAB}, s[{rA}:{rA+1}], s{sT0}")
C("workgroup 0, wave 2: this launch's number -> d_ws, and with 1 << 31 | XCC id << 28 -> d_debug (4 copies)")
A(f"s_lshl_b32 s{sT0}, s2, 4\ns_add_u32 s{sT0}, s{sT0}, s3\ns_cmp_eq_u32 s{sT0}, 2\ns_cbranch_scc0 L_notlead")
A(f"s_waitcnt lgkmcnt(0)\ns_load_dword s{sT0}, s[{pWS}:{pWS+1}], {hex(EPOCH)}")
A(f"s_getreg_b32 s{sT1}, hwreg(HW_REG_XCC_ID)\ns_or_b32 s{sT1}, s{sT1}, 8\ns_lshl_b32 s{sT1}, s{sT1}, 28")
A(f"v_mov_b32 v3, {EPOCH}\nv_lshlrev_b32 v4, 6, v0\ns_waitcnt lgkmcnt(0)")
A(f"s_add_u32 s{sT0}, s{sT0}, 0x0e3779b1\ns_and_b32 s{sT0}, s{sT0}, 0x0fffffff\ns_or_b32 s{sT1}, s{sT1}, s{sT0}")
A(f"v_mov_b32 v5, s{sT1}\nv_mov_b32 v6, s{sT0}\ns_mov_b64 exec, 15")
A(f"global_store_dword v4, v5, s[{pDBG}:{pDBG+1}] sc1")
A("s_mov_b64 exec, 1")
A(f"global_store_dword v3, v6, s[{pWS}:{pWS+1}] sc1")
A("s_mov_b64 exec, -1")
A("L_notlead:")
C("LDS: counters and accumulators = 0, running max = -inf; decode the work-table entry\n(role | group << 2 | spare units << 9 | first spare unit << 12); spare units go to waves 5, 4, 3, 2")
A("v_mov_b32 v4, 0\nv_mov_b32 v5, 0\nv_mov_b32 v6, 0\nv_mov_b32 v7, 0")
A(f"s_mov_b32 s{sT0}, 0xff800000\nv_writelane_b32 v4, s{sT0}, 0")
A(f"ds_write_b128 v8, v[4:7] offset:{MX}")
A(f"s_lshl_b32 s{sT0}, s3, 9\nv_lshl_add_u32 v9, v0, 3, s{sT0}\nds_write_b64 v9, v[6:7] offset:{OSL}")
A(f"""s_waitcnt lgkmcnt(0)
s_bitcmp1_b32 s{sI}, 0
s_cselect_b32 s{sT2}, 16, 0
s_lshr_b32 s{sT2}, s{sTAB}, s{sT2}
s_and_b32 s{sROLE}, s{sT2}, 3
s_bfe_u32 s{sR}, s{sT2}, 0x70002
s_bfe_u32 s{sT4}, s{sT2}, 0x30009
s_bfe_u32 s{sT3}, s{sT2}, 0x4000c
s_add_u32 s{sNKV}, s{sT4}, 6
s_add_u32 s{sU}, s3, s{sT4}
s_sub_u32 s{sU}, s{sU}, 6
s_cmp_ge_u32 s3, 6
s_cbranch_scc1 L_own_unit
s_add_u32 s{sT3}, s{sT3}, 5
s_sub_u32 s{sT3}, s{sT3}, s3
s_lshr_b32 s{sT2}, s{sT3}, 1
s_mul_i32 s{sT2}, s{sT2}, 6
s_add_u32 s{sT2}, s{sT2}, s{sT3}
s_and_b32 s{sT3}, s{sSLOT}, 0xf8
s_lshl_b32 s{sT3}, s{sT3}, 3
s_add_u32 s{sT2}, s{sT2}, s{sT3}
s_add_u32 s{sT2}, s{sT2}, 6
s_lshl_b32 s{sT2}, s{sT2}, 14
v_add_u32 v1, s{sT2}, v8
L_own_unit:""")
A(f"s_mov_b32 s{sHI}, 0xffff0000\ns_mov_b32 s{sMASK}, {TAGMASK}")
A(f"v_mov_b32 v{vL}, {MX}\nv_mov_b32 v{vONE}, 1")
srd(rA, pK, 0x2000000)
srd(rB, pV, 0x2000000)
srd(rWS, pWS, 0x10000000)
st(6)
A("s_barrier")
A(f"s_cmp_lt_i32 s{sU}, 0\ns_cbranch_scc1 L_helper")


def kvload(base, i, r):
    A(f"buffer_load_dwordx4 {V(base+4*i,4)}, v1, {R(r)}, s{sCUR} offen{NT}")
    A(f"s_addk_i32 s{sCUR}, 0x400" if i < 15 else f"s_mov_b32 s{sCUR}, 0")


C(f"---- K/V waves: 16 K loads, {NV1} V loads, then (once q is in LDS) scores, softmax, the other V loads, p.V")
A(f"s_mov_b32 s{sCUR}, {NE*1024}")
A(f"s_cmp_ge_u32 s3, 6\ns_cbranch_scc1 L_k_rest\ns_mov_b32 s{sCUR}, 0")
for i in range(NE):
    kvload(KR, i, rA)
A("L_k_rest:")
for i in range(NE, 16):
    kvload(KR, i, rA)
for i in range(NV1):
    kvload(VR, i, rB)
st(1)
C("byte selectors that turn a (hi, lo) bf16 pair into the p (x) I operand; LDS and hand-off addresses")
A("""v_bfe_u32 v10, v0, 3, 1
v_mul_u32_u24 v10, 0x202, v10
v_add_u32 v10, 0x100, v10
v_and_b32 v11, 1, v0
v_lshlrev_b32 v11, 4, v11
v_lshlrev_b32 v10, v11, v10
v_mov_b32 v12, 0x0c0c0000
v_lshrrev_b32 v12, v11, v12
v_or_b32 v10, v10, v12
v_bfe_u32 v11, v0, 1, 2
v_mov_b32 v12, 0x0c0c0c0c""")
for i in range(4):
    A(f"v_cmp_eq_u32 vcc, {i}, v11\nv_cndmask_b32 v{6+i}, v12, v10, vcc")
A(f"s_mov_b32 s{sM1}, 0xcccccccc\ns_mov_b32 s{sM1+1}, 0xcccccccc\ns_mov_b32 s{sM0}, 0xaaaaaaaa\ns_mov_b32 s{sM0+1}, 0xaaaaaaaa")
A(f"s_mov_b32 s{sC2}, {f32(128 ** -0.5 * 1.4426950408889634)}")
A("v_and_b32 v32, 15, v0\nv_lshlrev_b32 v32, 4, v32")
A(f"v_lshrrev_b32 v34, 4, v0\nv_and_b32 v35, 7, v0\nv_lshl_add_u32 v34, v34, 3, v35\ns_lshl_b32 s{sT0}, s3, 9\nv_lshl_add_u32 v34, v34, 4, s{sT0}")
A("v_lshlrev_b32 v35, 3, v0")
A(f"s_lshl_b32 s{sT0}, s{sSLOT}, 9\ns_add_u32 s{sT0}, s{sT0}, {OS}\nv_lshl_add_u32 v36, v0, 3, s{sT0}")
A(f"s_lshl_b32 s{sT0}, s{sSLOT}, 4\ns_add_u32 s{sT0}, s{sT0}, {ST}\nv_mov_b32 v37, s{sT0}")
A(f"s_sub_u32 s{sN}, s{sNKV}, 1")
A(f"v_lshrrev_b32 v26, 1, v32\nv_add_u32 v26, {ML}, v26\ns_lshl_b32 s{sT0}, s3, 3\ns_add_u32 s{sT0}, s{sT0}, {ML}\nv_mov_b32 v27, s{sT0}")
spin(CQ, 1, 10, f"ds_read_b128 v[2:5], v32 offset:{QL}\nds_read_b64 v[28:29], v{vL} offset:{FAST-MX}", sleep=2)
st(2)
A(f"v_readfirstlane_b32 s{sFAST}, v28\nv_mov_b32 v{vT}, v29")
A(f"s_waitcnt vmcnt({NV1})")
C("scores: lane (g, c) holds 8 dims of key 4i + g of load i; reduce-scatter leaves key (load c, row g) in lane (g, c)")
for j in range(4):
    for i in range(16):
        c = "0" if j == 0 else f"v{10+i}"
        A(f"v_dot2_f32_bf16 v{10+i}, v{KR+4*i+j}, v{2+j}, {c}")
for i in range(8):
    A(f"v_add_f32_dpp v{10+i}, v{10+i}, v{10+i} row_ror:8 row_mask:0xf bank_mask:0x3")
    A(f"v_add_f32_dpp v{10+i}, v{18+i}, v{18+i} row_ror:8 row_mask:0xf bank_mask:0xc")
for i in range(4):
    A(f"v_add_f32_dpp v{10+i}, v{10+i}, v{10+i} row_ror:12 row_mask:0xf bank_mask:0x5")
    A(f"v_add_f32_dpp v{10+i}, v{14+i}, v{14+i} row_ror:4 row_mask:0xf bank_mask:0xa")
for i in range(4):
    A(f"v_add_f32_dpp v{10+i}, v{10+i}, v{10+i} quad_perm:[2,3,0,1] {DPP}")
for i in range(2):
    A(f"v_cndmask_b32 v{10+i}, v{10+i}, v{12+i}, s[{sM1}:{sM1+1}]")
for i in range(2):
    A(f"v_add_f32_dpp v{10+i}, v{10+i}, v{10+i} quad_perm:[1,0,3,2] {DPP}")
A(f"v_cndmask_b32 v10, v10, v11, s[{sM0}:{sM0+1}]")
C("p = 2^(score - wave max), scores in log2 units; bf16 hi and lo parts; wave sum")
A(f"v_mul_f32 v10, s{sC2}, v10")
wave_allreduce("v_max_f32", 11, 12, first=10)
A("v_sub_f32 v10, v10, v11\nv_exp_f32 v10, v10")
A("v_cvt_pk_bf16_f32 v13, v10, v10\nv_lshlrev_b32 v13, 16, v13\nv_sub_f32 v13, v10, v13\nv_cvt_pk_bf16_f32 v13, v10, v13")
wave_allreduce("v_add_f32", 10, 12)
C("(max, sum) of this wave -> LDS; the wave that arrives last publishes the workgroup's pair")
A("v_mov_b32 v20, v11\nv_mov_b32 v21, v10\ns_mov_b64 exec, 1")
A(f"ds_write_b64 v27, v[20:21]\nds_max_f32 v{vL}, v11\nds_add_rtn_u32 v12, v{vL}, v{vONE} offset:{C1-MX}")
A("s_mov_b64 exec, -1")
A(f"ds_read_b64 v[22:23], v26\nds_read_b32 v20, v{vL}\ns_waitcnt lgkmcnt(0)")
A(f"v_readfirstlane_b32 s{sT0}, v12")
A(f"s_cmp_lg_u32 s{sT0}, s{sN}\ns_cbranch_scc1 L_kv_nost")
A(f"v_bfi_b32 v20, s{sMASK}, 0, v20")
A("v_sub_f32 v22, v22, v20\nv_min_f32 v22, 0x42800000, v22\nv_exp_f32 v22, v22\nv_mul_f32 v21, v22, v23")
row_allreduce("v_add_f32", 21)
tag([20, 21])
A(f"v_mov_b32 v22, v{vT}\nv_mov_b32 v23, v{vT}\ns_mov_b64 exec, 1\ns_setprio 3")
store_fs(f"buffer_store_dwordx4 v[20:23], v37, {R(rWS)}, 0 offen")
A("s_setprio 0\ns_mov_b64 exec, -1")
st(7)
A("L_kv_nost:")
st(3)
for i in range(NV1, 16):
    kvload(VR, i, rB)
C("B operands: p (hi in columns 0-7, lo in 8-15) times identity, written over the dead K registers")
for t in range(16):
    A(f"v_mov_b32_dpp v{14+t%4}, v13 row_newbcast:{t} {DPP}")
    if t >= 1:
        for i in range(4):
            A(f"v_perm_b32 v{KR+4*(t-1)+i}, v{14+(t-1)%4}, v{14+(t-1)%4}, v{6+i}")
for i in range(4):
    A(f"v_perm_b32 v{KR+60+i}, v{14+15%4}, v{14+15%4}, v{6+i}")
spin(C1, f"s{sNKV}", 12, f"ds_read_b32 v19, v{vL}", sleep=2)
A(f"v_bfi_b32 v19, s{sMASK}, 0, v19\nv_sub_f32 v18, v11, v19\nv_exp_f32 v18, v18")
st(4)
for t in range(16):
    A(f"s_waitcnt vmcnt({15-t})")
    c = "0" if t == 0 else "v[28:31]"
    A(f"v_mfma_f32_16x16x32_bf16 v[28:31], {V(VR+4*t,4)}, {V(KR+4*t,4)}, {c}")
st(5)
C("hi + lo, scale to the workgroup max, own slot in LDS; the last wave sums the slots and publishes o")
for i in range(4):
    A(f"v_add_f32_dpp v{28+i}, v{28+i}, v{28+i} row_ror:8 {DPP}")
A("v_pk_mul_f32 v[28:29], v[28:29], v[18:19] op_sel_hi:[1,0]\nv_pk_mul_f32 v[30:31], v[30:31], v[18:19] op_sel_hi:[1,0]")
A("s_mov_b32 exec_lo, 0x00ff00ff\ns_mov_b32 exec_hi, 0x00ff00ff")
A(f"ds_write_b128 v34, v[28:31] offset:{OSL}")
A("s_mov_b64 exec, 1")
A(f"ds_add_rtn_u32 v12, v{vL}, v{vONE} offset:{C3-MX}")
A("s_mov_b64 exec, -1")
assert max(max(t) for t in TAB) == 4
P = lambda k: V(KR + 2 * k, 2)
for k in range(10):
    A(f"ds_read_b64 {P(k)}, v35 offset:{OSL+512*(2+k)}")
A("s_waitcnt lgkmcnt(6)")
A(f"v_readfirstlane_b32 s{sT0}, v12")
A(f"v_pk_add_f32 {P(0)}, {P(0)}, {P(1)}\nv_pk_add_f32 {P(2)}, {P(2)}, {P(3)}\ns_waitcnt lgkmcnt(2)")
A(f"v_pk_add_f32 {P(4)}, {P(4)}, {P(5)}\nv_pk_add_f32 {P(6)}, {P(6)}, {P(7)}\nv_pk_add_f32 {P(0)}, {P(0)}, {P(2)}\ns_waitcnt lgkmcnt(0)")
A(f"v_pk_add_f32 {P(8)}, {P(8)}, {P(9)}\nv_pk_add_f32 {P(4)}, {P(4)}, {P(6)}\nv_pk_add_f32 {P(0)}, {P(0)}, {P(8)}\nv_pk_add_f32 v[18:19], {P(0)}, {P(4)}")
tag([18])
A(f"s_cmp_lg_u32 s{sT0}, s{sN}\ns_cbranch_scc1 L_kv_end")
store_fs(f"buffer_store_dwordx2 v[18:19], v36, {R(rWS)}, 0 offen")
A(f"ds_write_b32 v{vL}, v{vONE} offset:{C5-MX}")
st(6)
A("L_kv_end:")
end_wave()

A("L_helper:")
for i in range(4):
    A(f"s_mov_b32 s{sOFF+i}, {i*4096}")
A(f"s_mov_b32 s{sZO2}, 16384\ns_mov_b32 s{sZO3}, 20480")
srd(rD, pX, 1024)
A("s_cmp_eq_u32 s3, 0\ns_cbranch_scc1 L_q")
A("s_cmp_ge_u32 s3, 4\ns_cbranch_scc1 L_idle")
A(f"s_lshl_b32 s{sT0}, s2, 4\ns_add_u32 s{sT0}, s{sT0}, s3\ns_cmp_eq_u32 s{sT0}, 2\ns_cbranch_scc0 L_roles")
C("""workgroup 0, wave 2: which 8 KiB half of d_ws lies next to this XCD?  Count loop turns until an uncached read of
either half lands (best of a few); d_debug[1] = 2 | (near half of XCDs 0-3).  A wrong answer costs only time.""")
if opt.get("noprobe"):
    A("s_branch L_noprobe")
A(f"""s_load_dword s80, s[{pWS}:{pWS+1}], {hex(PROBE)} glc
s_load_dword s81, s[{pWS}:{pWS+1}], {hex(PROBE+0x2000)} glc
s_mov_b32 s82, -1
s_mov_b32 s83, -1
s_mov_b32 s{sT2}, {opt['nprobe']}
s_mov_b32 s{sT3}, 0
s_waitcnt lgkmcnt(0)
L_probe:""")
for h in range(2):
    A(f"""s_not_b32 s{sT0}, s{80+h}
s_mov_b32 s{sT1}, 0
s_load_dword s{sT0}, s[{pWS}:{pWS+1}], {hex(PROBE+0x2000*h)} glc
L_probe{h}:
s_add_u32 s{sT1}, s{sT1}, 1
s_cmp_eq_u32 s{sT0}, s{80+h}
s_cbranch_scc1 L_probed{h}
s_cmp_lt_u32 s{sT1}, 0x100
s_cbranch_scc1 L_probe{h}
L_probed{h}:
s_waitcnt lgkmcnt(0)
s_min_u32 s{82+h}, s{82+h}, s{sT1}
s_add_u32 s{sT3}, s{sT3}, s{sT1}""")
A(f"""s_cmp_lt_u32 s{sT3}, {opt['pbudget']}
s_cselect_b32 s{sT2}, s{sT2}, 1
s_sub_u32 s{sT2}, s{sT2}, 1
s_cmp_lg_u32 s{sT2}, 0
s_cbranch_scc1 L_probe
s_getreg_b32 s{sT0}, hwreg(HW_REG_XCC_ID)
s_bfe_u32 s{sT0}, s{sT0}, 0x10002
s_cmp_lt_u32 s83, s82
s_cselect_b32 s{sT1}, 3, 2
s_xor_b32 s{sT1}, s{sT1}, s{sT0}""")
if opt.get("noprobe"):
    A("L_noprobe:")
if opt["loc"] != "probe":
    A(f"s_mov_b32 s{sT1}, {2 | opt['loc']}")
if STAMPS or opt.get("diag"):
    A(f"s_lshl_b32 s82, s82, 8\ns_lshl_b32 s83, s83, 20\ns_or_b32 s{sT1}, s{sT1}, s82\ns_or_b32 s{sT1}, s{sT1}, s83")
A(f"v_mov_b32 v4, s{sT1}\nv_mov_b32 v3, 4\ns_mov_b64 exec, 1")
A(f"global_store_dword v3, v4, s[{pDBG}:{pDBG+1}] sc1")
A("s_mov_b64 exec, -1\ns_branch L_roles")
A("L_idle:")
end_wave()

C("---- wave 0: LayerNorm(x) with the reference's bf16 roundings, q block by MFMA (xn (x) I operand)")
A("L_q:")
A("""v_and_b32 v28, 1, v0
v_lshlrev_b32 v28, 4, v28
v_mov_b32 v29, 0x100
v_lshlrev_b32 v29, v28, v29
v_mov_b32 v30, 0x0c0c0000
v_lshrrev_b32 v30, v28, v30
v_or_b32 v29, v29, v30
v_bfe_u32 v28, v0, 1, 3
v_mov_b32 v30, 0x0c0c0c0c""")
for i in range(4):
    A(f"v_cmp_eq_u32 vcc, {i}, v28\nv_cndmask_b32 v{20+i}, v30, v29, vcc")
A("s_waitcnt vmcnt(16)")
for j in range(4):
    A(f"v_lshlrev_b32 v{112+2*j}, 16, v{104+j}\nv_and_b32 v{113+2*j}, s{sHI}, v{104+j}")
A("v_add_f32 v36, v112, v113\nv_add_f32 v37, v114, v115\nv_add_f32 v34, v116, v117\nv_add_f32 v35, v118, v119")
A("v_add_f32 v36, v36, v37\nv_add_f32 v34, v34, v35\nv_add_f32 v36, v36, v34")
wave_allreduce("v_add_f32", 36, 37)
A(f"v_mul_f32 v36, {f32(1/512)}, v36")
for j in range(8):
    A(f"v_sub_f32 v{112+j}, v{112+j}, v36")
A("v_mul_f32 v37, v112, v112")
for j in range(1, 8):
    A(f"v_fmac_f32 v37, v{112+j}, v{112+j}")
wave_allreduce("v_add_f32", 37, 34)
A(f"v_mul_f32 v37, {f32(1/512)}, v37")
A(f"""v_cvt_pk_bf16_f32 v34, v36, v37
v_lshlrev_b32 v36, 16, v34
v_and_b32 v37, s{sHI}, v34
v_add_f32 v37, {f32(1e-5)}, v37
v_cvt_pk_bf16_f32 v37, v37, v37
v_and_b32 v37, s{sHI}, v37
v_sqrt_f32 v37, v37
v_cvt_pk_bf16_f32 v37, v37, v37
v_and_b32 v37, s{sHI}, v37
v_rcp_f32 v37, v37""")
for j in range(8):
    r = 12 + j
    A(f"""v_lshlrev_b32 v28, 16, v{r}
v_and_b32 v29, s{sHI}, v{r}
v_sub_f32 v28, v28, v36
v_sub_f32 v29, v29, v36
v_cvt_pk_bf16_f32 v30, v28, v29
v_lshlrev_b32 v28, 16, v30
v_and_b32 v29, s{sHI}, v30
v_mul_f32 v28, v28, v37
v_mul_f32 v29, v29, v37
v_cvt_pk_bf16_f32 v{r}, v28, v29""")
A(f"s_load_dword s{sN}, s[{pDBG}:{pDBG+1}], 0")
A("s_waitcnt vmcnt(0)")
st(1)
for t in range(16):
    src = 12 + t // 2
    if t % 2:
        A(f"v_lshrrev_b32 v{src}, 16, v{src}")
    b = 104 + 4 * (t % 2)
    for i in range(4):
        A(f"v_perm_b32 v{b+i}, v{src}, v{src}, v{20+i}")
    c = "0" if t == 0 else "v[24:27]"
    A(f"v_mfma_f32_16x16x32_bf16 v[24:27], {V(40+4*t,4)}, {V(b,4)}, {c}")
C("launch number: one try per scalar-cache line, then vector loads (bounded)")
srd(rA, pDBG, 256)
A(f"s_mov_b32 s{sCNT}, {opt['spin']}")
for k in range(1, 4):
    A(f"s_waitcnt lgkmcnt(0)\ns_cmp_lg_u32 s{sN}, 0\ns_cbranch_scc1 L_num_ok")
    if k > 1:
        A(f"s_sleep {opt['nsl']}")
    A(f"s_load_dword s{sN}, s[{pDBG}:{pDBG+1}], {64*k}")
A("v_mov_b32 v3, 0\ns_waitcnt lgkmcnt(0)")
A(f"""L_num:
s_cmp_lg_u32 s{sN}, 0
s_cbranch_scc1 L_num_ok
s_sub_u32 s{sCNT}, s{sCNT}, 1
s_cbranch_scc1 L_num_ok
buffer_load_dword v4, v3, {R(rA)}, 0 offen sc1
s_waitcnt vmcnt(0)
v_readfirstlane_b32 s{sN}, v4
s_branch L_num
L_num_ok:""")
tmo(99)
st(2)
A(f"s_and_b32 s{sT0}, s{sN}, s{sMASK}\nv_mov_b32 v{vT}, s{sT0}")
A(f"s_getreg_b32 s{sT2}, hwreg(HW_REG_XCC_ID)\ns_and_b32 s{sT2}, s{sT2}, 15")
A(f"s_bfe_u32 s{sLOC}, s{sN}, 0x3001c")
A(f"s_lshl_b32 s{sN}, s{sN}, 4\ns_or_b32 s{sN}, s{sN}, s{sT2}")
C("publish the block (lane-native layout); Z workgroups also say which XCD they run on")
A(f"s_lshl_b32 s{sT0}, s{sSLOT}, 9")
A(f"v_lshrrev_b32 v2, 4, v0\nv_and_b32 v3, 7, v0\nv_lshl_add_u32 v2, v2, 3, v3\nv_lshl_add_u32 v2, v2, 4, s{sT0}")
assert QS == 0
tag([24])
A("s_mov_b32 exec_lo, 0x00ff00ff\ns_mov_b32 exec_hi, 0x00ff00ff")
A(f"buffer_store_dwordx4 v[24:27], v2, {R(rWS)}, 0 offen sc1")
A("s_mov_b64 exec, -1")
A(f"s_lshl_b32 s{sT1}, s{sXG}, 7\ns_add_u32 s{sT1}, s{sT1}, {XC}\nv_lshl_add_u32 v5, v3, 2, s{sT1}")
A(f"s_cmp_eq_u32 s{sROLE}, 0\ns_cbranch_scc0 L_noxc")
A(f"s_lshl_b32 s{sT0}, s{sR}, 2\ns_add_u32 s{sT0}, s{sT0}, s{sT1}\nv_mov_b32 v3, s{sT0}\nv_mov_b32 v4, s{sN}\ns_mov_b64 exec, 1")
A(f"buffer_store_dword v4, v3, {R(rWS)}, 0 offen sc1")
A("s_mov_b64 exec, -1")
A("L_noxc:")
A(f"s_and_b32 s{sT0}, s{sSLOT}, 0xf8\ns_lshl_b32 s{sT0}, s{sT0}, 9\nv_add_u32 v7, s{sT0}, v8")
A("v_bfe_u32 v2, v0, 3, 2\nv_lshlrev_b32 v2, 2, v2\nv_lshrrev_b32 v3, 5, v0\nv_add_u32 v2, v2, v3\nv_and_b32 v3, 7, v0\nv_lshl_add_u32 v2, v2, 3, v3\nv_lshlrev_b32 v2, 1, v2")
C("bring the lines this workgroup will publish o and (max, sum) in into L2 now: a store to an absent line\nmakes its first reader wait for a fill from memory")
A(f"s_lshl_b32 s{sT0}, s{sSLOT}, 9\ns_add_u32 s{sT0}, s{sT0}, {OS}\nv_lshl_add_u32 v9, v0, 3, s{sT0}")
A(f"buffer_load_dword v28, v9, {R(rWS)}, 0 offen")
A(f"s_lshl_b32 s{sT0}, s{sSLOT}, 4\ns_add_u32 s{sT0}, s{sT0}, {ST}\nv_mov_b32 v9, s{sT0}")
A(f"buffer_load_dword v29, v9, {R(rWS)}, 0 offen")
A("s_waitcnt vmcnt(0)")
st(3)


def q_poll():
    for t in range(4):
        A(f"buffer_load_dwordx4 {V(112+4*t,4)}, v7, {R(rWS)}, 0 offen offset:{1024*t} sc1")
    A(f"buffer_load_dword v6, v5, {R(rWS)}, 0 offen sc1")


poll(q_poll, [112, 116, 120, 124], 10)
A(f"v_cmp_ne_u32 vcc, s{sN}, v6\ns_cmp_eq_u64 vcc, 0\ns_cselect_b32 s{sFAST}, 1, 0")
A(f"v_mov_b32 v4, s{sFAST}\nv_mov_b32 v5, v{vT}\nv_mov_b32 v6, s{sLOC}\nds_write_b64 v{vL}, v[4:5] offset:{FAST-MX}\nds_write_b32 v{vL}, v6 offset:{LOC-MX}")
for i in range(4):
    A(f"v_add_f32 v{112+i}, v{112+i}, v{116+i}\nv_add_f32 v{120+i}, v{120+i}, v{124+i}")
for i in range(4):
    A(f"v_add_f32 v{112+i}, v{112+i}, v{120+i}")
A("v_permlane32_swap_b32 v112, v113\nv_permlane32_swap_b32 v114, v115")
A("v_add_f32 v112, v112, v113\nv_add_f32 v114, v114, v115")
A("v_cvt_pk_bf16_f32 v112, v112, v114")
A(f"ds_write_b16 v2, v112 offset:{QL}\nds_write_b16_d16_hi v2, v112 offset:{QL+32}")
A(f"ds_write_b32 v{vL}, v{vONE} offset:{CQ-MX}")
st(4)
C("one CU fetches lines at 384 mod 1024 bytes markedly slower than any other stride-1024 set: every\nworkgroup pulls 16 of the group's 512 such wo lines into L2 for the Z workgroup that owns them")
srd(rA, pWO, 0x400000)
A(f"v_and_b32 v1, 15, v0\nv_lshlrev_b32 v1, 10, v1\ns_lshl_b32 s{sT0}, s{sSLOT}, 14\ns_add_u32 s{sT0}, s{sT0}, 384")
A(f"buffer_load_dword v162, v1, {R(rA)}, s{sT0} offen")


def loc_issue():
    A(f"v_mov_b32 v17, 4\nglobal_load_dword v18, v17, s[{pDBG}:{pDBG+1}] sc1")


def loc_finish():
    uid[0] += 1
    u = uid[0]
    A(f"""s_mov_b32 s{sCNT}, {opt['spin']}
L_loc{u}:
v_readfirstlane_b32 s{sT0}, v18
s_cmp_lg_u32 s{sT0}, 0
s_cbranch_scc1 L_locok{u}
s_sub_u32 s{sCNT}, s{sCNT}, 1
s_cbranch_scc1 L_locok{u}
global_load_dword v18, v17, s[{pDBG}:{pDBG+1}] sc1
s_waitcnt vmcnt(0)
s_branch L_loc{u}
L_locok{u}:""")
    tmo(u)
    A(f"""s_getreg_b32 s{sT1}, hwreg(HW_REG_XCC_ID)
s_lshl_b32 s{sT0}, s{sT0}, 2
s_xor_b32 s{sLOC}, s{sLOC}, s{sT0}
s_and_b32 s{sLOC}, s{sLOC}, 7
s_xor_b32 s{sT0}, s{sT0}, s{sT1}
s_lshl_b32 s{sT0}, s{sT0}, 11
s_and_b32 s{sT0}, s{sT0}, 0x2000
s_or_b32 s{sLOC}, s{sLOC}, s{sT0}""")


def chunk(dst, grp):
    A(f"s_add_u32 s{dst}, {grp}, s{sLOC}\ns_lshl_b32 s{sT3}, s{dst}, 11")
    A(f"s_and_b32 s{sT3}, s{sT3}, 0x2000\ns_and_b32 s{dst}, s{dst}, 3\ns_lshl_b32 s{dst}, s{dst}, 8\ns_or_b32 s{dst}, s{dst}, s{sT3}")


def f_setup(par):
    A(f"s_lshl_b32 s{sT0}, s{sXG}, 3\ns_add_u32 s{sT0}, s{sT0}, s{sR}\ns_lshl_b32 s{sT0}, s{sT0}, 3")
    if par:
        A(f"s_add_u32 s{sT0}, s{sT0}, 4")
    A(f"s_and_b32 s{sT2}, s{sLOC}, 0x2000\ns_add_u32 s{sT2}, s{sT2}, {ZS}")
    A(f"v_lshrrev_b32 v20, 4, v0\nv_add_u32 v20, s{sT0}, v20\nv_lshlrev_b32 v21, 1, v20\nv_lshl_add_u32 v20, v20, 2, s{sT2}")
    A(f"s_lshl_b32 s{sT0}, s{sT0}, 2\ns_and_b32 s{sT1}, s{sT0}, 0x780\ns_add_u32 s{sT1}, s{sT1}, s{sT2}")
    A(f"v_bfe_u32 v27, v0, 3, 2\nv_lshlrev_b32 v27, 11, v27\nv_lshrrev_b32 v22, 5, v0\nv_lshl_add_u32 v27, v22, 14, v27\nv_and_b32 v23, 7, v0\nv_lshl_add_u32 v27, v23, 4, v27\nv_add_u32 v27, s{sT1}, v27")
    chunk(sT1, f"s{sXG}")
    A(f"s_and_b32 s{sT0}, s{sT0}, 0xff\ns_add_u32 s{sT0}, s{sT0}, s{sT1}\ns_add_u32 s{sT0}, s{sT0}, {PS}")
    A(f"v_lshrrev_b32 v22, 3, v0\nv_lshlrev_b32 v22, 14, v22\nv_lshl_add_u32 v22, v23, 10, v22\nv_add_u32 v22, s{sT0}, v22\nv_add_u32 v23, {8*16384}, v22")
    srd(rB, pOUT, 1024)
    A(f"buffer_load_ushort v26, v21, {R(rD)}, 0 offen")


A("L_roles:")
A(f"s_cmp_eq_u32 s{sROLE}, 1\ns_cbranch_scc1 L_mlp")
A(f"s_cmp_eq_u32 s{sROLE}, 0\ns_cbranch_scc1 L_z")
C("wave 0 of the group's first 8 role-free workgroups takes the other half of the F stage")
A("s_cmp_eq_u32 s3, 0\ns_cbranch_scc0 L_idle")
if opt["gpf"]:
    srd(rA, pWG, 512 * 2752)
    srd(rB, pWU, 512 * 2752)
    srd(rC, pWD, 1376 * 1024)
    A(f"""s_mul_i32 s{sT0}, s{sR}, 10
s_mul_i32 s{sT2}, s{sXG}, 11
s_cmp_eq_u32 s{sXG}, 7
s_subb_u32 s{sT2}, s{sT2}, 0
s_lshl_b32 s{sT1}, s{sT2}, 5
v_min_u32 v1, 39, v0
v_lshrrev_b32 v2, 2, v1
v_add_u32 v2, s{sT0}, v2
v_min_u32 v2, 127, v2
v_lshrrev_b32 v3, 5, v2
v_mul_u32_u24 v3, 96, v3
v_add3_u32 v2, v2, v3, 48
v_add_u32 v2, 48, v2
v_mul_u32_u24 v2, 2752, v2
v_and_b32 v1, 3, v1
v_lshlrev_b32 v1, 7, v1
v_min_u32 v1, 348, v1
v_add3_u32 v1, v1, v2, s{sT1}
s_mul_i32 s{sT0}, s{sR}, {109*128}
s_lshl_b32 s{sT1}, s{sT2}, 14
s_add_u32 s{sT0}, s{sT0}, s{sT1}
v_lshl_add_u32 v2, v0, 7, s{sT0}""")
else:
    A(f"s_cmp_lt_u32 s{sR}, 8\ns_cbranch_scc0 L_idle")
spin(C5, 1, 10, sleep=4)
if opt["gpf"]:
    if opt["gpf"] & 1:
        A(f"buffer_load_dword v150, v1, {R(rA)}, 0 offen\nbuffer_load_dword v151, v1, {R(rB)}, 0 offen")
    if opt["gpf"] & 2:
        A(f"buffer_load_dword v152, v2, {R(rC)}, 0 offen\ns_mov_b32 exec_hi, 0x1fff\nbuffer_load_dword v153, v2, {R(rC)}, s{sOFF+2} offen\ns_mov_b32 exec_hi, -1")
    A(f"s_cmp_lt_u32 s{sR}, 8\ns_cbranch_scc0 L_idle")
loc_issue()
A("s_waitcnt vmcnt(0)")
loc_finish()
f_setup(1)
C("z cannot be there before the group's o has been merged: stay off the memory pipeline until then")
A(f"s_sleep {opt['f0delay']}\ns_branch L_fin")

C("---- Z role: wave w owns head w of the group; wo tile -> LDS (DMA) -> transposed MFMA operands")
A("L_z:")
ZB, ZO, ZST, ZA, ZD = 40, 104, 120, 124, 140
srd(rA, pWO, 0x400000)
A(f"s_lshl_b32 s{sT0}, s{sXG}, 2\ns_add_u32 s{sT0}, s{sT0}, s3\ns_lshl_b32 s{sT0}, s{sT0}, 17\ns_lshl_b32 s{sT1}, s{sR}, 7\ns_add_u32 s{sT0}, s{sT0}, s{sT1}")
C("image row k holds wo row d(k): o is handed on in the order k = gq*32 + n*4 + i for d = gq*32 + i*8 + n")
A(f"v_bfe_u32 v1, v0, 3, 2\nv_lshrrev_b32 v2, 5, v0\nv_lshl_add_u32 v1, v1, 3, v2\nv_lshlrev_b32 v1, 10, v1\nv_and_b32 v2, 7, v0\nv_lshl_add_u32 v1, v2, 4, v1\nv_add_u32 v1, s{sT0}, v1")
A(f"s_lshl_b32 s{sIMG}, s3, 14\ns_add_u32 s{sIMG}, s{sIMG}, {WIMG}")
A(f"v_lshrrev_b32 v3, 4, v0\nv_lshlrev_b32 v3, 3, v3\nv_bfe_u32 v4, v0, 2, 2\nv_add_u32 v3, v3, v4\nv_lshlrev_b32 v3, 7, v3\nv_and_b32 v4, 3, v0\nv_lshl_add_u32 v3, v4, 3, v3\nv_add_u32 v3, s{sIMG}, v3")
A(f"s_lshl_b32 s{sT0}, s{sXG}, 5\ns_lshl_b32 s{sT1}, s3, 3\ns_add_u32 s{sT0}, s{sT0}, s{sT1}")
A(f"s_lshl_b32 s{sT1}, s{sT0}, 9\ns_add_u32 s{sT1}, s{sT1}, {OS}\nv_add_u32 v4, s{sT1}, v8")
A(f"s_lshl_b32 s{sT1}, s{sT0}, 4\ns_add_u32 s{sT1}, s{sT1}, {ST}\nv_lshl_add_u32 v5, v2, 4, s{sT1}")
A(f"s_lshl_b32 s{sT0}, s3, 8\ns_add_u32 s{sT1}, s{sT0}, {ZP}\nv_lshl_add_u32 v25, v0, 2, s{sT1}\ns_add_u32 s{sT0}, s{sT0}, {SCR}")
A(f"v_lshrrev_b32 v7, 4, v0\nv_lshl_add_u32 v7, v7, 4, s{sT0}")
A(f"v_and_b32 v9, 31, v0\nv_lshlrev_b32 v9, 3, v9\nv_lshrrev_b32 v10, 5, v0\nv_lshl_add_u32 v9, v10, 2, v9\nv_add_u32 v9, s{sT0}, v9")
A(f"s_lshr_b32 s{sT0}, s{sXG}, 2\ns_lshl_b32 s{sT0}, s{sT0}, 14\ns_and_b32 s{sT1}, s{sXG}, 3\ns_lshl_b32 s{sT1}, s{sT1}, 11\ns_add_u32 s{sT0}, s{sT0}, s{sT1}")
A(f"s_lshl_b32 s{sT1}, s{sR}, 8\ns_add_u32 s{sT0}, s{sT0}, s{sT1}\ns_add_u32 s{sT0}, s{sT0}, {ZS}")
A(f"v_and_b32 v6, 15, v0\nv_lshlrev_b32 v6, 4, v6\nv_bfe_u32 v10, v0, 4, 1\nv_lshl_add_u32 v24, v10, 13, v6\nv_add_u32 v24, s{sT0}, v24")
spin(C1, f"s{sNKV}", 10, f"ds_read_b32 v{vT}, v{vL} offset:{TAG-MX}\nds_read_b32 v11, v{vL} offset:{LOC-MX}", sleep=4)
A(f"v_readfirstlane_b32 s{sLOC}, v11")
A(f"buffer_load_dword v28, v24, {R(rWS)}, 0 offen")
for t in range(16):
    A(f"s_add_u32 m0, s{sIMG}, {t*1024}\ns_mov_b32 s{sT1}, {((t>>2)*32+(t&3)*2)*1024}")
    A(f"buffer_load_dwordx4 v1, {R(rA)}, s{sT1} offen{NT} lds")
loc_issue()
A("s_waitcnt vmcnt(0)")
for kb in range(4):
    for nt in range(4):
        for hf in range(2):
            A(f"ds_read_b64_tr_b16 {V(ZB+(kb*4+nt)*4+2*hf,2)}, v3 offset:{kb*4096+hf*512+nt*32}")
loc_finish()
f_setup(0)
st(5)
C("softmax weights of the head's 8 workgroups; the upper half-wave keeps those of the odd ones")
poll(lambda: A(f"buffer_load_dwordx4 {V(ZST,4)}, v5, {R(rWS)}, 0 offen sc1"), list(range(ZST, ZST + 4)), 10)
A(f"""v_max_f32_dpp v16, v{ZST}, v{ZST} quad_perm:[1,0,3,2] {DPP}
v_max_f32_dpp v16, v16, v16 quad_perm:[2,3,0,1] {DPP}
v_max_f32_dpp v16, v16, v16 row_half_mirror {DPP}
v_sub_f32 v16, v{ZST}, v16
v_exp_f32 v16, v16
v_mul_f32 v11, v16, v{ZST+1}
v_add_f32_dpp v11, v11, v11 quad_perm:[1,0,3,2] {DPP}
v_add_f32_dpp v11, v11, v11 quad_perm:[2,3,0,1] {DPP}
v_add_f32_dpp v11, v11, v11 row_half_mirror {DPP}
v_rcp_f32 v11, v11
v_mul_f32 v16, v16, v11
v_mov_b32_dpp v16, v16 row_ror:15 row_mask:0xc bank_mask:0xf""")
spin(C3, f"s{sNKV}", 10)
st(2)
poll4([(f"buffer_load_dwordx4 {V(ZO+4*t,4)}, v4, {R(rWS)}, 0 offen offset:{1024*t} sc1", [ZO + 4 * t, ZO + 4 * t + 2]) for t in range(4)], 10)
if opt.get("diag"):
    A("s_memrealtime s[98:99]")
st(6)
for t in range(4):
    for i in range(4):
        op = "v_mul_f32_dpp" if t == 0 else "v_fmac_f32_dpp"
        A(f"{op} v{12+i}, v16, v{ZO+4*t+i} row_newbcast:{2*t} {DPP}")
A("v_permlane32_swap_b32 v12, v14\nv_permlane32_swap_b32 v13, v15")
A("v_add_f32 v12, v12, v14\nv_add_f32 v13, v13, v15")
A("v_cvt_pk_bf16_f32 v12, v12, v13\nds_write_b32 v9, v12")
for kb in range(4):
    A(f"ds_read_b128 {V(ZA+4*kb,4)}, v7 offset:{64*kb}")
for kb in range(4):
    A(f"s_waitcnt lgkmcnt({3-kb})")
    for nt in range(4):
        c = "0" if kb == 0 else V(ZD + 4 * nt, 4)
        A(f"v_mfma_f32_16x16x32_bf16 {V(ZD+4*nt,4)}, {V(ZA+4*kb,4)}, {V(ZB+(kb*4+nt)*4,4)}, {c}")
for nt in range(1, 4):
    A(f"v_mov_b32_dpp v{ZD}, v{ZD+4*nt} quad_perm:[0,1,2,3] row_mask:{hex(1<<nt)} bank_mask:0xf")
C("the wave that arrives last sums the four heads and publishes")
A(f"ds_write_b32 v25, v{ZD}")
A("s_mov_b64 exec, 1")
A(f"ds_add_rtn_u32 v10, v{vL}, v{vONE} offset:{C4-MX}")
A("s_mov_b32 exec_lo, -1")
for w in range(4):
    A(f"ds_read_b128 {V(12 if w == 0 else ZA+4*w,4)}, v6 offset:{ZP+256*w}")
A("s_waitcnt lgkmcnt(2)")
A(f"v_readfirstlane_b32 s{sT0}, v10")
A(f"v_pk_add_f32 v[12:13], v[12:13], {V(ZA+4,2)}\nv_pk_add_f32 v[14:15], v[14:15], {V(ZA+6,2)}\ns_waitcnt lgkmcnt(0)")
A(f"v_pk_add_f32 {V(ZA+8,2)}, {V(ZA+8,2)}, {V(ZA+12,2)}\nv_pk_add_f32 {V(ZA+10,2)}, {V(ZA+10,2)}, {V(ZA+14,2)}")
A(f"v_pk_add_f32 v[12:13], v[12:13], {V(ZA+8,2)}\nv_pk_add_f32 v[14:15], v[14:15], {V(ZA+10,2)}")
tag([12])
A(f"s_cmp_lg_u32 s{sT0}, 3\ns_cbranch_scc1 L_z_notlast")
A(f"buffer_store_dwordx4 v[12:15], v24, {R(rWS)}, 0 offen sc1")
st(7)
A("L_z_notlast:")
A("s_mov_b64 exec, -1")
A("s_cmp_eq_u32 s3, 1\ns_cbranch_scc1 L_fin")
end_wave()

C("---- F stage: h for 4 columns (the first words of the line's 8 granules vouch for it), then the 86 MLP partial sums")
A("L_fin:")
poll(lambda: A(f"buffer_load_dword v28, v27, {R(rWS)}, 0 offen sc1"), [28], 10)
ZOFF = [f"s{sOFF}", f"s{sOFF+1}", f"s{sZO2}", f"s{sZO3}"]
for x in range(8):
    A(f"buffer_load_dword v{104+x}, v20, {R(rWS)}, {ZOFF[x//2]} offen offset:{2048*(x%2)} sc1")
A("v_mov_b32 v116, 0\nv_mov_b32 v117, 0\nv_mov_b32 v118, 0\nv_mov_b32 v119, 0")
A("s_waitcnt vmcnt(0)\ns_mov_b64 exec, 0xffff")
for x in range(8):
    A(f"v_xor_b32 v{104+x}, v{104+x}, v{vT}")
A("s_mov_b64 exec, -1")
st(1)
A("""v_add_f32 v104, v104, v106
v_add_f32 v105, v105, v107
v_add_f32 v104, v104, v108
v_add_f32 v105, v105, v109
v_add_f32 v104, v104, v110
v_add_f32 v105, v105, v111
v_add_f32 v104, v104, v105
v_lshlrev_b32 v26, 16, v26
v_add_f32 v104, v104, v26
v_cvt_pk_bf16_f32 v104, v104, v104
v_lshlrev_b32 v104, 16, v104""")
C("back off until the MLP stage is about done: a line read before it is written costs its writer an invalidation")
A(f"s_sleep {opt['fdelay']}")
TAILMASK = (1 << (NMLP - 64)) - 1


def f_poll2():
    A(f"buffer_load_dwordx4 v[112:115], v22, {R(rWS)}, 0 offen sc1")
    A(f"s_mov_b64 exec, {hex(TAILMASK)}\nbuffer_load_dwordx4 v[116:119], v23, {R(rWS)}, 0 offen sc1\ns_mov_b64 exec, -1")


poll(f_poll2, list(range(112, 116)), 10, masked=(TAILMASK, list(range(116, 120))))
st(2)
A("v_pk_add_f32 v[112:113], v[112:113], v[116:117]\nv_pk_add_f32 v[114:115], v[114:115], v[118:119]")
A("v_permlane32_swap_b32 v112, v114\nv_permlane32_swap_b32 v113, v115")
A("v_add_f32 v112, v112, v114\nv_add_f32 v113, v113, v115")
A("v_permlane16_swap_b32 v112, v113\nv_add_f32 v112, v112, v113")
row_allreduce("v_add_f32", 112)
A("v_add_f32 v112, v112, v104\nv_cvt_pk_bf16_f32 v112, v112, v112")
A("s_mov_b32 exec_lo, 0x00010001\ns_mov_b32 exec_hi, 0x00010001")
A(f"buffer_store_short v112, v21, {R(rB)}, 0 offen")
if opt.get("diag"):
    A(f"s_cmp_eq_u32 s{sI}, 0\ns_cbranch_scc0 L_exit\ns_cmp_eq_u32 s3, 1\ns_cbranch_scc0 L_exit")
    A("s_memrealtime s[96:97]\ns_waitcnt lgkmcnt(0)\ns_sub_u32 s94, s96, s98\ns_min_u32 s94, s94, 1000")
    A("s_mov_b32 s90, s94\ns_lshl_b32 s94, s94, 3\nL_amp:\ns_memrealtime s[92:93]\ns_waitcnt lgkmcnt(0)\ns_sub_u32 s92, s92, s96\ns_cmp_lt_u32 s92, s94\ns_cbranch_scc1 L_amp")
    A(f"s_lshl_b32 s{sT0}, s{sXG}, 2\nv_mov_b32 v1, s{sT0}\ns_lshl_b32 s91, s{sLOC}, 16\ns_or_b32 s90, s90, s91\nv_mov_b32 v2, s90\ns_mov_b64 exec, 1")
    A(f"global_store_dword v1, v2, s[{pDBG}:{pDBG+1}] offset:8 sc1")
st(3)
end_wave()

C("---- MLP role: wave w owns rows 128w.. of w_gate / w_up and columns 128w.. of w_down; weights load after this\nworkgroup's own K/V stream; g = ((h - mean).W) * rstd is evaluated as (h.W - mean * colsum(W)) * rstd")
A("L_mlp:")
srd(rA, pWG, 512 * 2752)
srd(rB, pWU, 512 * 2752)
srd(rC, pWD, 1376 * 1024)
A(f"s_lshl_b32 s{sT0}, s3, 7\nv_lshrrev_b32 v1, 1, v0\nv_add_u32 v1, s{sT0}, v1\nv_mul_u32_u24 v1, 2752, v1")
A(f"v_and_b32 v2, 1, v0\nv_lshl_add_u32 v1, v2, 4, v1\ns_lshl_b32 s{sT0}, s{sR}, 5\nv_add_u32 v1, s{sT0}, v1")
A(f"s_lshl_b32 s{sIMG}, s3, 14\ns_add_u32 s{sIMG}, s{sIMG}, {WIMG}")
A(f"v_lshrrev_b32 v3, 4, v0\nv_lshlrev_b32 v3, 3, v3\nv_bfe_u32 v4, v0, 2, 2\nv_add_u32 v3, v3, v4\nv_lshlrev_b32 v3, 5, v3\nv_and_b32 v2, 3, v0\nv_lshl_add_u32 v3, v2, 3, v3\nv_add_u32 v3, s{sIMG}, v3")
A(f"s_lshl_b32 s{sT0}, s3, 9\ns_add_u32 s{sT0}, s{sT0}, {ZS}\nv_lshrrev_b32 v2, 5, v0\nv_and_b32 v21, 31, v0\nv_lshlrev_b32 v4, 11, v2\nv_lshl_add_u32 v4, v21, 4, v4\nv_add_u32 v4, s{sT0}, v4")
A(f"v_lshlrev_b32 v21, 3, v21\nv_lshl_add_u32 v5, v2, 2, v21\ns_lshl_b32 s{sT0}, s3, 8\nv_add_u32 v5, s{sT0}, v5\nv_add_u32 v6, {SCR}, v5")
A(f"s_add_u32 s{sT0}, s{sT0}, {SCR}\nv_lshrrev_b32 v7, 4, v0\nv_lshl_add_u32 v7, v7, 4, s{sT0}")
A(f"s_lshl_b32 s{sT0}, s{sR}, 14\ns_lshl_b32 s{sT1}, s3, 8\ns_add_u32 s{sT0}, s{sT0}, s{sT1}")
A(f"v_lshrrev_b32 v20, 4, v0\nv_lshlrev_b32 v20, 10, v20\nv_and_b32 v22, 15, v0\nv_lshl_add_u32 v20, v22, 4, v20\nv_add_u32 v20, s{sT0}, v20")
A(f"s_add_u32 s{sT0}, s{sIMG}, 8192\nv_lshl_add_u32 v19, v0, 2, s{sT0}")
A(f"v_lshlrev_b32 v22, 3, v22\ns_lshl_b32 s{sT0}, s3, 7\ns_add_u32 s{sT0}, s{sT0}, {ZP}\nv_add_u32 v25, s{sT0}, v22")
A(f"v_lshlrev_b32 v23, 2, v2\nv_add_u32 v23, {SQ}, v23\nv_mov_b32 v24, {SQ}")
for i in range(4):
    A(f"v_mov_b32 v{116+i}, 0x3f803f80")
A(f"s_mov_b32 s{sM1}, 0x05040100\ns_mov_b32 s{sM1+1}, 0x07060302")
A(f"v_mov_b32 v30, 0\nv_mov_b32 v31, 0\nv_mov_b32 v29, {f32(1/512)}")
A(f"s_lshr_b32 s{sT4}, s{sR}, 3\ns_lshl_b32 s{sT4}, s{sT4}, 14\ns_and_b32 s{sT3}, s{sR}, 7\ns_lshl_b32 s{sT3}, s{sT3}, 10\ns_add_u32 s{sT4}, s{sT4}, s{sT3}\ns_add_u32 s{sT4}, s{sT4}, {PS}")
A(f"v_bfe_u32 v9, v0, 3, 1\nv_lshlrev_b32 v9, 13, v9\nv_and_b32 v10, 7, v0\nv_lshl_add_u32 v9, v10, 7, v9\nv_add_u32 v9, s{sT4}, v9")
spin(C1, f"s{sNKV}", 10, f"ds_read_b32 v{vT}, v{vL} offset:{TAG-MX}\nds_read_b32 v11, v{vL} offset:{LOC-MX}", sleep=4)
A(f"v_readfirstlane_b32 s{sLOC}, v11")
A(f"buffer_load_dword v26, v5, {R(rD)}, 0 offen")
A(f"buffer_load_dword v28, v9, {R(rWS)}, 0 offen")
loc_issue()
A("s_waitcnt vmcnt(0)")
loc_finish()
C("p chunk addresses: the lower / upper half-wave serves group 2w / 2w + 1; z is read from the near half")
A(f"s_lshl_b32 s{sT2}, s3, 1")
chunk(sT0, f"s{sT2}")
A(f"s_add_u32 s{sT2}, s{sT2}, 1")
chunk(sT1, f"s{sT2}")
A(f"s_add_u32 s{sT0}, s{sT0}, s{sT4}\ns_add_u32 s{sT1}, s{sT1}, s{sT4}\nv_add_u32 v10, s{sT1}, v21\nv_add_u32 v21, s{sT0}, v21")
A("s_mov_b32 exec_lo, 0\nv_mov_b32 v21, v10\ns_mov_b32 exec_lo, -1")
A(f"s_and_b32 s{sT0}, s{sLOC}, 0x2000\nv_add_u32 v4, s{sT0}, v4")
A(f"v_lshlrev_b32 v27, 16, v26\nv_and_b32 v26, s{sHI}, v26")
spin(C5, 1, 10)
st(2)
for t in range(4):
    A(f"s_add_u32 m0, s{sIMG}, {t*1024}\ns_mov_b32 s{sT1}, {t*32*2752}")
    A(f"buffer_load_dwordx4 v1, {R(rA)}, s{sT1} offen lds")
    A(f"s_add_u32 m0, s{sIMG}, {4096+t*1024}")
    A(f"buffer_load_dwordx4 v1, {R(rB)}, s{sT1} offen lds")
for t in range(4):
    A(f"s_add_u32 m0, s{sIMG}, {8192+t*1024}")
    A(f"buffer_load_dwordx4 v20, {R(rC)}, s{sOFF+t} offen{NT} lds")
st(5)
MZ = [(f"buffer_load_dwordx4 {V(72+4*t,4)}, v4, {R(rWS)}, {ZOFF[t]} offen sc1", [72 + 4 * t]) for t in range(4)]
if opt["mov"] == 1:
    for ld, _ in MZ:
        A(ld)
A(f"s_waitcnt vmcnt({4 if opt['mov'] == 1 else 0})")
if opt["mov"] == 2:
    for ld, _ in MZ:
        A(ld)
for kb in range(4):
    for tl in range(2):
        for hf in range(2):
            A(f"ds_read_b64_tr_b16 {V(40+(kb*2+tl)*4+2*hf,2)}, v3 offset:{kb*1024+hf*128+tl*4096}")
for r in range(0, 16, 2):
    A(f"ds_read2st64_b32 {V(120+r,2)}, v19 offset0:{r} offset1:{r+1}")
A("s_waitcnt lgkmcnt(0)")
for kb in range(4):
    for tl in range(2):
        c = "0" if kb == 0 else V(108 + 4 * tl, 4)
        A(f"v_mfma_f32_16x16x32_bf16 {V(108+4*tl,4)}, v[116:119], {V(40+(kb*2+tl)*4,4)}, {c}")
for i in range(8):
    A(f"v_perm_b32 v{136+i}, v{121+2*i}, v{120+2*i}, s{sM1}\nv_perm_b32 v{144+i}, v{121+2*i}, v{120+2*i}, s{sM1+1}")
A("s_mov_b64 exec, 0xffff")
A(f"ds_add_f32 v22, v108 offset:{CS}\nds_add_f32 v22, v112 offset:{CS+4}")
A("s_mov_b64 exec, -1")
st(1)
poll4(MZ, 10, issued=opt["mov"])
st(6)
for t in range(1, 4):
    for i in (0, 2):
        A(f"v_pk_add_f32 {V(72+i,2)}, {V(72+i,2)}, {V(72+4*t+i,2)}")
A("v_permlane32_swap_b32 v72, v74\nv_permlane32_swap_b32 v73, v75")
A("""v_add_f32 v72, v72, v74
v_add_f32 v73, v73, v75
v_add_f32 v72, v72, v27
v_add_f32 v73, v73, v26
v_cvt_pk_bf16_f32 v72, v72, v73
ds_write_b32 v6, v72""")
for kb in range(4):
    A(f"ds_read_b128 {V(92+4*kb,4)}, v7 offset:{64*kb}")
A(f"""v_lshlrev_b32 v73, 16, v72
v_and_b32 v72, s{sHI}, v72
v_add_f32 v74, v72, v73
v_mul_f32 v75, v72, v72
v_fmac_f32 v75, v73, v73""")
A("v_permlane32_swap_b32 v74, v75\nv_add_f32 v74, v74, v75")
for kb in range(4):
    A(f"s_waitcnt lgkmcnt({3-kb})")
    for tl in range(2):
        c = "0" if kb == 0 else V(108 + 4 * tl, 4)
        A(f"v_mfma_f32_16x16x32_bf16 {V(108+4*tl,4)}, {V(92+4*kb,4)}, {V(40+(kb*2+tl)*4,4)}, {c}")
    A(f"v_add_f32_dpp v74, v74, v74 row_ror:{(8, 4, 2, 1)[kb]} {DPP}")
A("s_mov_b32 exec_lo, 0x00010001\ns_mov_b32 exec_hi, 0x00010001")
A("ds_add_f32 v23, v74")
A("s_mov_b64 exec, 0xffff")
A("ds_write2_b32 v25, v108, v112 offset0:0 offset1:1")
A("s_mov_b64 exec, -1")
A("s_waitcnt lgkmcnt(0)\ns_barrier")
A(f"ds_read_b64 v[16:17], v24\nds_read_b64 v[14:15], v22 offset:{CS}")
for w in range(4):
    A(f"ds_read_b64 {V(12 if w == 0 else 92+2*w,2)}, v22 offset:{ZP+128*w}")
C("mean, rstd; sigmoid(g) * u for feature lane & 15; its share of w_down")
A(f"""s_waitcnt lgkmcnt(5)
v_mul_f32 v16, v16, v29
v_fmaak_f32 v17, v17, v29, {f32(1e-5)}
v_fma_f32 v17, -v16, v16, v17
v_max_f32 v17, {f32(1e-5)}, v17
v_rsq_f32 v17, v17
s_waitcnt lgkmcnt(0)
v_pk_add_f32 v[12:13], v[12:13], v[94:95]
v_pk_add_f32 v[96:97], v[96:97], v[98:99]
v_pk_add_f32 v[12:13], v[12:13], v[96:97]
v_mul_f32 v18, {f32(-1.4426950408889634)}, v17
v_fma_f32 v12, -v16, v14, v12
v_fma_f32 v13, -v16, v15, v13
v_mul_f32 v12, v12, v18
v_exp_f32 v12, v12
v_mul_f32 v13, v13, v17
v_add_f32 v12, 1.0, v12
v_rcp_f32 v12, v12
s_nop 0
v_mul_f32 v12, v12, v13
v_mov_b32_dpp v13, v12 quad_perm:[1,0,3,2] {DPP}
v_cvt_pk_bf16_f32 v12, v12, v13""")
for i in range(8):
    A(f"v_dot2c_f32_bf16_dpp v30, v12, v{136+i} row_newbcast:{2*i} {DPP}")
    A(f"v_dot2c_f32_bf16_dpp v31, v12, v{144+i} row_newbcast:{2*i} {DPP}")
tag([30, 31])
A(f"buffer_store_dwordx2 v[30:31], v21, {R(rWS)}, 0 offen sc1")
st(7)
end_wave()

if STAMPS:
    A("L_stamps:")
    A("s_mov_b64 exec, 1")
    A("s_waitcnt lgkmcnt(0)\ns_memrealtime s[4:5]\ns_waitcnt lgkmcnt(0)\ns_memtime s[6:7]")
    A(f"s_mul_i32 s{sT0}, s2, 12\ns_add_u32 s{sT0}, s{sT0}, s3\ns_lshl_b32 s{sT0}, s{sT0}, 6\ns_add_u32 s{sT0}, s{sT0}, {STAMP}")
    A(f"v_mov_b32 v1, s{sT0}\ns_waitcnt lgkmcnt(0)")
    for k in range(8):
        A(f"v_mov_b32 v{4+k}, s{sST+2*k}")
    A(f"v_mov_b32 v12, s100\nv_mov_b32 v13, s4\nv_mov_b32 v14, s6\nv_mov_b32 v15, s{sLOC}")
    A(f"v_mov_b32 v16, s{sROLE}\nv_mov_b32 v17, s{sNKV}\nbuffer_store_dwordx2 v[16:17], v1, {R(rWS)}, 0 offen offset:48")
    A(f"buffer_store_dwordx4 v[4:7], v1, {R(rWS)}, 0 offen\nbuffer_store_dwordx4 v[8:11], v1, {R(rWS)}, 0 offen offset:16\nbuffer_store_dwordx4 v[12:15], v1, {R(rWS)}, 0 offen offset:32")
A("L_exit:")
A("s_endpgm")

body, problems = fix_hazards(L)
for p in problems:
    print("HAZARD:", p, file=sys.stderr)
for line in body:
    out.append(line if line.endswith(":") and not line.startswith(";") else "    " + line)
out.append(".p2align 2\n.type L_table,@object\nL_table:")
for k in range(0, 256, 8):
    out.append("    .short " + ", ".join(hex(v) for v in TABLE[k:k+8]))
out.append(".size L_table, 512\nL_last:")
out.append(f""".section .rodata,"a"
.p2align 6
.amdhsa_kernel {NAME}_kernel
  .amdhsa_next_free_vgpr 168
  .amdhsa_next_free_sgpr 102
  .amdhsa_accum_offset 168
  .amdhsa_group_segment_fixed_size 0
  .amdhsa_kernarg_size 96
  .amdhsa_user_sgpr_count 2
  .amdhsa_user_sgpr_kernarg_segment_ptr 1
  .amdhsa_system_sgpr_workgroup_id_x 1
  .amdhsa_float_denorm_mode_32 3
.end_amdhsa_kernel""")
open(sys.argv[1], "w").write("\n".join(out) + "\n")
```
